```python
import torch

def _softmax(x, axis=-1):
    return torch.softmax(x, dim=axis)
def _gelu(x):
    return torch.nn.functional.gelu(x, approximate="tanh")
def _silu(x):
    return torch.nn.functional.silu(x)
def _sigmoid(x):
    return torch.sigmoid(x)
def _layernorm(x, axis=-1, eps=1e-5):
    m = x.mean(dim=axis, keepdim=True)
    v = x.var(dim=axis, keepdim=True, unbiased=False)
    return (x - m) / torch.sqrt(v + eps)
def _scatter_add(tgt, idx, src, axis=0):
    return tgt.clone().index_add_(axis, idx, src)
def _segment_sum(src, seg, n):
    out = torch.zeros((n,) + src.shape[1:], dtype=src.dtype)
    return out.index_add_(0, seg, src)
def _pad(x, pw):
    flat = tuple(v for pair in reversed(pw) for v in pair)
    return torch.nn.functional.pad(x, flat)

kernel_name = 'standalone__mha_block_cached__sampling'

def setup_inputs():

    _w = (lambda a: (lambda t: t.to(torch.bfloat16) if t.is_floating_point() else t)(torch.as_tensor(a)))
    B, Sq, D = 16, 8, 1024
    H, Sk, Dh = 32, 2048, 128
    return {
        "x": _w((lambda *s: torch.randn(*s, dtype=torch.bfloat16) * 0.8)(B, Sq, D)),
        "k_cache": _w((lambda *s: torch.randn(*s, dtype=torch.bfloat16) * 0.8)(B, H, Sk, Dh)),
        "v_cache": _w((lambda *s: torch.randn(*s, dtype=torch.bfloat16) * 0.05)(B, H, Sk, Dh)),
        "wq": _w((lambda *s: torch.randn(*s, dtype=torch.bfloat16) * 0.8)(D, H * Dh) * (D ** -0.5)),
        "wo": _w((lambda *s: torch.randn(*s, dtype=torch.bfloat16) * 0.05)(H * Dh, D) * ((H * Dh) ** -0.5)),
    }

def reference(x, k_cache, v_cache, wq, wo):
    B, Sq, D = x.shape
    H, Dh = 32, 128
    q = (lambda x, *d: x.permute(*d))((x @ wq).reshape(B, Sq, H, Dh), 0, 2, 1, 3)
    scores = torch.einsum("bhqd,bhkd->bhqk", q, k_cache) * (Dh ** -0.5)
    p = _softmax(scores, axis=-1)
    o = torch.einsum("bhqk,bhkd->bhqd", p, v_cache)
    return (lambda x, *d: x.permute(*d))(o, 0, 2, 1, 3).reshape(B, Sq, H * Dh) @ wo
```

```python
import sys, struct, math

def f32hex(x):
    return "0x%08x" % struct.unpack("<I", struct.pack("<f", x))[0]

STAMP = False
OPT = {}
class Asm:
    def __init__(self):
        self.L = []
        self.uid = 0
    def stamp(self, idx):
        if not STAMP: return
        self("s_memrealtime s[68:69]")
        self("s_waitcnt lgkmcnt(0)")
        self(f"s_mov_b32 s{70 + idx}, s68")
    def stamp_store(self, wsptr, base, n):
        if not STAMP: return
        self(f"s_mov_b32 s88, s{wsptr}")
        self(f"s_mov_b32 s89, s{wsptr+1}")
        self("s_mov_b32 s90, 0x40000000")
        self("s_mov_b32 s91, 0x00020000")
        self("s_lshl_b32 s92, s2, 3")
        self("s_add_u32 s92, s92, s40")
        self("s_lshl_b32 s92, s92, 6")
        self(f"s_add_u32 s92, s92, 0x{base:x}")
        self("v_mov_b32 v250, 0")
        for i in range(n):
            self(f"v_mov_b32 v251, s{70+i}")
            self(f"buffer_store_dword v251, v250, s[88:91], s92 offen offset:{4*i}")
            self("s_nop 1")
    def __call__(self, s):
        self.L.append("  " + s)
    def label(self, s):
        self.L.append(s + ":")
    def newlabel(self, p):
        self.uid += 1
        return f"L_{p}_{self.uid}"
    def raw(self, s):
        self.L.append(s)
    def text(self):
        return "\n".join(self.L) + "\n"

class MemSeq:
    def __init__(self, a, pre_kv=0):
        self.a = a; self.n = pre_kv; self.done = 0; self.kv = list(range(pre_kv)); self.slow = -1
    def issue(self, text, kv=False, slow=False):
        if text is not None: self.a(text)
        idx = self.n; self.n += 1
        if kv: self.kv.append(idx)
        if slow and self.slow < self.done: self.slow = idx
        return idx
    def wait_for(self, idx):
        if idx < self.done: return
        cnt = self.n - 1 - idx
        assert cnt <= 63, cnt
        self.a(f"s_waitcnt vmcnt({cnt})")
        self.done = idx + 1
    def pace(self, W):
        if len(self.kv) >= W:
            t = self.kv[-W]
            if self.slow >= self.done and t > self.slow: return
            self.wait_for(t)

def vr(b, n=4):
    return f"v[{b}:{b+n-1}]"
def ar(b, n=4):
    return f"a[{b}:{b+n-1}]"

HEADER = """; Kernarg layout for this problem (64 bytes, ptrs only, base s[0:1]):
"""

K1 = "standalone__mha_block_cached__sampling_kernel"

LDS_WO = 0
LDS_C = 32768
LDS_M = 65536
LDS_L = 67584
LDS_QF = 69632
LDS_CNT = 73728
LDS_SIZE = 73728 + 64
WOP = 0x400000
WS_SIZE = WOP + 0x800000

def gen_k1(a):
    W = int(OPT.get('W', 5))
    Wp = int(OPT.get('Wp', 5))
    Rn, Rd = [int(t) for t in OPT.get('R', '7/9').split('/')]
    vKoff, vVoff, vKoff2, vVoff2 = 1, 2, 3, 4
    vMc, vL, vT0, vT1 = 5, 6, 7, 20
    vS = 8
    vP = 16
    vAl, vT2, vT3 = 21, 22, 23
    vQ, vQ2 = 24, 32
    vO = 40
    vPT = 72
    vLdsO, vLdsM, vQF, vOne, vTr, vWoOff, vXoff, vWoff = 80, 81, 82, 83, 84, 85, 86, 87
    bK, bV = 88, 120
    vSR = 152
    vB = 168
    vAT = 232
    vCntL, vCntG, vDum = 248, 249, 252
    sX, sK, sV, sWQ, sWS, sWO, sOUT, sDBG, sNull = 20, 24, 28, 32, 36, 60, 64, 80, 96
    sWSo = 20
    sW, sH, sP_, sB1, sVoff, sKoff, sIter = 40, 41, 42, 43, 44, 45, 46
    sSelLo, sSelHi, sC, sBad, sSpin = 50, 51, 52, 53, 54
    sMask = 56
    sWoLd, sLb = 58, 59
    sXb, sWqb, sRot = 84, 85, 86
    sOld, sOst = 93, 94
    cscale = (128 ** -0.5) * math.log2(math.e)

    a.raw(f".globl {K1}")
    a.raw(".p2align 8")
    a.raw(f".type {K1},@function")
    a.label(K1)
    a("s_cmp_ge_u32 s2, 256")
    a("s_cbranch_scc1 L_end")
    a.stamp(0)
    a("s_load_dwordx16 s[4:19], s[0:1], 0")
    a("v_lshrrev_b32 v7, 6, v0")
    a("v_and_b32 v5, 63, v0")
    a("v_readfirstlane_b32 s40, v7")
    a("v_and_b32 v6, 15, v5")
    a("v_lshrrev_b32 v7, 4, v5")
    a("s_and_b32 s41, s2, 7")
    a("s_lshl_b32 s41, s41, 2")
    a("s_lshr_b32 s48, s2, 3")
    a("s_and_b32 s48, s48, 3")
    a("s_add_u32 s41, s41, s48")
    a("s_lshr_b32 s42, s2, 5")
    t0, t1, t2, t3 = 240, 241, 242, 243
    a(f"v_and_b32 v{t0}, 3, v6")
    a(f"v_lshlrev_b32 v{t0}, 2, v{t0}")
    a(f"v_lshrrev_b32 v{t1}, 2, v6")
    a(f"v_add_u32 v{t1}, v{t0}, v{t1}")
    a(f"v_lshlrev_b32 v{vWoff}, 16, v7")
    a(f"v_lshl_add_u32 v{vWoff}, v{t1}, 4, v{vWoff}")
    a(f"v_lshrrev_b32 v{t2}, 3, v6")
    a(f"v_lshlrev_b32 v{vXoff}, 17, v{t2}")
    a(f"v_and_b32 v{t3}, 7, v6")
    a(f"v_lshl_add_u32 v{vXoff}, v{t3}, 11, v{vXoff}")
    a(f"v_lshl_add_u32 v{vXoff}, v7, 4, v{vXoff}")
    a(f"v_bfe_u32 v{t1}, v6, 2, 1")
    a(f"v_add_u32 v{t1}, v{t0}, v{t1}")
    a(f"v_lshlrev_b32 v{vKoff}, 8, v{t1}")
    a(f"v_lshl_add_u32 v{vKoff}, v{t2}, 6, v{vKoff}")
    a(f"v_lshl_add_u32 v{vKoff}, v7, 4, v{vKoff}")
    a(f"v_add_u32 v{vKoff2}, 0x1000, v{vKoff}")
    a(f"v_lshlrev_b32 v{vVoff}, 4, v5")
    a(f"v_add_u32 v{vVoff2}, 0x1000, v{vVoff}")
    a(f"s_lshl_b32 s{sXb}, s{sP_}, 14")
    a(f"s_lshl_b32 s48, s{sW}, 9")
    a(f"s_add_u32 s{sXb}, s{sXb}, s48")
    a(f"s_lshl_b32 s{sWqb}, s{sW}, 21")
    a(f"s_lshl_b32 s48, s{sH}, 8")
    a(f"s_add_u32 s{sWqb}, s{sWqb}, s48")
    a(f"s_mov_b32 s{sRot}, s{sP_}")
    a(f"s_lshl_b32 s{sVoff}, s{sP_}, 5")
    a(f"s_add_u32 s{sVoff}, s{sVoff}, s{sH}")
    a(f"s_lshl_b32 s{sVoff}, s{sVoff}, 19")
    a(f"s_lshl_b32 s48, s{sW}, 13")
    a(f"s_add_u32 s{sVoff}, s{sVoff}, s48")
    a(f"s_add_u32 s{sB1}, s{sVoff}, 0x8000000")
    for (d, size) in ((sX, 16*8*1024*2), (sWQ, 1024*4096*2), (sK, 1 << 28), (sV, 1 << 28)):
        a(f"s_mov_b32 s{d+2}, 0x{size:x}")
        a(f"s_mov_b32 s{d+3}, 0x00020000")
    a(f"s_mov_b32 s{sSelLo}, 0x05040100")
    a(f"s_mov_b32 s{sSelHi}, 0x07060302")
    a("s_waitcnt lgkmcnt(0)")
    for (d, src) in ((sX, 4), (sWQ, 10), (sK, 6), (sV, 8)):
        a(f"s_mov_b32 s{d}, s{src}")
        a(f"s_mov_b32 s{d+1}, s{src+1}")

    ms = MemSeq(a)
    NSL = 3
    def xreg(ks): return 8 + 4*ks
    def slot(ks): return 152 + (ks % NSL)*32

    def ld_K(ms, dst, j, soff):
        T, s = j >> 2, j & 3
        return ms.issue(f"buffer_load_dwordx4 {dst}, v{vKoff if T == 0 else vKoff2}, s[{sK}:{sK+3}], s{soff} offen offset:{(s>>1)*512 + (s&1)*128} nt", kv=True)
    def ld_V(ms, dst, i, soff):
        return ms.issue(f"buffer_load_dwordx4 {dst}, v{vVoff if i < 4 else vVoff2}, s[{sV}:{sV+3}], s{soff} offen offset:{(i&3)*1024} nt", kv=True)

    stage = []
    for b in range(4):
        for j in range(8): stage.append(('K', b, j))
        for j in range(8): stage.append(('V', b, j))
    for j in range(8): stage.append(('K', 4, j))
    st = {'pos': 0, 'idx': {}}
    def stage_one(Wx):
        if st['pos'] >= len(stage): return False
        kind, b, j = stage[st['pos']]; st['pos'] += 1
        if len(ms.kv) >= Wx and not st.get('late'):
            st['late'] = True
            late_setup()
        ms.pace(Wx)
        if kind == 'K':
            dst = ar(64*b + 4*j) if b < 4 else vr(bK + 4*j)
            st['idx'][(kind, b, j)] = ld_K(ms, dst, j, sVoff)
        else:
            st['idx'][(kind, b, j)] = ld_V(ms, ar(64*b + 32 + 4*j), j, sVoff)
            if j == 7:
                a(f"s_add_u32 s{sVoff}, s{sVoff}, 0x8000")
        return True

    def perm_c(src, c):
        for hb, sel in ((0, sSelLo), (1, sSelHi)):
            for t in range(4):
                a(f"v_perm_b32 v{vPT + hb*4 + t}, v{src[2*t+1] + c}, v{src[2*t] + c}, s{sel}")
    def mfma_c(bop, c, first):
        a("s_nop 1")
        for hb in range(2):
            j = 2*c + hb
            cc = "0" if first else vr(vO + 4*j)
            a(f"v_mfma_f32_16x16x32_bf16 {vr(vO + 4*j)}, {vr(vPT + hb*4)}, {vr(bop)}, {cc}")
    def reset_state():
        for r in range(32):
            a(f"v_mov_b32 v{vO + r}, 0")
        a(f"v_mov_b32 v{vMc}, 0xff800000")
        a(f"v_mov_b32 v{vL}, 0")

    def late_setup():
        a(f"v_lshl_add_u32 v{t1}, v7, 4, v{t3}")
        a(f"v_lshlrev_b32 v{t1}, 4, v{t1}")
        a(f"v_lshl_add_u32 v{t1}, v{t2}, 10, v{t1}")
        a(f"v_add_u32 v{vQF}, 0x{LDS_QF:x}, v{t1}")
        a(f"v_mov_b32 v{vCntL}, 0x{LDS_CNT:x}")
        a(f"v_mov_b32 v{vOne}, 0")
        a(f"ds_write_b32 v{vCntL}, v{vOne}")
        a(f"ds_write_b32 v{vCntL}, v{vOne} offset:4")
        a(f"v_lshl_add_u32 v{t1}, v7, 3, v{t3}")
        a(f"v_lshlrev_b32 v{t1}, 4, v{t1}")
        a(f"s_lshl_b32 s48, s{sW}, 12")
        a(f"s_add_u32 s48, s48, 0x{LDS_C:x}")
        a(f"v_add_u32 v{vLdsO}, s48, v{t1}")
        a(f"s_lshl_b32 s48, s{sW}, 8")
        a(f"s_add_u32 s48, s48, 0x{LDS_M:x}")
        a(f"v_lshlrev_b32 v{t1}, 2, v5")
        a(f"v_add_u32 v{vLdsM}, s48, v{t1}")
        a(f"v_lshlrev_b32 v{vWoOff}, 11, v7")
        a(f"v_lshl_add_u32 v{vWoOff}, v6, 4, v{vWoOff}")
        a(f"v_lshrrev_b32 v{t1}, 2, v6")
        a(f"v_lshl_add_u32 v{t1}, v7, 3, v{t1}")
        a(f"v_lshlrev_b32 v{vTr}, 8, v{t1}")
        a(f"v_lshl_add_u32 v{vTr}, v{t0}, 1, v{vTr}")
        a(f"s_lshl_b32 s{sLb}, s{sW}, 13")
        a(f"v_add_u32 v{vTr}, s{sLb}, v{vTr}")
        a(f"v_mov_b32 v{vOne}, 1")
        a(f"s_mov_b32 s{sC}, {f32hex(cscale)}")
        a(f"s_mov_b32 s{sMask}, 0x00ff00ff")
        a(f"s_mov_b32 s{sMask+1}, 0x00ff00ff")
        for (d, src, size) in ((sWS, 18, WS_SIZE), (sWO, 12, 4096*1024*2), (sOUT, 14, 128*1024*2), (sDBG, 16, 256), (sNull, 18, 0)):
            a(f"s_mov_b32 s{d}, s{src}")
            a(f"s_mov_b32 s{d+1}, s{src+1}")
            a(f"s_mov_b32 s{d+2}, 0x{size:x}")
            a(f"s_mov_b32 s{d+3}, 0x00020000")
        a(f"s_lshl_b32 s{sWoLd}, s{sH}, 18")
        a(f"s_lshl_b32 s48, s{sW}, 16")
        a(f"s_add_u32 s{sWoLd}, s{sWoLd}, s48")
        a(f"s_add_u32 s{sWoLd}, s{sWoLd}, 0x{WOP:x}")
        a(f"s_lshl_b32 s{sOld}, s{sP_}, 16")
        a(f"s_lshl_b32 s48, s{sW}, 14")
        a(f"s_add_u32 s{sOld}, s{sOld}, s48")
        a(f"s_lshl_b32 s{sOst}, s{sP_}, 16")
        a(f"s_lshl_b32 s48, s{sH}, 11")
        a(f"s_add_u32 s{sOst}, s{sOst}, s48")
        a(f"s_and_b32 s48, s{sW}, 1")
        a("s_lshl_b32 s48, s48, 10")
        a(f"s_add_u32 s{sOst}, s{sOst}, s48")

    qlast = {}
    qdone = 0
    qn = 0
    def try_compute(force_upto=-1):
        nonlocal qdone
        while qdone < 8 and qdone in qlast and (qlast[qdone] < ms.done or qdone <= force_upto):
            ms.wait_for(qlast[qdone])
            for c in range(4):
                perm_c([slot(qdone) + 4*m for m in range(8)], c)
                mfma_c(xreg(qdone), c, qdone == 0)
            qdone += 1
    def after_q():
        nonlocal qn
        qn += 1
        while st['pos'] < (qn * Rn) // Rd:
            if not stage_one(Wp): break
            try_compute()
    if 'pf' in OPT:
        a("s_lshl_b32 s48, s2, 2")
        a(f"s_add_u32 s48, s48, s{sW}")
        a("s_lshl_b32 s48, s48, 13")
        for i in range(8):
            ms.issue(f"buffer_load_dwordx4 {vr(184 + 4*i)}, v{vVoff if i < 4 else vVoff2}, s[{sWQ}:{sWQ+3}], s48 offen offset:{(i&3)*1024}{OPT['pf']}")
            if i % 2 == 1: stage_one(Wp)
    for ks in range(8):
        if ks >= NSL:
            try_compute(force_upto=ks - NSL)
        a(f"s_add_u32 s48, s{sRot}, {ks}")
        a("s_and_b32 s48, s48, 7")
        a("s_lshl_b32 s49, s48, 6")
        a(f"s_add_u32 s49, s49, s{sXb}")
        if ks == int(OPT.get('noq', 99)):
            a(f"s_mov_b32 s{sX+2}, 0")
            a(f"s_mov_b32 s{sWQ+2}, 0")
        ms.issue(f"buffer_load_dwordx4 {vr(xreg(ks))}, v{vXoff}, s[{sX}:{sX+3}], s49 offen")
        a("s_lshl_b32 s47, s48, 18")
        a(f"s_add_u32 s47, s47, s{sWqb}")
        after_q()
        for m in range(8):
            idx = ms.issue(f"buffer_load_dwordx4 {vr(slot(ks) + 4*m)}, v{vWoff}, s[{sWQ}:{sWQ+3}], s47 offen{OPT.get('wqflag','')}")
            if m < 7:
                a("s_add_u32 s47, s47, 0x2000")
            else:
                qlast[ks] = idx
            after_q()
        if ks == 0 and not st.get('late'):
            st['late'] = True
            late_setup()
    while qdone < 8:
        stage_one(Wp)
        try_compute()
        if qdone < 8 and st['pos'] >= len(stage) - 10:
            try_compute(force_upto=7)
    a.stamp(1)
    a(f"s_lshl_b32 s48, s{sW}, 13")
    a(f"s_add_u32 s48, s48, 0x{LDS_C:x}")
    a(f"v_add_u32 v8, s48, v{vVoff}")
    a(f"s_lshl_b32 s48, s{sW}, 11")
    a(f"s_add_u32 s48, s48, 0x{LDS_C:x}")
    a(f"v_add_u32 v9, s48, v{vVoff}")
    a(f"s_lshl_b32 s48, s{sW}, 2")
    a(f"s_add_u32 s48, s48, 0x{LDS_QF:x}")
    a(f"v_add_u32 v10, s48, v{vVoff}")
    a(f"s_mov_b32 s{sWSo}, s18")
    a(f"s_mov_b32 s{sWSo+1}, s19")
    a(f"s_cmp_lt_u32 s{sW}, 2")
    a(f"s_cselect_b32 s{sWSo+2}, 0x100000, 0")
    a("s_nop 1")
    for j in range(8):
        a(f"ds_write_b128 v8, {vr(vO + 4*j)} offset:{j*1024}")
    stage_one(Wp)
    a("s_waitcnt lgkmcnt(0)")
    a("s_barrier")
    for w in range(4):
        for jj in range(2):
            a(f"ds_read_b128 {vr(vO + (w*2+jj)*4)}, v9 offset:{w*8192 + jj*1024}")
    stage_one(Wp)
    a("s_waitcnt lgkmcnt(0)")
    for r in range(8):
        a(f"v_add_f32 v{vO + r}, v{vO + r}, v{vO + 8 + r}")
        a(f"v_add_f32 v{vO + 16 + r}, v{vO + 16 + r}, v{vO + 24 + r}")
    for r in range(8):
        a(f"v_add_f32 v{vO + r}, v{vO + r}, v{vO + 16 + r}")
    for s in range(4):
        a(f"v_cvt_pk_bf16_f32 v{12 + s}, v{vO + s}, v{vO + 4 + s}")
    for s in range(4):
        a(f"ds_write_b32 v10, v{12 + s} offset:{s*1024}")
    stage_one(Wp)
    a("s_waitcnt lgkmcnt(0)")
    a("s_barrier")
    for ph in range(2):
        for sp in range(2):
            a(f"ds_read_b128 {vr(vQ + ph*8 + sp*4)}, v{vQF} offset:{sp*2048 + ph*128}")
    reset_state()
    a("s_waitcnt lgkmcnt(0)")
    a.stamp(2)

    def p_QK(kop):
        for T in range(2):
            for s in range(4):
                d = vSR + (T*2 + (s>>1))*4
                cc = "0" if (s & 1) == 0 else vr(d)
                a(f"v_mfma_f32_16x16x32_bf16 {vr(d)}, {kop(T*4+s)}, {vr(vQ + 4*(s&1))}, {cc}")
    def p_SM1():
        a("s_nop 7")
        for T in range(2):
            for r in range(4):
                a(f"v_permlane32_swap_b32 v{vSR + T*8 + r}, v{vSR + T*8 + 4 + r}")
        a("s_nop 0")
        for T in range(2):
            for r in range(4):
                a(f"v_add_f32_dpp v{vS + T*4 + r}, v{vSR + T*8 + 4 + r}, v{vSR + T*8 + r} row_ror:8 row_mask:0xf bank_mask:0xf")
        a(f"v_max3_f32 v{vT0}, v{vS+0}, v{vS+1}, v{vS+2}")
        a(f"v_max3_f32 v{vT0}, v{vT0}, v{vS+3}, v{vS+4}")
        a(f"v_max3_f32 v{vT0}, v{vT0}, v{vS+5}, v{vS+6}")
        a(f"v_max_f32 v{vT0}, v{vT0}, v{vS+7}")
        a(f"v_mov_b32 v{vT1}, v{vT0}")
        a("s_nop 1")
        a(f"v_permlane16_swap_b32 v{vT0}, v{vT1}")
        a("s_nop 1")
        a(f"v_max_f32 v{vT0}, v{vT0}, v{vT1}")
        a(f"v_mov_b32 v{vT1}, v{vT0}")
        a("s_nop 1")
        a(f"v_permlane32_swap_b32 v{vT0}, v{vT1}")
        a("s_nop 1")
        a(f"v_max_f32 v{vT0}, v{vT0}, v{vT1}")
        a(f"v_mul_f32 v{vT0}, s{sC}, v{vT0}")
        a(f"v_max_f32 v{vT0}, v{vT0}, v{vMc}")
        a(f"v_sub_f32 v{vAl}, v{vMc}, v{vT0}")
        a(f"v_exp_f32 v{vAl}, v{vAl}")
        a(f"v_mov_b32 v{vMc}, v{vT0}")
    def p_SM2():
        for i in range(8):
            a(f"v_fma_f32 v{vS+i}, v{vS+i}, s{sC}, -v{vMc}")
        for i in range(8):
            a(f"v_exp_f32 v{vS+i}, v{vS+i}")
        a("s_nop 0")
        a(f"v_add_f32 v{vT2}, v{vS+0}, v{vS+1}")
        a(f"v_add_f32 v{vT3}, v{vS+2}, v{vS+3}")
        a(f"v_add_f32 v{vT0}, v{vS+4}, v{vS+5}")
        a(f"v_add_f32 v{vT1}, v{vS+6}, v{vS+7}")
        a(f"v_add_f32 v{vT2}, v{vT2}, v{vT3}")
        a(f"v_add_f32 v{vT0}, v{vT0}, v{vT1}")
        a(f"v_add_f32 v{vT2}, v{vT2}, v{vT0}")
        a(f"v_fma_f32 v{vL}, v{vL}, v{vAl}, v{vT2}")
        for t in range(4):
            a(f"v_cvt_pk_bf16_f32 v{vP + t}, v{vS + 2*t}, v{vS + 2*t + 1}")
    def p_RS():
        a("s_nop 7")
        for r in range(32):
            a(f"v_mul_f32 v{vO + r}, v{vAl}, v{vO + r}")
    def p_PV(c):
        perm_c([bV + 4*i for i in range(8)], c)
        mfma_c(vP, c, False)
    def p_PVs(b, c):
        base = vAT + (c & 1)*8
        for i in range(8):
            a(f"v_accvgpr_read_b32 v{base + i}, a{64*b + 32 + 4*i + c}")
        perm_c([base + i for i in range(8)], 0)
        mfma_c(vP, c, False)

    def iteration(ms, kidx, staged=None, extras=None, static_n=None, extras7=None, W=W):
        pieces = {s: [] for s in range(16)}
        def wq_(): ms.wait_for(kidx[7]); p_QK(lambda j: vr(bK + 4*j))
        pq = max(W - 1, 4 if staged is not None else 0)
        pieces[pq].append(wq_)
        pieces[pq+1].append(p_SM1)
        pieces[pq+2].append(p_SM2)
        pieces[pq+3].append(p_RS)
        vidx = []
        for c in range(4):
            def f(c=c):
                ms.wait_for(vidx[7]); p_PV(c)
            pieces[min(15, 8 + W - 1 + c)].append(f)
        if staged is not None:
            b = staged
            def sq():
                ms.wait_for(st['idx'][('V', b, 7)]); p_QK(lambda j: ar(64*b + 4*j))
            pieces[0].insert(0, sq)
            pieces[1] = [p_SM1, p_SM2] + pieces[1]
            pieces[2] = [p_RS, lambda: p_PVs(b, 0), lambda: p_PVs(b, 1)] + pieces[2]
            pieces[3] = [lambda: p_PVs(b, 2), lambda: p_PVs(b, 3)] + pieces[3]
        knew = []
        for s in range(16):
            ms.pace(W)
            if s < 8:
                vidx.append(ld_V(ms, vr(bV + 4*s), s, sVoff))
            else:
                knew.append(ld_K(ms, vr(bK + 4*(s-8)), s - 8, sKoff))
            if s == 0:
                if extras: extras()
                a(f"s_add_u32 s{sKoff}, s{sVoff}, 0x8000")
                if static_n is None:
                    a(f"s_cmp_eq_u32 s{sIter}, 15")
                    a(f"s_cselect_b32 s{sKoff}, s{sB1}, s{sKoff}")
                    a(f"s_cmp_eq_u32 s{sIter}, 31")
                    a(f"s_cselect_b32 s{sK+2}, 0, s{sK+2}")
            for f in pieces[s]: f()
            if s == 7 and extras7: extras7()
            assert not (s == 7 and pq > 7)
        a(f"s_mov_b32 s{sVoff}, s{sKoff}")
        return knew

    while stage_one(W): pass
    kidx = [st['idx'][('K', 4, j)] for j in range(8)]

    pre = {}
    def ex4():
        a("s_lshr_b32 s48, s2, 1")
        a("s_lshl_b32 s48, s48, 16")
        a("s_and_b32 s49, s2, 1")
        a("s_lshl_b32 s49, s49, 10")
        a("s_add_u32 s48, s48, s49")
        a(f"s_lshl_b32 s49, s{sW}, 8")
        a("s_add_u32 s48, s48, s49")
        for m in range(8):
            a(f"s_add_u32 m0, s{sLb}, {m*1024}")
            a("s_nop 0")
            pre['dma'] = ms.issue(f"buffer_load_dwordx4 v{vWoOff}, s[{sWO}:{sWO+3}], s48 offen nt lds")
            if m < 7: a("s_add_u32 s48, s48, 0x2000")
    def ex5():
        ms.wait_for(pre['dma'])
        for t in range(8):
            for half in range(2):
                d = vB + t*4 + half*2
                a(f"ds_read_b64_tr_b16 v[{d}:{d+1}], v{vTr} offset:{half*1024 + t*32}")
        a("s_and_b32 s48, s2, 1")
        a("s_lshl_b32 s48, s48, 4")
        a(f"s_lshl_b32 s49, s{sW}, 2")
        a("s_add_u32 s48, s48, s49")
        a("s_lshl_b32 s48, s48, 18")
        a("s_lshr_b32 s49, s2, 1")
        a("s_lshl_b32 s49, s49, 11")
        a("s_add_u32 s48, s48, s49")
        a(f"s_add_u32 s48, s48, 0x{WOP:x}")
        a("s_waitcnt lgkmcnt(0)")
        for t in range(8):
            pre['st'] = ms.issue(f"buffer_store_dwordx4 {vr(vB + 4*t)}, v{vVoff}, s[{sWS}:{sWS+3}], s48 offen offset:{(t&1)*1024} sc1", slow=True)
            if t & 1 and t < 7: a("s_add_u32 s48, s48, 0x40000")
        for r in range(4):
            a(f"v_mov_b32 v{vB + 60 + r}, -1")
        a(f"s_lshr_b32 s48, s{sW}, 1")
        a("s_lshl_b32 s48, s48, 19")
        a(f"s_add_u32 s48, s48, s{sOst}")
        pre['st'] = ms.issue(f"buffer_store_dwordx4 {vr(vB + 60)}, v{vVoff}, s[{sWS}:{sWS+3}], s48 offen sc1", slow=True)
    def ex6():
        ms.wait_for(pre['st'])
        a("s_mov_b64 exec, 1")
        a(f"ds_add_rtn_u32 v{vCntG}, v{vCntL}, v{vOne} offset:4")
        a("s_and_b32 s48, s2, 31")
        a("s_lshl_b32 s48, s48, 3")
        a("s_waitcnt lgkmcnt(0)")
        a(f"v_readfirstlane_b32 s49, v{vCntG}")
        a(f"v_mov_b32 v{vCntG}, 0")
        a("s_cmp_eq_u32 s49, 3")
        a(f"s_cselect_b32 s{sNull+2}, 256, 0")
        a(f"s_mov_b32 s{sNull}, s16")
        a(f"s_mov_b32 s{sNull+1}, s17")
        a("s_nop 0")
        ms.issue(f"buffer_atomic_add v{vOne}, v{vCntG}, s[{sNull}:{sNull+3}], s48 offen sc1", slow=True)
        a("s_mov_b64 exec, -1")
        a("s_nop 0")
        a(f"s_mov_b32 s{sNull+2}, 0")
    exs = {4: ex4}
    exs7 = {4: ex5, 6: ex6}
    if OPT.get('nopre'): exs = {}; exs7 = {}
    for n in range(4, 8):
        kidx = iteration(ms, kidx, staged=n - 4, extras=exs.get(n), static_n=n, extras7=exs7.get(n))
        a.stamp(n - 1)
    a(f"s_mov_b32 s{sIter}, 8")

    def flush():
        a(f"v_mov_b32 v{vT1}, v{vL}")
        a("s_nop 1")
        a(f"v_permlane16_swap_b32 v{vL}, v{vT1}")
        a("s_nop 1")
        a(f"v_add_f32 v{vL}, v{vL}, v{vT1}")
        a(f"v_mov_b32 v{vT1}, v{vL}")
        a("s_nop 1")
        a(f"v_permlane32_swap_b32 v{vL}, v{vT1}")
        a("s_nop 1")
        a(f"v_add_f32 v{vL}, v{vL}, v{vT1}")
        a(f"ds_write_b32 v{vLdsM}, v{vMc}")
        a(f"ds_write_b32 v{vLdsM}, v{vL} offset:{LDS_L - LDS_M}")
        a(f"s_mov_b64 exec, s[{sMask}:{sMask+1}]")
        for j in range(8):
            a(f"ds_write_b128 v{vLdsO}, {vr(vO + 4*j)} offset:{j*512}")
        a("s_mov_b64 exec, -1")

    def combine_addr(ph, vA, vM):
        a(f"v_and_b32 v{vA}, 15, v0")
        a(f"v_lshlrev_b32 v{vA}, 4, v{vA}")
        a(f"v_bfe_u32 v{vM}, v0, 4, 2")
        a(f"v_lshl_add_u32 v{vA}, v{vM}, 2, v{vA}")
        a(f"s_and_b32 s49, s{sW}, 1")
        a("s_lshl_b32 s49, s49, 8")
        a(f"s_add_u32 s49, s49, 0x{LDS_C + ph*0x4000:x}")
        a(f"v_add_u32 v{vA}, s49, v{vA}")
        a(f"v_and_b32 v{vM}, 7, v0")
        a(f"v_lshlrev_b32 v{vM}, 2, v{vM}")
        a(f"v_add_u32 v{vM}, 0x{LDS_M + ph*0x400:x}, v{vM}")
    def combine(ph, vA, vM, R):
        vm, vl, vo, vx, vacc, vout = R, R+4, R+8, R+40, R+44, R+52
        for w in range(4):
            a(f"ds_read_b32 v{vm + w}, v{vM} offset:{w*256}")
        for w in range(4):
            a(f"ds_read_b32 v{vl + w}, v{vM} offset:{LDS_L - LDS_M + w*256}")
        for j in range(6):
            a(f"ds_read_b32 v{vo + j}, v{vA} offset:{j*512}")
        a("s_waitcnt lgkmcnt(10)")
        a(f"v_max3_f32 v{vx}, v{vm}, v{vm+1}, v{vm+2}")
        a(f"v_max_f32 v{vx}, v{vx}, v{vm+3}")
        for ww in range(4):
            a(f"v_sub_f32 v{vm+ww}, v{vm+ww}, v{vx}")
        for ww in range(4):
            a(f"v_exp_f32 v{vm+ww}, v{vm+ww}")
        for n in range(6, 32):
            w, j = n >> 3, n & 7
            a(f"ds_read_b32 v{vo + n}, v{vA} offset:{w*4096 + j*512}")
            if n == 8:
                a("s_waitcnt lgkmcnt(9)")
                a(f"v_mul_f32 v{vx+1}, v{vm}, v{vl}")
                for ww in range(1, 4):
                    a(f"v_fma_f32 v{vx+1}, v{vm+ww}, v{vl+ww}, v{vx+1}")
                a(f"v_rcp_f32 v{vx+1}, v{vx+1}")
        a("s_nop 0")
        for ww in range(4):
            a(f"v_mul_f32 v{vm+ww}, v{vx+1}, v{vm+ww}")
        a("s_waitcnt lgkmcnt(0)")
        for j in range(8):
            a(f"v_mul_f32 v{vacc+j}, v{vm}, v{vo + j}")
        for w in range(1, 4):
            for j in range(8):
                a(f"v_fma_f32 v{vacc+j}, v{vm+w}, v{vo + w*8 + j}, v{vacc+j}")
        for t in range(4):
            a(f"v_cvt_pk_bf16_f32 v{vout+t}, v{vacc+2*t}, v{vacc+2*t+1}")
        for t in range(4):
            a(f"v_min_u32 v{vout+t}, -2, v{vout+t}")
        if ph:
            a(f"s_add_u32 s49, s{sOst}, 0x80000")
        else:
            a(f"s_mov_b32 s49, s{sOst}")
        a(f"buffer_store_dwordx4 {vr(vout)}, v{vVoff}, s[{sWSo}:{sWSo+3}], s49 offen sc1")

    def dummy(k):
        for _ in range(k):
            a(f"buffer_load_dword v{vDum}, v{vVoff}, s[{sNull}:{sNull+3}], 0 offen")
    def wo_ld(q):
        a(f"s_lshl_b32 s48, s{sP_}, 2")
        a(f"s_add_u32 s48, s48, {2*q}")
        a("s_and_b32 s48, s48, 31")
        a("s_lshl_b32 s48, s48, 11")
        a(f"s_add_u32 s48, s48, s{sWoLd}")
        for i in range(4):
            a(f"buffer_load_dwordx4 {ar(16*q + 4*i)}, v{vVoff}, s[{sWS}:{sWS+3}], s48 offen offset:{i*1024} sc1")
    def o_ld(q, bb, dst):
        a(f"s_lshl_b32 s48, s{sP_}, 1")
        a(f"s_add_u32 s48, s48, {q}")
        a("s_and_b32 s48, s48, 15")
        a("s_lshl_b32 s48, s48, 10")
        a(f"s_add_u32 s48, s48, s{sOld}")
        if bb: a("s_add_u32 s48, s48, 0x80000")
        a(f"buffer_load_dwordx4 {vr(dst + 4*q)}, v{vVoff}, s[{sWS}:{sWS+3}], s48 offen sc1")
    def cnt_ld():
        a(f"v_lshrrev_b32 v{vCntG}, 1, v{vVoff}")
        a("s_mov_b32 exec_hi, 0")
        a(f"buffer_load_dword v{vCntG}, v{vCntG}, s[{sDBG}:{sDBG+3}], 0 offen sc1")
        a("s_mov_b64 exec, -1")
    def cnt_check():
        lp, ld = a.newlabel("cp"), a.newlabel("cd")
        if OPT.get('nopre'): return
        a(f"s_mov_b32 s{sSpin}, 0x100000")
        a.label(lp)
        a("s_mov_b32 exec_hi, 0")
        a(f"v_cmp_ne_u32 vcc, 8, v{vCntG}")
        a("s_mov_b64 exec, -1")
        a(f"s_cbranch_vccz {ld}")
        a(f"s_sub_u32 s{sSpin}, s{sSpin}, 1")
        a(f"s_cmp_eq_u32 s{sSpin}, 0")
        a(f"s_cbranch_scc1 {ld}")
        a("s_sleep 8")
        cnt_ld()
        a("s_waitcnt vmcnt(0)")
        a(f"s_branch {lp}")
        a.label(ld)
    def flush0():
        a("s_nop 1")
        flush()
        for r in range(8):
            a(f"v_mov_b32 v{vQ + r}, v{vQ2 + r}")
        a(f"v_add_u32 v{vLdsO}, 0x4000, v{vLdsO}")
        a(f"v_add_u32 v{vLdsM}, 0x400, v{vLdsM}")
        a("s_waitcnt lgkmcnt(0)")
        a("s_mov_b64 exec, 1")
        a(f"ds_add_u32 v{vCntL}, v{vOne}")
        a("s_mov_b64 exec, -1")
        reset_state()
    def comb0():
        lp, ld = a.newlabel("lp"), a.newlabel("ld")
        combine_addr(0, vB + 60, vB + 61)
        a(f"s_mov_b32 s{sSpin}, 0x100000")
        a.label(lp)
        a(f"ds_read_b32 v{vB + 62}, v{vCntL}")
        a("s_waitcnt lgkmcnt(0)")
        a(f"v_readfirstlane_b32 s48, v{vB + 62}")
        a("s_cmp_ge_u32 s48, 4")
        a(f"s_cbranch_scc1 {ld}")
        a(f"s_sub_u32 s{sSpin}, s{sSpin}, 1")
        a(f"s_cmp_eq_u32 s{sSpin}, 0")
        a(f"s_cbranch_scc1 {ld}")
        a("s_sleep 2")
        a(f"s_branch {lp}")
        a.label(ld)
        combine(0, vB + 60, vB + 61, vB)
    snip = {}
    snip[8] = lambda: dummy(4)
    snip[9] = lambda: (cnt_ld(), dummy(3))
    snip[10] = lambda: (cnt_check(), wo_ld(0))
    for q in range(1, 8):
        snip[10 + q] = (lambda q=q: wo_ld(q))
    snip[16] = lambda: (wo_ld(6), flush0())
    snip[18] = lambda: (dummy(3), comb0())
    for q in range(8, 16):
        snip[11 + q] = (lambda q=q: wo_ld(q))
    snip[27] = lambda: dummy(4)
    for i in range(4):
        snip[28 + i] = (lambda i=i: [o_ld(4*i + k, 0, vB) for k in range(4)])

    N2 = int(OPT.get('N2', 32))
    W2 = int(OPT.get('W2', W))
    for li, (nend, Wl) in enumerate(((N2, W), (32, W2))):
        if li == 1 and N2 == 32: break
        a.label(f"L_loop{li}")
        ml = MemSeq(a, pre_kv=8)
        def ex_loop():
            a(f"s_branch L_snip{li}")
            a.label(f"L_snip_ret{li}")
            for _ in range(4): ml.issue(None)
        iteration(ml, list(range(8)), extras=ex_loop, W=Wl)
        a(f"s_add_u32 s{sIter}, s{sIter}, 1")
        a(f"s_cmp_lt_u32 s{sIter}, {nend}")
        a(f"s_cbranch_scc1 L_loop{li}")
    a.stamp(7)
    combine_addr(1, 8, 9)
    flush()
    a("s_waitcnt lgkmcnt(0)")
    a("s_barrier")
    combine(1, 8, 9, 10)
    for q in range(16):
        o_ld(q, 1, bK)
    for r in range(32):
        a(f"v_mov_b32 v{vO + r}, 0")
    a(f"s_mov_b32 s{sSpin}, 0x40000")
    def frag_mfma(bb, q, src):
        for par in range(2):
            for nn in range(2):
                d = vO + ((bb*2 + nn)*2 + par)*4
                a(f"v_mfma_f32_16x16x32_bf16 {vr(d)}, {ar(16*q + par*8 + nn*4)}, {vr(src + 4*q)}, {vr(d)}")
    a.label("L_p0chk")
    a(f"v_max3_u32 v8, v{vB}, v{vB+1}, v{vB+2}")
    for r in range(3, 63, 2):
        a(f"v_max3_u32 v8, v8, v{vB+r}, v{vB+r+1}")
    a(f"v_max_u32 v8, v8, v{vB+63}")
    a("v_cmp_eq_u32 vcc, -1, v8")
    a("s_cbranch_vccnz L_p0retry")
    a.label("L_p0ok")
    for q in range(16):
        frag_mfma(0, q, vB)
    a(f"s_mov_b32 s{sBad}, 0")
    for q in range(16):
        a(f"s_waitcnt vmcnt({15 - q})")
        a(f"v_max3_u32 v8, v{bK+4*q}, v{bK+4*q+1}, v{bK+4*q+2}")
        a(f"v_max_u32 v8, v8, v{bK+4*q+3}")
        a("v_cmp_eq_u32 vcc, -1, v8")
        a(f"s_cbranch_vccnz L_bad{q}")
        frag_mfma(1, q, bK)
        a.label(f"L_nx{q}")
    a.label("L_retry")
    a(f"s_cmp_eq_u32 s{sBad}, 0")
    a("s_cbranch_scc1 L_alldone")
    a(f"s_sub_u32 s{sSpin}, s{sSpin}, 1")
    a(f"s_cmp_eq_u32 s{sSpin}, 0")
    a("s_cbranch_scc1 L_alldone")
    for q in range(16):
        a(f"s_bitcmp1_b32 s{sBad}, {q}")
        a(f"s_cbranch_scc0 L_rl{q}")
        o_ld(q, 1, bK)
        a.label(f"L_rl{q}")
    a("s_waitcnt vmcnt(0)")
    for q in range(16):
        a(f"s_bitcmp1_b32 s{sBad}, {q}")
        a(f"s_cbranch_scc0 L_rc{q}")
        a(f"v_max3_u32 v8, v{bK+4*q}, v{bK+4*q+1}, v{bK+4*q+2}")
        a(f"v_max_u32 v8, v8, v{bK+4*q+3}")
        a("v_cmp_eq_u32 vcc, -1, v8")
        a(f"s_cbranch_vccnz L_rc{q}")
        frag_mfma(1, q, bK)
        a(f"s_bitset0_b32 s{sBad}, {q}")
        a.label(f"L_rc{q}")
    a("s_branch L_retry")
    a.label("L_alldone")
    a.stamp(8)
    a(f"v_add_u32 v8, s{sLb}, v{vVoff}")
    a("v_and_b32 v5, 63, v0")
    a("v_lshrrev_b32 v6, 5, v5")
    a("v_bfe_u32 v7, v5, 3, 2")
    a("v_and_b32 v9, 7, v5")
    a("s_nop 4")
    for t in range(8):
        a(f"ds_write_b128 v8, {vr(vO + 4*t)} offset:{t*1024}")
    a("v_lshl_add_u32 v11, v7, 4, v9")
    a("v_lshlrev_b32 v11, 4, v11")
    a("v_lshl_add_u32 v11, v6, 11, v11")
    a(f"s_lshl_b32 s48, s{sW}, 12")
    a("v_add_u32 v11, s48, v11")
    a("v_lshlrev_b32 v10, 11, v9")
    a("v_lshl_add_u32 v10, v6, 5, v10")
    a("v_lshl_add_u32 v10, v7, 3, v10")
    a(f"s_lshl_b32 s48, s{sW}, 17")
    a(f"s_lshl_b32 s49, s{sP_}, 14")
    a("s_add_u32 s48, s48, s49")
    a(f"s_lshl_b32 s49, s{sH}, 6")
    a("s_add_u32 s44, s48, s49")
    a("s_waitcnt lgkmcnt(0)")
    a("s_barrier")
    a.stamp(9)
    a.stamp_store(18, 0x200000, 10)
    a(f"s_cmp_ge_u32 s{sW}, 2")
    a("s_cbranch_scc1 L_end")
    for w in range(4):
        a(f"ds_read_b128 {vr(88 + w*8)}, v11 offset:{w*8192}")
        a(f"ds_read_b128 {vr(92 + w*8)}, v11 offset:{w*8192 + 1024 + 128}")
    for i in range(1, 8):
        a(f"s_waitcnt lgkmcnt({7 - i})")
        for r in range(4):
            a(f"v_add_f32 v{88 + r}, v{88 + r}, v{88 + 4*i + r}")
    a("v_cvt_pk_bf16_f32 v12, v88, v89")
    a("v_cvt_pk_bf16_f32 v13, v90, v91")
    a(f"buffer_store_dwordx2 v[12:13], v10, s[{sOUT}:{sOUT+3}], s44 offen")
    a.label("L_end")
    a("s_endpgm")
    for q in range(16):
        a.label(f"L_bad{q}")
        a(f"s_bitset1_b32 s{sBad}, {q}")
        a(f"s_branch L_nx{q}")
    a.label("L_p0retry")
    a(f"s_sub_u32 s{sSpin}, s{sSpin}, 1")
    a(f"s_cmp_eq_u32 s{sSpin}, 0")
    a("s_cbranch_scc1 L_p0ok")
    for q in range(16):
        o_ld(q, 0, vB)
    a("s_waitcnt vmcnt(0)")
    a("s_branch L_p0chk")
    for li in range(2):
        ks = [n for n in sorted(snip) if (n < N2) == (li == 0)]
        if not ks: continue
        a.label(f"L_snip{li}")
        for n in ks:
            if n != ks[-1]:
                a(f"s_cmp_lg_u32 s{sIter}, {n}")
                a(f"s_cbranch_scc1 L_sn{n+1}")
            snip[n]()
            a(f"s_branch L_snip_ret{li}")
            if n != ks[-1]:
                a.label(f"L_sn{n+1}")

def kd(a, name):
    a.raw(".p2align 6")
    a.raw(f".amdhsa_kernel {name}")
    a.raw("  .amdhsa_next_free_vgpr 512")
    a.raw("  .amdhsa_next_free_sgpr 102")
    a.raw("  .amdhsa_accum_offset 256")
    a.raw("  .amdhsa_group_segment_fixed_size 0")
    a.raw("  .amdhsa_kernarg_size 64")
    a.raw("  .amdhsa_user_sgpr_count 2")
    a.raw("  .amdhsa_user_sgpr_kernarg_segment_ptr 1")
    a.raw("  .amdhsa_system_sgpr_workgroup_id_x 1")
    a.raw(".end_amdhsa_kernel")

def main(path):
    a = Asm()
    a.raw(HEADER.rstrip())
    a.raw(f"; @launch grid=(256,1,1) block=(256,1,1) lds={LDS_SIZE}")
    a.raw('.amdgcn_target "amdgcn-amd-amdhsa--gfx950"')
    a.raw(".text")
    gen_k1(a)
    a.raw('.section .rodata,"a"')
    kd(a, K1)
    open(path, "w").write(a.text())

if __name__ == "__main__":
    args = sys.argv[1:]
    if "--stamp" in args:
        STAMP = True
        args.remove("--stamp")
    rest = []
    for x in args:
        if "=" in x:
            k, v = x.split("=", 1)
            OPT[k] = v.replace("+", " ")
        else:
            rest.append(x)
    main(rest[0] if rest else "standalone__mha_block_cached__sampling.s")
```

```python
import sys, struct, math

def f32hex(x):
    return "0x%08x" % struct.unpack("<I", struct.pack("<f", x))[0]

STAMP = False
OPT = {}
class Asm:
    def __init__(self):
        self.L = []
        self.uid = 0
    def stamp(self, idx):
        if not STAMP: return
        self("s_memrealtime s[68:69]")
        self("s_waitcnt lgkmcnt(0)")
        self(f"s_mov_b32 s{70 + idx}, s68")
    def stamp_store(self, wsptr, base, n):
        if not STAMP: return
        self(f"s_mov_b32 s88, s{wsptr}")
        self(f"s_mov_b32 s89, s{wsptr+1}")
        self("s_mov_b32 s90, 0x40000000")
        self("s_mov_b32 s91, 0x00020000")
        self("s_lshl_b32 s92, s2, 3")
        self("s_add_u32 s92, s92, s40")
        self("s_lshl_b32 s92, s92, 6")
        self(f"s_add_u32 s92, s92, 0x{base:x}")
        self("v_mov_b32 v250, 0")
        for i in range(n):
            self(f"v_mov_b32 v251, s{70+i}")
            self(f"buffer_store_dword v251, v250, s[88:91], s92 offen offset:{4*i}")
            self("s_nop 1")
    def __call__(self, s):
        self.L.append("  " + s)
    def label(self, s):
        self.L.append(s + ":")
    def newlabel(self, p):
        self.uid += 1
        return f"L_{p}_{self.uid}"
    def raw(self, s):
        self.L.append(s)
    def text(self):
        return "\n".join(self.L) + "\n"

class MemSeq:
    def __init__(self, a, pre_kv=0):
        self.a = a; self.n = pre_kv; self.done = 0; self.kv = list(range(pre_kv)); self.slow = -1
    def issue(self, text, kv=False, slow=False):
        if text is not None: self.a(text)
        idx = self.n; self.n += 1
        if kv: self.kv.append(idx)
        if slow and self.slow < self.done: self.slow = idx
        return idx
    def wait_for(self, idx):
        if idx < self.done: return
        cnt = self.n - 1 - idx
        assert cnt <= 63, cnt
        self.a(f"s_waitcnt vmcnt({cnt})")
        self.done = idx + 1
    def pace(self, W):
        if len(self.kv) >= W:
            t = self.kv[-W]
            if self.slow >= self.done and t > self.slow: return
            self.wait_for(t)

def vr(b, n=4):
    return f"v[{b}:{b+n-1}]"
def ar(b, n=4):
    return f"a[{b}:{b+n-1}]"

HEADER = """; Kernarg layout for this problem (64 bytes, ptrs only, base s[0:1]):
"""

K1 = "standalone__mha_block_cached__sampling_kernel"

LDS_WO = 0
LDS_C = 32768
LDS_WQS = 0
LDS_XS = 65536
LDS_M = 98304
LDS_L = 100352
LDS_QF = 102400
LDS_CNT = 106496
LDS_SIZE = 106496 + 64
WOP = 0x400000
QP = 0xC00000
WS_SIZE = QP + 0x800000
FLQ = 0x300000
FLP = 0x310000

def gen_k1(a):
    W = int(OPT.get('W', 5))
    Wp = int(OPT.get('Wp', 5))
    Rn, Rd = [int(t) for t in OPT.get('R', '7/9').split('/')]
    vKoff, vVoff, vKoff2, vVoff2 = 1, 2, 3, 4
    vMc, vL, vT0, vT1 = 5, 6, 7, 20
    vS = 8
    vP = 16
    vAl, vT2, vT3 = 21, 22, 23
    vQ, vQ2 = 24, 32
    vO = 40
    vPT = 72
    vLdsO, vLdsM, vQF, vOne, vTr, vWoOff, vXoff, vWoff = 80, 81, 82, 83, 84, 85, 86, 87
    bK, bV = 88, 120
    vSR = 152
    vB = 168
    vAT = 232
    vCntL, vCntG, vDum = 248, 249, 252
    sX, sK, sV, sWQ, sWS, sWO, sOUT, sDBG, sNull = 20, 24, 28, 32, 36, 60, 64, 80, 96
    sWSo = 20
    sW, sH, sP_, sB1, sVoff, sKoff, sIter = 40, 41, 42, 43, 44, 45, 46
    sSelLo, sSelHi, sC, sBad, sSpin = 50, 51, 52, 53, 54
    sMask = 56
    sWoLd, sLb = 58, 59
    sXb, sWqb, sJ = 84, 85, 86
    vWoffB, vXt, vTq, vXrd = 253, 254, 216, 224
    sFl = 95
    sNon = 55
    vNon = 246
    sOld, sOst = 93, 94
    cscale = (128 ** -0.5) * math.log2(math.e)

    a.raw(f".globl {K1}")
    a.raw(".p2align 8")
    a.raw(f".type {K1},@function")
    a.label(K1)
    a("s_cmp_ge_u32 s2, 256")
    a("s_cbranch_scc1 L_end")
    a.stamp(0)
    a("s_load_dwordx16 s[4:19], s[0:1], 0")
    a("s_memrealtime s[90:91]")
    a("v_lshrrev_b32 v7, 6, v0")
    a("v_and_b32 v5, 63, v0")
    a("v_readfirstlane_b32 s40, v7")
    a("v_and_b32 v6, 15, v5")
    a("v_lshrrev_b32 v7, 4, v5")
    a("s_and_b32 s41, s2, 7")
    a("s_lshl_b32 s41, s41, 2")
    a("s_lshr_b32 s48, s2, 3")
    a("s_and_b32 s48, s48, 3")
    a("s_add_u32 s41, s41, s48")
    a("s_lshr_b32 s42, s2, 5")
    if OPT.get('map') == 'anti':
        a("s_lshr_b32 s41, s2, 3")
        a("s_and_b32 s42, s2, 7")
    t0, t1, t2, t3 = 240, 241, 242, 243
    a(f"v_and_b32 v{t0}, 3, v6")
    a(f"v_lshlrev_b32 v{t0}, 2, v{t0}")
    a(f"v_lshrrev_b32 v{t2}, 3, v6")
    a(f"v_and_b32 v{t3}, 7, v6")
    a(f"v_lshrrev_b32 v{t1}, 1, v6")
    a(f"v_xor_b32 v{t1}, v{t1}, v7")
    a(f"v_lshlrev_b32 v{vWoff}, 13, v7")
    a(f"v_lshl_add_u32 v{vWoff}, v{t1}, 5, v{vWoff}")
    a(f"v_and_b32 v{t1}, 1, v5")
    a(f"v_lshl_add_u32 v{vWoff}, v{t1}, 4, v{vWoff}")
    a(f"v_xor_b32 v{vWoffB}, 0x80, v{vWoff}")
    a(f"v_lshrrev_b32 v{t1}, 5, v5")
    a(f"v_and_b32 v{vXoff}, 31, v5")
    a(f"v_lshlrev_b32 v{vXoff}, 4, v{vXoff}")
    a(f"v_lshlrev_b32 v{vXt}, 6, v{t1}")
    a(f"v_xor_b32 v{vXoff}, v{vXoff}, v{vXt}")
    a(f"v_lshl_add_u32 v{vXoff}, v{t1}, 11, v{vXoff}")
    a(f"v_bfe_u32 v{t1}, v6, 2, 1")
    a(f"v_add_u32 v{t1}, v{t0}, v{t1}")
    a(f"v_lshlrev_b32 v{vKoff}, 8, v{t1}")
    a(f"v_lshl_add_u32 v{vKoff}, v{t2}, 6, v{vKoff}")
    a(f"v_lshl_add_u32 v{vKoff}, v7, 4, v{vKoff}")
    a(f"v_add_u32 v{vKoff2}, 0x1000, v{vKoff}")
    a(f"v_lshlrev_b32 v{vVoff}, 4, v5")
    a(f"v_add_u32 v{vVoff2}, 0x1000, v{vVoff}")
    a(f"s_and_b32 s{sJ}, s{sP_}, 3")
    a(f"s_and_b32 s48, s{sP_}, 4")
    a(f"s_add_u32 s48, s48, s{sW}")
    a(f"s_lshl_b32 s{sXb}, s48, 14")
    a(f"s_lshl_b32 s48, s{sJ}, 9")
    a(f"s_add_u32 s{sXb}, s{sXb}, s48")
    a(f"s_lshl_b32 s{sWqb}, s{sJ}, 21")
    a(f"s_lshl_b32 s48, s{sW}, 19")
    a(f"s_add_u32 s{sWqb}, s{sWqb}, s48")
    a(f"s_lshl_b32 s48, s{sH}, 8")
    a(f"s_add_u32 s{sWqb}, s{sWqb}, s48")
    a(f"s_lshl_b32 s{sVoff}, s{sP_}, 5")
    a(f"s_add_u32 s{sVoff}, s{sVoff}, s{sH}")
    a(f"s_lshl_b32 s{sVoff}, s{sVoff}, 19")
    a(f"s_lshl_b32 s48, s{sW}, 13")
    a(f"s_add_u32 s{sVoff}, s{sVoff}, s48")
    a(f"s_add_u32 s{sB1}, s{sVoff}, 0x8000000")
    for (d, size) in ((sX, 16*8*1024*2), (sWQ, 1024*4096*2), (sK, 1 << 28), (sV, 1 << 28)):
        a(f"s_mov_b32 s{d+2}, 0x{size:x}")
        a(f"s_mov_b32 s{d+3}, 0x00020000")
    a(f"s_mov_b32 s{sSelLo}, 0x05040100")
    a(f"s_mov_b32 s{sSelHi}, 0x07060302")
    a("s_waitcnt lgkmcnt(0)")
    for (d, src) in ((sX, 4), (sWQ, 10), (sK, 6), (sV, 8)):
        a(f"s_mov_b32 s{d}, s{src}")
        a(f"s_mov_b32 s{d+1}, s{src+1}")

    ms = MemSeq(a)
    NSL = 3
    def xreg(ks): return 8 + 4*ks
    def slot(ks): return 152 + (ks % NSL)*32

    def ld_K(ms, dst, j, soff):
        T, s = j >> 2, j & 3
        return ms.issue(f"buffer_load_dwordx4 {dst}, v{vKoff if T == 0 else vKoff2}, s[{sK}:{sK+3}], s{soff} offen offset:{(s>>1)*512 + (s&1)*128} nt", kv=True)
    def ld_V(ms, dst, i, soff):
        return ms.issue(f"buffer_load_dwordx4 {dst}, v{vVoff if i < 4 else vVoff2}, s[{sV}:{sV+3}], s{soff} offen offset:{(i&3)*1024} nt", kv=True)

    stage = []
    for b in range(4):
        for j in range(8): stage.append(('K', b, j))
        for j in range(8): stage.append(('V', b, j))
    for j in range(8): stage.append(('K', 4, j))
    st = {'pos': 0, 'idx': {}}
    def stage_one(Wx):
        if st['pos'] >= len(stage): return False
        kind, b, j = stage[st['pos']]; st['pos'] += 1
        if len(ms.kv) >= Wx and not st.get('late'):
            st['late'] = True
            late_setup()
        ms.pace(Wx)
        if kind == 'K':
            dst = ar(64*b + 4*j) if b < 4 else vr(bK + 4*j)
            st['idx'][(kind, b, j)] = ld_K(ms, dst, j, sVoff)
        else:
            st['idx'][(kind, b, j)] = ld_V(ms, ar(64*b + 32 + 4*j), j, sVoff)
            if j == 7:
                a(f"s_add_u32 s{sVoff}, s{sVoff}, 0x8000")
        return True

    def perm_c(src, c):
        for hb, sel in ((0, sSelLo), (1, sSelHi)):
            for t in range(4):
                a(f"v_perm_b32 v{vPT + hb*4 + t}, v{src[2*t+1] + c}, v{src[2*t] + c}, s{sel}")
    def mfma_c(bop, c, first):
        a("s_nop 1")
        for hb in range(2):
            j = 2*c + hb
            cc = "0" if first else vr(vO + 4*j)
            a(f"v_mfma_f32_16x16x32_bf16 {vr(vO + 4*j)}, {vr(vPT + hb*4)}, {vr(bop)}, {cc}")
    def reset_state():
        for r in range(32):
            a(f"v_mov_b32 v{vO + r}, 0")
        a(f"v_mov_b32 v{vMc}, 0xff800000")
        a(f"v_mov_b32 v{vL}, 0")

    def late_setup():
        a(f"v_lshl_add_u32 v{t1}, v7, 4, v{t3}")
        a(f"v_lshlrev_b32 v{t1}, 4, v{t1}")
        a(f"v_lshl_add_u32 v{t1}, v{t2}, 10, v{t1}")
        a(f"v_add_u32 v{vQF}, 0x{LDS_QF:x}, v{t1}")
        a(f"v_mov_b32 v{vCntL}, 0x{LDS_CNT:x}")
        a(f"v_mov_b32 v{vOne}, 0")
        a(f"ds_write_b32 v{vCntL}, v{vOne}")
        a(f"ds_write_b32 v{vCntL}, v{vOne} offset:4")
        a(f"ds_write_b32 v{vCntL}, v{vOne} offset:8")
        a(f"ds_write_b32 v{vCntL}, v{vOne} offset:12")
        a(f"v_lshl_add_u32 v{t1}, v7, 3, v{t3}")
        a(f"v_lshlrev_b32 v{t1}, 4, v{t1}")
        a(f"s_lshl_b32 s48, s{sW}, 12")
        a(f"s_add_u32 s48, s48, 0x{LDS_C:x}")
        a(f"v_add_u32 v{vLdsO}, s48, v{t1}")
        a(f"s_lshl_b32 s48, s{sW}, 8")
        a(f"s_add_u32 s48, s48, 0x{LDS_M:x}")
        a(f"v_lshlrev_b32 v{t1}, 2, v5")
        a(f"v_add_u32 v{vLdsM}, s48, v{t1}")
        a(f"v_lshlrev_b32 v{vWoOff}, 11, v7")
        a(f"v_lshl_add_u32 v{vWoOff}, v6, 4, v{vWoOff}")
        a(f"v_lshrrev_b32 v{t1}, 2, v6")
        a(f"v_lshl_add_u32 v{t1}, v7, 3, v{t1}")
        a(f"v_lshlrev_b32 v{vTr}, 8, v{t1}")
        a(f"v_lshl_add_u32 v{vTr}, v{t0}, 1, v{vTr}")
        a(f"s_lshl_b32 s{sLb}, s{sW}, 13")
        a(f"v_add_u32 v{vTr}, s{sLb}, v{vTr}")
        a(f"v_mov_b32 v{vOne}, 1")
        a(f"s_mov_b32 s{sC}, {f32hex(cscale)}")
        a(f"s_mov_b32 s{sMask}, 0x00ff00ff")
        a(f"s_mov_b32 s{sMask+1}, 0x00ff00ff")
        for (d, src, size) in ((sWS, 18, WS_SIZE), (sWO, 12, 4096*1024*2), (sOUT, 14, 128*1024*2), (sDBG, 16, 256), (sNull, 18, 0)):
            a(f"s_mov_b32 s{d}, s{src}")
            a(f"s_mov_b32 s{d+1}, s{src+1}")
            a(f"s_mov_b32 s{d+2}, 0x{size:x}")
            a(f"s_mov_b32 s{d+3}, 0x00020000")
        a(f"s_lshl_b32 s{sWoLd}, s{sH}, 18")
        a(f"s_lshl_b32 s48, s{sW}, 16")
        a(f"s_add_u32 s{sWoLd}, s{sWoLd}, s48")
        a(f"s_add_u32 s{sWoLd}, s{sWoLd}, 0x{WOP:x}")
        a(f"s_lshl_b32 s{sOld}, s{sP_}, 16")
        a(f"s_lshl_b32 s48, s{sW}, 14")
        a(f"s_add_u32 s{sOld}, s{sOld}, s48")
        a(f"s_lshl_b32 s{sOst}, s{sP_}, 16")
        a(f"s_lshl_b32 s48, s{sH}, 11")
        a(f"s_add_u32 s{sOst}, s{sOst}, s48")
        a(f"s_and_b32 s48, s{sW}, 1")
        a("s_lshl_b32 s48, s48, 10")
        a(f"s_add_u32 s{sOst}, s{sOst}, s48")

    dl = []
    for m in range(8): dl.append(('x', m))
    for m in range(16): dl.append(('w', m))
    order = []
    for i in range(8):
        order += [dl[i], dl[8 + 2*i], dl[9 + 2*i]]
    last_dma = None
    for i, (kind, m) in enumerate(order):
        if kind == 'x':
            a(f"s_lshl_b32 s48, s{sW}, 13")
            a(f"s_add_u32 m0, s48, 0x{LDS_XS + m*1024:x}")
            a(f"s_add_u32 s49, s{sXb}, 0x{(m&3)*4096 + (m>>2)*131072:x}")
            src = vXoff
            if m & 3:
                a(f"v_xor_b32 v{vXt}, 0x{(m&3) << 7:x}, v{vXoff}")
                src = vXt
            last_dma = ms.issue(f"buffer_load_dwordx4 v{src}, s[{sX}:{sX+3}], s49 offen lds")
        else:
            a(f"s_lshl_b32 s48, s{sW}, 14")
            a(f"s_add_u32 m0, s48, 0x{LDS_WQS + m*1024:x}")
            a(f"s_add_u32 s49, s{sWqb}, 0x{m*32768:x}")
            last_dma = ms.issue(f"buffer_load_dwordx4 v{vWoffB if m & 2 else vWoff}, s[{sWQ}:{sWQ+3}], s49 offen{OPT.get('wqflag','')} lds")
        if i % int(OPT.get('DI', 3)) == 1:
            stage_one(Wp)
    if not st.get('late'):
        st['late'] = True
        late_setup()
    a(f"s_mov_b32 s{sNull}, s16")
    a(f"s_mov_b32 s{sNull+1}, s17")
    a(f"s_cmp_eq_u32 s{sW}, 0")
    a(f"s_cselect_b32 s{sNull+2}, 256, 0")
    a(f"s_mov_b32 s{sNull+3}, 0x00020000")
    a(f"v_mov_b32 v{vNon+1}, 0")
    a(f"s_or_b32 s{sNon}, s90, 1")
    a(f"v_mov_b32 v{vNon}, s{sNon}")
    a("s_mov_b64 exec, 1")
    nidx = ms.issue(f"buffer_atomic_cmpswap v[{vNon}:{vNon+1}], v{vNon+1}, s[{sNull}:{sNull+3}], 0 offen sc0 sc1", slow=True)
    a("s_mov_b64 exec, -1")
    a("s_nop 0")
    a(f"s_mov_b32 s{sNull}, s18")
    a(f"s_mov_b32 s{sNull+1}, s19")
    a(f"s_mov_b32 s{sNull+2}, 0")
    a(f"v_lshrrev_b32 v{vXt}, 2, v6")
    a(f"v_and_b32 v{vTq+1}, 1, v7")
    a(f"v_lshl_add_u32 v{vTq+1}, v{vTq+1}, 2, v{vXt}")
    a(f"v_lshl_add_u32 v{vTq}, v7, 3, v{vXt}")
    a(f"v_lshlrev_b32 v{vTq}, 8, v{vTq}")
    a(f"v_lshl_add_u32 v{vTq}, v{vTq+1}, 5, v{vTq}")
    a(f"v_and_b32 v{vXt}, 3, v6")
    a(f"v_lshl_add_u32 v{vTq}, v{vXt}, 3, v{vTq}")
    for t in range(1, 8):
        a(f"v_xor_b32 v{vTq+t}, {t << 5}, v{vTq}")
    a(f"v_lshlrev_b32 v{vXrd}, 9, v6")
    a(f"v_lshl_add_u32 v{vXrd}, v7, 4, v{vXrd}")
    a(f"v_and_b32 v{vXt}, 7, v6")
    a(f"v_lshl_add_u32 v{vXrd}, v{vXt}, 6, v{vXrd}")
    a(f"s_lshl_b32 s48, s{sW}, 13")
    a(f"s_add_u32 s48, s48, 0x{LDS_XS:x}")
    a(f"v_add_u32 v{vXrd}, s48, v{vXrd}")
    for i in range(int(OPT.get('SA', 2))): stage_one(Wp)
    ms.wait_for(last_dma)
    a("s_waitcnt lgkmcnt(0)")
    a("s_barrier")
    def q_reads(ks):
        A0 = 152 + (ks & 1)*32
        if ks:
            a(f"v_xor_b32 v{vXt}, 0x{ks << 6:x}, v{vXrd}")
        a(f"ds_read_b128 {vr(8 + (ks&1)*4)}, v{vXt if ks else vXrd}")
        for t in range(8):
            for half in range(2):
                d = A0 + t*4 + half*2
                a(f"ds_read_b64_tr_b16 v[{d}:{d+1}], v{vTq+t} offset:{ks*8192 + half*1024}")
    q_reads(0)
    for ks in range(8):
        if ks < 7:
            a("s_waitcnt lgkmcnt(0)")
            q_reads(ks + 1)
        else:
            a("s_waitcnt lgkmcnt(0)")
        A0 = 152 + (ks & 1)*32
        for t in range(8):
            cc = "0" if ks == 0 else vr(vO + 4*t)
            a(f"v_mfma_f32_16x16x32_bf16 {vr(vO + 4*t)}, {vr(A0 + 4*t)}, {vr(8 + (ks&1)*4)}, {cc}")
        stage_one(Wp)
    a.stamp(1)
    a("s_and_b32 s48, s2, 0x9f")
    a(f"s_lshl_b32 s49, s{sW}, 5")
    a("s_or_b32 s48, s48, s49")
    a("s_lshl_b32 s48, s48, 2")
    a(f"s_add_u32 s48, s48, s{sJ}")
    a("s_lshl_b32 s48, s48, 13")
    a(f"s_add_u32 s48, s48, 0x{QP:x}")
    a(f"s_mov_b32 s{sWSo}, s18")
    a(f"s_mov_b32 s{sWSo+1}, s19")
    a(f"s_cmp_lg_u32 s{sW}, s{sJ}")
    a(f"s_cselect_b32 s{sWSo+2}, 0x{WS_SIZE:x}, 0")
    a("s_nop 3")
    for t in range(8):
        qst = ms.issue(f"buffer_store_dwordx4 {vr(vO + 4*t)}, v{vVoff if t < 4 else vVoff2}, s[{sWSo}:{sWSo+3}], s48 offen offset:{(t&3)*1024} sc1", slow=True)
    a(f"s_cbranch_scc1 L_notown")
    a(f"s_lshl_b32 s48, s{sW}, 13")
    a(f"s_add_u32 s48, s48, 0x{LDS_XS:x}")
    a(f"v_add_u32 v8, s48, v{vVoff}")
    for t in range(8):
        a(f"ds_write_b128 v8, {vr(vO + 4*t)} offset:{t*1024}")
    a.label("L_notown")
    a(f"s_lshl_b32 s{sFl}, s2, 7")
    a(f"s_add_u32 s{sFl}, s{sFl}, 0x{FLQ:x}")
    for i in range(int(OPT.get('SB', 10))): stage_one(Wp)
    def signal(soff, cnt_off):
        a("s_waitcnt lgkmcnt(0)")
        a("s_mov_b64 exec, 1")
        a(f"ds_add_rtn_u32 v{vCntG}, v{vCntL}, v{vOne} offset:{cnt_off}")
        a(f"v_mov_b32 v{vDum}, s{sNon}")
        a("s_waitcnt lgkmcnt(0)")
        a(f"v_readfirstlane_b32 s49, v{vCntG}")
        a(f"v_mov_b32 v{vCntG}, 0")
        a("s_cmp_eq_u32 s49, 3")
        a(f"s_cselect_b32 s{sNull+2}, 0x{WS_SIZE:x}, 0")
        a("s_nop 0")
        ms.issue(f"buffer_store_dword v{vDum}, v{vCntG}, s[{sNull}:{sNull+3}], s{soff} offen sc1", slow=True)
        a("s_mov_b64 exec, -1")
        a("s_nop 0")
        a(f"s_mov_b32 s{sNull+2}, 0")
    ms.wait_for(qst)
    if OPT.get('xst'): a.stamp(3)
    a(f"v_readfirstlane_b32 s48, v{vNon}")
    a("s_cmp_eq_u32 s48, 0")
    a(f"s_cselect_b32 s48, s{sNon}, s48")
    a(f"v_mov_b32 v{vNon}, s48")
    a(f"s_cmp_lg_u32 s{sW}, 0")
    a("s_cbranch_scc1 L_nonw")
    a(f"ds_write_b32 v{vCntL}, v{vNon} offset:12")
    a.label("L_nonw")
    a(f"s_mov_b32 s{sSpin}, 0x1000000")
    a.label("L_nonp")
    a(f"ds_read_b32 v{vNon}, v{vCntL} offset:12")
    a(f"s_sub_u32 s{sSpin}, s{sSpin}, 1")
    a("s_waitcnt lgkmcnt(0)")
    a(f"v_readfirstlane_b32 s{sNon}, v{vNon}")
    a(f"s_cmp_eq_u32 s{sSpin}, 0")
    a("s_cbranch_scc1 L_nond")
    a(f"s_cmp_eq_u32 s{sNon}, 0")
    a("s_cbranch_scc1 L_nonp")
    a.label("L_nond")
    if OPT.get('xst'): a.stamp(4)
    signal(sFl, 8)
    for i in range(int(OPT.get('SC', 14))): stage_one(Wp)
    a("s_and_b32 s47, s2, 0x9f")
    a("s_lshl_b32 s47, s47, 7")
    a(f"s_add_u32 s47, s47, 0x{FLQ:x}")
    a(f"v_and_b32 v{vCntG}, 3, v0")
    a(f"v_lshlrev_b32 v{vCntG}, 12, v{vCntG}")
    pidx = ms.issue(f"buffer_load_dword v{vDum}, v{vCntG}, s[{sWS}:{sWS+3}], s47 offen sc1")
    for i in range(2): stage_one(Wp)
    ms.wait_for(pidx)
    a(f"s_mov_b32 s{sSpin}, 0x100000")
    a.label("L_qpoll")
    a(f"v_cmp_ne_u32 vcc, s{sNon}, v{vDum}")
    a("s_cbranch_vccz L_qok")
    a(f"s_sub_u32 s{sSpin}, s{sSpin}, 1")
    a(f"s_cmp_eq_u32 s{sSpin}, 0")
    a("s_cbranch_scc1 L_qok")
    a("s_sleep 2")
    a(f"buffer_load_dword v{vDum}, v{vCntG}, s[{sWS}:{sWS+3}], s47 offen sc1")
    a("s_waitcnt vmcnt(0)")
    a("s_branch L_qpoll")
    a.label("L_qok")
    if OPT.get('xst'): a.stamp(5)
    a("s_lshl_b32 s48, s2, 15")
    a(f"s_lshl_b32 s49, s{sW}, 11")
    a("s_add_u32 s48, s48, s49")
    a(f"s_add_u32 s48, s48, 0x{QP:x}")
    for jj in range(4):
        a(f"s_cmp_lg_u32 s{sJ}, {jj}")
        a(f"s_cselect_b32 s{sWSo+2}, 0x{WS_SIZE:x}, 0")
        for tt in range(2):
            gl = ms.issue(f"buffer_load_dwordx4 {vr(vO + (jj*2+tt)*4)}, v{vVoff}, s[{sWSo}:{sWSo+3}], s48 offen offset:{tt*1024} sc1")
        if jj < 3: a("s_add_u32 s48, s48, 0x2000")
    a(f"s_lshl_b32 s48, s{sJ}, 13")
    a(f"s_add_u32 s48, s48, s49")
    a(f"s_add_u32 s48, s48, 0x{LDS_XS:x}")
    a(f"v_add_u32 v8, s48, v{vVoff}")
    for tt in range(2):
        a(f"ds_read_b128 {vr(12 + tt*4)}, v8 offset:{tt*1024}")
    a("v_and_b32 v9, 15, v0")
    a("v_lshlrev_b32 v9, 4, v9")
    a("v_bfe_u32 v10, v0, 5, 1")
    a("v_lshl_add_u32 v9, v10, 8, v9")
    a("v_bfe_u32 v10, v0, 4, 1")
    a("v_lshl_add_u32 v9, v10, 3, v9")
    a(f"s_lshl_b32 s48, s{sW}, 10")
    a(f"s_add_u32 s48, s48, 0x{LDS_QF:x}")
    a("v_add_u32 v9, s48, v9")
    a(f"s_cmp_lt_u32 s{sW}, 2")
    a(f"s_cselect_b32 s{sWSo+2}, 0x100000, 0")
    for i in range(int(OPT.get('SD', 5))): stage_one(Wp)
    ms.wait_for(gl)
    if OPT.get('xst'): a.stamp(6)
    a("s_waitcnt lgkmcnt(0)")
    for r in range(8):
        a(f"v_add_f32 v{vO + r}, v{vO + r}, v{vO + 8 + r}")
        a(f"v_add_f32 v{vO + 16 + r}, v{vO + 16 + r}, v{vO + 24 + r}")
    for r in range(8):
        a(f"v_add_f32 v{vO + r}, v{vO + r}, v{12 + r}")
    for r in range(8):
        a(f"v_add_f32 v{vO + r}, v{vO + r}, v{vO + 16 + r}")
    for s_ in range(4):
        a(f"v_cvt_pk_bf16_f32 v{20 + s_}, v{vO + 2*s_}, v{vO + 2*s_ + 1}")
    for tt in range(2):
        a(f"ds_write_b64 v9, v[{20 + 2*tt}:{21 + 2*tt}] offset:{tt*512}")
    stage_one(Wp)
    a("s_waitcnt lgkmcnt(0)")
    a("s_barrier")
    for ph in range(2):
        for sp in range(2):
            a(f"ds_read_b128 {vr(vQ + ph*8 + sp*4)}, v{vQF} offset:{sp*2048 + ph*128}")
    reset_state()
    a("s_waitcnt lgkmcnt(0)")
    a.stamp(2)

    def p_QK(kop):
        for T in range(2):
            for s in range(4):
                d = vSR + (T*2 + (s>>1))*4
                cc = "0" if (s & 1) == 0 else vr(d)
                a(f"v_mfma_f32_16x16x32_bf16 {vr(d)}, {kop(T*4+s)}, {vr(vQ + 4*(s&1))}, {cc}")
    def p_SM1():
        a("s_nop 7")
        for T in range(2):
            for r in range(4):
                a(f"v_permlane32_swap_b32 v{vSR + T*8 + r}, v{vSR + T*8 + 4 + r}")
        a("s_nop 0")
        for T in range(2):
            for r in range(4):
                a(f"v_add_f32_dpp v{vS + T*4 + r}, v{vSR + T*8 + 4 + r}, v{vSR + T*8 + r} row_ror:8 row_mask:0xf bank_mask:0xf")
        a(f"v_max3_f32 v{vT0}, v{vS+0}, v{vS+1}, v{vS+2}")
        a(f"v_max3_f32 v{vT0}, v{vT0}, v{vS+3}, v{vS+4}")
        a(f"v_max3_f32 v{vT0}, v{vT0}, v{vS+5}, v{vS+6}")
        a(f"v_max_f32 v{vT0}, v{vT0}, v{vS+7}")
        a(f"v_mov_b32 v{vT1}, v{vT0}")
        a("s_nop 1")
        a(f"v_permlane16_swap_b32 v{vT0}, v{vT1}")
        a("s_nop 1")
        a(f"v_max_f32 v{vT0}, v{vT0}, v{vT1}")
        a(f"v_mov_b32 v{vT1}, v{vT0}")
        a("s_nop 1")
        a(f"v_permlane32_swap_b32 v{vT0}, v{vT1}")
        a("s_nop 1")
        a(f"v_max_f32 v{vT0}, v{vT0}, v{vT1}")
        a(f"v_mul_f32 v{vT0}, s{sC}, v{vT0}")
        a(f"v_max_f32 v{vT0}, v{vT0}, v{vMc}")
        a(f"v_sub_f32 v{vAl}, v{vMc}, v{vT0}")
        a(f"v_exp_f32 v{vAl}, v{vAl}")
        a(f"v_mov_b32 v{vMc}, v{vT0}")
    def p_SM2():
        for i in range(8):
            a(f"v_fma_f32 v{vS+i}, v{vS+i}, s{sC}, -v{vMc}")
        for i in range(8):
            a(f"v_exp_f32 v{vS+i}, v{vS+i}")
        a("s_nop 0")
        a(f"v_add_f32 v{vT2}, v{vS+0}, v{vS+1}")
        a(f"v_add_f32 v{vT3}, v{vS+2}, v{vS+3}")
        a(f"v_add_f32 v{vT0}, v{vS+4}, v{vS+5}")
        a(f"v_add_f32 v{vT1}, v{vS+6}, v{vS+7}")
        a(f"v_add_f32 v{vT2}, v{vT2}, v{vT3}")
        a(f"v_add_f32 v{vT0}, v{vT0}, v{vT1}")
        a(f"v_add_f32 v{vT2}, v{vT2}, v{vT0}")
        a(f"v_fma_f32 v{vL}, v{vL}, v{vAl}, v{vT2}")
        for t in range(4):
            a(f"v_cvt_pk_bf16_f32 v{vP + t}, v{vS + 2*t}, v{vS + 2*t + 1}")
    def p_RS():
        a("s_nop 7")
        for r in range(32):
            a(f"v_mul_f32 v{vO + r}, v{vAl}, v{vO + r}")
    def p_PV(c):
        perm_c([bV + 4*i for i in range(8)], c)
        mfma_c(vP, c, False)
    def p_PVs(b, c):
        base = vAT + (c & 1)*8
        for i in range(8):
            a(f"v_accvgpr_read_b32 v{base + i}, a{64*b + 32 + 4*i + c}")
        perm_c([base + i for i in range(8)], 0)
        mfma_c(vP, c, False)

    def iteration(ms, kidx, staged=None, extras=None, static_n=None, extras7=None, W=W):
        pieces = {s: [] for s in range(16)}
        def wq_(): ms.wait_for(kidx[7]); p_QK(lambda j: vr(bK + 4*j))
        pq = max(W - 1, 4 if staged is not None else 0)
        pieces[pq].append(wq_)
        pieces[pq+1].append(p_SM1)
        pieces[pq+2].append(p_SM2)
        pieces[pq+3].append(p_RS)
        vidx = []
        for c in range(4):
            def f(c=c):
                ms.wait_for(vidx[7]); p_PV(c)
            pieces[min(15, 8 + W - 1 + c)].append(f)
        if staged is not None:
            b = staged
            def sq():
                ms.wait_for(st['idx'][('V', b, 7)]); p_QK(lambda j: ar(64*b + 4*j))
            pieces[0].insert(0, sq)
            pieces[1] = [p_SM1, p_SM2] + pieces[1]
            pieces[2] = [p_RS, lambda: p_PVs(b, 0), lambda: p_PVs(b, 1)] + pieces[2]
            pieces[3] = [lambda: p_PVs(b, 2), lambda: p_PVs(b, 3)] + pieces[3]
        knew = []
        for s in range(16):
            ms.pace(W)
            if s < 8:
                vidx.append(ld_V(ms, vr(bV + 4*s), s, sVoff))
            else:
                knew.append(ld_K(ms, vr(bK + 4*(s-8)), s - 8, sKoff))
            if s == 0:
                if extras: extras()
                a(f"s_add_u32 s{sKoff}, s{sVoff}, 0x8000")
                if static_n is None:
                    a(f"s_cmp_eq_u32 s{sIter}, 15")
                    a(f"s_cselect_b32 s{sKoff}, s{sB1}, s{sKoff}")
                    a(f"s_cmp_eq_u32 s{sIter}, 31")
                    a(f"s_cselect_b32 s{sK+2}, 0, s{sK+2}")
            for f in pieces[s]: f()
            if s == 7 and extras7: extras7()
            assert not (s == 7 and pq > 7)
        a(f"s_mov_b32 s{sVoff}, s{sKoff}")
        return knew

    while stage_one(W): pass
    kidx = [st['idx'][('K', 4, j)] for j in range(8)]

    pre = {}
    def ex4():
        a("s_lshr_b32 s48, s2, 1")
        a("s_lshl_b32 s48, s48, 16")
        a("s_and_b32 s49, s2, 1")
        a("s_lshl_b32 s49, s49, 10")
        a("s_add_u32 s48, s48, s49")
        a(f"s_lshl_b32 s49, s{sW}, 8")
        a("s_add_u32 s48, s48, s49")
        for m in range(8):
            a(f"s_add_u32 m0, s{sLb}, {m*1024}")
            a("s_nop 0")
            pre['dma'] = ms.issue(f"buffer_load_dwordx4 v{vWoOff}, s[{sWO}:{sWO+3}], s48 offen nt lds")
            if m < 7: a("s_add_u32 s48, s48, 0x2000")
    def ex5():
        ms.wait_for(pre['dma'])
        for t in range(8):
            for half in range(2):
                d = vB + t*4 + half*2
                a(f"ds_read_b64_tr_b16 v[{d}:{d+1}], v{vTr} offset:{half*1024 + t*32}")
        a("s_and_b32 s48, s2, 1")
        a("s_lshl_b32 s48, s48, 4")
        a(f"s_lshl_b32 s49, s{sW}, 2")
        a("s_add_u32 s48, s48, s49")
        a("s_lshl_b32 s48, s48, 18")
        a("s_lshr_b32 s49, s2, 1")
        a("s_lshl_b32 s49, s49, 11")
        a("s_add_u32 s48, s48, s49")
        a(f"s_add_u32 s48, s48, 0x{WOP:x}")
        a("s_waitcnt lgkmcnt(0)")
        for t in range(8):
            pre['st'] = ms.issue(f"buffer_store_dwordx4 {vr(vB + 4*t)}, v{vVoff}, s[{sWS}:{sWS+3}], s48 offen offset:{(t&1)*1024} sc1", slow=True)
            if t & 1 and t < 7: a("s_add_u32 s48, s48, 0x40000")
        for r in range(4):
            a(f"v_mov_b32 v{vB + 60 + r}, -1")
        a(f"s_lshr_b32 s48, s{sW}, 1")
        a("s_lshl_b32 s48, s48, 19")
        a(f"s_add_u32 s48, s48, s{sOst}")
        pre['st'] = ms.issue(f"buffer_store_dwordx4 {vr(vB + 60)}, v{vVoff}, s[{sWS}:{sWS+3}], s48 offen sc1", slow=True)
    def ex6():
        ms.wait_for(pre['st'])
        a(f"s_lshl_b32 s{sFl}, s2, 2")
        a(f"s_add_u32 s{sFl}, s{sFl}, 0x{FLP:x}")
        signal(sFl, 4)
    exs = {4: ex4}
    exs7 = {4: ex5, 6: ex6}
    if OPT.get('nopre'): exs = {}; exs7 = {}
    for n in range(4, 8):
        kidx = iteration(ms, kidx, staged=n - 4, extras=exs.get(n), static_n=n, extras7=exs7.get(n))
        if not OPT.get('xst'): a.stamp(n - 1)
    a(f"s_mov_b32 s{sIter}, 8")

    def flush():
        a(f"v_mov_b32 v{vT1}, v{vL}")
        a("s_nop 1")
        a(f"v_permlane16_swap_b32 v{vL}, v{vT1}")
        a("s_nop 1")
        a(f"v_add_f32 v{vL}, v{vL}, v{vT1}")
        a(f"v_mov_b32 v{vT1}, v{vL}")
        a("s_nop 1")
        a(f"v_permlane32_swap_b32 v{vL}, v{vT1}")
        a("s_nop 1")
        a(f"v_add_f32 v{vL}, v{vL}, v{vT1}")
        a(f"ds_write_b32 v{vLdsM}, v{vMc}")
        a(f"ds_write_b32 v{vLdsM}, v{vL} offset:{LDS_L - LDS_M}")
        a(f"s_mov_b64 exec, s[{sMask}:{sMask+1}]")
        for j in range(8):
            a(f"ds_write_b128 v{vLdsO}, {vr(vO + 4*j)} offset:{j*512}")
        a("s_mov_b64 exec, -1")

    def combine_addr(ph, vA, vM):
        a(f"v_and_b32 v{vA}, 15, v0")
        a(f"v_lshlrev_b32 v{vA}, 4, v{vA}")
        a(f"v_bfe_u32 v{vM}, v0, 4, 2")
        a(f"v_lshl_add_u32 v{vA}, v{vM}, 2, v{vA}")
        a(f"s_and_b32 s49, s{sW}, 1")
        a("s_lshl_b32 s49, s49, 8")
        a(f"s_add_u32 s49, s49, 0x{LDS_C + ph*0x4000:x}")
        a(f"v_add_u32 v{vA}, s49, v{vA}")
        a(f"v_and_b32 v{vM}, 7, v0")
        a(f"v_lshlrev_b32 v{vM}, 2, v{vM}")
        a(f"v_add_u32 v{vM}, 0x{LDS_M + ph*0x400:x}, v{vM}")
    def combine(ph, vA, vM, R):
        vm, vl, vo, vx, vacc, vout = R, R+4, R+8, R+40, R+44, R+52
        for w in range(4):
            a(f"ds_read_b32 v{vm + w}, v{vM} offset:{w*256}")
        for w in range(4):
            a(f"ds_read_b32 v{vl + w}, v{vM} offset:{LDS_L - LDS_M + w*256}")
        for j in range(6):
            a(f"ds_read_b32 v{vo + j}, v{vA} offset:{j*512}")
        a("s_waitcnt lgkmcnt(10)")
        a(f"v_max3_f32 v{vx}, v{vm}, v{vm+1}, v{vm+2}")
        a(f"v_max_f32 v{vx}, v{vx}, v{vm+3}")
        for ww in range(4):
            a(f"v_sub_f32 v{vm+ww}, v{vm+ww}, v{vx}")
        for ww in range(4):
            a(f"v_exp_f32 v{vm+ww}, v{vm+ww}")
        for n in range(6, 32):
            w, j = n >> 3, n & 7
            a(f"ds_read_b32 v{vo + n}, v{vA} offset:{w*4096 + j*512}")
            if n == 8:
                a("s_waitcnt lgkmcnt(9)")
                a(f"v_mul_f32 v{vx+1}, v{vm}, v{vl}")
                for ww in range(1, 4):
                    a(f"v_fma_f32 v{vx+1}, v{vm+ww}, v{vl+ww}, v{vx+1}")
                a(f"v_rcp_f32 v{vx+1}, v{vx+1}")
        a("s_nop 0")
        for ww in range(4):
            a(f"v_mul_f32 v{vm+ww}, v{vx+1}, v{vm+ww}")
        a("s_waitcnt lgkmcnt(0)")
        for j in range(8):
            a(f"v_mul_f32 v{vacc+j}, v{vm}, v{vo + j}")
        for w in range(1, 4):
            for j in range(8):
                a(f"v_fma_f32 v{vacc+j}, v{vm+w}, v{vo + w*8 + j}, v{vacc+j}")
        for t in range(4):
            a(f"v_cvt_pk_bf16_f32 v{vout+t}, v{vacc+2*t}, v{vacc+2*t+1}")
        for t in range(4):
            a(f"v_min_u32 v{vout+t}, -2, v{vout+t}")
        if ph:
            a(f"s_add_u32 s49, s{sOst}, 0x80000")
        else:
            a(f"s_mov_b32 s49, s{sOst}")
        a(f"buffer_store_dwordx4 {vr(vout)}, v{vVoff}, s[{sWSo}:{sWSo+3}], s49 offen sc1")

    def dummy(k):
        for _ in range(k):
            a(f"buffer_load_dword v{vDum}, v{vVoff}, s[{sNull}:{sNull+3}], 0 offen")
    def wo_ld(q):
        a(f"s_lshl_b32 s48, s{sP_}, 2")
        a(f"s_add_u32 s48, s48, {2*q}")
        a("s_and_b32 s48, s48, 31")
        a("s_lshl_b32 s48, s48, 11")
        a(f"s_add_u32 s48, s48, s{sWoLd}")
        for i in range(4):
            a(f"buffer_load_dwordx4 {ar(16*q + 4*i)}, v{vVoff}, s[{sWS}:{sWS+3}], s48 offen offset:{i*1024} sc1")
    def o_ld(q, bb, dst):
        a(f"s_lshl_b32 s48, s{sP_}, 1")
        a(f"s_add_u32 s48, s48, {q}")
        a("s_and_b32 s48, s48, 15")
        a("s_lshl_b32 s48, s48, 10")
        a(f"s_add_u32 s48, s48, s{sOld}")
        if bb: a("s_add_u32 s48, s48, 0x80000")
        a(f"buffer_load_dwordx4 {vr(dst + 4*q)}, v{vVoff}, s[{sWS}:{sWS+3}], s48 offen sc1")
    def cnt_ld():
        a(f"s_mov_b32 s48, 0x{FLP:x}")
        a(f"buffer_load_dwordx4 {vr(vB + 56)}, v{vVoff}, s[{sWS}:{sWS+3}], s48 offen sc1")
    def cnt_check():
        lp, ld = a.newlabel("cp"), a.newlabel("cd")
        if OPT.get('nopre'): return
        a(f"s_mov_b32 s{sSpin}, 0x100000")
        a.label(lp)
        for r in range(4):
            a(f"v_xor_b32 v{vB + 56 + r}, s{sNon}, v{vB + 56 + r}")
        a(f"v_or3_b32 v{vB + 56}, v{vB + 56}, v{vB + 57}, v{vB + 58}")
        a(f"v_or_b32 v{vB + 56}, v{vB + 56}, v{vB + 59}")
        a(f"v_cmp_ne_u32 vcc, 0, v{vB + 56}")
        a(f"s_cbranch_vccz {ld}")
        a(f"s_sub_u32 s{sSpin}, s{sSpin}, 1")
        a(f"s_cmp_eq_u32 s{sSpin}, 0")
        a(f"s_cbranch_scc1 {ld}")
        a("s_sleep 8")
        cnt_ld()
        a("s_waitcnt vmcnt(0)")
        a(f"s_branch {lp}")
        a.label(ld)
    def flush0():
        a("s_nop 1")
        flush()
        for r in range(8):
            a(f"v_mov_b32 v{vQ + r}, v{vQ2 + r}")
        a(f"v_add_u32 v{vLdsO}, 0x4000, v{vLdsO}")
        a(f"v_add_u32 v{vLdsM}, 0x400, v{vLdsM}")
        a("s_waitcnt lgkmcnt(0)")
        a("s_mov_b64 exec, 1")
        a(f"ds_add_u32 v{vCntL}, v{vOne}")
        a("s_mov_b64 exec, -1")
        reset_state()
    def comb0():
        lp, ld = a.newlabel("lp"), a.newlabel("ld")
        combine_addr(0, vB + 60, vB + 61)
        a(f"s_mov_b32 s{sSpin}, 0x100000")
        a.label(lp)
        a(f"ds_read_b32 v{vB + 62}, v{vCntL}")
        a("s_waitcnt lgkmcnt(0)")
        a(f"v_readfirstlane_b32 s48, v{vB + 62}")
        a("s_cmp_ge_u32 s48, 4")
        a(f"s_cbranch_scc1 {ld}")
        a(f"s_sub_u32 s{sSpin}, s{sSpin}, 1")
        a(f"s_cmp_eq_u32 s{sSpin}, 0")
        a(f"s_cbranch_scc1 {ld}")
        a("s_sleep 2")
        a(f"s_branch {lp}")
        a.label(ld)
        combine(0, vB + 60, vB + 61, vB)
    snip = {}
    snip[8] = lambda: dummy(4)
    snip[9] = lambda: (cnt_ld(), dummy(3))
    snip[10] = lambda: (cnt_check(), wo_ld(0))
    for q in range(1, 8):
        snip[10 + q] = (lambda q=q: wo_ld(q))
    snip[16] = lambda: (wo_ld(6), flush0())
    snip[18] = lambda: (dummy(3), comb0())
    for q in range(8, 16):
        snip[11 + q] = (lambda q=q: wo_ld(q))
    snip[27] = lambda: dummy(4)
    for i in range(4):
        snip[28 + i] = (lambda i=i: [o_ld(4*i + k, 0, vB) for k in range(4)])

    N2 = int(OPT.get('N2', 32))
    W2 = int(OPT.get('W2', W))
    for li, (nend, Wl) in enumerate(((N2, W), (32, W2))):
        if li == 1 and N2 == 32: break
        a.label(f"L_loop{li}")
        ml = MemSeq(a, pre_kv=8)
        def ex_loop():
            a(f"s_branch L_snip{li}")
            a.label(f"L_snip_ret{li}")
            for _ in range(4): ml.issue(None)
        iteration(ml, list(range(8)), extras=ex_loop, W=Wl)
        a(f"s_add_u32 s{sIter}, s{sIter}, 1")
        a(f"s_cmp_lt_u32 s{sIter}, {nend}")
        a(f"s_cbranch_scc1 L_loop{li}")
    a.stamp(7)
    combine_addr(1, 8, 9)
    flush()
    a("s_waitcnt lgkmcnt(0)")
    a("s_barrier")
    combine(1, 8, 9, 10)
    for q in range(16):
        o_ld(q, 1, bK)
    for r in range(32):
        a(f"v_mov_b32 v{vO + r}, 0")
    a(f"s_mov_b32 s{sSpin}, 0x40000")
    def frag_mfma(bb, q, src):
        for par in range(2):
            for nn in range(2):
                d = vO + ((bb*2 + nn)*2 + par)*4
                a(f"v_mfma_f32_16x16x32_bf16 {vr(d)}, {ar(16*q + par*8 + nn*4)}, {vr(src + 4*q)}, {vr(d)}")
    a.label("L_p0chk")
    a(f"v_max3_u32 v8, v{vB}, v{vB+1}, v{vB+2}")
    for r in range(3, 63, 2):
        a(f"v_max3_u32 v8, v8, v{vB+r}, v{vB+r+1}")
    a(f"v_max_u32 v8, v8, v{vB+63}")
    a("v_cmp_eq_u32 vcc, -1, v8")
    a("s_cbranch_vccnz L_p0retry")
    a.label("L_p0ok")
    for q in range(16):
        frag_mfma(0, q, vB)
    a(f"s_mov_b32 s{sBad}, 0")
    for q in range(16):
        a(f"s_waitcnt vmcnt({15 - q})")
        a(f"v_max3_u32 v8, v{bK+4*q}, v{bK+4*q+1}, v{bK+4*q+2}")
        a(f"v_max_u32 v8, v8, v{bK+4*q+3}")
        a("v_cmp_eq_u32 vcc, -1, v8")
        a(f"s_cbranch_vccnz L_bad{q}")
        frag_mfma(1, q, bK)
        a.label(f"L_nx{q}")
    a.label("L_retry")
    a(f"s_cmp_eq_u32 s{sBad}, 0")
    a("s_cbranch_scc1 L_alldone")
    a(f"s_sub_u32 s{sSpin}, s{sSpin}, 1")
    a(f"s_cmp_eq_u32 s{sSpin}, 0")
    a("s_cbranch_scc1 L_alldone")
    for q in range(16):
        a(f"s_bitcmp1_b32 s{sBad}, {q}")
        a(f"s_cbranch_scc0 L_rl{q}")
        o_ld(q, 1, bK)
        a.label(f"L_rl{q}")
    a("s_waitcnt vmcnt(0)")
    for q in range(16):
        a(f"s_bitcmp1_b32 s{sBad}, {q}")
        a(f"s_cbranch_scc0 L_rc{q}")
        a(f"v_max3_u32 v8, v{bK+4*q}, v{bK+4*q+1}, v{bK+4*q+2}")
        a(f"v_max_u32 v8, v8, v{bK+4*q+3}")
        a("v_cmp_eq_u32 vcc, -1, v8")
        a(f"s_cbranch_vccnz L_rc{q}")
        frag_mfma(1, q, bK)
        a(f"s_bitset0_b32 s{sBad}, {q}")
        a.label(f"L_rc{q}")
    a("s_branch L_retry")
    a.label("L_alldone")
    a.stamp(8)
    a(f"v_add_u32 v8, s{sLb}, v{vVoff}")
    a("v_and_b32 v5, 63, v0")
    a("v_lshrrev_b32 v6, 5, v5")
    a("v_bfe_u32 v7, v5, 3, 2")
    a("v_and_b32 v9, 7, v5")
    a("s_nop 4")
    for t in range(8):
        a(f"ds_write_b128 v8, {vr(vO + 4*t)} offset:{t*1024}")
    a("v_lshl_add_u32 v11, v7, 4, v9")
    a("v_lshlrev_b32 v11, 4, v11")
    a("v_lshl_add_u32 v11, v6, 11, v11")
    a(f"s_lshl_b32 s48, s{sW}, 12")
    a("v_add_u32 v11, s48, v11")
    a("v_lshlrev_b32 v10, 11, v9")
    a("v_lshl_add_u32 v10, v6, 5, v10")
    a("v_lshl_add_u32 v10, v7, 3, v10")
    a(f"s_lshl_b32 s48, s{sW}, 17")
    a(f"s_lshl_b32 s49, s{sP_}, 14")
    a("s_add_u32 s48, s48, s49")
    a(f"s_lshl_b32 s49, s{sH}, 6")
    a("s_add_u32 s44, s48, s49")
    a("s_waitcnt lgkmcnt(0)")
    a("s_barrier")
    a.stamp(9)
    a.stamp_store(18, 0x200000, 10)
    a(f"s_cmp_ge_u32 s{sW}, 2")
    a("s_cbranch_scc1 L_end")
    for w in range(4):
        a(f"ds_read_b128 {vr(88 + w*8)}, v11 offset:{w*8192}")
        a(f"ds_read_b128 {vr(92 + w*8)}, v11 offset:{w*8192 + 1024 + 128}")
    for i in range(1, 8):
        a(f"s_waitcnt lgkmcnt({7 - i})")
        for r in range(4):
            a(f"v_add_f32 v{88 + r}, v{88 + r}, v{88 + 4*i + r}")
    a("v_cvt_pk_bf16_f32 v12, v88, v89")
    a("v_cvt_pk_bf16_f32 v13, v90, v91")
    a(f"buffer_store_dwordx2 v[12:13], v10, s[{sOUT}:{sOUT+3}], s44 offen{OPT.get('outflag','')}")
    a.label("L_end")
    a("s_endpgm")
    for q in range(16):
        a.label(f"L_bad{q}")
        a(f"s_bitset1_b32 s{sBad}, {q}")
        a(f"s_branch L_nx{q}")
    a.label("L_p0retry")
    a(f"s_sub_u32 s{sSpin}, s{sSpin}, 1")
    a(f"s_cmp_eq_u32 s{sSpin}, 0")
    a("s_cbranch_scc1 L_p0ok")
    for q in range(16):
        o_ld(q, 0, vB)
    a("s_waitcnt vmcnt(0)")
    a("s_branch L_p0chk")
    for li in range(2):
        ks = [n for n in sorted(snip) if (n < N2) == (li == 0)]
        if not ks: continue
        a.label(f"L_snip{li}")
        for n in ks:
            if n != ks[-1]:
                a(f"s_cmp_lg_u32 s{sIter}, {n}")
                a(f"s_cbranch_scc1 L_sn{n+1}")
            snip[n]()
            a(f"s_branch L_snip_ret{li}")
            if n != ks[-1]:
                a.label(f"L_sn{n+1}")

def kd(a, name):
    a.raw(".p2align 6")
    a.raw(f".amdhsa_kernel {name}")
    a.raw("  .amdhsa_next_free_vgpr 512")
    a.raw("  .amdhsa_next_free_sgpr 102")
    a.raw("  .amdhsa_accum_offset 256")
    a.raw("  .amdhsa_group_segment_fixed_size 0")
    a.raw("  .amdhsa_kernarg_size 64")
    a.raw("  .amdhsa_user_sgpr_count 2")
    a.raw("  .amdhsa_user_sgpr_kernarg_segment_ptr 1")
    a.raw("  .amdhsa_system_sgpr_workgroup_id_x 1")
    a.raw(".end_amdhsa_kernel")

def main(path):
    a = Asm()
    a.raw(HEADER.rstrip())
    a.raw(f"; @launch grid=(256,1,1) block=(256,1,1) lds={LDS_SIZE}")
    a.raw('.amdgcn_target "amdgcn-amd-amdhsa--gfx950"')
    a.raw(".text")
    gen_k1(a)
    a.raw('.section .rodata,"a"')
    kd(a, K1)
    open(path, "w").write(a.text())

if __name__ == "__main__":
    args = sys.argv[1:]
    if "--stamp" in args:
        STAMP = True
        args.remove("--stamp")
    rest = []
    for x in args:
        if "=" in x:
            k, v = x.split("=", 1)
            OPT[k] = v.replace("+", " ")
        else:
            rest.append(x)
    main(rest[0] if rest else "standalone__mha_block_cached__sampling.s")
```

```python
import sys, struct, math

def f32hex(x):
    return "0x%08x" % struct.unpack("<I", struct.pack("<f", x))[0]

STAMP = False
OPT = {}
class Asm:
    def __init__(self):
        self.L = []
        self.uid = 0
    def stamp(self, idx):
        if not STAMP: return
        self("s_memrealtime s[68:69]")
        self("s_waitcnt lgkmcnt(0)")
        self(f"s_mov_b32 s{70 + idx}, s68")
    def stamp_store(self, wsptr, base, n):
        if not STAMP: return
        self(f"s_mov_b32 s88, s{wsptr}")
        self(f"s_mov_b32 s89, s{wsptr+1}")
        self("s_mov_b32 s90, 0x40000000")
        self("s_mov_b32 s91, 0x00020000")
        self("s_lshl_b32 s92, s2, 3")
        self("s_add_u32 s92, s92, s40")
        self("s_lshl_b32 s92, s92, 6")
        self(f"s_add_u32 s92, s92, 0x{base:x}")
        self("v_mov_b32 v250, 0")
        for i in range(n):
            self(f"v_mov_b32 v251, s{70+i}")
            self(f"buffer_store_dword v251, v250, s[88:91], s92 offen offset:{4*i}")
            self("s_nop 1")
    def __call__(self, s):
        self.L.append("  " + s)
    def label(self, s):
        self.L.append(s + ":")
    def newlabel(self, p):
        self.uid += 1
        return f"L_{p}_{self.uid}"
    def raw(self, s):
        self.L.append(s)
    def text(self):
        return "\n".join(self.L) + "\n"

class MemSeq:
    def __init__(self, a, pre_kv=0):
        self.a = a; self.n = pre_kv; self.done = 0; self.kv = list(range(pre_kv)); self.slow = -1
    def issue(self, text, kv=False, slow=False):
        if text is not None: self.a(text)
        idx = self.n; self.n += 1
        if kv: self.kv.append(idx)
        if slow and self.slow < self.done: self.slow = idx
        return idx
    def wait_for(self, idx):
        if idx < self.done: return
        cnt = self.n - 1 - idx
        assert cnt <= 63, cnt
        self.a(f"s_waitcnt vmcnt({cnt})")
        self.done = idx + 1
    def pace(self, W):
        if len(self.kv) >= W:
            t = self.kv[-W]
            if self.slow >= self.done and t > self.slow: return
            self.wait_for(t)

def vr(b, n=4):
    return f"v[{b}:{b+n-1}]"
def ar(b, n=4):
    return f"a[{b}:{b+n-1}]"

HEADER = """; Kernarg layout for this problem (64 bytes, ptrs only, base s[0:1]):
"""

K1 = "standalone__mha_block_cached__sampling_kernel"

LDS_WO = 0
LDS_C = 32768
LDS_WQS = 0
LDS_XS = 65536
LDS_M = 98304
LDS_L = 100352
LDS_QF = 102400
LDS_CNT = 106496
LDS_SIZE = 106496 + 64
WOP = 0x400000
QP = 0xC00000
WS_SIZE = QP + 0x800000
FLQ = 0x300000
FLP = 0x310000

def gen_k1(a):
    W = int(OPT.get('W', 5))
    Wp = int(OPT.get('Wp', 5))
    Rn, Rd = [int(t) for t in OPT.get('R', '7/9').split('/')]
    vKoff, vVoff, vKoff2, vVoff2 = 1, 2, 3, 4
    vMc, vL, vT0, vT1 = 5, 6, 7, 20
    vS = 8
    vP = 16
    vAl, vT2, vT3 = 21, 22, 23
    vQ, vQ2 = 24, 32
    vO = 40
    vPT = 72
    vLdsO, vLdsM, vQF, vOne, vTr, vWoOff, vXoff, vWoff = 80, 81, 82, 83, 84, 85, 86, 87
    bK, bV = 88, 120
    vSR = 152
    vB = 168
    vAT = 232
    vCntL, vCntG, vDum = 248, 249, 252
    sX, sK, sV, sWQ, sWS, sWO, sOUT, sDBG, sNull = 20, 24, 28, 32, 36, 60, 64, 80, 96
    sWSo = 20
    sW, sH, sP_, sB1, sVoff, sKoff, sIter = 40, 41, 42, 43, 44, 45, 46
    sSelLo, sSelHi, sC, sBad, sSpin = 50, 51, 52, 53, 54
    sMask = 56
    sWoLd, sLb = 58, 59
    sXb, sWqb, sJ = 84, 85, 86
    vWoffB, vXt, vTq, vXrd = 253, 254, 216, 224
    sFl = 95
    sNon = 55
    vNon = 246
    sOld, sOst = 93, 94
    cscale = (128 ** -0.5) * math.log2(math.e)

    a.raw(f".globl {K1}")
    a.raw(".p2align 8")
    a.raw(f".type {K1},@function")
    a.label(K1)
    a("s_cmp_ge_u32 s2, 256")
    a("s_cbranch_scc1 L_end")
    a.stamp(0)
    a("s_load_dwordx16 s[4:19], s[0:1], 0")
    a("s_memrealtime s[90:91]")
    a("v_lshrrev_b32 v7, 6, v0")
    a("v_and_b32 v5, 63, v0")
    a("v_readfirstlane_b32 s40, v7")
    a("v_and_b32 v6, 15, v5")
    a("v_lshrrev_b32 v7, 4, v5")
    a("s_and_b32 s41, s2, 7")
    a("s_lshl_b32 s41, s41, 2")
    a("s_lshr_b32 s48, s2, 3")
    a("s_and_b32 s48, s48, 3")
    a("s_add_u32 s41, s41, s48")
    a("s_lshr_b32 s42, s2, 5")
    if OPT.get('map') == 'anti':
        a("s_lshr_b32 s41, s2, 3")
        a("s_and_b32 s42, s2, 7")
    t0, t1, t2, t3 = 240, 241, 242, 243
    a(f"v_and_b32 v{t0}, 3, v6")
    a(f"v_lshlrev_b32 v{t0}, 2, v{t0}")
    a(f"v_lshrrev_b32 v{t2}, 3, v6")
    a(f"v_and_b32 v{t3}, 7, v6")
    a(f"v_lshrrev_b32 v{t1}, 1, v6")
    a(f"v_xor_b32 v{t1}, v{t1}, v7")
    a(f"v_lshlrev_b32 v{vWoff}, 13, v7")
    a(f"v_lshl_add_u32 v{vWoff}, v{t1}, 5, v{vWoff}")
    a(f"v_and_b32 v{t1}, 1, v5")
    a(f"v_lshl_add_u32 v{vWoff}, v{t1}, 4, v{vWoff}")
    a(f"v_xor_b32 v{vWoffB}, 0x80, v{vWoff}")
    a(f"v_lshrrev_b32 v{t1}, 5, v5")
    a(f"v_and_b32 v{vXoff}, 31, v5")
    a(f"v_lshlrev_b32 v{vXoff}, 4, v{vXoff}")
    a(f"v_lshlrev_b32 v{vXt}, 6, v{t1}")
    a(f"v_xor_b32 v{vXoff}, v{vXoff}, v{vXt}")
    a(f"v_lshl_add_u32 v{vXoff}, v{t1}, 11, v{vXoff}")
    a(f"v_bfe_u32 v{t1}, v6, 2, 1")
    a(f"v_add_u32 v{t1}, v{t0}, v{t1}")
    a(f"v_lshlrev_b32 v{vKoff}, 8, v{t1}")
    a(f"v_lshl_add_u32 v{vKoff}, v{t2}, 6, v{vKoff}")
    a(f"v_lshl_add_u32 v{vKoff}, v7, 4, v{vKoff}")
    a(f"v_add_u32 v{vKoff2}, 0x1000, v{vKoff}")
    a(f"v_lshlrev_b32 v{vVoff}, 4, v5")
    a(f"v_add_u32 v{vVoff2}, 0x1000, v{vVoff}")
    a(f"s_and_b32 s{sJ}, s{sP_}, 3")
    a(f"s_and_b32 s48, s{sP_}, 4")
    a(f"s_add_u32 s48, s48, s{sW}")
    a(f"s_lshl_b32 s{sXb}, s48, 14")
    a(f"s_lshl_b32 s48, s{sJ}, 9")
    a(f"s_add_u32 s{sXb}, s{sXb}, s48")
    a(f"s_lshl_b32 s{sWqb}, s{sJ}, 21")
    a(f"s_lshl_b32 s48, s{sW}, 19")
    a(f"s_add_u32 s{sWqb}, s{sWqb}, s48")
    a(f"s_lshl_b32 s48, s{sH}, 8")
    a(f"s_add_u32 s{sWqb}, s{sWqb}, s48")
    a(f"s_lshl_b32 s{sVoff}, s{sP_}, 5")
    a(f"s_add_u32 s{sVoff}, s{sVoff}, s{sH}")
    a(f"s_lshl_b32 s{sVoff}, s{sVoff}, 19")
    a(f"s_lshl_b32 s48, s{sW}, 13")
    a(f"s_add_u32 s{sVoff}, s{sVoff}, s48")
    a(f"s_add_u32 s{sB1}, s{sVoff}, 0x8000000")
    for (d, size) in ((sX, 16*8*1024*2), (sWQ, 1024*4096*2), (sK, 1 << 28), (sV, 1 << 28)):
        a(f"s_mov_b32 s{d+2}, 0x{size:x}")
        a(f"s_mov_b32 s{d+3}, 0x00020000")
    a(f"s_mov_b32 s{sSelLo}, 0x05040100")
    a(f"s_mov_b32 s{sSelHi}, 0x07060302")
    a("s_waitcnt lgkmcnt(0)")
    for (d, src) in ((sX, 4), (sWQ, 10), (sK, 6), (sV, 8)):
        a(f"s_mov_b32 s{d}, s{src}")
        a(f"s_mov_b32 s{d+1}, s{src+1}")

    ms = MemSeq(a)
    NSL = 3
    def xreg(ks): return 8 + 4*ks
    def slot(ks): return 152 + (ks % NSL)*32

    def ld_K(ms, dst, j, soff):
        T, s = j >> 2, j & 3
        return ms.issue(f"buffer_load_dwordx4 {dst}, v{vKoff if T == 0 else vKoff2}, s[{sK}:{sK+3}], s{soff} offen offset:{(s>>1)*512 + (s&1)*128} nt", kv=True)
    def ld_V(ms, dst, i, soff):
        return ms.issue(f"buffer_load_dwordx4 {dst}, v{vVoff if i < 4 else vVoff2}, s[{sV}:{sV+3}], s{soff} offen offset:{(i&3)*1024} nt", kv=True)

    stage = []
    for b in range(4):
        for j in range(8): stage.append(('K', b, j))
        for j in range(8): stage.append(('V', b, j))
    for j in range(8): stage.append(('K', 4, j))
    st = {'pos': 0, 'idx': {}}
    def stage_one(Wx):
        if st['pos'] >= len(stage): return False
        kind, b, j = stage[st['pos']]; st['pos'] += 1
        if len(ms.kv) >= Wx and not st.get('late'):
            st['late'] = True
            late_setup()
        ms.pace(Wx)
        if kind == 'K':
            dst = ar(64*b + 4*j) if b < 4 else vr(bK + 4*j)
            st['idx'][(kind, b, j)] = ld_K(ms, dst, j, sVoff)
        else:
            st['idx'][(kind, b, j)] = ld_V(ms, ar(64*b + 32 + 4*j), j, sVoff)
            if j == 7:
                a(f"s_add_u32 s{sVoff}, s{sVoff}, 0x8000")
        return True

    def perm_c(src, c):
        for hb, sel in ((0, sSelLo), (1, sSelHi)):
            for t in range(4):
                a(f"v_perm_b32 v{vPT + hb*4 + t}, v{src[2*t+1] + c}, v{src[2*t] + c}, s{sel}")
    def mfma_c(bop, c, first):
        a("s_nop 1")
        for hb in range(2):
            j = 2*c + hb
            cc = "0" if first else vr(vO + 4*j)
            a(f"v_mfma_f32_16x16x32_bf16 {vr(vO + 4*j)}, {vr(vPT + hb*4)}, {vr(bop)}, {cc}")
    def reset_state():
        for r in range(32):
            a(f"v_mov_b32 v{vO + r}, 0")
        a(f"v_mov_b32 v{vMc}, 0xff800000")
        a(f"v_mov_b32 v{vL}, 0")

    def late_setup():
        a(f"v_lshl_add_u32 v{t1}, v7, 4, v{t3}")
        a(f"v_lshlrev_b32 v{t1}, 4, v{t1}")
        a(f"v_lshl_add_u32 v{t1}, v{t2}, 10, v{t1}")
        a(f"v_add_u32 v{vQF}, 0x{LDS_QF:x}, v{t1}")
        a(f"v_mov_b32 v{vCntL}, 0x{LDS_CNT:x}")
        a(f"v_mov_b32 v{vOne}, 0")
        a(f"ds_write_b32 v{vCntL}, v{vOne}")
        a(f"ds_write_b32 v{vCntL}, v{vOne} offset:4")
        a(f"ds_write_b32 v{vCntL}, v{vOne} offset:8")
        a(f"ds_write_b32 v{vCntL}, v{vOne} offset:12")
        a(f"v_lshl_add_u32 v{t1}, v7, 3, v{t3}")
        a(f"v_lshlrev_b32 v{t1}, 4, v{t1}")
        a(f"s_lshl_b32 s48, s{sW}, 12")
        a(f"s_add_u32 s48, s48, 0x{LDS_C:x}")
        a(f"v_add_u32 v{vLdsO}, s48, v{t1}")
        a(f"s_lshl_b32 s48, s{sW}, 8")
        a(f"s_add_u32 s48, s48, 0x{LDS_M:x}")
        a(f"v_lshlrev_b32 v{t1}, 2, v5")
        a(f"v_add_u32 v{vLdsM}, s48, v{t1}")
        a(f"v_lshlrev_b32 v{vWoOff}, 11, v7")
        a(f"v_lshl_add_u32 v{vWoOff}, v6, 4, v{vWoOff}")
        a(f"v_lshrrev_b32 v{t1}, 2, v6")
        a(f"v_lshl_add_u32 v{t1}, v7, 3, v{t1}")
        a(f"v_lshlrev_b32 v{vTr}, 8, v{t1}")
        a(f"v_lshl_add_u32 v{vTr}, v{t0}, 1, v{vTr}")
        a(f"s_lshl_b32 s{sLb}, s{sW}, 13")
        a(f"v_add_u32 v{vTr}, s{sLb}, v{vTr}")
        a(f"v_mov_b32 v{vOne}, 1")
        a(f"s_mov_b32 s{sC}, {f32hex(cscale)}")
        a(f"s_mov_b32 s{sMask}, 0x00ff00ff")
        a(f"s_mov_b32 s{sMask+1}, 0x00ff00ff")
        for (d, src, size) in ((sWS, 18, WS_SIZE), (sWO, 12, 4096*1024*2), (sOUT, 14, 128*1024*2), (sDBG, 16, 256), (sNull, 18, 0)):
            a(f"s_mov_b32 s{d}, s{src}")
            a(f"s_mov_b32 s{d+1}, s{src+1}")
            a(f"s_mov_b32 s{d+2}, 0x{size:x}")
            a(f"s_mov_b32 s{d+3}, 0x00020000")
        a(f"s_lshl_b32 s{sWoLd}, s{sH}, 18")
        a(f"s_lshl_b32 s48, s{sW}, 16")
        a(f"s_add_u32 s{sWoLd}, s{sWoLd}, s48")
        a(f"s_add_u32 s{sWoLd}, s{sWoLd}, 0x{WOP:x}")
        a(f"s_lshl_b32 s{sOld}, s{sP_}, 16")
        a(f"s_lshl_b32 s48, s{sW}, 14")
        a(f"s_add_u32 s{sOld}, s{sOld}, s48")
        a(f"s_lshl_b32 s{sOst}, s{sP_}, 16")
        a(f"s_lshl_b32 s48, s{sH}, 11")
        a(f"s_add_u32 s{sOst}, s{sOst}, s48")
        a(f"s_and_b32 s48, s{sW}, 1")
        a("s_lshl_b32 s48, s48, 10")
        a(f"s_add_u32 s{sOst}, s{sOst}, s48")

    if OPT.get('noq7'):
        a(f"s_mov_b32 s{sX+2}, 0")
        a(f"s_mov_b32 s{sWQ+2}, 0")
    dl = []
    for m in range(8): dl.append(('x', m))
    for m in range(16): dl.append(('w', m))
    order = []
    for i in range(8):
        order += [dl[i], dl[8 + 2*i], dl[9 + 2*i]]
    last_dma = None
    for i, (kind, m) in enumerate(order):
        if kind == 'x':
            a(f"s_lshl_b32 s48, s{sW}, 13")
            a(f"s_add_u32 m0, s48, 0x{LDS_XS + m*1024:x}")
            a(f"s_add_u32 s49, s{sXb}, 0x{(m&3)*4096 + (m>>2)*131072:x}")
            src = vXoff
            if m & 3:
                a(f"v_xor_b32 v{vXt}, 0x{(m&3) << 7:x}, v{vXoff}")
                src = vXt
            last_dma = ms.issue(f"buffer_load_dwordx4 v{src}, s[{sX}:{sX+3}], s49 offen lds")
        else:
            a(f"s_lshl_b32 s48, s{sW}, 14")
            a(f"s_add_u32 m0, s48, 0x{LDS_WQS + m*1024:x}")
            a(f"s_add_u32 s49, s{sWqb}, 0x{m*32768:x}")
            last_dma = ms.issue(f"buffer_load_dwordx4 v{vWoffB if m & 2 else vWoff}, s[{sWQ}:{sWQ+3}], s49 offen{OPT.get('wqflag','')} lds")
        if i % int(OPT.get('DI', 3)) == 1:
            stage_one(Wp)
    if not st.get('late'):
        st['late'] = True
        late_setup()
    a(f"s_mov_b32 s{sNull}, s16")
    a(f"s_mov_b32 s{sNull+1}, s17")
    a(f"s_cmp_eq_u32 s{sW}, 0")
    a(f"s_cselect_b32 s{sNull+2}, 256, 0")
    a(f"s_mov_b32 s{sNull+3}, 0x00020000")
    a(f"v_mov_b32 v{vNon+1}, 0")
    a(f"s_or_b32 s{sNon}, s90, 1")
    a(f"v_mov_b32 v{vNon}, s{sNon}")
    a("s_mov_b64 exec, 1")
    nidx = ms.issue(f"buffer_atomic_cmpswap v[{vNon}:{vNon+1}], v{vNon+1}, s[{sNull}:{sNull+3}], 0 offen sc0 sc1", slow=True)
    a("s_mov_b64 exec, -1")
    a("s_nop 0")
    a(f"s_mov_b32 s{sNull}, s18")
    a(f"s_mov_b32 s{sNull+1}, s19")
    a(f"s_mov_b32 s{sNull+2}, 0")
    a(f"v_lshrrev_b32 v{vXt}, 2, v6")
    a(f"v_and_b32 v{vTq+1}, 1, v7")
    a(f"v_lshl_add_u32 v{vTq+1}, v{vTq+1}, 2, v{vXt}")
    a(f"v_lshl_add_u32 v{vTq}, v7, 3, v{vXt}")
    a(f"v_lshlrev_b32 v{vTq}, 8, v{vTq}")
    a(f"v_lshl_add_u32 v{vTq}, v{vTq+1}, 5, v{vTq}")
    a(f"v_and_b32 v{vXt}, 3, v6")
    a(f"v_lshl_add_u32 v{vTq}, v{vXt}, 3, v{vTq}")
    for t in range(1, 8):
        a(f"v_xor_b32 v{vTq+t}, {t << 5}, v{vTq}")
    a(f"v_lshlrev_b32 v{vXrd}, 9, v6")
    a(f"v_lshl_add_u32 v{vXrd}, v7, 4, v{vXrd}")
    a(f"v_and_b32 v{vXt}, 7, v6")
    a(f"v_lshl_add_u32 v{vXrd}, v{vXt}, 6, v{vXrd}")
    a(f"s_lshl_b32 s48, s{sW}, 13")
    a(f"s_add_u32 s48, s48, 0x{LDS_XS:x}")
    a(f"v_add_u32 v{vXrd}, s48, v{vXrd}")
    for i in range(int(OPT.get('SA', 2))): stage_one(Wp)
    ms.wait_for(last_dma)
    a("s_waitcnt lgkmcnt(0)")
    a("s_barrier")
    def q_reads(ks):
        A0 = 152 + (ks & 1)*32
        if ks:
            a(f"v_xor_b32 v{vXt}, 0x{ks << 6:x}, v{vXrd}")
        a(f"ds_read_b128 {vr(8 + (ks&1)*4)}, v{vXt if ks else vXrd}")
        for t in range(8):
            for half in range(2):
                d = A0 + t*4 + half*2
                a(f"ds_read_b64_tr_b16 v[{d}:{d+1}], v{vTq+t} offset:{ks*8192 + half*1024}")
    q_reads(0)
    for ks in range(8):
        if ks < 7:
            a("s_waitcnt lgkmcnt(0)")
            q_reads(ks + 1)
        else:
            a("s_waitcnt lgkmcnt(0)")
        A0 = 152 + (ks & 1)*32
        for t in range(8):
            cc = "0" if ks == 0 else vr(vO + 4*t)
            a(f"v_mfma_f32_16x16x32_bf16 {vr(vO + 4*t)}, {vr(A0 + 4*t)}, {vr(8 + (ks&1)*4)}, {cc}")
        stage_one(Wp)
    a.stamp(1)
    a("s_and_b32 s48, s2, 0x9f")
    a(f"s_lshl_b32 s49, s{sW}, 5")
    a("s_or_b32 s48, s48, s49")
    a("s_lshl_b32 s48, s48, 2")
    a(f"s_add_u32 s48, s48, s{sJ}")
    a("s_lshl_b32 s48, s48, 13")
    a(f"s_add_u32 s48, s48, 0x{QP:x}")
    a(f"s_mov_b32 s{sWSo}, s18")
    a(f"s_mov_b32 s{sWSo+1}, s19")
    a(f"s_cmp_lg_u32 s{sW}, s{sJ}")
    a(f"s_cselect_b32 s{sWSo+2}, 0x{WS_SIZE if not OPT.get('noq7') else 0:x}, 0")
    a("s_nop 3")
    for t in range(8):
        qst = ms.issue(f"buffer_store_dwordx4 {vr(vO + 4*t)}, v{vVoff if t < 4 else vVoff2}, s[{sWSo}:{sWSo+3}], s48 offen offset:{(t&3)*1024} sc1", slow=True)
    a(f"s_cbranch_scc1 L_notown")
    a(f"s_lshl_b32 s48, s{sW}, 13")
    a(f"s_add_u32 s48, s48, 0x{LDS_XS:x}")
    a(f"v_add_u32 v8, s48, v{vVoff}")
    for t in range(8):
        a(f"ds_write_b128 v8, {vr(vO + 4*t)} offset:{t*1024}")
    a.label("L_notown")
    a(f"s_lshl_b32 s{sFl}, s2, 7")
    a(f"s_add_u32 s{sFl}, s{sFl}, 0x{FLQ:x}")
    for i in range(int(OPT.get('SB', 10))): stage_one(Wp)
    def signal(soff, cnt_off):
        a("s_waitcnt lgkmcnt(0)")
        a("s_mov_b64 exec, 1")
        a(f"ds_add_rtn_u32 v{vCntG}, v{vCntL}, v{vOne} offset:{cnt_off}")
        a(f"v_mov_b32 v{vDum}, s{sNon}")
        a("s_waitcnt lgkmcnt(0)")
        a(f"v_readfirstlane_b32 s49, v{vCntG}")
        a(f"v_mov_b32 v{vCntG}, 0")
        a("s_cmp_eq_u32 s49, 3")
        a(f"s_cselect_b32 s{sNull+2}, 0x{WS_SIZE:x}, 0")
        a("s_nop 0")
        ms.issue(f"buffer_store_dword v{vDum}, v{vCntG}, s[{sNull}:{sNull+3}], s{soff} offen sc1", slow=True)
        a("s_mov_b64 exec, -1")
        a("s_nop 0")
        a(f"s_mov_b32 s{sNull+2}, 0")
    ms.wait_for(qst)
    if OPT.get('xst'): a.stamp(3)
    a(f"v_readfirstlane_b32 s48, v{vNon}")
    a("s_cmp_eq_u32 s48, 0")
    a(f"s_cselect_b32 s48, s{sNon}, s48")
    a(f"v_mov_b32 v{vNon}, s48")
    a(f"s_cmp_lg_u32 s{sW}, 0")
    a("s_cbranch_scc1 L_nonw")
    a(f"ds_write_b32 v{vCntL}, v{vNon} offset:12")
    a.label("L_nonw")
    a(f"s_mov_b32 s{sSpin}, 0x100000")
    a.label("L_nonp")
    a(f"ds_read_b32 v{vNon}, v{vCntL} offset:12")
    a(f"s_sub_u32 s{sSpin}, s{sSpin}, 1")
    a("s_waitcnt lgkmcnt(0)")
    a(f"v_readfirstlane_b32 s{sNon}, v{vNon}")
    a(f"s_cmp_eq_u32 s{sSpin}, 0")
    a("s_cbranch_scc1 L_nond")
    a(f"s_cmp_eq_u32 s{sNon}, 0")
    a("s_cbranch_scc1 L_nonp")
    a.label("L_nond")
    if OPT.get('xst'): a.stamp(4)
    signal(sFl, 8)
    for i in range(int(OPT.get('SC', 14))): stage_one(Wp)
    a("s_and_b32 s47, s2, 0x9f")
    a("s_lshl_b32 s47, s47, 7")
    a(f"s_add_u32 s47, s47, 0x{FLQ:x}")
    a(f"v_and_b32 v{vCntG}, 3, v0")
    a(f"v_lshlrev_b32 v{vCntG}, 12, v{vCntG}")
    pidx = ms.issue(f"buffer_load_dword v{vDum}, v{vCntG}, s[{sWS}:{sWS+3}], s47 offen sc1")
    for i in range(2): stage_one(Wp)
    ms.wait_for(pidx)
    a(f"s_mov_b32 s{sSpin}, 0x20000")
    a.label("L_qpoll")
    a(f"v_cmp_ne_u32 vcc, s{sNon}, v{vDum}")
    a("s_cbranch_vccz L_qok")
    if OPT.get('noq7'): a("s_branch L_qok")
    a(f"s_sub_u32 s{sSpin}, s{sSpin}, 1")
    a(f"s_cmp_eq_u32 s{sSpin}, 0")
    a("s_cbranch_scc1 L_qok")
    a("s_sleep 2")
    a(f"buffer_load_dword v{vDum}, v{vCntG}, s[{sWS}:{sWS+3}], s47 offen sc1")
    a("s_waitcnt vmcnt(0)")
    a("s_branch L_qpoll")
    a.label("L_qok")
    if OPT.get('xst'): a.stamp(5)
    a("s_lshl_b32 s48, s2, 15")
    a(f"s_lshl_b32 s49, s{sW}, 11")
    a("s_add_u32 s48, s48, s49")
    a(f"s_add_u32 s48, s48, 0x{QP:x}")
    for jj in range(4):
        a(f"s_cmp_lg_u32 s{sJ}, {jj}")
        a(f"s_cselect_b32 s{sWSo+2}, 0x{WS_SIZE if not OPT.get('noq7') else 0:x}, 0")
        for tt in range(2):
            gl = ms.issue(f"buffer_load_dwordx4 {vr(vO + (jj*2+tt)*4)}, v{vVoff}, s[{sWSo}:{sWSo+3}], s48 offen offset:{tt*1024} sc1")
        if jj < 3: a("s_add_u32 s48, s48, 0x2000")
    a(f"s_lshl_b32 s48, s{sJ}, 13")
    a(f"s_add_u32 s48, s48, s49")
    a(f"s_add_u32 s48, s48, 0x{LDS_XS:x}")
    a(f"v_add_u32 v8, s48, v{vVoff}")
    for tt in range(2):
        a(f"ds_read_b128 {vr(12 + tt*4)}, v8 offset:{tt*1024}")
    a("v_and_b32 v9, 15, v0")
    a("v_lshlrev_b32 v9, 4, v9")
    a("v_bfe_u32 v10, v0, 5, 1")
    a("v_lshl_add_u32 v9, v10, 8, v9")
    a("v_bfe_u32 v10, v0, 4, 1")
    a("v_lshl_add_u32 v9, v10, 3, v9")
    a(f"s_lshl_b32 s48, s{sW}, 10")
    a(f"s_add_u32 s48, s48, 0x{LDS_QF:x}")
    a("v_add_u32 v9, s48, v9")
    a(f"s_cmp_lt_u32 s{sW}, 2")
    a(f"s_cselect_b32 s{sWSo+2}, 0x100000, 0")
    for i in range(int(OPT.get('SD', 5))): stage_one(Wp)
    ms.wait_for(gl)
    if OPT.get('xst'): a.stamp(6)
    a("s_waitcnt lgkmcnt(0)")
    for r in range(8):
        a(f"v_add_f32 v{vO + r}, v{vO + r}, v{vO + 8 + r}")
        a(f"v_add_f32 v{vO + 16 + r}, v{vO + 16 + r}, v{vO + 24 + r}")
    for r in range(8):
        a(f"v_add_f32 v{vO + r}, v{vO + r}, v{12 + r}")
    for r in range(8):
        a(f"v_add_f32 v{vO + r}, v{vO + r}, v{vO + 16 + r}")
    for s_ in range(4):
        a(f"v_cvt_pk_bf16_f32 v{20 + s_}, v{vO + 2*s_}, v{vO + 2*s_ + 1}")
    for tt in range(2):
        a(f"ds_write_b64 v9, v[{20 + 2*tt}:{21 + 2*tt}] offset:{tt*512}")
    stage_one(Wp)
    a("s_waitcnt lgkmcnt(0)")
    a("s_barrier")
    for ph in range(2):
        for sp in range(2):
            a(f"ds_read_b128 {vr(vQ + ph*8 + sp*4)}, v{vQF} offset:{sp*2048 + ph*128}")
    reset_state()
    a("s_waitcnt lgkmcnt(0)")
    a.stamp(2)

    def p_QK(kop):
        for T in range(2):
            for s in range(4):
                d = vSR + (T*2 + (s>>1))*4
                cc = "0" if (s & 1) == 0 else vr(d)
                a(f"v_mfma_f32_16x16x32_bf16 {vr(d)}, {kop(T*4+s)}, {vr(vQ + 4*(s&1))}, {cc}")
    def p_SM1():
        a("s_nop 7")
        for T in range(2):
            for r in range(4):
                a(f"v_permlane32_swap_b32 v{vSR + T*8 + r}, v{vSR + T*8 + 4 + r}")
        a("s_nop 0")
        for T in range(2):
            for r in range(4):
                a(f"v_add_f32_dpp v{vS + T*4 + r}, v{vSR + T*8 + 4 + r}, v{vSR + T*8 + r} row_ror:8 row_mask:0xf bank_mask:0xf")
        a(f"v_max3_f32 v{vT0}, v{vS+0}, v{vS+1}, v{vS+2}")
        a(f"v_max3_f32 v{vT0}, v{vT0}, v{vS+3}, v{vS+4}")
        a(f"v_max3_f32 v{vT0}, v{vT0}, v{vS+5}, v{vS+6}")
        a(f"v_max_f32 v{vT0}, v{vT0}, v{vS+7}")
        a(f"v_mov_b32 v{vT1}, v{vT0}")
        a("s_nop 1")
        a(f"v_permlane16_swap_b32 v{vT0}, v{vT1}")
        a("s_nop 1")
        a(f"v_max_f32 v{vT0}, v{vT0}, v{vT1}")
        a(f"v_mov_b32 v{vT1}, v{vT0}")
        a("s_nop 1")
        a(f"v_permlane32_swap_b32 v{vT0}, v{vT1}")
        a("s_nop 1")
        a(f"v_max_f32 v{vT0}, v{vT0}, v{vT1}")
        a(f"v_mul_f32 v{vT0}, s{sC}, v{vT0}")
        a(f"v_max_f32 v{vT0}, v{vT0}, v{vMc}")
        a(f"v_sub_f32 v{vAl}, v{vMc}, v{vT0}")
        a(f"v_exp_f32 v{vAl}, v{vAl}")
        a(f"v_mov_b32 v{vMc}, v{vT0}")
    def p_SM2():
        for i in range(8):
            a(f"v_fma_f32 v{vS+i}, v{vS+i}, s{sC}, -v{vMc}")
        for i in range(8):
            a(f"v_exp_f32 v{vS+i}, v{vS+i}")
        a("s_nop 0")
        a(f"v_add_f32 v{vT2}, v{vS+0}, v{vS+1}")
        a(f"v_add_f32 v{vT3}, v{vS+2}, v{vS+3}")
        a(f"v_add_f32 v{vT0}, v{vS+4}, v{vS+5}")
        a(f"v_add_f32 v{vT1}, v{vS+6}, v{vS+7}")
        a(f"v_add_f32 v{vT2}, v{vT2}, v{vT3}")
        a(f"v_add_f32 v{vT0}, v{vT0}, v{vT1}")
        a(f"v_add_f32 v{vT2}, v{vT2}, v{vT0}")
        a(f"v_fma_f32 v{vL}, v{vL}, v{vAl}, v{vT2}")
        for t in range(4):
            a(f"v_cvt_pk_bf16_f32 v{vP + t}, v{vS + 2*t}, v{vS + 2*t + 1}")
    def p_RS():
        a("s_nop 7")
        for r in range(32):
            a(f"v_mul_f32 v{vO + r}, v{vAl}, v{vO + r}")
    def p_PV(c):
        perm_c([bV + 4*i for i in range(8)], c)
        mfma_c(vP, c, False)
    def p_PVs(b, c):
        base = vAT + (c & 1)*8
        for i in range(8):
            a(f"v_accvgpr_read_b32 v{base + i}, a{64*b + 32 + 4*i + c}")
        perm_c([base + i for i in range(8)], 0)
        mfma_c(vP, c, False)

    def iteration(ms, kidx, staged=None, extras=None, static_n=None, extras7=None, W=W):
        pieces = {s: [] for s in range(16)}
        def wq_(): ms.wait_for(kidx[7]); p_QK(lambda j: vr(bK + 4*j))
        pq = max(W - 1, 4 if staged is not None else 0)
        pieces[pq].append(wq_)
        pieces[pq+1].append(p_SM1)
        pieces[pq+2].append(p_SM2)
        pieces[pq+3].append(p_RS)
        vidx = []
        for c in range(4):
            def f(c=c):
                ms.wait_for(vidx[7]); p_PV(c)
            pieces[min(15, 8 + W - 1 + c)].append(f)
        if staged is not None:
            b = staged
            def sq():
                ms.wait_for(st['idx'][('V', b, 7)]); p_QK(lambda j: ar(64*b + 4*j))
            pieces[0].insert(0, sq)
            pieces[1] = [p_SM1, p_SM2] + pieces[1]
            pieces[2] = [p_RS, lambda: p_PVs(b, 0), lambda: p_PVs(b, 1)] + pieces[2]
            pieces[3] = [lambda: p_PVs(b, 2), lambda: p_PVs(b, 3)] + pieces[3]
        knew = []
        for s in range(16):
            ms.pace(W)
            if s < 8:
                vidx.append(ld_V(ms, vr(bV + 4*s), s, sVoff))
            else:
                knew.append(ld_K(ms, vr(bK + 4*(s-8)), s - 8, sKoff))
            if s == 0:
                if extras: extras()
                a(f"s_add_u32 s{sKoff}, s{sVoff}, 0x8000")
                if static_n is None:
                    a(f"s_cmp_eq_u32 s{sIter}, 15")
                    a(f"s_cselect_b32 s{sKoff}, s{sB1}, s{sKoff}")
                    a(f"s_cmp_eq_u32 s{sIter}, 31")
                    a(f"s_cselect_b32 s{sK+2}, 0, s{sK+2}")
            for f in pieces[s]: f()
            if s == 7 and extras7: extras7()
            assert not (s == 7 and pq > 7)
        a(f"s_mov_b32 s{sVoff}, s{sKoff}")
        return knew

    while stage_one(W): pass
    kidx = [st['idx'][('K', 4, j)] for j in range(8)]

    pre = {}
    def ex4():
        a("s_lshr_b32 s48, s2, 1")
        a("s_lshl_b32 s48, s48, 16")
        a("s_and_b32 s49, s2, 1")
        a("s_lshl_b32 s49, s49, 10")
        a("s_add_u32 s48, s48, s49")
        a(f"s_lshl_b32 s49, s{sW}, 8")
        a("s_add_u32 s48, s48, s49")
        for m in range(8):
            a(f"s_add_u32 m0, s{sLb}, {m*1024}")
            a("s_nop 0")
            pre['dma'] = ms.issue(f"buffer_load_dwordx4 v{vWoOff}, s[{sWO}:{sWO+3}], s48 offen nt lds")
            if m < 7: a("s_add_u32 s48, s48, 0x2000")
    def ex5():
        ms.wait_for(pre['dma'])
        for t in range(8):
            for half in range(2):
                d = vB + t*4 + half*2
                a(f"ds_read_b64_tr_b16 v[{d}:{d+1}], v{vTr} offset:{half*1024 + t*32}")
        a("s_and_b32 s48, s2, 1")
        a("s_lshl_b32 s48, s48, 4")
        a(f"s_lshl_b32 s49, s{sW}, 2")
        a("s_add_u32 s48, s48, s49")
        a("s_lshl_b32 s48, s48, 18")
        a("s_lshr_b32 s49, s2, 1")
        a("s_lshl_b32 s49, s49, 11")
        a("s_add_u32 s48, s48, s49")
        a(f"s_add_u32 s48, s48, 0x{WOP:x}")
        a("s_waitcnt lgkmcnt(0)")
        for t in range(8):
            pre['st'] = ms.issue(f"buffer_store_dwordx4 {vr(vB + 4*t)}, v{vVoff}, s[{sWS}:{sWS+3}], s48 offen offset:{(t&1)*1024}{OPT.get('wosflag', ' sc1')}", slow=True)
            if t & 1 and t < 7: a("s_add_u32 s48, s48, 0x40000")
        for r in range(4):
            a(f"v_mov_b32 v{vB + 60 + r}, -1")
        a(f"s_lshr_b32 s48, s{sW}, 1")
        a("s_lshl_b32 s48, s48, 19")
        a(f"s_add_u32 s48, s48, s{sOst}")
        pre['st'] = ms.issue(f"buffer_store_dwordx4 {vr(vB + 60)}, v{vVoff}, s[{sWS}:{sWS+3}], s48 offen sc1", slow=True)
    def ex6():
        ms.wait_for(pre['st'])
        a(f"s_lshl_b32 s{sFl}, s2, 2")
        a(f"s_add_u32 s{sFl}, s{sFl}, 0x{FLP:x}")
        signal(sFl, 4)
    exs = {4: ex4}
    exs7 = {4: ex5, 6: ex6}
    if OPT.get('nopre'): exs = {}; exs7 = {}
    for n in range(4, 8):
        kidx = iteration(ms, kidx, staged=n - 4, extras=exs.get(n), static_n=n, extras7=exs7.get(n))
        if not OPT.get('xst'): a.stamp(n - 1)
    a(f"s_mov_b32 s{sIter}, 8")

    def flush():
        a(f"v_mov_b32 v{vT1}, v{vL}")
        a("s_nop 1")
        a(f"v_permlane16_swap_b32 v{vL}, v{vT1}")
        a("s_nop 1")
        a(f"v_add_f32 v{vL}, v{vL}, v{vT1}")
        a(f"v_mov_b32 v{vT1}, v{vL}")
        a("s_nop 1")
        a(f"v_permlane32_swap_b32 v{vL}, v{vT1}")
        a("s_nop 1")
        a(f"v_add_f32 v{vL}, v{vL}, v{vT1}")
        a(f"ds_write_b32 v{vLdsM}, v{vMc}")
        a(f"ds_write_b32 v{vLdsM}, v{vL} offset:{LDS_L - LDS_M}")
        a(f"s_mov_b64 exec, s[{sMask}:{sMask+1}]")
        for j in range(8):
            a(f"ds_write_b128 v{vLdsO}, {vr(vO + 4*j)} offset:{j*512}")
        a("s_mov_b64 exec, -1")

    def combine_addr(ph, vA, vM):
        a(f"v_and_b32 v{vA}, 15, v0")
        a(f"v_lshlrev_b32 v{vA}, 4, v{vA}")
        a(f"v_bfe_u32 v{vM}, v0, 4, 2")
        a(f"v_lshl_add_u32 v{vA}, v{vM}, 2, v{vA}")
        a(f"s_and_b32 s49, s{sW}, 1")
        a("s_lshl_b32 s49, s49, 8")
        a(f"s_add_u32 s49, s49, 0x{LDS_C + ph*0x4000:x}")
        a(f"v_add_u32 v{vA}, s49, v{vA}")
        a(f"v_and_b32 v{vM}, 7, v0")
        a(f"v_lshlrev_b32 v{vM}, 2, v{vM}")
        a(f"v_add_u32 v{vM}, 0x{LDS_M + ph*0x400:x}, v{vM}")
    def combine(ph, vA, vM, R):
        vm, vl, vo, vx, vacc, vout = R, R+4, R+8, R+40, R+44, R+52
        for w in range(4):
            a(f"ds_read_b32 v{vm + w}, v{vM} offset:{w*256}")
        for w in range(4):
            a(f"ds_read_b32 v{vl + w}, v{vM} offset:{LDS_L - LDS_M + w*256}")
        for j in range(6):
            a(f"ds_read_b32 v{vo + j}, v{vA} offset:{j*512}")
        a("s_waitcnt lgkmcnt(10)")
        a(f"v_max3_f32 v{vx}, v{vm}, v{vm+1}, v{vm+2}")
        a(f"v_max_f32 v{vx}, v{vx}, v{vm+3}")
        for ww in range(4):
            a(f"v_sub_f32 v{vm+ww}, v{vm+ww}, v{vx}")
        for ww in range(4):
            a(f"v_exp_f32 v{vm+ww}, v{vm+ww}")
        for n in range(6, 32):
            w, j = n >> 3, n & 7
            a(f"ds_read_b32 v{vo + n}, v{vA} offset:{w*4096 + j*512}")
            if n == 8:
                a("s_waitcnt lgkmcnt(9)")
                a(f"v_mul_f32 v{vx+1}, v{vm}, v{vl}")
                for ww in range(1, 4):
                    a(f"v_fma_f32 v{vx+1}, v{vm+ww}, v{vl+ww}, v{vx+1}")
                a(f"v_rcp_f32 v{vx+1}, v{vx+1}")
        a("s_nop 0")
        for ww in range(4):
            a(f"v_mul_f32 v{vm+ww}, v{vx+1}, v{vm+ww}")
        a("s_waitcnt lgkmcnt(0)")
        for j in range(8):
            a(f"v_mul_f32 v{vacc+j}, v{vm}, v{vo + j}")
        for w in range(1, 4):
            for j in range(8):
                a(f"v_fma_f32 v{vacc+j}, v{vm+w}, v{vo + w*8 + j}, v{vacc+j}")
        for t in range(4):
            a(f"v_cvt_pk_bf16_f32 v{vout+t}, v{vacc+2*t}, v{vacc+2*t+1}")
        for t in range(4):
            a(f"v_min_u32 v{vout+t}, -2, v{vout+t}")
        if ph:
            a(f"s_add_u32 s49, s{sOst}, 0x80000")
        else:
            a(f"s_mov_b32 s49, s{sOst}")
        a(f"buffer_store_dwordx4 {vr(vout)}, v{vVoff}, s[{sWSo}:{sWSo+3}], s49 offen sc1")

    def dummy(k):
        for _ in range(k):
            a(f"buffer_load_dword v{vDum}, v{vVoff}, s[{sNull}:{sNull+3}], 0 offen")
    def wo_ld(q):
        if OPT.get('nowo7'): return dummy(4)
        a(f"s_lshl_b32 s48, s{sP_}, 2" if not OPT.get('norot') else "s_mov_b32 s48, 0")
        a(f"s_add_u32 s48, s48, {2*q}")
        a("s_and_b32 s48, s48, 31")
        a("s_lshl_b32 s48, s48, 11")
        a(f"s_add_u32 s48, s48, s{sWoLd}")
        for i in range(4):
            a(f"buffer_load_dwordx4 {ar(16*q + 4*i)}, v{vVoff}, s[{sWS}:{sWS+3}], s48 offen offset:{i*1024}{OPT.get('wolflag', ' sc1')}")
    def o_ld(q, bb, dst):
        a(f"s_lshl_b32 s48, s{sP_}, 1" if not OPT.get('norot') else "s_mov_b32 s48, 0")
        a(f"s_add_u32 s48, s48, {q}")
        a("s_and_b32 s48, s48, 15")
        a("s_lshl_b32 s48, s48, 10")
        a(f"s_add_u32 s48, s48, s{sOld}")
        if bb: a("s_add_u32 s48, s48, 0x80000")
        a(f"buffer_load_dwordx4 {vr(dst + 4*q)}, v{vVoff}, s[{sWS}:{sWS+3}], s48 offen sc1")
    def cnt_ld():
        a(f"s_mov_b32 s48, 0x{FLP:x}")
        a(f"buffer_load_dwordx4 {vr(vB + 56)}, v{vVoff}, s[{sWS}:{sWS+3}], s48 offen sc1")
    def cnt_check():
        lp, ld = a.newlabel("cp"), a.newlabel("cd")
        if OPT.get('nopre'): return
        a(f"s_mov_b32 s{sSpin}, 0x20000")
        a.label(lp)
        for r in range(4):
            a(f"v_xor_b32 v{vB + 56 + r}, s{sNon}, v{vB + 56 + r}")
        a(f"v_or3_b32 v{vB + 56}, v{vB + 56}, v{vB + 57}, v{vB + 58}")
        a(f"v_or_b32 v{vB + 56}, v{vB + 56}, v{vB + 59}")
        a(f"v_cmp_ne_u32 vcc, 0, v{vB + 56}")
        a(f"s_cbranch_vccz {ld}")
        a(f"s_sub_u32 s{sSpin}, s{sSpin}, 1")
        a(f"s_cmp_eq_u32 s{sSpin}, 0")
        a(f"s_cbranch_scc1 {ld}")
        a("s_sleep 8")
        cnt_ld()
        a("s_waitcnt vmcnt(0)")
        a(f"s_branch {lp}")
        a.label(ld)
    def flush0():
        a("s_nop 1")
        flush()
        for r in range(8):
            a(f"v_mov_b32 v{vQ + r}, v{vQ2 + r}")
        a(f"v_add_u32 v{vLdsO}, 0x4000, v{vLdsO}")
        a(f"v_add_u32 v{vLdsM}, 0x400, v{vLdsM}")
        a("s_waitcnt lgkmcnt(0)")
        a("s_mov_b64 exec, 1")
        a(f"ds_add_u32 v{vCntL}, v{vOne}")
        a("s_mov_b64 exec, -1")
        reset_state()
    def comb0():
        lp, ld = a.newlabel("lp"), a.newlabel("ld")
        combine_addr(0, vB + 60, vB + 61)
        a(f"s_mov_b32 s{sSpin}, 0x100000")
        a.label(lp)
        a(f"ds_read_b32 v{vB + 62}, v{vCntL}")
        a("s_waitcnt lgkmcnt(0)")
        a(f"v_readfirstlane_b32 s48, v{vB + 62}")
        a("s_cmp_ge_u32 s48, 4")
        a(f"s_cbranch_scc1 {ld}")
        a(f"s_sub_u32 s{sSpin}, s{sSpin}, 1")
        a(f"s_cmp_eq_u32 s{sSpin}, 0")
        a(f"s_cbranch_scc1 {ld}")
        a("s_sleep 2")
        a(f"s_branch {lp}")
        a.label(ld)
        combine(0, vB + 60, vB + 61, vB)
    snip = {}
    snip[8] = lambda: dummy(4)
    snip[9] = lambda: (cnt_ld(), dummy(3))
    snip[10] = lambda: (cnt_check(), wo_ld(0))
    if OPT.get('nocnt'):
        snip[9] = lambda: dummy(4)
        snip[10] = lambda: wo_ld(0)
    for q in range(1, 8):
        snip[10 + q] = (lambda q=q: wo_ld(q))
    snip[16] = lambda: (wo_ld(6), flush0())
    snip[18] = lambda: (dummy(3), comb0())
    for q in range(8, 16):
        snip[11 + q] = (lambda q=q: wo_ld(q))
    snip[27] = lambda: dummy(4)
    for i in range(4):
        snip[28 + i] = (lambda i=i: [o_ld(4*i + k, 0, vB) for k in range(4)])

    N2 = int(OPT.get('N2', 32))
    W2 = int(OPT.get('W2', W))
    for li, (nend, Wl) in enumerate(((N2, W), (32, W2))):
        if li == 1 and N2 == 32: break
        a.label(f"L_loop{li}")
        ml = MemSeq(a, pre_kv=8)
        def ex_loop():
            a(f"s_branch L_snip{li}")
            a.label(f"L_snip_ret{li}")
            for _ in range(4): ml.issue(None)
        iteration(ml, list(range(8)), extras=ex_loop, W=Wl)
        a(f"s_add_u32 s{sIter}, s{sIter}, 1")
        a(f"s_cmp_lt_u32 s{sIter}, {nend}")
        a(f"s_cbranch_scc1 L_loop{li}")
    a.stamp(7)
    combine_addr(1, 8, 9)
    flush()
    a("s_waitcnt lgkmcnt(0)")
    a("s_barrier")
    combine(1, 8, 9, 10)
    for q in range(16):
        o_ld(q, 1, bK)
    for r in range(32):
        a(f"v_mov_b32 v{vO + r}, 0")
    a(f"s_mov_b32 s{sSpin}, 0x20000")
    def frag_mfma(bb, q, src):
        for par in range(2):
            for nn in range(2):
                d = vO + ((bb*2 + nn)*2 + par)*4
                a(f"v_mfma_f32_16x16x32_bf16 {vr(d)}, {ar(16*q + par*8 + nn*4)}, {vr(src + 4*q)}, {vr(d)}")
    a.label("L_p0chk")
    a(f"v_max3_u32 v8, v{vB}, v{vB+1}, v{vB+2}")
    for r in range(3, 63, 2):
        a(f"v_max3_u32 v8, v8, v{vB+r}, v{vB+r+1}")
    a(f"v_max_u32 v8, v8, v{vB+63}")
    a("v_cmp_eq_u32 vcc, -1, v8")
    a("s_cbranch_vccnz L_p0retry")
    a.label("L_p0ok")
    for q in range(16):
        frag_mfma(0, q, vB)
    a(f"s_mov_b32 s{sBad}, 0")
    for q in range(16):
        a(f"s_waitcnt vmcnt({15 - q})")
        a(f"v_max3_u32 v8, v{bK+4*q}, v{bK+4*q+1}, v{bK+4*q+2}")
        a(f"v_max_u32 v8, v8, v{bK+4*q+3}")
        a("v_cmp_eq_u32 vcc, -1, v8")
        a(f"s_cbranch_vccnz L_bad{q}")
        frag_mfma(1, q, bK)
        a.label(f"L_nx{q}")
    a.label("L_retry")
    a(f"s_cmp_eq_u32 s{sBad}, 0")
    a("s_cbranch_scc1 L_alldone")
    a(f"s_sub_u32 s{sSpin}, s{sSpin}, 1")
    a(f"s_cmp_eq_u32 s{sSpin}, 0")
    a("s_cbranch_scc1 L_alldone")
    for q in range(16):
        a(f"s_bitcmp1_b32 s{sBad}, {q}")
        a(f"s_cbranch_scc0 L_rl{q}")
        o_ld(q, 1, bK)
        a.label(f"L_rl{q}")
    a("s_waitcnt vmcnt(0)")
    for q in range(16):
        a(f"s_bitcmp1_b32 s{sBad}, {q}")
        a(f"s_cbranch_scc0 L_rc{q}")
        a(f"v_max3_u32 v8, v{bK+4*q}, v{bK+4*q+1}, v{bK+4*q+2}")
        a(f"v_max_u32 v8, v8, v{bK+4*q+3}")
        a("v_cmp_eq_u32 vcc, -1, v8")
        a(f"s_cbranch_vccnz L_rc{q}")
        frag_mfma(1, q, bK)
        a(f"s_bitset0_b32 s{sBad}, {q}")
        a.label(f"L_rc{q}")
    a("s_branch L_retry")
    a.label("L_alldone")
    a.stamp(8)
    a(f"v_add_u32 v8, s{sLb}, v{vVoff}")
    a("v_and_b32 v5, 63, v0")
    a("v_lshrrev_b32 v6, 5, v5")
    a("v_bfe_u32 v7, v5, 3, 2")
    a("v_and_b32 v9, 7, v5")
    a("s_nop 4")
    for t in range(8):
        a(f"ds_write_b128 v8, {vr(vO + 4*t)} offset:{t*1024}")
    a("v_lshl_add_u32 v11, v7, 4, v9")
    a("v_lshlrev_b32 v11, 4, v11")
    a("v_lshl_add_u32 v11, v6, 11, v11")
    a(f"s_lshl_b32 s48, s{sW}, 12")
    a("v_add_u32 v11, s48, v11")
    a("v_lshlrev_b32 v10, 11, v9")
    a("v_lshl_add_u32 v10, v6, 5, v10")
    a("v_lshl_add_u32 v10, v7, 3, v10")
    a(f"s_lshl_b32 s48, s{sW}, 17")
    a(f"s_lshl_b32 s49, s{sP_}, 14")
    a("s_add_u32 s48, s48, s49")
    a(f"s_lshl_b32 s49, s{sH}, 6")
    a("s_add_u32 s44, s48, s49")
    a("s_waitcnt lgkmcnt(0)")
    a("s_barrier")
    a.stamp(9)
    a.stamp_store(18, 0x200000, 10)
    a(f"s_cmp_ge_u32 s{sW}, 2")
    a("s_cbranch_scc1 L_end")
    for w in range(4):
        a(f"ds_read_b128 {vr(88 + w*8)}, v11 offset:{w*8192}")
        a(f"ds_read_b128 {vr(92 + w*8)}, v11 offset:{w*8192 + 1024 + 128}")
    for i in range(1, 8):
        a(f"s_waitcnt lgkmcnt({7 - i})")
        for r in range(4):
            a(f"v_add_f32 v{88 + r}, v{88 + r}, v{88 + 4*i + r}")
    a("v_cvt_pk_bf16_f32 v12, v88, v89")
    a("v_cvt_pk_bf16_f32 v13, v90, v91")
    a(f"buffer_store_dwordx2 v[12:13], v10, s[{sOUT}:{sOUT+3}], s44 offen{OPT.get('outflag','')}")
    a.label("L_end")
    a("s_endpgm")
    for q in range(16):
        a.label(f"L_bad{q}")
        a(f"s_bitset1_b32 s{sBad}, {q}")
        a(f"s_branch L_nx{q}")
    a.label("L_p0retry")
    a(f"s_sub_u32 s{sSpin}, s{sSpin}, 1")
    a(f"s_cmp_eq_u32 s{sSpin}, 0")
    a("s_cbranch_scc1 L_p0ok")
    for q in range(16):
        o_ld(q, 0, vB)
    a("s_waitcnt vmcnt(0)")
    a("s_branch L_p0chk")
    for li in range(2):
        ks = [n for n in sorted(snip) if (n < N2) == (li == 0)]
        if not ks: continue
        a.label(f"L_snip{li}")
        for n in ks:
            if n != ks[-1]:
                a(f"s_cmp_lg_u32 s{sIter}, {n}")
                a(f"s_cbranch_scc1 L_sn{n+1}")
            snip[n]()
            a(f"s_branch L_snip_ret{li}")
            if n != ks[-1]:
                a.label(f"L_sn{n+1}")

def kd(a, name):
    a.raw(".p2align 6")
    a.raw(f".amdhsa_kernel {name}")
    a.raw("  .amdhsa_next_free_vgpr 512")
    a.raw("  .amdhsa_next_free_sgpr 102")
    a.raw("  .amdhsa_accum_offset 256")
    a.raw("  .amdhsa_group_segment_fixed_size 0")
    a.raw("  .amdhsa_kernarg_size 64")
    a.raw("  .amdhsa_user_sgpr_count 2")
    a.raw("  .amdhsa_user_sgpr_kernarg_segment_ptr 1")
    a.raw("  .amdhsa_system_sgpr_workgroup_id_x 1")
    a.raw(".end_amdhsa_kernel")

def main(path):
    a = Asm()
    a.raw(HEADER.rstrip())
    a.raw(f"; @launch grid=(256,1,1) block=(256,1,1) lds={LDS_SIZE}")
    a.raw('.amdgcn_target "amdgcn-amd-amdhsa--gfx950"')
    a.raw(".text")
    gen_k1(a)
    a.raw('.section .rodata,"a"')
    kd(a, K1)
    open(path, "w").write(a.text())

if __name__ == "__main__":
    args = sys.argv[1:]
    if "--stamp" in args:
        STAMP = True
        args.remove("--stamp")
    rest = []
    for x in args:
        if "=" in x:
            k, v = x.split("=", 1)
            OPT[k] = v.replace("+", " ")
        else:
            rest.append(x)
    main(rest[0] if rest else "standalone__mha_block_cached__sampling.s")
```

```python
import sys, struct, math

def f32hex(x):
    return "0x%08x" % struct.unpack("<I", struct.pack("<f", x))[0]

STAMP = False
OPT = {}
class Asm:
    def __init__(self):
        self.L = []
        self.uid = 0
    def stamp(self, idx):
        if not STAMP: return
        self("s_memrealtime s[68:69]")
        self("s_waitcnt lgkmcnt(0)")
        self(f"s_mov_b32 s{70 + idx}, s68")
    def stamp_store(self, wsptr, base, n):
        if not STAMP: return
        self(f"s_mov_b32 s88, s{wsptr}")
        self(f"s_mov_b32 s89, s{wsptr+1}")
        self("s_mov_b32 s90, 0x40000000")
        self("s_mov_b32 s91, 0x00020000")
        self("s_lshl_b32 s92, s2, 3")
        self("s_add_u32 s92, s92, s40")
        self("s_lshl_b32 s92, s92, 6")
        self(f"s_add_u32 s92, s92, 0x{base:x}")
        self("v_mov_b32 v250, 0")
        for i in range(n):
            self(f"v_mov_b32 v251, s{70+i}")
            self(f"buffer_store_dword v251, v250, s[88:91], s92 offen offset:{4*i}")
            self("s_nop 1")
    def __call__(self, s):
        self.L.append("  " + s)
    def label(self, s):
        self.L.append(s + ":")
    def newlabel(self, p):
        self.uid += 1
        return f"L_{p}_{self.uid}"
    def raw(self, s):
        self.L.append(s)
    def text(self):
        return "\n".join(self.L) + "\n"

class MemSeq:
    def __init__(self, a, pre_kv=0):
        self.a = a; self.n = pre_kv; self.done = 0; self.kv = list(range(pre_kv)); self.slow = -1
    def issue(self, text, kv=False, slow=False):
        if text is not None: self.a(text)
        idx = self.n; self.n += 1
        if kv: self.kv.append(idx)
        if slow and self.slow < self.done: self.slow = idx
        return idx
    def wait_for(self, idx):
        if idx < self.done: return
        cnt = self.n - 1 - idx
        assert cnt <= 63, cnt
        self.a(f"s_waitcnt vmcnt({cnt})")
        self.done = idx + 1
    def pace(self, W):
        if len(self.kv) >= W:
            t = self.kv[-W]
            if self.slow >= self.done and t > self.slow: return
            self.wait_for(t)

def vr(b, n=4):
    return f"v[{b}:{b+n-1}]"
def ar(b, n=4):
    return f"a[{b}:{b+n-1}]"

HEADER = """; Kernarg layout for this problem (64 bytes, ptrs only, base s[0:1]):
"""

K1 = "standalone__mha_block_cached__sampling_kernel"

LDS_WO = 0
LDS_C = 32768
LDS_WQS = 0
LDS_XS = 65536
LDS_M = 98304
LDS_L = 100352
LDS_QF = 102400
LDS_CNT = 106496
LDS_SIZE = 106496 + 64
WOP = 0x400000
QP = 0xC00000
WS_SIZE = QP + 0x800000
FLQ = 0x300000
FLP = 0x310000

def gen_k1(a):
    W = int(OPT.get('W', 5))
    Wp = int(OPT.get('Wp', 5))
    Rn, Rd = [int(t) for t in OPT.get('R', '7/9').split('/')]
    vKoff, vVoff, vKoff2, vVoff2 = 1, 2, 3, 4
    vMc, vL, vT0, vT1 = 5, 6, 7, 20
    vS = 8
    vP = 16
    vAl, vT2, vT3 = 21, 22, 23
    vQ, vQ2 = 24, 32
    vO = 40
    vPT = 72
    vLdsO, vLdsM, vQF, vOne, vTr, vWoOff, vXoff, vWoff = 80, 81, 82, 83, 84, 85, 86, 87
    bK, bV = 88, 120
    vSR = 152
    vB = 168
    vAT = 232
    vCntL, vCntG, vDum = 248, 249, 252
    sX, sK, sV, sWQ, sWS, sWO, sOUT, sDBG, sNull = 20, 24, 28, 32, 36, 60, 64, 80, 96
    sWSo = 20
    sW, sH, sP_, sB1, sVoff, sKoff, sIter = 40, 41, 42, 43, 44, 45, 46
    sSelLo, sSelHi, sC, sBad, sSpin = 50, 51, 52, 53, 54
    sMask = 56
    sWoLd, sLb = 58, 59
    sXb, sWqb, sJ = 84, 85, 86
    vWoffB, vXt, vTq, vXrd = 253, 254, 216, 224
    sFl = 95
    sNon = 55
    vNon = 246
    sOld, sOst = 93, 94
    cscale = (128 ** -0.5) * math.log2(math.e)

    a.raw(f".globl {K1}")
    a.raw(".p2align 8")
    a.raw(f".type {K1},@function")
    a.label(K1)
    a("s_cmp_ge_u32 s2, 256")
    a("s_cbranch_scc1 L_end")
    a.stamp(0)
    a("s_load_dwordx16 s[4:19], s[0:1], 0")
    a("s_memrealtime s[90:91]")
    a("v_lshrrev_b32 v7, 6, v0")
    a("v_and_b32 v5, 63, v0")
    a("v_readfirstlane_b32 s40, v7")
    a("v_and_b32 v6, 15, v5")
    a("v_lshrrev_b32 v7, 4, v5")
    a("s_and_b32 s41, s2, 7")
    a("s_lshl_b32 s41, s41, 2")
    a("s_lshr_b32 s48, s2, 3")
    a("s_and_b32 s48, s48, 3")
    a("s_add_u32 s41, s41, s48")
    a("s_lshr_b32 s42, s2, 5")
    if OPT.get('map') == 'anti':
        a("s_lshr_b32 s41, s2, 3")
        a("s_and_b32 s42, s2, 7")
    t0, t1, t2, t3 = 240, 241, 242, 243
    a(f"v_and_b32 v{t0}, 3, v6")
    a(f"v_lshlrev_b32 v{t0}, 2, v{t0}")
    a(f"v_lshrrev_b32 v{t2}, 3, v6")
    a(f"v_and_b32 v{t3}, 7, v6")
    a(f"v_lshrrev_b32 v{t1}, 1, v6")
    a(f"v_xor_b32 v{t1}, v{t1}, v7")
    a(f"v_lshlrev_b32 v{vWoff}, 13, v7")
    a(f"v_lshl_add_u32 v{vWoff}, v{t1}, 5, v{vWoff}")
    a(f"v_and_b32 v{t1}, 1, v5")
    a(f"v_lshl_add_u32 v{vWoff}, v{t1}, 4, v{vWoff}")
    a(f"v_xor_b32 v{vWoffB}, 0x80, v{vWoff}")
    a(f"v_lshrrev_b32 v{t1}, 5, v5")
    a(f"v_and_b32 v{vXoff}, 31, v5")
    a(f"v_lshlrev_b32 v{vXoff}, 4, v{vXoff}")
    a(f"v_lshlrev_b32 v{vXt}, 6, v{t1}")
    a(f"v_xor_b32 v{vXoff}, v{vXoff}, v{vXt}")
    a(f"v_lshl_add_u32 v{vXoff}, v{t1}, 11, v{vXoff}")
    a(f"v_bfe_u32 v{t1}, v6, 2, 1")
    a(f"v_add_u32 v{t1}, v{t0}, v{t1}")
    a(f"v_lshlrev_b32 v{vKoff}, 8, v{t1}")
    a(f"v_lshl_add_u32 v{vKoff}, v{t2}, 6, v{vKoff}")
    a(f"v_lshl_add_u32 v{vKoff}, v7, 4, v{vKoff}")
    a(f"v_add_u32 v{vKoff2}, 0x1000, v{vKoff}")
    a(f"v_lshlrev_b32 v{vVoff}, 4, v5")
    a(f"v_add_u32 v{vVoff2}, 0x1000, v{vVoff}")
    a(f"s_and_b32 s{sJ}, s{sP_}, 3")
    a(f"s_and_b32 s48, s{sP_}, 4")
    a(f"s_add_u32 s48, s48, s{sW}")
    a(f"s_lshl_b32 s{sXb}, s48, 14")
    a(f"s_lshl_b32 s48, s{sJ}, 9")
    a(f"s_add_u32 s{sXb}, s{sXb}, s48")
    a(f"s_lshl_b32 s{sWqb}, s{sJ}, 21")
    a(f"s_lshl_b32 s48, s{sW}, 19")
    a(f"s_add_u32 s{sWqb}, s{sWqb}, s48")
    a(f"s_lshl_b32 s48, s{sH}, 8")
    a(f"s_add_u32 s{sWqb}, s{sWqb}, s48")
    a(f"s_lshl_b32 s{sVoff}, s{sP_}, 5")
    a(f"s_add_u32 s{sVoff}, s{sVoff}, s{sH}")
    a(f"s_lshl_b32 s{sVoff}, s{sVoff}, 19")
    a(f"s_lshl_b32 s48, s{sW}, 13")
    a(f"s_add_u32 s{sVoff}, s{sVoff}, s48")
    a(f"s_add_u32 s{sB1}, s{sVoff}, 0x8000000")
    for (d, size) in ((sX, 16*8*1024*2), (sWQ, 1024*4096*2), (sK, 1 << 28), (sV, 1 << 28)):
        a(f"s_mov_b32 s{d+2}, 0x{size:x}")
        a(f"s_mov_b32 s{d+3}, 0x00020000")
    a(f"s_mov_b32 s{sSelLo}, 0x05040100")
    a(f"s_mov_b32 s{sSelHi}, 0x07060302")
    a("s_waitcnt lgkmcnt(0)")
    for (d, src) in ((sX, 4), (sWQ, 10), (sK, 6), (sV, 8)):
        a(f"s_mov_b32 s{d}, s{src}")
        a(f"s_mov_b32 s{d+1}, s{src+1}")

    ms = MemSeq(a)
    NSL = 3
    def xreg(ks): return 8 + 4*ks
    def slot(ks): return 152 + (ks % NSL)*32

    def ld_K(ms, dst, j, soff):
        T, s = j >> 2, j & 3
        return ms.issue(f"buffer_load_dwordx4 {dst}, v{vKoff if T == 0 else vKoff2}, s[{sK}:{sK+3}], s{soff} offen offset:{(s>>1)*512 + (s&1)*128} nt", kv=True)
    def ld_V(ms, dst, i, soff):
        return ms.issue(f"buffer_load_dwordx4 {dst}, v{vVoff if i < 4 else vVoff2}, s[{sV}:{sV+3}], s{soff} offen offset:{(i&3)*1024} nt", kv=True)

    stage = []
    for b in range(4):
        for j in range(8): stage.append(('K', b, j))
        for j in range(8): stage.append(('V', b, j))
    for j in range(8): stage.append(('K', 4, j))
    st = {'pos': 0, 'idx': {}}
    def stage_one(Wx):
        if st['pos'] >= len(stage): return False
        kind, b, j = stage[st['pos']]; st['pos'] += 1
        if len(ms.kv) >= Wx and not st.get('late'):
            st['late'] = True
            late_setup()
        ms.pace(Wx)
        if kind == 'K':
            dst = ar(64*b + 4*j) if b < 4 else vr(bK + 4*j)
            st['idx'][(kind, b, j)] = ld_K(ms, dst, j, sVoff)
        else:
            st['idx'][(kind, b, j)] = ld_V(ms, ar(64*b + 32 + 4*j), j, sVoff)
            if j == 7:
                a(f"s_add_u32 s{sVoff}, s{sVoff}, 0x8000")
        return True

    def perm_c(src, c):
        for hb, sel in ((0, sSelLo), (1, sSelHi)):
            for t in range(4):
                a(f"v_perm_b32 v{vPT + hb*4 + t}, v{src[2*t+1] + c}, v{src[2*t] + c}, s{sel}")
    def mfma_c(bop, c, first):
        a("s_nop 1")
        for hb in range(2):
            j = 2*c + hb
            cc = "0" if first else vr(vO + 4*j)
            a(f"v_mfma_f32_16x16x32_bf16 {vr(vO + 4*j)}, {vr(vPT + hb*4)}, {vr(bop)}, {cc}")
    def reset_state():
        for r in range(32):
            a(f"v_mov_b32 v{vO + r}, 0")
        a(f"v_mov_b32 v{vMc}, 0xff800000")
        a(f"v_mov_b32 v{vL}, 0")

    def late_setup():
        a(f"v_lshl_add_u32 v{t1}, v7, 4, v{t3}")
        a(f"v_lshlrev_b32 v{t1}, 4, v{t1}")
        a(f"v_lshl_add_u32 v{t1}, v{t2}, 10, v{t1}")
        a(f"v_add_u32 v{vQF}, 0x{LDS_QF:x}, v{t1}")
        a(f"v_mov_b32 v{vCntL}, 0x{LDS_CNT:x}")
        a(f"v_mov_b32 v{vOne}, 0")
        a(f"ds_write_b32 v{vCntL}, v{vOne}")
        a(f"ds_write_b32 v{vCntL}, v{vOne} offset:4")
        a(f"ds_write_b32 v{vCntL}, v{vOne} offset:8")
        a(f"ds_write_b32 v{vCntL}, v{vOne} offset:12")
        a(f"v_lshl_add_u32 v{t1}, v7, 3, v{t3}")
        a(f"v_lshlrev_b32 v{t1}, 4, v{t1}")
        a(f"s_lshl_b32 s48, s{sW}, 12")
        a(f"s_add_u32 s48, s48, 0x{LDS_C:x}")
        a(f"v_add_u32 v{vLdsO}, s48, v{t1}")
        a(f"s_lshl_b32 s48, s{sW}, 8")
        a(f"s_add_u32 s48, s48, 0x{LDS_M:x}")
        a(f"v_lshlrev_b32 v{t1}, 2, v5")
        a(f"v_add_u32 v{vLdsM}, s48, v{t1}")
        a(f"v_lshlrev_b32 v{vWoOff}, 11, v7")
        a(f"v_lshl_add_u32 v{vWoOff}, v6, 4, v{vWoOff}")
        a(f"v_lshrrev_b32 v{t1}, 2, v6")
        a(f"v_lshl_add_u32 v{t1}, v7, 3, v{t1}")
        a(f"v_lshlrev_b32 v{vTr}, 8, v{t1}")
        a(f"v_lshl_add_u32 v{vTr}, v{t0}, 1, v{vTr}")
        a(f"s_lshl_b32 s{sLb}, s{sW}, 13")
        a(f"v_add_u32 v{vTr}, s{sLb}, v{vTr}")
        a(f"v_mov_b32 v{vOne}, 1")
        a(f"s_mov_b32 s{sC}, {f32hex(cscale)}")
        a(f"s_mov_b32 s{sMask}, 0x00ff00ff")
        a(f"s_mov_b32 s{sMask+1}, 0x00ff00ff")
        for (d, src, size) in ((sWS, 18, WS_SIZE), (sWO, 12, 4096*1024*2), (sOUT, 14, 128*1024*2), (sDBG, 16, 256), (sNull, 18, 0)):
            a(f"s_mov_b32 s{d}, s{src}")
            a(f"s_mov_b32 s{d+1}, s{src+1}")
            a(f"s_mov_b32 s{d+2}, 0x{size:x}")
            a(f"s_mov_b32 s{d+3}, 0x00020000")
        a(f"s_lshl_b32 s{sWoLd}, s{sH}, 18")
        a(f"s_lshl_b32 s48, s{sW}, 16")
        a(f"s_add_u32 s{sWoLd}, s{sWoLd}, s48")
        a(f"s_add_u32 s{sWoLd}, s{sWoLd}, 0x{WOP:x}")
        a(f"s_lshl_b32 s{sOld}, s{sP_}, 16")
        a(f"s_lshl_b32 s48, s{sW}, 14")
        a(f"s_add_u32 s{sOld}, s{sOld}, s48")
        a(f"s_lshl_b32 s{sOst}, s{sP_}, 16")
        a(f"s_lshl_b32 s48, s{sH}, 11")
        a(f"s_add_u32 s{sOst}, s{sOst}, s48")
        a(f"s_and_b32 s48, s{sW}, 1")
        a("s_lshl_b32 s48, s48, 10")
        a(f"s_add_u32 s{sOst}, s{sOst}, s48")

    if OPT.get('noq7'):
        a(f"s_mov_b32 s{sX+2}, 0")
        a(f"s_mov_b32 s{sWQ+2}, 0")
    dl = []
    for m in range(8): dl.append(('x', m))
    for m in range(16): dl.append(('w', m))
    order = []
    for i in range(8):
        order += [dl[i], dl[8 + 2*i], dl[9 + 2*i]]
    last_dma = None
    for i, (kind, m) in enumerate(order):
        if kind == 'x':
            a(f"s_lshl_b32 s48, s{sW}, 13")
            a(f"s_add_u32 m0, s48, 0x{LDS_XS + m*1024:x}")
            a(f"s_add_u32 s49, s{sXb}, 0x{(m&3)*4096 + (m>>2)*131072:x}")
            src = vXoff
            if m & 3:
                a(f"v_xor_b32 v{vXt}, 0x{(m&3) << 7:x}, v{vXoff}")
                src = vXt
            last_dma = ms.issue(f"buffer_load_dwordx4 v{src}, s[{sX}:{sX+3}], s49 offen lds")
        else:
            a(f"s_lshl_b32 s48, s{sW}, 14")
            a(f"s_add_u32 m0, s48, 0x{LDS_WQS + m*1024:x}")
            a(f"s_add_u32 s49, s{sWqb}, 0x{m*32768:x}")
            last_dma = ms.issue(f"buffer_load_dwordx4 v{vWoffB if m & 2 else vWoff}, s[{sWQ}:{sWQ+3}], s49 offen{OPT.get('wqflag','')} lds")
        if i % int(OPT.get('DI', 3)) == 1:
            stage_one(Wp)
    if not st.get('late'):
        st['late'] = True
        late_setup()
    a(f"s_mov_b32 s{sNull}, s16")
    a(f"s_mov_b32 s{sNull+1}, s17")
    a(f"s_cmp_eq_u32 s{sW}, 0")
    a(f"s_cselect_b32 s{sNull+2}, 256, 0")
    a(f"s_mov_b32 s{sNull+3}, 0x00020000")
    a(f"v_mov_b32 v{vNon+1}, 0")
    a(f"s_or_b32 s{sNon}, s90, 1")
    a(f"v_mov_b32 v{vNon}, s{sNon}")
    a("s_mov_b64 exec, 1")
    nidx = ms.issue(f"buffer_atomic_cmpswap v[{vNon}:{vNon+1}], v{vNon+1}, s[{sNull}:{sNull+3}], 0 offen sc0 sc1", slow=True)
    a("s_mov_b64 exec, -1")
    a("s_nop 0")
    a(f"s_mov_b32 s{sNull}, s18")
    a(f"s_mov_b32 s{sNull+1}, s19")
    a(f"s_mov_b32 s{sNull+2}, 0")
    a(f"v_lshrrev_b32 v{vXt}, 2, v6")
    a(f"v_and_b32 v{vTq+1}, 1, v7")
    a(f"v_lshl_add_u32 v{vTq+1}, v{vTq+1}, 2, v{vXt}")
    a(f"v_lshl_add_u32 v{vTq}, v7, 3, v{vXt}")
    a(f"v_lshlrev_b32 v{vTq}, 8, v{vTq}")
    a(f"v_lshl_add_u32 v{vTq}, v{vTq+1}, 5, v{vTq}")
    a(f"v_and_b32 v{vXt}, 3, v6")
    a(f"v_lshl_add_u32 v{vTq}, v{vXt}, 3, v{vTq}")
    for t in range(1, 8):
        a(f"v_xor_b32 v{vTq+t}, {t << 5}, v{vTq}")
    a(f"v_lshlrev_b32 v{vXrd}, 9, v6")
    a(f"v_lshl_add_u32 v{vXrd}, v7, 4, v{vXrd}")
    a(f"v_and_b32 v{vXt}, 7, v6")
    a(f"v_lshl_add_u32 v{vXrd}, v{vXt}, 6, v{vXrd}")
    a(f"s_lshl_b32 s48, s{sW}, 13")
    a(f"s_add_u32 s48, s48, 0x{LDS_XS:x}")
    a(f"v_add_u32 v{vXrd}, s48, v{vXrd}")
    for i in range(int(OPT.get('SA', 2))): stage_one(Wp)
    ms.wait_for(last_dma)
    a("s_waitcnt lgkmcnt(0)")
    a("s_barrier")
    def q_reads(ks):
        A0 = 152 + (ks & 1)*32
        if ks:
            a(f"v_xor_b32 v{vXt}, 0x{ks << 6:x}, v{vXrd}")
        a(f"ds_read_b128 {vr(8 + (ks&1)*4)}, v{vXt if ks else vXrd}")
        for t in range(8):
            for half in range(2):
                d = A0 + t*4 + half*2
                a(f"ds_read_b64_tr_b16 v[{d}:{d+1}], v{vTq+t} offset:{ks*8192 + half*1024}")
    q_reads(0)
    for ks in range(8):
        if ks < 7:
            a("s_waitcnt lgkmcnt(0)")
            q_reads(ks + 1)
        else:
            a("s_waitcnt lgkmcnt(0)")
        A0 = 152 + (ks & 1)*32
        for t in range(8):
            cc = "0" if ks == 0 else vr(vO + 4*t)
            a(f"v_mfma_f32_16x16x32_bf16 {vr(vO + 4*t)}, {vr(A0 + 4*t)}, {vr(8 + (ks&1)*4)}, {cc}")
        stage_one(Wp)
    a.stamp(1)
    a("s_and_b32 s48, s2, 0x9f")
    a(f"s_lshl_b32 s49, s{sW}, 5")
    a("s_or_b32 s48, s48, s49")
    a("s_lshl_b32 s48, s48, 2")
    a(f"s_add_u32 s48, s48, s{sJ}")
    a("s_lshl_b32 s48, s48, 13")
    a(f"s_add_u32 s48, s48, 0x{QP:x}")
    a(f"s_mov_b32 s{sWSo}, s18")
    a(f"s_mov_b32 s{sWSo+1}, s19")
    a(f"s_cmp_lg_u32 s{sW}, s{sJ}")
    a(f"s_cselect_b32 s{sWSo+2}, 0x{WS_SIZE if not OPT.get('noq7') else 0:x}, 0")
    a("s_nop 3")
    for t in range(8):
        qst = ms.issue(f"buffer_store_dwordx4 {vr(vO + 4*t)}, v{vVoff if t < 4 else vVoff2}, s[{sWSo}:{sWSo+3}], s48 offen offset:{(t&3)*1024} sc1", slow=True)
    a(f"s_cbranch_scc1 L_notown")
    a(f"s_lshl_b32 s48, s{sW}, 13")
    a(f"s_add_u32 s48, s48, 0x{LDS_XS:x}")
    a(f"v_add_u32 v8, s48, v{vVoff}")
    for t in range(8):
        a(f"ds_write_b128 v8, {vr(vO + 4*t)} offset:{t*1024}")
    a.label("L_notown")
    a(f"s_lshl_b32 s{sFl}, s2, 7")
    a(f"s_add_u32 s{sFl}, s{sFl}, 0x{FLQ:x}")
    for i in range(int(OPT.get('SB', 10))): stage_one(Wp)
    def signal(soff, cnt_off):
        a("s_waitcnt lgkmcnt(0)")
        a("s_mov_b64 exec, 1")
        a(f"ds_add_rtn_u32 v{vCntG}, v{vCntL}, v{vOne} offset:{cnt_off}")
        a(f"v_mov_b32 v{vDum}, s{sNon}")
        a("s_waitcnt lgkmcnt(0)")
        a(f"v_readfirstlane_b32 s49, v{vCntG}")
        a(f"v_mov_b32 v{vCntG}, 0")
        a("s_cmp_eq_u32 s49, 3")
        a(f"s_cselect_b32 s{sNull+2}, 0x{WS_SIZE:x}, 0")
        a("s_nop 0")
        ms.issue(f"buffer_store_dword v{vDum}, v{vCntG}, s[{sNull}:{sNull+3}], s{soff} offen sc1", slow=True)
        a("s_mov_b64 exec, -1")
        a("s_nop 0")
        a(f"s_mov_b32 s{sNull+2}, 0")
    ms.wait_for(qst)
    if OPT.get('xst'): a.stamp(3)
    a(f"v_readfirstlane_b32 s48, v{vNon}")
    a("s_cmp_eq_u32 s48, 0")
    a(f"s_cselect_b32 s48, s{sNon}, s48")
    a(f"v_mov_b32 v{vNon}, s48")
    a(f"s_cmp_lg_u32 s{sW}, 0")
    a("s_cbranch_scc1 L_nonw")
    a(f"ds_write_b32 v{vCntL}, v{vNon} offset:12")
    a.label("L_nonw")
    a(f"s_mov_b32 s{sSpin}, 0x100000")
    a.label("L_nonp")
    a(f"ds_read_b32 v{vNon}, v{vCntL} offset:12")
    a(f"s_sub_u32 s{sSpin}, s{sSpin}, 1")
    a("s_waitcnt lgkmcnt(0)")
    a(f"v_readfirstlane_b32 s{sNon}, v{vNon}")
    a(f"s_cmp_eq_u32 s{sSpin}, 0")
    a("s_cbranch_scc1 L_nond")
    a(f"s_cmp_eq_u32 s{sNon}, 0")
    a("s_cbranch_scc1 L_nonp")
    a.label("L_nond")
    if OPT.get('xst'): a.stamp(4)
    signal(sFl, 8)
    for i in range(int(OPT.get('SC', 14))): stage_one(Wp)
    a("s_and_b32 s47, s2, 0x9f")
    a("s_lshl_b32 s47, s47, 7")
    a(f"s_add_u32 s47, s47, 0x{FLQ:x}")
    a(f"v_and_b32 v{vCntG}, 3, v0")
    a(f"v_lshlrev_b32 v{vCntG}, 12, v{vCntG}")
    pidx = ms.issue(f"buffer_load_dword v{vDum}, v{vCntG}, s[{sWS}:{sWS+3}], s47 offen sc1")
    for i in range(2): stage_one(Wp)
    ms.wait_for(pidx)
    a(f"s_mov_b32 s{sSpin}, 0x20000")
    a.label("L_qpoll")
    a(f"v_cmp_ne_u32 vcc, s{sNon}, v{vDum}")
    a("s_cbranch_vccz L_qok")
    if OPT.get('noq7'): a("s_branch L_qok")
    a(f"s_sub_u32 s{sSpin}, s{sSpin}, 1")
    a(f"s_cmp_eq_u32 s{sSpin}, 0")
    a("s_cbranch_scc1 L_qok")
    a("s_sleep 2")
    a(f"buffer_load_dword v{vDum}, v{vCntG}, s[{sWS}:{sWS+3}], s47 offen sc1")
    a("s_waitcnt vmcnt(0)")
    a("s_branch L_qpoll")
    a.label("L_qok")
    if OPT.get('xst'): a.stamp(5)
    a("s_lshl_b32 s48, s2, 15")
    a(f"s_lshl_b32 s49, s{sW}, 11")
    a("s_add_u32 s48, s48, s49")
    a(f"s_add_u32 s48, s48, 0x{QP:x}")
    for jj in range(4):
        a(f"s_cmp_lg_u32 s{sJ}, {jj}")
        a(f"s_cselect_b32 s{sWSo+2}, 0x{WS_SIZE if not OPT.get('noq7') else 0:x}, 0")
        for tt in range(2):
            gl = ms.issue(f"buffer_load_dwordx4 {vr(vO + (jj*2+tt)*4)}, v{vVoff}, s[{sWSo}:{sWSo+3}], s48 offen offset:{tt*1024} sc1")
        if jj < 3: a("s_add_u32 s48, s48, 0x2000")
    a(f"s_lshl_b32 s48, s{sJ}, 13")
    a(f"s_add_u32 s48, s48, s49")
    a(f"s_add_u32 s48, s48, 0x{LDS_XS:x}")
    a(f"v_add_u32 v8, s48, v{vVoff}")
    for tt in range(2):
        a(f"ds_read_b128 {vr(12 + tt*4)}, v8 offset:{tt*1024}")
    a("v_and_b32 v9, 15, v0")
    a("v_lshlrev_b32 v9, 4, v9")
    a("v_bfe_u32 v10, v0, 5, 1")
    a("v_lshl_add_u32 v9, v10, 8, v9")
    a("v_bfe_u32 v10, v0, 4, 1")
    a("v_lshl_add_u32 v9, v10, 3, v9")
    a(f"s_lshl_b32 s48, s{sW}, 10")
    a(f"s_add_u32 s48, s48, 0x{LDS_QF:x}")
    a("v_add_u32 v9, s48, v9")
    a(f"s_cmp_lt_u32 s{sW}, 2")
    a(f"s_cselect_b32 s{sWSo+2}, 0x100000, 0")
    for i in range(int(OPT.get('SD', 5))): stage_one(Wp)
    ms.wait_for(gl)
    if OPT.get('xst'): a.stamp(6)
    a("s_waitcnt lgkmcnt(0)")
    for r in range(8):
        a(f"v_add_f32 v{vO + r}, v{vO + r}, v{vO + 8 + r}")
        a(f"v_add_f32 v{vO + 16 + r}, v{vO + 16 + r}, v{vO + 24 + r}")
    for r in range(8):
        a(f"v_add_f32 v{vO + r}, v{vO + r}, v{12 + r}")
    for r in range(8):
        a(f"v_add_f32 v{vO + r}, v{vO + r}, v{vO + 16 + r}")
    for s_ in range(4):
        a(f"v_cvt_pk_bf16_f32 v{20 + s_}, v{vO + 2*s_}, v{vO + 2*s_ + 1}")
    for tt in range(2):
        a(f"ds_write_b64 v9, v[{20 + 2*tt}:{21 + 2*tt}] offset:{tt*512}")
    stage_one(Wp)
    a("s_waitcnt lgkmcnt(0)")
    a("s_barrier")
    for ph in range(2):
        for sp in range(2):
            a(f"ds_read_b128 {vr(vQ + ph*8 + sp*4)}, v{vQF} offset:{sp*2048 + ph*128}")
    reset_state()
    a("s_waitcnt lgkmcnt(0)")
    a.stamp(2)

    def p_QK(kop):
        for T in range(2):
            for s in range(4):
                d = vSR + (T*2 + (s>>1))*4
                cc = "0" if (s & 1) == 0 else vr(d)
                a(f"v_mfma_f32_16x16x32_bf16 {vr(d)}, {kop(T*4+s)}, {vr(vQ + 4*(s&1))}, {cc}")
    def p_SM1():
        a("s_nop 7")
        for T in range(2):
            for r in range(4):
                a(f"v_permlane32_swap_b32 v{vSR + T*8 + r}, v{vSR + T*8 + 4 + r}")
        a("s_nop 0")
        for T in range(2):
            for r in range(4):
                a(f"v_add_f32_dpp v{vS + T*4 + r}, v{vSR + T*8 + 4 + r}, v{vSR + T*8 + r} row_ror:8 row_mask:0xf bank_mask:0xf")
        a(f"v_max3_f32 v{vT0}, v{vS+0}, v{vS+1}, v{vS+2}")
        a(f"v_max3_f32 v{vT0}, v{vT0}, v{vS+3}, v{vS+4}")
        a(f"v_max3_f32 v{vT0}, v{vT0}, v{vS+5}, v{vS+6}")
        a(f"v_max_f32 v{vT0}, v{vT0}, v{vS+7}")
        a(f"v_mov_b32 v{vT1}, v{vT0}")
        a("s_nop 1")
        a(f"v_permlane16_swap_b32 v{vT0}, v{vT1}")
        a("s_nop 1")
        a(f"v_max_f32 v{vT0}, v{vT0}, v{vT1}")
        a(f"v_mov_b32 v{vT1}, v{vT0}")
        a("s_nop 1")
        a(f"v_permlane32_swap_b32 v{vT0}, v{vT1}")
        a("s_nop 1")
        a(f"v_max_f32 v{vT0}, v{vT0}, v{vT1}")
        a(f"v_mul_f32 v{vT0}, s{sC}, v{vT0}")
        a(f"v_max_f32 v{vT0}, v{vT0}, v{vMc}")
        a(f"v_sub_f32 v{vAl}, v{vMc}, v{vT0}")
        a(f"v_exp_f32 v{vAl}, v{vAl}")
        a(f"v_mov_b32 v{vMc}, v{vT0}")
    def p_SM2():
        for i in range(8):
            a(f"v_fma_f32 v{vS+i}, v{vS+i}, s{sC}, -v{vMc}")
        for i in range(8):
            a(f"v_exp_f32 v{vS+i}, v{vS+i}")
        a("s_nop 0")
        a(f"v_add_f32 v{vT2}, v{vS+0}, v{vS+1}")
        a(f"v_add_f32 v{vT3}, v{vS+2}, v{vS+3}")
        a(f"v_add_f32 v{vT0}, v{vS+4}, v{vS+5}")
        a(f"v_add_f32 v{vT1}, v{vS+6}, v{vS+7}")
        a(f"v_add_f32 v{vT2}, v{vT2}, v{vT3}")
        a(f"v_add_f32 v{vT0}, v{vT0}, v{vT1}")
        a(f"v_add_f32 v{vT2}, v{vT2}, v{vT0}")
        a(f"v_fma_f32 v{vL}, v{vL}, v{vAl}, v{vT2}")
        for t in range(4):
            a(f"v_cvt_pk_bf16_f32 v{vP + t}, v{vS + 2*t}, v{vS + 2*t + 1}")
    def p_RS():
        a("s_nop 7")
        for r in range(32):
            a(f"v_mul_f32 v{vO + r}, v{vAl}, v{vO + r}")
    def p_PV(c):
        perm_c([bV + 4*i for i in range(8)], c)
        mfma_c(vP, c, False)
    def p_PVs(b, c):
        base = vAT + (c & 1)*8
        for i in range(8):
            a(f"v_accvgpr_read_b32 v{base + i}, a{64*b + 32 + 4*i + c}")
        perm_c([base + i for i in range(8)], 0)
        mfma_c(vP, c, False)

    def iteration(ms, kidx, staged=None, extras=None, static_n=None, extras7=None, W=W):
        pieces = {s: [] for s in range(16)}
        def wq_(): ms.wait_for(kidx[7]); p_QK(lambda j: vr(bK + 4*j))
        WV = int(OPT.get('WV', W)); WK = int(OPT.get('WK', W))
        pq = max(WV - 1, 4 if staged is not None else 0)
        pieces[pq].append(wq_)
        pieces[pq+1].append(p_SM1)
        pieces[pq+2].append(p_SM2)
        pieces[pq+3].append(p_RS)
        vidx = []
        for c in range(4):
            def f(c=c):
                ms.wait_for(vidx[7]); p_PV(c)
            pieces[min(15, 8 + WK - 1 + c)].append(f)
        if staged is not None:
            b = staged
            def sq():
                ms.wait_for(st['idx'][('V', b, 7)]); p_QK(lambda j: ar(64*b + 4*j))
            pieces[0].insert(0, sq)
            pieces[1] = [p_SM1, p_SM2] + pieces[1]
            pieces[2] = [p_RS, lambda: p_PVs(b, 0), lambda: p_PVs(b, 1)] + pieces[2]
            pieces[3] = [lambda: p_PVs(b, 2), lambda: p_PVs(b, 3)] + pieces[3]
        knew = []
        for s in range(16):
            ms.pace(WV if s < 8 else WK)
            if s < 8:
                vidx.append(ld_V(ms, vr(bV + 4*s), s, sVoff))
            else:
                knew.append(ld_K(ms, vr(bK + 4*(s-8)), s - 8, sKoff))
            if s == 0:
                if extras: extras()
                a(f"s_add_u32 s{sKoff}, s{sVoff}, 0x8000")
                if static_n is None:
                    a(f"s_cmp_eq_u32 s{sIter}, 15")
                    a(f"s_cselect_b32 s{sKoff}, s{sB1}, s{sKoff}")
                    a(f"s_cmp_eq_u32 s{sIter}, 31")
                    a(f"s_cselect_b32 s{sK+2}, 0, s{sK+2}")
            for f in pieces[s]: f()
            if s == 7 and extras7: extras7()
            assert not (s == 7 and pq > 7)
        a(f"s_mov_b32 s{sVoff}, s{sKoff}")
        return knew

    while stage_one(W): pass
    kidx = [st['idx'][('K', 4, j)] for j in range(8)]

    pre = {}
    def ex4():
        a("s_lshr_b32 s48, s2, 1")
        a("s_lshl_b32 s48, s48, 16")
        a("s_and_b32 s49, s2, 1")
        a("s_lshl_b32 s49, s49, 10")
        a("s_add_u32 s48, s48, s49")
        a(f"s_lshl_b32 s49, s{sW}, 8")
        a("s_add_u32 s48, s48, s49")
        for m in range(8):
            a(f"s_add_u32 m0, s{sLb}, {m*1024}")
            a("s_nop 0")
            pre['dma'] = ms.issue(f"buffer_load_dwordx4 v{vWoOff}, s[{sWO}:{sWO+3}], s48 offen nt lds")
            if m < 7: a("s_add_u32 s48, s48, 0x2000")
    def ex5():
        ms.wait_for(pre['dma'])
        for t in range(8):
            for half in range(2):
                d = vB + t*4 + half*2
                a(f"ds_read_b64_tr_b16 v[{d}:{d+1}], v{vTr} offset:{half*1024 + t*32}")
        a("s_and_b32 s48, s2, 1")
        a("s_lshl_b32 s48, s48, 4")
        a(f"s_lshl_b32 s49, s{sW}, 2")
        a("s_add_u32 s48, s48, s49")
        a("s_lshl_b32 s48, s48, 18")
        a("s_lshr_b32 s49, s2, 1")
        a("s_lshl_b32 s49, s49, 11")
        a("s_add_u32 s48, s48, s49")
        a(f"s_add_u32 s48, s48, 0x{WOP:x}")
        a("s_waitcnt lgkmcnt(0)")
        for t in range(8):
            pre['st'] = ms.issue(f"buffer_store_dwordx4 {vr(vB + 4*t)}, v{vVoff}, s[{sWS}:{sWS+3}], s48 offen offset:{(t&1)*1024}{OPT.get('wosflag', ' sc1')}", slow=True)
            if t & 1 and t < 7: a("s_add_u32 s48, s48, 0x40000")
        for r in range(4):
            a(f"v_mov_b32 v{vB + 60 + r}, -1")
        a(f"s_lshr_b32 s48, s{sW}, 1")
        a("s_lshl_b32 s48, s48, 19")
        a(f"s_add_u32 s48, s48, s{sOst}")
        pre['st'] = ms.issue(f"buffer_store_dwordx4 {vr(vB + 60)}, v{vVoff}, s[{sWS}:{sWS+3}], s48 offen sc1", slow=True)
    def ex6():
        ms.wait_for(pre['st'])
        a(f"s_lshl_b32 s{sFl}, s2, 2")
        a(f"s_add_u32 s{sFl}, s{sFl}, 0x{FLP:x}")
        signal(sFl, 4)
    exs = {4: ex4}
    exs7 = {4: ex5, 6: ex6}
    if OPT.get('nopre'): exs = {}; exs7 = {}
    for n in range(4, 8):
        kidx = iteration(ms, kidx, staged=n - 4, extras=exs.get(n), static_n=n, extras7=exs7.get(n))
        if not OPT.get('xst'): a.stamp(n - 1)
    a(f"s_mov_b32 s{sIter}, 8")

    def flush():
        a(f"v_mov_b32 v{vT1}, v{vL}")
        a("s_nop 1")
        a(f"v_permlane16_swap_b32 v{vL}, v{vT1}")
        a("s_nop 1")
        a(f"v_add_f32 v{vL}, v{vL}, v{vT1}")
        a(f"v_mov_b32 v{vT1}, v{vL}")
        a("s_nop 1")
        a(f"v_permlane32_swap_b32 v{vL}, v{vT1}")
        a("s_nop 1")
        a(f"v_add_f32 v{vL}, v{vL}, v{vT1}")
        a(f"ds_write_b32 v{vLdsM}, v{vMc}")
        a(f"ds_write_b32 v{vLdsM}, v{vL} offset:{LDS_L - LDS_M}")
        a(f"s_mov_b64 exec, s[{sMask}:{sMask+1}]")
        for j in range(8):
            a(f"ds_write_b128 v{vLdsO}, {vr(vO + 4*j)} offset:{j*512}")
        a("s_mov_b64 exec, -1")

    def combine_addr(ph, vA, vM):
        a(f"v_and_b32 v{vA}, 15, v0")
        a(f"v_lshlrev_b32 v{vA}, 4, v{vA}")
        a(f"v_bfe_u32 v{vM}, v0, 4, 2")
        a(f"v_lshl_add_u32 v{vA}, v{vM}, 2, v{vA}")
        a(f"s_and_b32 s49, s{sW}, 1")
        a("s_lshl_b32 s49, s49, 8")
        a(f"s_add_u32 s49, s49, 0x{LDS_C + ph*0x4000:x}")
        a(f"v_add_u32 v{vA}, s49, v{vA}")
        a(f"v_and_b32 v{vM}, 7, v0")
        a(f"v_lshlrev_b32 v{vM}, 2, v{vM}")
        a(f"v_add_u32 v{vM}, 0x{LDS_M + ph*0x400:x}, v{vM}")
    def combine(ph, vA, vM, R):
        vm, vl, vo, vx, vacc, vout = R, R+4, R+8, R+40, R+44, R+52
        for w in range(4):
            a(f"ds_read_b32 v{vm + w}, v{vM} offset:{w*256}")
        for w in range(4):
            a(f"ds_read_b32 v{vl + w}, v{vM} offset:{LDS_L - LDS_M + w*256}")
        for j in range(6):
            a(f"ds_read_b32 v{vo + j}, v{vA} offset:{j*512}")
        a("s_waitcnt lgkmcnt(10)")
        a(f"v_max3_f32 v{vx}, v{vm}, v{vm+1}, v{vm+2}")
        a(f"v_max_f32 v{vx}, v{vx}, v{vm+3}")
        for ww in range(4):
            a(f"v_sub_f32 v{vm+ww}, v{vm+ww}, v{vx}")
        for ww in range(4):
            a(f"v_exp_f32 v{vm+ww}, v{vm+ww}")
        for n in range(6, 32):
            w, j = n >> 3, n & 7
            a(f"ds_read_b32 v{vo + n}, v{vA} offset:{w*4096 + j*512}")
            if n == 8:
                a("s_waitcnt lgkmcnt(9)")
                a(f"v_mul_f32 v{vx+1}, v{vm}, v{vl}")
                for ww in range(1, 4):
                    a(f"v_fma_f32 v{vx+1}, v{vm+ww}, v{vl+ww}, v{vx+1}")
                a(f"v_rcp_f32 v{vx+1}, v{vx+1}")
        a("s_nop 0")
        for ww in range(4):
            a(f"v_mul_f32 v{vm+ww}, v{vx+1}, v{vm+ww}")
        a("s_waitcnt lgkmcnt(0)")
        for j in range(8):
            a(f"v_mul_f32 v{vacc+j}, v{vm}, v{vo + j}")
        for w in range(1, 4):
            for j in range(8):
                a(f"v_fma_f32 v{vacc+j}, v{vm+w}, v{vo + w*8 + j}, v{vacc+j}")
        for t in range(4):
            a(f"v_cvt_pk_bf16_f32 v{vout+t}, v{vacc+2*t}, v{vacc+2*t+1}")
        for t in range(4):
            a(f"v_min_u32 v{vout+t}, -2, v{vout+t}")
        if ph:
            a(f"s_add_u32 s49, s{sOst}, 0x80000")
        else:
            a(f"s_mov_b32 s49, s{sOst}")
        a(f"buffer_store_dwordx4 {vr(vout)}, v{vVoff}, s[{sWSo}:{sWSo+3}], s49 offen sc1")

    def dummy(k):
        for _ in range(k):
            a(f"buffer_load_dword v{vDum}, v{vVoff}, s[{sNull}:{sNull+3}], 0 offen")
    def wo_ld(q):
        if OPT.get('nowo7'): return dummy(4)
        a(f"s_mul_i32 s48, s{sP_}, {2*int(OPT.get('ROT', 2))}")
        a(f"s_add_u32 s48, s48, {2*q}")
        a("s_and_b32 s48, s48, 31")
        a("s_lshl_b32 s48, s48, 11")
        a(f"s_add_u32 s48, s48, s{sWoLd}")
        for i in range(4):
            a(f"buffer_load_dwordx4 {ar(16*q + 4*i)}, v{vVoff}, s[{sWS}:{sWS+3}], s48 offen offset:{i*1024}{OPT.get('wolflag', ' sc1')}")
    def o_ld(q, bb, dst):
        a(f"s_mul_i32 s48, s{sP_}, {int(OPT.get('ROT', 2))}")
        a(f"s_add_u32 s48, s48, {q}")
        a("s_and_b32 s48, s48, 15")
        a("s_lshl_b32 s48, s48, 10")
        a(f"s_add_u32 s48, s48, s{sOld}")
        if bb: a("s_add_u32 s48, s48, 0x80000")
        a(f"buffer_load_dwordx4 {vr(dst + 4*q)}, v{vVoff}, s[{sWS}:{sWS+3}], s48 offen sc1")
    def cnt_ld():
        a(f"s_mov_b32 s48, 0x{FLP:x}")
        a(f"buffer_load_dwordx4 {vr(vB + 56)}, v{vVoff}, s[{sWS}:{sWS+3}], s48 offen sc1")
    def cnt_check():
        lp, ld = a.newlabel("cp"), a.newlabel("cd")
        if OPT.get('nopre'): return
        a(f"s_mov_b32 s{sSpin}, 0x20000")
        a.label(lp)
        for r in range(4):
            a(f"v_xor_b32 v{vB + 56 + r}, s{sNon}, v{vB + 56 + r}")
        a(f"v_or3_b32 v{vB + 56}, v{vB + 56}, v{vB + 57}, v{vB + 58}")
        a(f"v_or_b32 v{vB + 56}, v{vB + 56}, v{vB + 59}")
        a(f"v_cmp_ne_u32 vcc, 0, v{vB + 56}")
        a(f"s_cbranch_vccz {ld}")
        a(f"s_sub_u32 s{sSpin}, s{sSpin}, 1")
        a(f"s_cmp_eq_u32 s{sSpin}, 0")
        a(f"s_cbranch_scc1 {ld}")
        a("s_sleep 8")
        cnt_ld()
        a("s_waitcnt vmcnt(0)")
        a(f"s_branch {lp}")
        a.label(ld)
    def flush0():
        a("s_nop 1")
        flush()
        for r in range(8):
            a(f"v_mov_b32 v{vQ + r}, v{vQ2 + r}")
        a(f"v_add_u32 v{vLdsO}, 0x4000, v{vLdsO}")
        a(f"v_add_u32 v{vLdsM}, 0x400, v{vLdsM}")
        a("s_waitcnt lgkmcnt(0)")
        a("s_mov_b64 exec, 1")
        a(f"ds_add_u32 v{vCntL}, v{vOne}")
        a("s_mov_b64 exec, -1")
        reset_state()
    def comb0():
        lp, ld = a.newlabel("lp"), a.newlabel("ld")
        combine_addr(0, vB + 60, vB + 61)
        a(f"s_mov_b32 s{sSpin}, 0x100000")
        a.label(lp)
        a(f"ds_read_b32 v{vB + 62}, v{vCntL}")
        a("s_waitcnt lgkmcnt(0)")
        a(f"v_readfirstlane_b32 s48, v{vB + 62}")
        a("s_cmp_ge_u32 s48, 4")
        a(f"s_cbranch_scc1 {ld}")
        a(f"s_sub_u32 s{sSpin}, s{sSpin}, 1")
        a(f"s_cmp_eq_u32 s{sSpin}, 0")
        a(f"s_cbranch_scc1 {ld}")
        a("s_sleep 2")
        a(f"s_branch {lp}")
        a.label(ld)
        combine(0, vB + 60, vB + 61, vB)
    snip = {}
    snip[8] = lambda: dummy(4)
    snip[9] = lambda: (cnt_ld(), dummy(3))
    snip[10] = lambda: (cnt_check(), wo_ld(0))
    if OPT.get('nocnt'):
        snip[9] = lambda: dummy(4)
        snip[10] = lambda: wo_ld(0)
    for q in range(1, 8):
        snip[10 + q] = (lambda q=q: wo_ld(q))
    snip[16] = lambda: (wo_ld(6), flush0())
    snip[18] = lambda: (dummy(3), comb0())
    for q in range(8, 16):
        snip[11 + q] = (lambda q=q: wo_ld(q))
    snip[27] = lambda: dummy(4)
    for i in range(4):
        snip[28 + i] = (lambda i=i: [o_ld(4*i + k, 0, vB) for k in range(4)])

    N2 = int(OPT.get('N2', 32))
    W2 = int(OPT.get('W2', W))
    for li, (nend, Wl) in enumerate(((N2, W), (32, W2))):
        if li == 1 and N2 == 32: break
        a.label(f"L_loop{li}")
        ml = MemSeq(a, pre_kv=8)
        def ex_loop():
            a(f"s_branch L_snip{li}")
            a.label(f"L_snip_ret{li}")
            for _ in range(4): ml.issue(None)
        iteration(ml, list(range(8)), extras=ex_loop, W=Wl)
        a(f"s_add_u32 s{sIter}, s{sIter}, 1")
        a(f"s_cmp_lt_u32 s{sIter}, {nend}")
        a(f"s_cbranch_scc1 L_loop{li}")
    a.stamp(7)
    combine_addr(1, 8, 9)
    flush()
    a("s_waitcnt lgkmcnt(0)")
    a("s_barrier")
    combine(1, 8, 9, 10)
    for q in range(16):
        o_ld(q, 1, bK)
    for r in range(32):
        a(f"v_mov_b32 v{vO + r}, 0")
    a(f"s_mov_b32 s{sSpin}, 0x20000")
    def frag_mfma(bb, q, src):
        for par in range(2):
            for nn in range(2):
                d = vO + ((bb*2 + nn)*2 + par)*4
                a(f"v_mfma_f32_16x16x32_bf16 {vr(d)}, {ar(16*q + par*8 + nn*4)}, {vr(src + 4*q)}, {vr(d)}")
    a.label("L_p0chk")
    a(f"v_max3_u32 v8, v{vB}, v{vB+1}, v{vB+2}")
    for r in range(3, 63, 2):
        a(f"v_max3_u32 v8, v8, v{vB+r}, v{vB+r+1}")
    a(f"v_max_u32 v8, v8, v{vB+63}")
    a("v_cmp_eq_u32 vcc, -1, v8")
    a("s_cbranch_vccnz L_p0retry")
    a.label("L_p0ok")
    for q in range(16):
        frag_mfma(0, q, vB)
    a(f"s_mov_b32 s{sBad}, 0")
    for q in range(16):
        a(f"s_waitcnt vmcnt({15 - q})")
        a(f"v_max3_u32 v8, v{bK+4*q}, v{bK+4*q+1}, v{bK+4*q+2}")
        a(f"v_max_u32 v8, v8, v{bK+4*q+3}")
        a("v_cmp_eq_u32 vcc, -1, v8")
        a(f"s_cbranch_vccnz L_bad{q}")
        frag_mfma(1, q, bK)
        a.label(f"L_nx{q}")
    a.label("L_retry")
    a(f"s_cmp_eq_u32 s{sBad}, 0")
    a("s_cbranch_scc1 L_alldone")
    a(f"s_sub_u32 s{sSpin}, s{sSpin}, 1")
    a(f"s_cmp_eq_u32 s{sSpin}, 0")
    a("s_cbranch_scc1 L_alldone")
    for q in range(16):
        a(f"s_bitcmp1_b32 s{sBad}, {q}")
        a(f"s_cbranch_scc0 L_rl{q}")
        o_ld(q, 1, bK)
        a.label(f"L_rl{q}")
    a("s_waitcnt vmcnt(0)")
    for q in range(16):
        a(f"s_bitcmp1_b32 s{sBad}, {q}")
        a(f"s_cbranch_scc0 L_rc{q}")
        a(f"v_max3_u32 v8, v{bK+4*q}, v{bK+4*q+1}, v{bK+4*q+2}")
        a(f"v_max_u32 v8, v8, v{bK+4*q+3}")
        a("v_cmp_eq_u32 vcc, -1, v8")
        a(f"s_cbranch_vccnz L_rc{q}")
        frag_mfma(1, q, bK)
        a(f"s_bitset0_b32 s{sBad}, {q}")
        a.label(f"L_rc{q}")
    a("s_branch L_retry")
    a.label("L_alldone")
    a.stamp(8)
    a(f"v_add_u32 v8, s{sLb}, v{vVoff}")
    a("v_and_b32 v5, 63, v0")
    a("v_lshrrev_b32 v6, 5, v5")
    a("v_bfe_u32 v7, v5, 3, 2")
    a("v_and_b32 v9, 7, v5")
    a("s_nop 4")
    for t in range(8):
        a(f"ds_write_b128 v8, {vr(vO + 4*t)} offset:{t*1024}")
    a("v_lshl_add_u32 v11, v7, 4, v9")
    a("v_lshlrev_b32 v11, 4, v11")
    a("v_lshl_add_u32 v11, v6, 11, v11")
    a(f"s_lshl_b32 s48, s{sW}, 12")
    a("v_add_u32 v11, s48, v11")
    a("v_lshlrev_b32 v10, 11, v9")
    a("v_lshl_add_u32 v10, v6, 5, v10")
    a("v_lshl_add_u32 v10, v7, 3, v10")
    a(f"s_lshl_b32 s48, s{sW}, 17")
    a(f"s_lshl_b32 s49, s{sP_}, 14")
    a("s_add_u32 s48, s48, s49")
    a(f"s_lshl_b32 s49, s{sH}, 6")
    a("s_add_u32 s44, s48, s49")
    a("s_waitcnt lgkmcnt(0)")
    a("s_barrier")
    a.stamp(9)
    a.stamp_store(18, 0x200000, 10)
    a(f"s_cmp_ge_u32 s{sW}, 2")
    a("s_cbranch_scc1 L_end")
    for w in range(4):
        a(f"ds_read_b128 {vr(88 + w*8)}, v11 offset:{w*8192}")
        a(f"ds_read_b128 {vr(92 + w*8)}, v11 offset:{w*8192 + 1024 + 128}")
    for i in range(1, 8):
        a(f"s_waitcnt lgkmcnt({7 - i})")
        for r in range(4):
            a(f"v_add_f32 v{88 + r}, v{88 + r}, v{88 + 4*i + r}")
    a("v_cvt_pk_bf16_f32 v12, v88, v89")
    a("v_cvt_pk_bf16_f32 v13, v90, v91")
    a(f"buffer_store_dwordx2 v[12:13], v10, s[{sOUT}:{sOUT+3}], s44 offen{OPT.get('outflag','')}")
    a.label("L_end")
    a("s_endpgm")
    for q in range(16):
        a.label(f"L_bad{q}")
        a(f"s_bitset1_b32 s{sBad}, {q}")
        a(f"s_branch L_nx{q}")
    a.label("L_p0retry")
    a(f"s_sub_u32 s{sSpin}, s{sSpin}, 1")
    a(f"s_cmp_eq_u32 s{sSpin}, 0")
    a("s_cbranch_scc1 L_p0ok")
    for q in range(16):
        o_ld(q, 0, vB)
    a("s_waitcnt vmcnt(0)")
    a("s_branch L_p0chk")
    for li in range(2):
        ks = [n for n in sorted(snip) if (n < N2) == (li == 0)]
        if not ks: continue
        a.label(f"L_snip{li}")
        for n in ks:
            if n != ks[-1]:
                a(f"s_cmp_lg_u32 s{sIter}, {n}")
                a(f"s_cbranch_scc1 L_sn{n+1}")
            snip[n]()
            a(f"s_branch L_snip_ret{li}")
            if n != ks[-1]:
                a.label(f"L_sn{n+1}")

def kd(a, name):
    a.raw(".p2align 6")
    a.raw(f".amdhsa_kernel {name}")
    a.raw("  .amdhsa_next_free_vgpr 512")
    a.raw("  .amdhsa_next_free_sgpr 102")
    a.raw("  .amdhsa_accum_offset 256")
    a.raw("  .amdhsa_group_segment_fixed_size 0")
    a.raw("  .amdhsa_kernarg_size 64")
    a.raw("  .amdhsa_user_sgpr_count 2")
    a.raw("  .amdhsa_user_sgpr_kernarg_segment_ptr 1")
    a.raw("  .amdhsa_system_sgpr_workgroup_id_x 1")
    a.raw(".end_amdhsa_kernel")

def main(path):
    a = Asm()
    a.raw(HEADER.rstrip())
    a.raw(f"; @launch grid=(256,1,1) block=(256,1,1) lds={LDS_SIZE}")
    a.raw('.amdgcn_target "amdgcn-amd-amdhsa--gfx950"')
    a.raw(".text")
    gen_k1(a)
    a.raw('.section .rodata,"a"')
    kd(a, K1)
    open(path, "w").write(a.text())

if __name__ == "__main__":
    args = sys.argv[1:]
    if "--stamp" in args:
        STAMP = True
        args.remove("--stamp")
    rest = []
    for x in args:
        if "=" in x:
            k, v = x.split("=", 1)
            OPT[k] = v.replace("+", " ")
        else:
            rest.append(x)
    main(rest[0] if rest else "standalone__mha_block_cached__sampling.s")
```

```python
import sys, struct, math

def f32hex(x):
    return "0x%08x" % struct.unpack("<I", struct.pack("<f", x))[0]

STAMP = False
OPT = {}
class Asm:
    def __init__(self):
        self.L = []
        self.uid = 0
    def stamp(self, idx):
        if not STAMP: return
        self("s_memrealtime s[68:69]")
        self("s_waitcnt lgkmcnt(0)")
        self(f"s_mov_b32 s{70 + idx}, s68")
    def stamp_store(self, wsptr, base, n):
        if not STAMP: return
        self(f"s_mov_b32 s88, s{wsptr}")
        self(f"s_mov_b32 s89, s{wsptr+1}")
        self("s_mov_b32 s90, 0x40000000")
        self("s_mov_b32 s91, 0x00020000")
        self("s_lshl_b32 s92, s2, 3")
        self("s_add_u32 s92, s92, s40")
        self("s_lshl_b32 s92, s92, 6")
        self(f"s_add_u32 s92, s92, 0x{base:x}")
        self("v_mov_b32 v250, 0")
        for i in range(n):
            self(f"v_mov_b32 v251, s{70+i}")
            self(f"buffer_store_dword v251, v250, s[88:91], s92 offen offset:{4*i}")
            self("s_nop 1")
    def __call__(self, s):
        self.L.append("  " + s)
    def label(self, s):
        self.L.append(s + ":")
    def newlabel(self, p):
        self.uid += 1
        return f"L_{p}_{self.uid}"
    def raw(self, s):
        self.L.append(s)
    def text(self):
        return "\n".join(self.L) + "\n"

class MemSeq:
    def __init__(self, a, pre_kv=0):
        self.a = a; self.n = pre_kv; self.done = 0; self.kv = list(range(pre_kv)); self.slow = -1
    def issue(self, text, kv=False, slow=False):
        if text is not None: self.a(text)
        idx = self.n; self.n += 1
        if kv: self.kv.append(idx)
        if slow and self.slow < self.done: self.slow = idx
        return idx
    def wait_for(self, idx):
        if idx < self.done: return
        cnt = self.n - 1 - idx
        assert cnt <= 63, cnt
        self.a(f"s_waitcnt vmcnt({cnt})")
        self.done = idx + 1
    def pace(self, W):
        if len(self.kv) >= W:
            t = self.kv[-W]
            if self.slow >= self.done and t > self.slow: return
            self.wait_for(t)

def vr(b, n=4):
    return f"v[{b}:{b+n-1}]"
def ar(b, n=4):
    return f"a[{b}:{b+n-1}]"

HEADER = """; Kernarg layout for this problem (64 bytes, ptrs only, base s[0:1]):
"""

K1 = "standalone__mha_block_cached__sampling_kernel"

LDS_WO = 0
LDS_C = 32768
LDS_WQS = 0
LDS_XS = 65536
LDS_M = 98304
LDS_L = 100352
LDS_QF = 102400
LDS_CNT = 106496
LDS_SIZE = 106496 + 64
WOP = 0x400000
QP = 0xC00000
WS_SIZE = QP + 0x800000
FLQ = 0x300000
FLP = 0x310000

def gen_k1(a):
    W = int(OPT.get('W', 5))
    Wp = int(OPT.get('Wp', 5))
    Rn, Rd = [int(t) for t in OPT.get('R', '7/9').split('/')]
    vKoff, vVoff, vKoff2, vVoff2 = 1, 2, 3, 4
    vMc, vL, vT0, vT1 = 5, 6, 7, 20
    vS = 8
    vP = 16
    vAl, vT2, vT3 = 21, 22, 23
    vQ, vQ2 = 24, 32
    vO = 40
    vPT = 72
    vLdsO, vLdsM, vQF, vOne, vTr, vWoOff, vXoff, vWoff = 80, 81, 82, 83, 84, 85, 86, 87
    bK, bV = 88, 120
    vSR = 152
    vB = 168
    vAT = 232
    vCntL, vCntG, vDum = 248, 249, 252
    sX, sK, sV, sWQ, sWS, sWO, sOUT, sDBG, sNull = 20, 24, 28, 32, 36, 60, 64, 80, 96
    sWSo = 20
    sW, sH, sP_, sB1, sVoff, sKoff, sIter = 40, 41, 42, 43, 44, 45, 46
    sSelLo, sSelHi, sC, sBad, sSpin = 50, 51, 52, 53, 54
    sMask = 56
    sWoLd, sLb = 58, 59
    sXb, sWqb, sJ = 84, 85, 86
    vWoffB, vXt, vTq, vXrd = 253, 254, 216, 224
    sFl = 95
    sNon = 55
    vNon = 246
    sOld, sOst = 93, 94
    cscale = (128 ** -0.5) * math.log2(math.e)

    a.raw(f".globl {K1}")
    a.raw(".p2align 8")
    a.raw(f".type {K1},@function")
    a.label(K1)
    a("s_cmp_ge_u32 s2, 256")
    a("s_cbranch_scc1 L_end")
    a.stamp(0)
    a("s_load_dwordx16 s[4:19], s[0:1], 0")
    a("s_memrealtime s[90:91]")
    a("v_lshrrev_b32 v7, 6, v0")
    a("v_and_b32 v5, 63, v0")
    a("v_readfirstlane_b32 s40, v7")
    a("v_and_b32 v6, 15, v5")
    a("v_lshrrev_b32 v7, 4, v5")
    a("s_and_b32 s41, s2, 7")
    a("s_lshl_b32 s41, s41, 2")
    a("s_lshr_b32 s48, s2, 3")
    a("s_and_b32 s48, s48, 3")
    a("s_add_u32 s41, s41, s48")
    a("s_lshr_b32 s42, s2, 5")
    if OPT.get('map') == 'anti':
        a("s_lshr_b32 s41, s2, 3")
        a("s_and_b32 s42, s2, 7")
    t0, t1, t2, t3 = 240, 241, 242, 243
    a(f"v_and_b32 v{t0}, 3, v6")
    a(f"v_lshlrev_b32 v{t0}, 2, v{t0}")
    a(f"v_lshrrev_b32 v{t2}, 3, v6")
    a(f"v_and_b32 v{t3}, 7, v6")
    a(f"v_lshrrev_b32 v{t1}, 1, v6")
    a(f"v_xor_b32 v{t1}, v{t1}, v7")
    a(f"v_lshlrev_b32 v{vWoff}, 13, v7")
    a(f"v_lshl_add_u32 v{vWoff}, v{t1}, 5, v{vWoff}")
    a(f"v_and_b32 v{t1}, 1, v5")
    a(f"v_lshl_add_u32 v{vWoff}, v{t1}, 4, v{vWoff}")
    a(f"v_xor_b32 v{vWoffB}, 0x80, v{vWoff}")
    a(f"v_lshrrev_b32 v{t1}, 5, v5")
    a(f"v_and_b32 v{vXoff}, 31, v5")
    a(f"v_lshlrev_b32 v{vXoff}, 4, v{vXoff}")
    a(f"v_lshlrev_b32 v{vXt}, 6, v{t1}")
    a(f"v_xor_b32 v{vXoff}, v{vXoff}, v{vXt}")
    a(f"v_lshl_add_u32 v{vXoff}, v{t1}, 11, v{vXoff}")
    a(f"v_bfe_u32 v{t1}, v6, 2, 1")
    a(f"v_add_u32 v{t1}, v{t0}, v{t1}")
    a(f"v_lshlrev_b32 v{vKoff}, 8, v{t1}")
    a(f"v_lshl_add_u32 v{vKoff}, v{t2}, 6, v{vKoff}")
    a(f"v_lshl_add_u32 v{vKoff}, v7, 4, v{vKoff}")
    a(f"v_add_u32 v{vKoff2}, 0x1000, v{vKoff}")
    a(f"v_lshlrev_b32 v{vVoff}, 4, v5")
    a(f"v_add_u32 v{vVoff2}, 0x1000, v{vVoff}")
    a(f"s_and_b32 s{sJ}, s{sP_}, 3")
    a(f"s_and_b32 s48, s{sP_}, 4")
    a(f"s_add_u32 s48, s48, s{sW}")
    a(f"s_lshl_b32 s{sXb}, s48, 14")
    a(f"s_lshl_b32 s48, s{sJ}, 9")
    a(f"s_add_u32 s{sXb}, s{sXb}, s48")
    a(f"s_lshl_b32 s{sWqb}, s{sJ}, 21")
    a(f"s_lshl_b32 s48, s{sW}, 19")
    a(f"s_add_u32 s{sWqb}, s{sWqb}, s48")
    a(f"s_lshl_b32 s48, s{sH}, 8")
    a(f"s_add_u32 s{sWqb}, s{sWqb}, s48")
    a(f"s_lshl_b32 s{sVoff}, s{sP_}, 5")
    a(f"s_add_u32 s{sVoff}, s{sVoff}, s{sH}")
    a(f"s_lshl_b32 s{sVoff}, s{sVoff}, 19")
    a(f"s_lshl_b32 s48, s{sW}, 13")
    a(f"s_add_u32 s{sVoff}, s{sVoff}, s48")
    a(f"s_add_u32 s{sB1}, s{sVoff}, 0x8000000")
    for (d, size) in ((sX, 16*8*1024*2), (sWQ, 1024*4096*2), (sK, 1 << 28), (sV, 1 << 28)):
        a(f"s_mov_b32 s{d+2}, 0x{size:x}")
        a(f"s_mov_b32 s{d+3}, 0x00020000")
    a(f"s_mov_b32 s{sSelLo}, 0x05040100")
    a(f"s_mov_b32 s{sSelHi}, 0x07060302")
    a("s_waitcnt lgkmcnt(0)")
    for (d, src) in ((sX, 4), (sWQ, 10), (sK, 6), (sV, 8)):
        a(f"s_mov_b32 s{d}, s{src}")
        a(f"s_mov_b32 s{d+1}, s{src+1}")

    ms = MemSeq(a)
    NSL = 3
    def xreg(ks): return 8 + 4*ks
    def slot(ks): return 152 + (ks % NSL)*32

    def ld_K(ms, dst, j, soff):
        T, s = j >> 2, j & 3
        return ms.issue(f"buffer_load_dwordx4 {dst}, v{vKoff if T == 0 else vKoff2}, s[{sK}:{sK+3}], s{soff} offen offset:{(s>>1)*512 + (s&1)*128} nt", kv=True)
    def ld_V(ms, dst, i, soff):
        return ms.issue(f"buffer_load_dwordx4 {dst}, v{vVoff if i < 4 else vVoff2}, s[{sV}:{sV+3}], s{soff} offen offset:{(i&3)*1024} nt", kv=True)

    stage = []
    for b in range(4):
        for j in range(8): stage.append(('K', b, j))
        for j in range(8): stage.append(('V', b, j))
    for j in range(8): stage.append(('K', 4, j))
    st = {'pos': 0, 'idx': {}}
    def stage_one(Wx):
        if st['pos'] >= len(stage): return False
        kind, b, j = stage[st['pos']]; st['pos'] += 1
        if len(ms.kv) >= Wx and not st.get('late'):
            st['late'] = True
            late_setup()
        ms.pace(Wx)
        if kind == 'K':
            dst = ar(64*b + 4*j) if b < 4 else vr(bK + 4*j)
            st['idx'][(kind, b, j)] = ld_K(ms, dst, j, sVoff)
        else:
            st['idx'][(kind, b, j)] = ld_V(ms, ar(64*b + 32 + 4*j), j, sVoff)
            if j == 7:
                a(f"s_add_u32 s{sVoff}, s{sVoff}, 0x8000")
        return True

    def perm_c(src, c):
        for hb, sel in ((0, sSelLo), (1, sSelHi)):
            for t in range(4):
                a(f"v_perm_b32 v{vPT + hb*4 + t}, v{src[2*t+1] + c}, v{src[2*t] + c}, s{sel}")
    def mfma_c(bop, c, first):
        a("s_nop 1")
        for hb in range(2):
            j = 2*c + hb
            cc = "0" if first else vr(vO + 4*j)
            a(f"v_mfma_f32_16x16x32_bf16 {vr(vO + 4*j)}, {vr(vPT + hb*4)}, {vr(bop)}, {cc}")
    def reset_state():
        for r in range(32):
            a(f"v_mov_b32 v{vO + r}, 0")
        a(f"v_mov_b32 v{vMc}, 0xff800000")
        a(f"v_mov_b32 v{vL}, 0")

    def late_setup():
        a(f"v_lshl_add_u32 v{t1}, v7, 4, v{t3}")
        a(f"v_lshlrev_b32 v{t1}, 4, v{t1}")
        a(f"v_lshl_add_u32 v{t1}, v{t2}, 10, v{t1}")
        a(f"v_add_u32 v{vQF}, 0x{LDS_QF:x}, v{t1}")
        a(f"v_mov_b32 v{vCntL}, 0x{LDS_CNT:x}")
        a(f"v_mov_b32 v{vOne}, 0")
        a(f"ds_write_b32 v{vCntL}, v{vOne}")
        a(f"ds_write_b32 v{vCntL}, v{vOne} offset:4")
        a(f"ds_write_b32 v{vCntL}, v{vOne} offset:8")
        a(f"ds_write_b32 v{vCntL}, v{vOne} offset:12")
        a(f"v_lshl_add_u32 v{t1}, v7, 3, v{t3}")
        a(f"v_lshlrev_b32 v{t1}, 4, v{t1}")
        a(f"s_lshl_b32 s48, s{sW}, 12")
        a(f"s_add_u32 s48, s48, 0x{LDS_C:x}")
        a(f"v_add_u32 v{vLdsO}, s48, v{t1}")
        a(f"s_lshl_b32 s48, s{sW}, 8")
        a(f"s_add_u32 s48, s48, 0x{LDS_M:x}")
        a(f"v_lshlrev_b32 v{t1}, 2, v5")
        a(f"v_add_u32 v{vLdsM}, s48, v{t1}")
        a(f"v_lshlrev_b32 v{vWoOff}, 11, v7")
        a(f"v_lshl_add_u32 v{vWoOff}, v6, 4, v{vWoOff}")
        a(f"v_lshrrev_b32 v{t1}, 2, v6")
        a(f"v_lshl_add_u32 v{t1}, v7, 3, v{t1}")
        a(f"v_lshlrev_b32 v{vTr}, 8, v{t1}")
        a(f"v_lshl_add_u32 v{vTr}, v{t0}, 1, v{vTr}")
        a(f"s_lshl_b32 s{sLb}, s{sW}, 13")
        a(f"v_add_u32 v{vTr}, s{sLb}, v{vTr}")
        a(f"v_mov_b32 v{vOne}, 1")
        a(f"s_mov_b32 s{sC}, {f32hex(cscale)}")
        a(f"s_mov_b32 s{sMask}, 0x00ff00ff")
        a(f"s_mov_b32 s{sMask+1}, 0x00ff00ff")
        for (d, src, size) in ((sWS, 18, WS_SIZE), (sWO, 12, 4096*1024*2), (sOUT, 14, 128*1024*2), (sDBG, 16, 256), (sNull, 18, 0)):
            a(f"s_mov_b32 s{d}, s{src}")
            a(f"s_mov_b32 s{d+1}, s{src+1}")
            a(f"s_mov_b32 s{d+2}, 0x{size:x}")
            a(f"s_mov_b32 s{d+3}, 0x00020000")
        a(f"s_lshl_b32 s{sWoLd}, s{sH}, 18")
        a(f"s_lshl_b32 s48, s{sW}, 16")
        a(f"s_add_u32 s{sWoLd}, s{sWoLd}, s48")
        a(f"s_add_u32 s{sWoLd}, s{sWoLd}, 0x{WOP:x}")
        a(f"s_lshl_b32 s{sOld}, s{sP_}, 16")
        a(f"s_lshl_b32 s48, s{sW}, 14")
        a(f"s_add_u32 s{sOld}, s{sOld}, s48")
        a(f"s_lshl_b32 s{sOst}, s{sP_}, 16")
        a(f"s_lshl_b32 s48, s{sH}, 11")
        a(f"s_add_u32 s{sOst}, s{sOst}, s48")
        a(f"s_and_b32 s48, s{sW}, 1")
        a("s_lshl_b32 s48, s48, 10")
        a(f"s_add_u32 s{sOst}, s{sOst}, s48")

    if OPT.get('noq7'):
        a(f"s_mov_b32 s{sX+2}, 0")
        a(f"s_mov_b32 s{sWQ+2}, 0")
    dl = []
    for m in range(8): dl.append(('x', m))
    for m in range(16): dl.append(('w', m))
    order = []
    for i in range(8):
        order += [dl[i], dl[8 + 2*i], dl[9 + 2*i]]
    last_dma = None
    for i, (kind, m) in enumerate(order):
        if kind == 'x':
            a(f"s_lshl_b32 s48, s{sW}, 13")
            a(f"s_add_u32 m0, s48, 0x{LDS_XS + m*1024:x}")
            a(f"s_add_u32 s49, s{sXb}, 0x{(m&3)*4096 + (m>>2)*131072:x}")
            src = vXoff
            if m & 3:
                a(f"v_xor_b32 v{vXt}, 0x{(m&3) << 7:x}, v{vXoff}")
                src = vXt
            last_dma = ms.issue(f"buffer_load_dwordx4 v{src}, s[{sX}:{sX+3}], s49 offen lds")
        else:
            a(f"s_lshl_b32 s48, s{sW}, 14")
            a(f"s_add_u32 m0, s48, 0x{LDS_WQS + m*1024:x}")
            a(f"s_add_u32 s49, s{sWqb}, 0x{m*32768:x}")
            last_dma = ms.issue(f"buffer_load_dwordx4 v{vWoffB if m & 2 else vWoff}, s[{sWQ}:{sWQ+3}], s49 offen{OPT.get('wqflag','')} lds")
        if i % int(OPT.get('DI', 3)) == 1:
            stage_one(Wp)
    if not st.get('late'):
        st['late'] = True
        late_setup()
    a(f"s_mov_b32 s{sNull}, s16")
    a(f"s_mov_b32 s{sNull+1}, s17")
    a(f"s_cmp_eq_u32 s{sW}, 0")
    a(f"s_cselect_b32 s{sNull+2}, 256, 0")
    a(f"s_mov_b32 s{sNull+3}, 0x00020000")
    a(f"v_mov_b32 v{vNon+1}, 0")
    a(f"s_or_b32 s{sNon}, s90, 1")
    a(f"v_mov_b32 v{vNon}, s{sNon}")
    a("s_mov_b64 exec, 1")
    nidx = ms.issue(f"buffer_atomic_cmpswap v[{vNon}:{vNon+1}], v{vNon+1}, s[{sNull}:{sNull+3}], 0 offen sc0 sc1", slow=True)
    a("s_mov_b64 exec, -1")
    a("s_nop 0")
    a(f"s_mov_b32 s{sNull}, s18")
    a(f"s_mov_b32 s{sNull+1}, s19")
    a(f"s_mov_b32 s{sNull+2}, 0")
    a(f"v_lshrrev_b32 v{vXt}, 2, v6")
    a(f"v_and_b32 v{vTq+1}, 1, v7")
    a(f"v_lshl_add_u32 v{vTq+1}, v{vTq+1}, 2, v{vXt}")
    a(f"v_lshl_add_u32 v{vTq}, v7, 3, v{vXt}")
    a(f"v_lshlrev_b32 v{vTq}, 8, v{vTq}")
    a(f"v_lshl_add_u32 v{vTq}, v{vTq+1}, 5, v{vTq}")
    a(f"v_and_b32 v{vXt}, 3, v6")
    a(f"v_lshl_add_u32 v{vTq}, v{vXt}, 3, v{vTq}")
    for t in range(1, 8):
        a(f"v_xor_b32 v{vTq+t}, {t << 5}, v{vTq}")
    a(f"v_lshlrev_b32 v{vXrd}, 9, v6")
    a(f"v_lshl_add_u32 v{vXrd}, v7, 4, v{vXrd}")
    a(f"v_and_b32 v{vXt}, 7, v6")
    a(f"v_lshl_add_u32 v{vXrd}, v{vXt}, 6, v{vXrd}")
    a(f"s_lshl_b32 s48, s{sW}, 13")
    a(f"s_add_u32 s48, s48, 0x{LDS_XS:x}")
    a(f"v_add_u32 v{vXrd}, s48, v{vXrd}")
    for i in range(int(OPT.get('SA', 2))): stage_one(Wp)
    ms.wait_for(last_dma)
    a("s_waitcnt lgkmcnt(0)")
    a("s_barrier")
    def q_reads(ks):
        A0 = 152 + (ks & 1)*32
        if ks:
            a(f"v_xor_b32 v{vXt}, 0x{ks << 6:x}, v{vXrd}")
        a(f"ds_read_b128 {vr(8 + (ks&1)*4)}, v{vXt if ks else vXrd}")
        for t in range(8):
            for half in range(2):
                d = A0 + t*4 + half*2
                a(f"ds_read_b64_tr_b16 v[{d}:{d+1}], v{vTq+t} offset:{ks*8192 + half*1024}")
    q_reads(0)
    for ks in range(8):
        if ks < 7:
            a("s_waitcnt lgkmcnt(0)")
            q_reads(ks + 1)
        else:
            a("s_waitcnt lgkmcnt(0)")
        A0 = 152 + (ks & 1)*32
        for t in range(8):
            cc = "0" if ks == 0 else vr(vO + 4*t)
            a(f"v_mfma_f32_16x16x32_bf16 {vr(vO + 4*t)}, {vr(A0 + 4*t)}, {vr(8 + (ks&1)*4)}, {cc}")
        stage_one(Wp)
    a.stamp(1)
    a("s_and_b32 s48, s2, 0x9f")
    a(f"s_lshl_b32 s49, s{sW}, 5")
    a("s_or_b32 s48, s48, s49")
    a("s_lshl_b32 s48, s48, 2")
    a(f"s_add_u32 s48, s48, s{sJ}")
    a("s_lshl_b32 s48, s48, 13")
    a(f"s_add_u32 s48, s48, 0x{QP:x}")
    a(f"s_mov_b32 s{sWSo}, s18")
    a(f"s_mov_b32 s{sWSo+1}, s19")
    a(f"s_cmp_lg_u32 s{sW}, s{sJ}")
    a(f"s_cselect_b32 s{sWSo+2}, 0x{WS_SIZE if not OPT.get('noq7') else 0:x}, 0")
    a("s_nop 3")
    for t in range(8):
        qst = ms.issue(f"buffer_store_dwordx4 {vr(vO + 4*t)}, v{vVoff if t < 4 else vVoff2}, s[{sWSo}:{sWSo+3}], s48 offen offset:{(t&3)*1024} sc1", slow=True)
    a(f"s_cbranch_scc1 L_notown")
    a(f"s_lshl_b32 s48, s{sW}, 13")
    a(f"s_add_u32 s48, s48, 0x{LDS_XS:x}")
    a(f"v_add_u32 v8, s48, v{vVoff}")
    for t in range(8):
        a(f"ds_write_b128 v8, {vr(vO + 4*t)} offset:{t*1024}")
    a.label("L_notown")
    a(f"s_lshl_b32 s{sFl}, s2, 7")
    a(f"s_add_u32 s{sFl}, s{sFl}, 0x{FLQ:x}")
    for i in range(int(OPT.get('SB', 10))): stage_one(Wp)
    def signal(soff, cnt_off):
        a("s_waitcnt lgkmcnt(0)")
        a("s_mov_b64 exec, 1")
        a(f"ds_add_rtn_u32 v{vCntG}, v{vCntL}, v{vOne} offset:{cnt_off}")
        a(f"v_mov_b32 v{vDum}, s{sNon}")
        a("s_waitcnt lgkmcnt(0)")
        a(f"v_readfirstlane_b32 s49, v{vCntG}")
        a(f"v_mov_b32 v{vCntG}, 0")
        a("s_cmp_eq_u32 s49, 3")
        a(f"s_cselect_b32 s{sNull+2}, 0x{WS_SIZE:x}, 0")
        a("s_nop 0")
        ms.issue(f"buffer_store_dword v{vDum}, v{vCntG}, s[{sNull}:{sNull+3}], s{soff} offen sc1", slow=True)
        a("s_mov_b64 exec, -1")
        a("s_nop 0")
        a(f"s_mov_b32 s{sNull+2}, 0")
    ms.wait_for(qst)
    if OPT.get('xst'): a.stamp(3)
    a(f"v_readfirstlane_b32 s48, v{vNon}")
    a("s_cmp_eq_u32 s48, 0")
    a(f"s_cselect_b32 s48, s{sNon}, s48")
    a(f"v_mov_b32 v{vNon}, s48")
    a(f"s_cmp_lg_u32 s{sW}, 0")
    a("s_cbranch_scc1 L_nonw")
    a(f"ds_write_b32 v{vCntL}, v{vNon} offset:12")
    a.label("L_nonw")
    a(f"s_mov_b32 s{sSpin}, 0x1000000")
    a.label("L_nonp")
    a(f"ds_read_b32 v{vNon}, v{vCntL} offset:12")
    a(f"s_sub_u32 s{sSpin}, s{sSpin}, 1")
    a("s_waitcnt lgkmcnt(0)")
    a(f"v_readfirstlane_b32 s{sNon}, v{vNon}")
    a(f"s_cmp_eq_u32 s{sSpin}, 0")
    a("s_cbranch_scc1 L_nond")
    a(f"s_cmp_eq_u32 s{sNon}, 0")
    a("s_cbranch_scc1 L_nonp")
    a.label("L_nond")
    if OPT.get('xst'): a.stamp(4)
    signal(sFl, 8)
    for i in range(int(OPT.get('SC', 14))): stage_one(Wp)
    a("s_and_b32 s47, s2, 0x9f")
    a("s_lshl_b32 s47, s47, 7")
    a(f"s_add_u32 s47, s47, 0x{FLQ:x}")
    a(f"v_and_b32 v{vCntG}, 3, v0")
    a(f"v_lshlrev_b32 v{vCntG}, 12, v{vCntG}")
    pidx = ms.issue(f"buffer_load_dword v{vDum}, v{vCntG}, s[{sWS}:{sWS+3}], s47 offen sc1")
    for i in range(2): stage_one(Wp)
    ms.wait_for(pidx)
    a(f"s_mov_b32 s{sSpin}, 0x100000")
    a.label("L_qpoll")
    a(f"v_cmp_ne_u32 vcc, s{sNon}, v{vDum}")
    a("s_cbranch_vccz L_qok")
    if OPT.get('noq7'): a("s_branch L_qok")
    a(f"s_sub_u32 s{sSpin}, s{sSpin}, 1")
    a(f"s_cmp_eq_u32 s{sSpin}, 0")
    a("s_cbranch_scc1 L_qok")
    a("s_sleep 2")
    a(f"buffer_load_dword v{vDum}, v{vCntG}, s[{sWS}:{sWS+3}], s47 offen sc1")
    a("s_waitcnt vmcnt(0)")
    a("s_branch L_qpoll")
    a.label("L_qok")
    if OPT.get('xst'): a.stamp(5)
    a("s_lshl_b32 s48, s2, 15")
    a(f"s_lshl_b32 s49, s{sW}, 11")
    a("s_add_u32 s48, s48, s49")
    a(f"s_add_u32 s48, s48, 0x{QP:x}")
    for jj in range(4):
        a(f"s_cmp_lg_u32 s{sJ}, {jj}")
        a(f"s_cselect_b32 s{sWSo+2}, 0x{WS_SIZE if not OPT.get('noq7') else 0:x}, 0")
        for tt in range(2):
            gl = ms.issue(f"buffer_load_dwordx4 {vr(vO + (jj*2+tt)*4)}, v{vVoff}, s[{sWSo}:{sWSo+3}], s48 offen offset:{tt*1024} sc1")
        if jj < 3: a("s_add_u32 s48, s48, 0x2000")
    a(f"s_lshl_b32 s48, s{sJ}, 13")
    a(f"s_add_u32 s48, s48, s49")
    a(f"s_add_u32 s48, s48, 0x{LDS_XS:x}")
    a(f"v_add_u32 v8, s48, v{vVoff}")
    for tt in range(2):
        a(f"ds_read_b128 {vr(12 + tt*4)}, v8 offset:{tt*1024}")
    a("v_and_b32 v9, 15, v0")
    a("v_lshlrev_b32 v9, 4, v9")
    a("v_bfe_u32 v10, v0, 5, 1")
    a("v_lshl_add_u32 v9, v10, 8, v9")
    a("v_bfe_u32 v10, v0, 4, 1")
    a("v_lshl_add_u32 v9, v10, 3, v9")
    a(f"s_lshl_b32 s48, s{sW}, 10")
    a(f"s_add_u32 s48, s48, 0x{LDS_QF:x}")
    a("v_add_u32 v9, s48, v9")
    a(f"s_cmp_lt_u32 s{sW}, 2")
    a(f"s_cselect_b32 s{sWSo+2}, 0x100000, 0")
    for i in range(int(OPT.get('SD', 5))): stage_one(Wp)
    ms.wait_for(gl)
    if OPT.get('xst'): a.stamp(6)
    a("s_waitcnt lgkmcnt(0)")
    for r in range(8):
        a(f"v_add_f32 v{vO + r}, v{vO + r}, v{vO + 8 + r}")
        a(f"v_add_f32 v{vO + 16 + r}, v{vO + 16 + r}, v{vO + 24 + r}")
    for r in range(8):
        a(f"v_add_f32 v{vO + r}, v{vO + r}, v{12 + r}")
    for r in range(8):
        a(f"v_add_f32 v{vO + r}, v{vO + r}, v{vO + 16 + r}")
    for s_ in range(4):
        a(f"v_cvt_pk_bf16_f32 v{20 + s_}, v{vO + 2*s_}, v{vO + 2*s_ + 1}")
    for tt in range(2):
        a(f"ds_write_b64 v9, v[{20 + 2*tt}:{21 + 2*tt}] offset:{tt*512}")
    stage_one(Wp)
    a("s_waitcnt lgkmcnt(0)")
    a("s_barrier")
    for ph in range(2):
        for sp in range(2):
            a(f"ds_read_b128 {vr(vQ + ph*8 + sp*4)}, v{vQF} offset:{sp*2048 + ph*128}")
    reset_state()
    a("s_waitcnt lgkmcnt(0)")
    a.stamp(2)

    def p_QK(kop):
        for T in range(2):
            for s in range(4):
                d = vSR + (T*2 + (s>>1))*4
                cc = "0" if (s & 1) == 0 else vr(d)
                a(f"v_mfma_f32_16x16x32_bf16 {vr(d)}, {kop(T*4+s)}, {vr(vQ + 4*(s&1))}, {cc}")
    def p_SM1():
        a("s_nop 7")
        for T in range(2):
            for r in range(4):
                a(f"v_permlane32_swap_b32 v{vSR + T*8 + r}, v{vSR + T*8 + 4 + r}")
        a("s_nop 0")
        for T in range(2):
            for r in range(4):
                a(f"v_add_f32_dpp v{vS + T*4 + r}, v{vSR + T*8 + 4 + r}, v{vSR + T*8 + r} row_ror:8 row_mask:0xf bank_mask:0xf")
        a(f"v_max3_f32 v{vT0}, v{vS+0}, v{vS+1}, v{vS+2}")
        a(f"v_max3_f32 v{vT0}, v{vT0}, v{vS+3}, v{vS+4}")
        a(f"v_max3_f32 v{vT0}, v{vT0}, v{vS+5}, v{vS+6}")
        a(f"v_max_f32 v{vT0}, v{vT0}, v{vS+7}")
        a(f"v_mov_b32 v{vT1}, v{vT0}")
        a("s_nop 1")
        a(f"v_permlane16_swap_b32 v{vT0}, v{vT1}")
        a("s_nop 1")
        a(f"v_max_f32 v{vT0}, v{vT0}, v{vT1}")
        a(f"v_mov_b32 v{vT1}, v{vT0}")
        a("s_nop 1")
        a(f"v_permlane32_swap_b32 v{vT0}, v{vT1}")
        a("s_nop 1")
        a(f"v_max_f32 v{vT0}, v{vT0}, v{vT1}")
        a(f"v_mul_f32 v{vT0}, s{sC}, v{vT0}")
        a(f"v_max_f32 v{vT0}, v{vT0}, v{vMc}")
        a(f"v_sub_f32 v{vAl}, v{vMc}, v{vT0}")
        a(f"v_exp_f32 v{vAl}, v{vAl}")
        a(f"v_mov_b32 v{vMc}, v{vT0}")
    def p_SM2():
        for i in range(8):
            a(f"v_fma_f32 v{vS+i}, v{vS+i}, s{sC}, -v{vMc}")
        for i in range(8):
            a(f"v_exp_f32 v{vS+i}, v{vS+i}")
        a("s_nop 0")
        a(f"v_add_f32 v{vT2}, v{vS+0}, v{vS+1}")
        a(f"v_add_f32 v{vT3}, v{vS+2}, v{vS+3}")
        a(f"v_add_f32 v{vT0}, v{vS+4}, v{vS+5}")
        a(f"v_add_f32 v{vT1}, v{vS+6}, v{vS+7}")
        a(f"v_add_f32 v{vT2}, v{vT2}, v{vT3}")
        a(f"v_add_f32 v{vT0}, v{vT0}, v{vT1}")
        a(f"v_add_f32 v{vT2}, v{vT2}, v{vT0}")
        a(f"v_fma_f32 v{vL}, v{vL}, v{vAl}, v{vT2}")
        for t in range(4):
            a(f"v_cvt_pk_bf16_f32 v{vP + t}, v{vS + 2*t}, v{vS + 2*t + 1}")
    def p_RS():
        a("s_nop 7")
        for r in range(32):
            a(f"v_mul_f32 v{vO + r}, v{vAl}, v{vO + r}")
    def p_PV(c):
        perm_c([bV + 4*i for i in range(8)], c)
        mfma_c(vP, c, False)
    def p_PVs(b, c):
        base = vAT + (c & 1)*8
        for i in range(8):
            a(f"v_accvgpr_read_b32 v{base + i}, a{64*b + 32 + 4*i + c}")
        perm_c([base + i for i in range(8)], 0)
        mfma_c(vP, c, False)

    def iteration(ms, kidx, staged=None, extras=None, static_n=None, extras7=None, W=W, xpts={}):
        pieces = {s: [] for s in range(16)}
        def wq_(): ms.wait_for(kidx[7]); p_QK(lambda j: vr(bK + 4*j))
        pq = max(W - 1, 4 if staged is not None else 0)
        pieces[pq].append(wq_)
        pieces[pq+1].append(p_SM1)
        pieces[pq+2].append(p_SM2)
        pieces[pq+3].append(p_RS)
        vidx = []
        for c in range(4):
            def f(c=c):
                ms.wait_for(vidx[7]); p_PV(c)
            pieces[min(15, 8 + W - 1 + c)].append(f)
        if staged is not None:
            b = staged
            def sq():
                ms.wait_for(st['idx'][('V', b, 7)]); p_QK(lambda j: ar(64*b + 4*j))
            pieces[0].insert(0, sq)
            pieces[1] = [p_SM1, p_SM2] + pieces[1]
            pieces[2] = [p_RS, lambda: p_PVs(b, 0), lambda: p_PVs(b, 1)] + pieces[2]
            pieces[3] = [lambda: p_PVs(b, 2), lambda: p_PVs(b, 3)] + pieces[3]
        knew = []
        for s in range(16):
            ms.pace(W)
            if s < 8:
                vidx.append(ld_V(ms, vr(bV + 4*s), s, sVoff))
            else:
                knew.append(ld_K(ms, vr(bK + 4*(s-8)), s - 8, sKoff))
            if s in xpts: xpts[s]()
            if s == 0:
                if extras: extras()
                a(f"s_add_u32 s{sKoff}, s{sVoff}, 0x8000")
                if static_n is None:
                    a(f"s_cmp_eq_u32 s{sIter}, 15")
                    a(f"s_cselect_b32 s{sKoff}, s{sB1}, s{sKoff}")
                    a(f"s_cmp_eq_u32 s{sIter}, 31")
                    a(f"s_cselect_b32 s{sK+2}, 0, s{sK+2}")
            for f in pieces[s]: f()
            if s == 7 and extras7: extras7()
            assert not (s == 7 and pq > 7)
        a(f"s_mov_b32 s{sVoff}, s{sKoff}")
        return knew

    while stage_one(W): pass
    kidx = [st['idx'][('K', 4, j)] for j in range(8)]

    pre = {}
    XP = [0, 4, 8, 12]
    def ex4():
        a("s_lshr_b32 s48, s2, 1")
        a("s_lshl_b32 s48, s48, 16")
        a("s_and_b32 s49, s2, 1")
        a("s_lshl_b32 s49, s49, 10")
        a("s_add_u32 s48, s48, s49")
        a(f"s_lshl_b32 s49, s{sW}, 8")
        a("s_add_u32 s48, s48, s49")
        for m in range(8):
            a(f"s_add_u32 m0, s{sLb}, {m*1024}")
            a("s_nop 0")
            pre['dma'] = ms.issue(f"buffer_load_dwordx4 v{vWoOff}, s[{sWO}:{sWO+3}], s48 offen nt lds")
            if m < 7: a("s_add_u32 s48, s48, 0x2000")
    def ex5():
        ms.wait_for(pre['dma'])
        for t in range(8):
            for half in range(2):
                d = vB + t*4 + half*2
                a(f"ds_read_b64_tr_b16 v[{d}:{d+1}], v{vTr} offset:{half*1024 + t*32}")
        a("s_and_b32 s48, s2, 1")
        a("s_lshl_b32 s48, s48, 4")
        a(f"s_lshl_b32 s49, s{sW}, 2")
        a("s_add_u32 s48, s48, s49")
        a("s_lshl_b32 s48, s48, 18")
        a("s_lshr_b32 s49, s2, 1")
        a("s_lshl_b32 s49, s49, 11")
        a("s_add_u32 s48, s48, s49")
        a(f"s_add_u32 s48, s48, 0x{WOP:x}")
        a("s_waitcnt lgkmcnt(0)")
        for t in range(8):
            pre['st'] = ms.issue(f"buffer_store_dwordx4 {vr(vB + 4*t)}, v{vVoff}, s[{sWS}:{sWS+3}], s48 offen offset:{(t&1)*1024} sc1", slow=True)
            if t & 1 and t < 7: a("s_add_u32 s48, s48, 0x40000")
        for r in range(4):
            a(f"v_mov_b32 v{vB + 60 + r}, -1")
        a(f"s_lshr_b32 s48, s{sW}, 1")
        a("s_lshl_b32 s48, s48, 19")
        a(f"s_add_u32 s48, s48, s{sOst}")
        pre['st'] = ms.issue(f"buffer_store_dwordx4 {vr(vB + 60)}, v{vVoff}, s[{sWS}:{sWS+3}], s48 offen sc1", slow=True)
    def ex6():
        ms.wait_for(pre['st'])
        a(f"s_lshl_b32 s{sFl}, s2, 2")
        a(f"s_add_u32 s{sFl}, s{sFl}, 0x{FLP:x}")
        signal(sFl, 4)
    exs = {4: ex4}
    exs7 = {4: ex5, 6: ex6}
    if OPT.get('nopre'): exs = {}; exs7 = {}
    for n in range(4, 8):
        dm = lambda: ms.issue(f"buffer_load_dword v{vDum}, v{vVoff}, s[{sNull}:{sNull+3}], 0 offen")
        kidx = iteration(ms, kidx, staged=n - 4, extras=exs.get(n), static_n=n, extras7=exs7.get(n),
                         xpts=({XP[2]: dm, XP[3]: dm} if n == 7 else {}))
        if not OPT.get('xst'): a.stamp(n - 1)
    a(f"s_mov_b32 s{sIter}, 8")

    def flush():
        a(f"v_mov_b32 v{vT1}, v{vL}")
        a("s_nop 1")
        a(f"v_permlane16_swap_b32 v{vL}, v{vT1}")
        a("s_nop 1")
        a(f"v_add_f32 v{vL}, v{vL}, v{vT1}")
        a(f"v_mov_b32 v{vT1}, v{vL}")
        a("s_nop 1")
        a(f"v_permlane32_swap_b32 v{vL}, v{vT1}")
        a("s_nop 1")
        a(f"v_add_f32 v{vL}, v{vL}, v{vT1}")
        a(f"ds_write_b32 v{vLdsM}, v{vMc}")
        a(f"ds_write_b32 v{vLdsM}, v{vL} offset:{LDS_L - LDS_M}")
        a(f"s_mov_b64 exec, s[{sMask}:{sMask+1}]")
        for j in range(8):
            a(f"ds_write_b128 v{vLdsO}, {vr(vO + 4*j)} offset:{j*512}")
        a("s_mov_b64 exec, -1")

    def combine_addr(ph, vA, vM):
        a(f"v_and_b32 v{vA}, 15, v0")
        a(f"v_lshlrev_b32 v{vA}, 4, v{vA}")
        a(f"v_bfe_u32 v{vM}, v0, 4, 2")
        a(f"v_lshl_add_u32 v{vA}, v{vM}, 2, v{vA}")
        a(f"s_and_b32 s49, s{sW}, 1")
        a("s_lshl_b32 s49, s49, 8")
        a(f"s_add_u32 s49, s49, 0x{LDS_C + ph*0x4000:x}")
        a(f"v_add_u32 v{vA}, s49, v{vA}")
        a(f"v_and_b32 v{vM}, 7, v0")
        a(f"v_lshlrev_b32 v{vM}, 2, v{vM}")
        a(f"v_add_u32 v{vM}, 0x{LDS_M + ph*0x400:x}, v{vM}")
    def combine(ph, vA, vM, R):
        vm, vl, vo, vx, vacc, vout = R, R+4, R+8, R+40, R+44, R+52
        for w in range(4):
            a(f"ds_read_b32 v{vm + w}, v{vM} offset:{w*256}")
        for w in range(4):
            a(f"ds_read_b32 v{vl + w}, v{vM} offset:{LDS_L - LDS_M + w*256}")
        for j in range(6):
            a(f"ds_read_b32 v{vo + j}, v{vA} offset:{j*512}")
        a("s_waitcnt lgkmcnt(10)")
        a(f"v_max3_f32 v{vx}, v{vm}, v{vm+1}, v{vm+2}")
        a(f"v_max_f32 v{vx}, v{vx}, v{vm+3}")
        for ww in range(4):
            a(f"v_sub_f32 v{vm+ww}, v{vm+ww}, v{vx}")
        for ww in range(4):
            a(f"v_exp_f32 v{vm+ww}, v{vm+ww}")
        for n in range(6, 32):
            w, j = n >> 3, n & 7
            a(f"ds_read_b32 v{vo + n}, v{vA} offset:{w*4096 + j*512}")
            if n == 8:
                a("s_waitcnt lgkmcnt(9)")
                a(f"v_mul_f32 v{vx+1}, v{vm}, v{vl}")
                for ww in range(1, 4):
                    a(f"v_fma_f32 v{vx+1}, v{vm+ww}, v{vl+ww}, v{vx+1}")
                a(f"v_rcp_f32 v{vx+1}, v{vx+1}")
        a("s_nop 0")
        for ww in range(4):
            a(f"v_mul_f32 v{vm+ww}, v{vx+1}, v{vm+ww}")
        a("s_waitcnt lgkmcnt(0)")
        for j in range(8):
            a(f"v_mul_f32 v{vacc+j}, v{vm}, v{vo + j}")
        for w in range(1, 4):
            for j in range(8):
                a(f"v_fma_f32 v{vacc+j}, v{vm+w}, v{vo + w*8 + j}, v{vacc+j}")
        for t in range(4):
            a(f"v_cvt_pk_bf16_f32 v{vout+t}, v{vacc+2*t}, v{vacc+2*t+1}")
        for t in range(4):
            a(f"v_min_u32 v{vout+t}, -2, v{vout+t}")
        if ph:
            a(f"s_add_u32 s49, s{sOst}, 0x80000")
        else:
            a(f"s_mov_b32 s49, s{sOst}")
        a(f"buffer_store_dwordx4 {vr(vout)}, v{vVoff}, s[{sWSo}:{sWSo+3}], s49 offen sc1")

    def dummy(k):
        for _ in range(k):
            a(f"buffer_load_dword v{vDum}, v{vVoff}, s[{sNull}:{sNull+3}], 0 offen")
    def wo_ld(q):
        if OPT.get('nowo7'): return dummy(4)
        a(f"s_lshl_b32 s48, s{sP_}, 2" if not OPT.get('norot') else "s_mov_b32 s48, 0")
        a(f"s_add_u32 s48, s48, {2*q}")
        a("s_and_b32 s48, s48, 31")
        a("s_lshl_b32 s48, s48, 11")
        a(f"s_add_u32 s48, s48, s{sWoLd}")
        for i in range(4):
            a(f"buffer_load_dwordx4 {ar(16*q + 4*i)}, v{vVoff}, s[{sWS}:{sWS+3}], s48 offen offset:{i*1024} sc1")
    def o_ld(q, bb, dst):
        a(f"s_lshl_b32 s48, s{sP_}, 1" if not OPT.get('norot') else "s_mov_b32 s48, 0")
        a(f"s_add_u32 s48, s48, {q}")
        a("s_and_b32 s48, s48, 15")
        a("s_lshl_b32 s48, s48, 10")
        a(f"s_add_u32 s48, s48, s{sOld}")
        if bb: a("s_add_u32 s48, s48, 0x80000")
        a(f"buffer_load_dwordx4 {vr(dst + 4*q)}, v{vVoff}, s[{sWS}:{sWS+3}], s48 offen sc1")
    def cnt_ld():
        a(f"s_mov_b32 s48, 0x{FLP:x}")
        a(f"buffer_load_dwordx4 {vr(vB + 56)}, v{vVoff}, s[{sWS}:{sWS+3}], s48 offen sc1")
    def cnt_check():
        lp, ld = a.newlabel("cp"), a.newlabel("cd")
        if OPT.get('nopre'): return
        a(f"s_mov_b32 s{sSpin}, 0x100000")
        a.label(lp)
        for r in range(4):
            a(f"v_xor_b32 v{vB + 56 + r}, s{sNon}, v{vB + 56 + r}")
        a(f"v_or3_b32 v{vB + 56}, v{vB + 56}, v{vB + 57}, v{vB + 58}")
        a(f"v_or_b32 v{vB + 56}, v{vB + 56}, v{vB + 59}")
        a(f"v_cmp_ne_u32 vcc, 0, v{vB + 56}")
        a(f"s_cbranch_vccz {ld}")
        a(f"s_sub_u32 s{sSpin}, s{sSpin}, 1")
        a(f"s_cmp_eq_u32 s{sSpin}, 0")
        a(f"s_cbranch_scc1 {ld}")
        a("s_sleep 8")
        cnt_ld()
        a("s_waitcnt vmcnt(0)")
        a(f"s_branch {lp}")
        a.label(ld)
    def flush0():
        a("s_nop 1")
        flush()
        for r in range(8):
            a(f"v_mov_b32 v{vQ + r}, v{vQ2 + r}")
        a(f"v_add_u32 v{vLdsO}, 0x4000, v{vLdsO}")
        a(f"v_add_u32 v{vLdsM}, 0x400, v{vLdsM}")
        a("s_waitcnt lgkmcnt(0)")
        a("s_mov_b64 exec, 1")
        a(f"ds_add_u32 v{vCntL}, v{vOne}")
        a("s_mov_b64 exec, -1")
        reset_state()
    def comb0():
        lp, ld = a.newlabel("lp"), a.newlabel("ld")
        combine_addr(0, vB + 60, vB + 61)
        a(f"s_mov_b32 s{sSpin}, 0x100000")
        a.label(lp)
        a(f"ds_read_b32 v{vB + 62}, v{vCntL}")
        a("s_waitcnt lgkmcnt(0)")
        a(f"v_readfirstlane_b32 s48, v{vB + 62}")
        a("s_cmp_ge_u32 s48, 4")
        a(f"s_cbranch_scc1 {ld}")
        a(f"s_sub_u32 s{sSpin}, s{sSpin}, 1")
        a(f"s_cmp_eq_u32 s{sSpin}, 0")
        a(f"s_cbranch_scc1 {ld}")
        a("s_sleep 2")
        a(f"s_branch {lp}")
        a.label(ld)
        combine(0, vB + 60, vB + 61, vB)
    def wo1(q, i):
        if OPT.get('nowo7'): return dummy(1)
        if i == 0:
            a(f"s_lshl_b32 s87, s{sP_}, 2" if not OPT.get('norot') else "s_mov_b32 s87, 0")
            a(f"s_add_u32 s87, s87, {2*q}")
            a("s_and_b32 s87, s87, 31")
            a("s_lshl_b32 s87, s87, 11")
            a(f"s_add_u32 s87, s87, s{sWoLd}")
        a(f"buffer_load_dwordx4 {ar(16*q + 4*i)}, v{vVoff}, s[{sWS}:{sWS+3}], s87 offen offset:{i*1024} sc1")
    d1 = lambda: dummy(1)
    snip = {n: [d1, d1, d1, d1] for n in range(8, 32)}
    snip[9][0] = cnt_ld
    woit = list(range(10, 18)) + list(range(19, 27))
    for q, n in enumerate(woit):
        snip[n] = [(lambda q=q, i=i: wo1(q, i)) for i in range(4)]
    f10 = snip[10][0]; snip[10][0] = lambda: (cnt_check(), f10())
    f16 = snip[16][0]; snip[16][0] = lambda: (f16(), flush0())
    snip[18][0] = comb0
    for i in range(4):
        snip[28 + i] = [(lambda i=i, k=k: o_ld(4*i + k, 0, vB)) for k in range(4)]

    a.label("L_loop0")
    ml = MemSeq(a)
    kid = []
    for sl in range(8, 16):
        kid.append(ml.issue(None, kv=True))
        if sl in XP: ml.issue(None)
    def mk(k):
        def f():
            a(f"s_branch L_snip{k}")
            a.label(f"L_snip_ret{k}")
            ml.issue(None)
        return f
    iteration(ml, kid, xpts={XP[k]: mk(k) for k in range(4)})
    a(f"s_add_u32 s{sIter}, s{sIter}, 1")
    a(f"s_cmp_lt_u32 s{sIter}, 32")
    a("s_cbranch_scc1 L_loop0")
    a.stamp(7)
    combine_addr(1, 8, 9)
    flush()
    a("s_waitcnt lgkmcnt(0)")
    a("s_barrier")
    combine(1, 8, 9, 10)
    for q in range(16):
        o_ld(q, 1, bK)
    for r in range(32):
        a(f"v_mov_b32 v{vO + r}, 0")
    a(f"s_mov_b32 s{sSpin}, 0x40000")
    def frag_mfma(bb, q, src):
        for par in range(2):
            for nn in range(2):
                d = vO + ((bb*2 + nn)*2 + par)*4
                a(f"v_mfma_f32_16x16x32_bf16 {vr(d)}, {ar(16*q + par*8 + nn*4)}, {vr(src + 4*q)}, {vr(d)}")
    a("s_waitcnt vmcnt(17)")
    a.label("L_p0chk")
    a(f"v_max3_u32 v8, v{vB}, v{vB+1}, v{vB+2}")
    for r in range(3, 63, 2):
        a(f"v_max3_u32 v8, v8, v{vB+r}, v{vB+r+1}")
    a(f"v_max_u32 v8, v8, v{vB+63}")
    a("v_cmp_eq_u32 vcc, -1, v8")
    a("s_cbranch_vccnz L_p0retry")
    a.label("L_p0ok")
    for q in range(16):
        frag_mfma(0, q, vB)
    a(f"s_mov_b32 s{sBad}, 0")
    for q in range(16):
        a(f"s_waitcnt vmcnt({15 - q})")
        a(f"v_max3_u32 v8, v{bK+4*q}, v{bK+4*q+1}, v{bK+4*q+2}")
        a(f"v_max_u32 v8, v8, v{bK+4*q+3}")
        a("v_cmp_eq_u32 vcc, -1, v8")
        a(f"s_cbranch_vccnz L_bad{q}")
        frag_mfma(1, q, bK)
        a.label(f"L_nx{q}")
    a.label("L_retry")
    a(f"s_cmp_eq_u32 s{sBad}, 0")
    a("s_cbranch_scc1 L_alldone")
    a(f"s_sub_u32 s{sSpin}, s{sSpin}, 1")
    a(f"s_cmp_eq_u32 s{sSpin}, 0")
    a("s_cbranch_scc1 L_alldone")
    for q in range(16):
        a(f"s_bitcmp1_b32 s{sBad}, {q}")
        a(f"s_cbranch_scc0 L_rl{q}")
        o_ld(q, 1, bK)
        a.label(f"L_rl{q}")
    a("s_waitcnt vmcnt(0)")
    for q in range(16):
        a(f"s_bitcmp1_b32 s{sBad}, {q}")
        a(f"s_cbranch_scc0 L_rc{q}")
        a(f"v_max3_u32 v8, v{bK+4*q}, v{bK+4*q+1}, v{bK+4*q+2}")
        a(f"v_max_u32 v8, v8, v{bK+4*q+3}")
        a("v_cmp_eq_u32 vcc, -1, v8")
        a(f"s_cbranch_vccnz L_rc{q}")
        frag_mfma(1, q, bK)
        a(f"s_bitset0_b32 s{sBad}, {q}")
        a.label(f"L_rc{q}")
    a("s_branch L_retry")
    a.label("L_alldone")
    a.stamp(8)
    a(f"v_add_u32 v8, s{sLb}, v{vVoff}")
    a("v_and_b32 v5, 63, v0")
    a("v_lshrrev_b32 v6, 5, v5")
    a("v_bfe_u32 v7, v5, 3, 2")
    a("v_and_b32 v9, 7, v5")
    a("s_nop 4")
    for t in range(8):
        a(f"ds_write_b128 v8, {vr(vO + 4*t)} offset:{t*1024}")
    a("v_lshl_add_u32 v11, v7, 4, v9")
    a("v_lshlrev_b32 v11, 4, v11")
    a("v_lshl_add_u32 v11, v6, 11, v11")
    a(f"s_lshl_b32 s48, s{sW}, 12")
    a("v_add_u32 v11, s48, v11")
    a("v_lshlrev_b32 v10, 11, v9")
    a("v_lshl_add_u32 v10, v6, 5, v10")
    a("v_lshl_add_u32 v10, v7, 3, v10")
    a(f"s_lshl_b32 s48, s{sW}, 17")
    a(f"s_lshl_b32 s49, s{sP_}, 14")
    a("s_add_u32 s48, s48, s49")
    a(f"s_lshl_b32 s49, s{sH}, 6")
    a("s_add_u32 s44, s48, s49")
    a("s_waitcnt lgkmcnt(0)")
    a("s_barrier")
    a.stamp(9)
    a.stamp_store(18, 0x200000, 10)
    a(f"s_cmp_ge_u32 s{sW}, 2")
    a("s_cbranch_scc1 L_end")
    for w in range(4):
        a(f"ds_read_b128 {vr(88 + w*8)}, v11 offset:{w*8192}")
        a(f"ds_read_b128 {vr(92 + w*8)}, v11 offset:{w*8192 + 1024 + 128}")
    for i in range(1, 8):
        a(f"s_waitcnt lgkmcnt({7 - i})")
        for r in range(4):
            a(f"v_add_f32 v{88 + r}, v{88 + r}, v{88 + 4*i + r}")
    a("v_cvt_pk_bf16_f32 v12, v88, v89")
    a("v_cvt_pk_bf16_f32 v13, v90, v91")
    a(f"buffer_store_dwordx2 v[12:13], v10, s[{sOUT}:{sOUT+3}], s44 offen{OPT.get('outflag','')}")
    a.label("L_end")
    a("s_endpgm")
    for q in range(16):
        a.label(f"L_bad{q}")
        a(f"s_bitset1_b32 s{sBad}, {q}")
        a(f"s_branch L_nx{q}")
    a.label("L_p0retry")
    a(f"s_sub_u32 s{sSpin}, s{sSpin}, 1")
    a(f"s_cmp_eq_u32 s{sSpin}, 0")
    a("s_cbranch_scc1 L_p0ok")
    for q in range(16):
        o_ld(q, 0, vB)
    a("s_waitcnt vmcnt(0)")
    a("s_branch L_p0chk")
    def tree(k, lo, hi):
        if lo == hi:
            snip[lo][k]()
            a(f"s_branch L_snip_ret{k}")
            return
        mid = (lo + hi) // 2
        lb = a.newlabel("tr")
        a(f"s_cmp_gt_u32 s{sIter}, {mid}")
        a(f"s_cbranch_scc1 {lb}")
        tree(k, lo, mid)
        a.label(lb)
        tree(k, mid + 1, hi)
    for k in range(4):
        a.label(f"L_snip{k}")
        tree(k, 8, 31)

def kd(a, name):
    a.raw(".p2align 6")
    a.raw(f".amdhsa_kernel {name}")
    a.raw("  .amdhsa_next_free_vgpr 512")
    a.raw("  .amdhsa_next_free_sgpr 102")
    a.raw("  .amdhsa_accum_offset 256")
    a.raw("  .amdhsa_group_segment_fixed_size 0")
    a.raw("  .amdhsa_kernarg_size 64")
    a.raw("  .amdhsa_user_sgpr_count 2")
    a.raw("  .amdhsa_user_sgpr_kernarg_segment_ptr 1")
    a.raw("  .amdhsa_system_sgpr_workgroup_id_x 1")
    a.raw(".end_amdhsa_kernel")

def main(path):
    a = Asm()
    a.raw(HEADER.rstrip())
    a.raw(f"; @launch grid=(256,1,1) block=(256,1,1) lds={LDS_SIZE}")
    a.raw('.amdgcn_target "amdgcn-amd-amdhsa--gfx950"')
    a.raw(".text")
    gen_k1(a)
    a.raw('.section .rodata,"a"')
    kd(a, K1)
    open(path, "w").write(a.text())

if __name__ == "__main__":
    args = sys.argv[1:]
    if "--stamp" in args:
        STAMP = True
        args.remove("--stamp")
    rest = []
    for x in args:
        if "=" in x:
            k, v = x.split("=", 1)
            OPT[k] = v.replace("+", " ")
        else:
            rest.append(x)
    main(rest[0] if rest else "standalone__mha_block_cached__sampling.s")
```

```python
import sys, struct, math

def f32hex(x):
    return "0x%08x" % struct.unpack("<I", struct.pack("<f", x))[0]

STAMP = False
OPT = {}
class Asm:
    def __init__(self):
        self.L = []
        self.uid = 0
    def stamp(self, idx):
        if not STAMP: return
        self("s_memrealtime s[68:69]")
        self("s_waitcnt lgkmcnt(0)")
        self(f"s_mov_b32 s{70 + idx}, s68")
    def stamp_store(self, wsptr, base, n):
        if not STAMP: return
        self(f"s_mov_b32 s88, s{wsptr}")
        self(f"s_mov_b32 s89, s{wsptr+1}")
        self("s_mov_b32 s90, 0x40000000")
        self("s_mov_b32 s91, 0x00020000")
        self("s_lshl_b32 s92, s2, 3")
        self("s_add_u32 s92, s92, s40")
        self("s_lshl_b32 s92, s92, 6")
        self(f"s_add_u32 s92, s92, 0x{base:x}")
        self("v_mov_b32 v250, 0")
        self("s_getreg_b32 s93, hwreg(HW_REG_XCC_ID)")
        self("v_mov_b32 v251, s93")
        self(f"buffer_store_dword v251, v250, s[88:91], s92 offen offset:{4*n}")
        self("s_nop 1")
        self("s_getreg_b32 s93, hwreg(HW_REG_HW_ID)")
        self("v_mov_b32 v251, s93")
        self(f"buffer_store_dword v251, v250, s[88:91], s92 offen offset:{4*n+4}")
        self("s_nop 1")
        for i in range(n):
            self(f"v_mov_b32 v251, s{70+i}")
            self(f"buffer_store_dword v251, v250, s[88:91], s92 offen offset:{4*i}")
            self("s_nop 1")
    def __call__(self, s):
        self.L.append("  " + s)
    def label(self, s):
        self.L.append(s + ":")
    def newlabel(self, p):
        self.uid += 1
        return f"L_{p}_{self.uid}"
    def raw(self, s):
        self.L.append(s)
    def text(self):
        return "\n".join(self.L) + "\n"

class MemSeq:
    def __init__(self, a, pre_kv=0):
        self.a = a; self.n = pre_kv; self.done = 0; self.kv = list(range(pre_kv)); self.slow = -1
    def issue(self, text, kv=False, slow=False):
        if text is not None: self.a(text)
        idx = self.n; self.n += 1
        if kv: self.kv.append(idx)
        if slow and self.slow < self.done: self.slow = idx
        return idx
    def wait_for(self, idx):
        if idx < self.done: return
        cnt = self.n - 1 - idx
        assert cnt <= 63, cnt
        self.a(f"s_waitcnt vmcnt({cnt})")
        self.done = idx + 1
    def pace(self, W):
        if len(self.kv) >= W:
            t = self.kv[-W]
            if self.slow >= self.done and t > self.slow: return
            self.wait_for(t)

def vr(b, n=4):
    return f"v[{b}:{b+n-1}]"
def ar(b, n=4):
    return f"a[{b}:{b+n-1}]"

HEADER = """; Kernarg layout for this problem (64 bytes, ptrs only, base s[0:1]):
"""

K1 = "standalone__mha_block_cached__sampling_kernel"

LDS_WO = 0
LDS_C = 32768
LDS_WQS = 0
LDS_XS = 65536
LDS_M = 98304
LDS_L = 100352
LDS_QF = 102400
LDS_CNT = 106496
LDS_SIZE = 106496 + 64
PR = 0x400000
QP = 0xC00000
WS_SIZE = QP + 0x800000
FLQ = 0x300000
FLP = 0x310000

def gen_k1(a):
    W = int(OPT.get('W', 5))
    Wp = int(OPT.get('Wp', 5))
    Rn, Rd = [int(t) for t in OPT.get('R', '7/9').split('/')]
    vKoff, vVoff, vKoff2, vVoff2 = 1, 2, 3, 4
    vMc, vL, vT0, vT1 = 5, 6, 7, 20
    vS = 8
    vP = 16
    vAl, vT2, vT3 = 21, 22, 23
    vQ, vQ2 = 24, 32
    vO = 40
    vPT = 72
    vLdsO, vLdsM, vQF, vOne, vTr, vWoOff, vXoff, vWoff = 80, 81, 82, 83, 84, 85, 86, 87
    bK, bV = 88, 120
    vSR = 152
    vB = 168
    vAT = 232
    vCntL, vCntG, vDum = 248, 249, 252
    sX, sK, sV, sWQ, sWS, sWO, sOUT, sDBG, sNull = 20, 24, 28, 32, 36, 60, 64, 80, 96
    sWSo = 20
    sW, sH, sP_, sB1, sVoff, sKoff, sIter = 40, 41, 42, 43, 44, 45, 46
    sSelLo, sSelHi, sC, sBad, sSpin = 50, 51, 52, 53, 54
    sMask = 56
    sWoLd, sLb = 58, 59
    sXb, sWqb, sJ = 84, 85, 86
    vWoffB, vXt, vTq, vXrd = 253, 254, 216, 224
    sFl = 95
    sNon = 55
    vNon = 246
    sOld, sOst = 93, 94
    cscale = (128 ** -0.5) * math.log2(math.e)

    a.raw(f".globl {K1}")
    a.raw(".p2align 8")
    a.raw(f".type {K1},@function")
    a.label(K1)
    a("s_cmp_ge_u32 s2, 256")
    a("s_cbranch_scc1 L_end")
    a.stamp(0)
    a("s_load_dwordx16 s[4:19], s[0:1], 0")
    a("s_memrealtime s[90:91]")
    a("v_lshrrev_b32 v7, 6, v0")
    a("v_and_b32 v5, 63, v0")
    a("v_readfirstlane_b32 s40, v7")
    a("v_and_b32 v6, 15, v5")
    a("v_lshrrev_b32 v7, 4, v5")
    a("s_and_b32 s41, s2, 7")
    a("s_lshl_b32 s41, s41, 2")
    a("s_lshr_b32 s48, s2, 3")
    a("s_and_b32 s48, s48, 3")
    a("s_add_u32 s41, s41, s48")
    a("s_lshr_b32 s42, s2, 5")
    if OPT.get('map') == 'anti':
        a("s_lshr_b32 s41, s2, 3")
        a("s_and_b32 s42, s2, 7")
    t0, t1, t2, t3 = 240, 241, 242, 243
    a(f"v_and_b32 v{t0}, 3, v6")
    a(f"v_lshlrev_b32 v{t0}, 2, v{t0}")
    a(f"v_lshrrev_b32 v{t2}, 3, v6")
    a(f"v_and_b32 v{t3}, 7, v6")
    a(f"v_lshrrev_b32 v{t1}, 1, v6")
    a(f"v_xor_b32 v{t1}, v{t1}, v7")
    a(f"v_lshlrev_b32 v{vWoff}, 13, v7")
    a(f"v_lshl_add_u32 v{vWoff}, v{t1}, 5, v{vWoff}")
    a(f"v_and_b32 v{t1}, 1, v5")
    a(f"v_lshl_add_u32 v{vWoff}, v{t1}, 4, v{vWoff}")
    a(f"v_xor_b32 v{vWoffB}, 0x80, v{vWoff}")
    a(f"v_lshrrev_b32 v{t1}, 5, v5")
    a(f"v_and_b32 v{vXoff}, 31, v5")
    a(f"v_lshlrev_b32 v{vXoff}, 4, v{vXoff}")
    a(f"v_lshlrev_b32 v{vXt}, 6, v{t1}")
    a(f"v_xor_b32 v{vXoff}, v{vXoff}, v{vXt}")
    a(f"v_lshl_add_u32 v{vXoff}, v{t1}, 11, v{vXoff}")
    a(f"v_bfe_u32 v{t1}, v6, 2, 1")
    a(f"v_add_u32 v{t1}, v{t0}, v{t1}")
    a(f"v_lshlrev_b32 v{vKoff}, 8, v{t1}")
    a(f"v_lshl_add_u32 v{vKoff}, v{t2}, 6, v{vKoff}")
    a(f"v_lshl_add_u32 v{vKoff}, v7, 4, v{vKoff}")
    a(f"v_add_u32 v{vKoff2}, 0x1000, v{vKoff}")
    a(f"v_lshlrev_b32 v{vVoff}, 4, v5")
    a(f"v_add_u32 v{vVoff2}, 0x1000, v{vVoff}")
    a(f"s_and_b32 s{sJ}, s{sP_}, 3")
    a(f"s_and_b32 s48, s{sP_}, 4")
    a(f"s_add_u32 s48, s48, s{sW}")
    a(f"s_lshl_b32 s{sXb}, s48, 14")
    a(f"s_lshl_b32 s48, s{sJ}, 9")
    a(f"s_add_u32 s{sXb}, s{sXb}, s48")
    a(f"s_lshl_b32 s{sWqb}, s{sJ}, 21")
    a(f"s_lshl_b32 s48, s{sW}, 19")
    a(f"s_add_u32 s{sWqb}, s{sWqb}, s48")
    a(f"s_lshl_b32 s48, s{sH}, 8")
    a(f"s_add_u32 s{sWqb}, s{sWqb}, s48")
    a(f"s_lshl_b32 s{sVoff}, s{sP_}, 5")
    a(f"s_add_u32 s{sVoff}, s{sVoff}, s{sH}")
    a(f"s_lshl_b32 s{sVoff}, s{sVoff}, 19")
    a(f"s_lshl_b32 s48, s{sW}, 13")
    a(f"s_add_u32 s{sVoff}, s{sVoff}, s48")
    a(f"s_add_u32 s{sB1}, s{sVoff}, 0x8000000")
    for (d, size) in ((sX, 16*8*1024*2), (sWQ, 1024*4096*2), (sK, 1 << 28), (sV, 1 << 28)):
        a(f"s_mov_b32 s{d+2}, 0x{size:x}")
        a(f"s_mov_b32 s{d+3}, 0x00020000")
    a(f"s_mov_b32 s{sSelLo}, 0x05040100")
    a(f"s_mov_b32 s{sSelHi}, 0x07060302")
    a("s_waitcnt lgkmcnt(0)")
    if OPT.get('wsoff'):
        a(f"s_add_u32 s18, s18, {OPT['wsoff']}")
        a("s_addc_u32 s19, s19, 0")
    for (d, src) in ((sX, 4), (sWQ, 10), (sK, 6), (sV, 8)):
        a(f"s_mov_b32 s{d}, s{src}")
        a(f"s_mov_b32 s{d+1}, s{src+1}")

    ms = MemSeq(a)
    NSL = 3
    def xreg(ks): return 8 + 4*ks
    def slot(ks): return 152 + (ks % NSL)*32

    def ld_K(ms, dst, j, soff):
        T, s = j >> 2, j & 3
        return ms.issue(f"buffer_load_dwordx4 {dst}, v{vKoff if T == 0 else vKoff2}, s[{sK}:{sK+3}], s{soff} offen offset:{(s>>1)*512 + (s&1)*128} nt", kv=True)
    def ld_V(ms, dst, i, soff):
        return ms.issue(f"buffer_load_dwordx4 {dst}, v{vVoff if i < 4 else vVoff2}, s[{sV}:{sV+3}], s{soff} offen offset:{(i&3)*1024} nt", kv=True)

    stage = []
    for b in range(4):
        for j in range(8): stage.append(('K', b, j))
        for j in range(8): stage.append(('V', b, j))
    for j in range(8): stage.append(('K', 4, j))
    st = {'pos': 0, 'idx': {}}
    def stage_one(Wx):
        if st['pos'] >= len(stage): return False
        kind, b, j = stage[st['pos']]; st['pos'] += 1
        if len(ms.kv) >= Wx and not st.get('late'):
            st['late'] = True
            late_setup()
        ms.pace(Wx)
        if kind == 'K':
            dst = ar(64*b + 4*j) if b < 4 else vr(bK + 4*j)
            st['idx'][(kind, b, j)] = ld_K(ms, dst, j, sVoff)
        else:
            st['idx'][(kind, b, j)] = ld_V(ms, ar(64*b + 32 + 4*j), j, sVoff)
            if j == 7:
                a(f"s_add_u32 s{sVoff}, s{sVoff}, 0x8000")
        return True

    def perm_c(src, c):
        for hb, sel in ((0, sSelLo), (1, sSelHi)):
            for t in range(4):
                a(f"v_perm_b32 v{vPT + hb*4 + t}, v{src[2*t+1] + c}, v{src[2*t] + c}, s{sel}")
    def mfma_c(bop, c, first):
        a("s_nop 1")
        for hb in range(2):
            j = 2*c + hb
            cc = "0" if first else vr(vO + 4*j)
            a(f"v_mfma_f32_16x16x32_bf16 {vr(vO + 4*j)}, {vr(vPT + hb*4)}, {vr(bop)}, {cc}")
    def reset_state():
        for r in range(32):
            a(f"v_mov_b32 v{vO + r}, 0")
        a(f"v_mov_b32 v{vMc}, 0xff800000")
        a(f"v_mov_b32 v{vL}, 0")

    def late_setup():
        a(f"v_lshl_add_u32 v{t1}, v7, 4, v{t3}")
        a(f"v_lshlrev_b32 v{t1}, 4, v{t1}")
        a(f"v_lshl_add_u32 v{t1}, v{t2}, 10, v{t1}")
        a(f"v_add_u32 v{vQF}, 0x{LDS_QF:x}, v{t1}")
        a(f"v_mov_b32 v{vCntL}, 0x{LDS_CNT:x}")
        a(f"v_mov_b32 v{vOne}, 0")
        a(f"ds_write_b32 v{vCntL}, v{vOne}")
        a(f"ds_write_b32 v{vCntL}, v{vOne} offset:4")
        a(f"ds_write_b32 v{vCntL}, v{vOne} offset:8")
        a(f"ds_write_b32 v{vCntL}, v{vOne} offset:12")
        a(f"ds_write_b32 v{vCntL}, v{vOne} offset:16")
        a(f"v_lshl_add_u32 v{t1}, v7, 3, v{t3}")
        a(f"v_lshlrev_b32 v{t1}, 4, v{t1}")
        a(f"s_lshl_b32 s48, s{sW}, 12")
        a(f"s_add_u32 s48, s48, 0x{LDS_C:x}")
        a(f"v_add_u32 v{vLdsO}, s48, v{t1}")
        a(f"s_lshl_b32 s48, s{sW}, 8")
        a(f"s_add_u32 s48, s48, 0x{LDS_M:x}")
        a(f"v_lshlrev_b32 v{t1}, 2, v5")
        a(f"v_add_u32 v{vLdsM}, s48, v{t1}")
        a(f"v_lshrrev_b32 v{t1}, 3, v5")
        a(f"v_lshlrev_b32 v{vWoOff}, 11, v{t1}")
        a(f"v_lshl_add_u32 v{vWoOff}, v{t3}, 4, v{vWoOff}")
        a(f"v_and_b32 v{t1}, 1, v7")
        a(f"v_lshlrev_b32 v{vTr}, 5, v{t1}")
        a(f"v_xor_b32 v{vWoOff}, v{vWoOff}, v{vTr}")
        a(f"v_lshl_add_u32 v{t1}, v{t1}, 1, v{t2}")
        a(f"v_lshlrev_b32 v{vTr}, 5, v{t1}")
        a(f"v_lshrrev_b32 v{t1}, 2, v6")
        a(f"v_lshl_add_u32 v{t1}, v7, 3, v{t1}")
        a(f"v_lshl_add_u32 v{vTr}, v{t1}, 7, v{vTr}")
        a(f"v_lshl_add_u32 v{vTr}, v{t0}, 1, v{vTr}")
        a(f"s_lshl_b32 s{sLb}, s{sW}, 14")
        a(f"s_lshr_b32 s48, s{sW}, 1")
        a("s_lshl_b32 s48, s48, 15")
        a(f"s_add_u32 s{sLb}, s{sLb}, s48")
        a(f"v_mov_b32 v{vOne}, 1")
        a(f"s_mov_b32 s{sC}, {f32hex(cscale)}")
        a(f"s_mov_b32 s{sMask}, 0x00ff00ff")
        a(f"s_mov_b32 s{sMask+1}, 0x00ff00ff")
        for (d, src, size) in ((sWS, 18, WS_SIZE), (sWO, 12, 4096*1024*2), (sOUT, 14, 128*1024*2), (sNull, 18, 0)):
            a(f"s_mov_b32 s{d}, s{src}")
            a(f"s_mov_b32 s{d+1}, s{src+1}")
            a(f"s_mov_b32 s{d+2}, 0x{size:x}")
            a(f"s_mov_b32 s{d+3}, 0x00020000")
        a("s_and_b32 s48, s2, 7")
        a(f"s_lshl_b32 s{sWoLd}, s48, 20")
        a(f"s_lshl_b32 s{sOld}, s48, 15")
        a(f"s_lshl_b32 s48, s{sW}, 18")
        a(f"s_add_u32 s{sWoLd}, s{sWoLd}, s48")
        a("s_lshr_b32 s48, s2, 3")
        a("s_lshl_b32 s48, s48, 6")
        a(f"s_add_u32 s{sWoLd}, s{sWoLd}, s48")
        a(f"s_lshl_b32 s48, s{sW}, 21")
        a(f"s_add_u32 s{sOld}, s{sOld}, s48")
        a(f"s_add_u32 s{sOld}, s{sOld}, 0x{QP:x}")
        a(f"s_lshl_b32 s{sOst}, s2, 15")
        a(f"s_add_u32 s48, s{sP_}, 3")
        a("s_and_b32 s48, s48, 3")
        a("s_lshl_b32 s48, s48, 13")
        a(f"s_add_u32 s{sOst}, s{sOst}, s48")
        a(f"s_add_u32 s{sOst}, s{sOst}, 0x{QP:x}")
        a(f"s_and_b32 s48, s{sW}, 1")
        a("s_lshl_b32 s48, s48, 10")
        a(f"s_add_u32 s{sOst}, s{sOst}, s48")

    if OPT.get('noq7'):
        a(f"s_mov_b32 s{sX+2}, 0")
        a(f"s_mov_b32 s{sWQ+2}, 0")
    dl = []
    for m in range(8): dl.append(('x', m))
    for m in range(16): dl.append(('w', m))
    order = []
    for i in range(8):
        order += [dl[i], dl[8 + 2*i], dl[9 + 2*i]]
    last_dma = None
    for i, (kind, m) in enumerate(order):
        if kind == 'x':
            a(f"s_lshl_b32 s48, s{sW}, 13")
            a(f"s_add_u32 m0, s48, 0x{LDS_XS + m*1024:x}")
            a(f"s_add_u32 s49, s{sXb}, 0x{(m&3)*4096 + (m>>2)*131072:x}")
            src = vXoff
            if m & 3:
                a(f"v_xor_b32 v{vXt}, 0x{(m&3) << 7:x}, v{vXoff}")
                src = vXt
            last_dma = ms.issue(f"buffer_load_dwordx4 v{src}, s[{sX}:{sX+3}], s49 offen lds")
        else:
            a(f"s_lshl_b32 s48, s{sW}, 14")
            a(f"s_add_u32 m0, s48, 0x{LDS_WQS + m*1024:x}")
            a(f"s_add_u32 s49, s{sWqb}, 0x{m*32768:x}")
            last_dma = ms.issue(f"buffer_load_dwordx4 v{vWoffB if m & 2 else vWoff}, s[{sWQ}:{sWQ+3}], s49 offen{OPT.get('wqflag','')} lds")
        if i % int(OPT.get('DI', 3)) == 1:
            stage_one(Wp)
    if not st.get('late'):
        st['late'] = True
        late_setup()
    a(f"s_mov_b32 s{sNull}, s16")
    a(f"s_mov_b32 s{sNull+1}, s17")
    a(f"s_cmp_eq_u32 s{sW}, 0")
    a(f"s_cselect_b32 s{sNull+2}, 256, 0")
    a(f"s_mov_b32 s{sNull+3}, 0x00020000")
    a(f"v_mov_b32 v{vNon+1}, 0")
    a(f"s_or_b32 s{sNon}, s90, 1")
    a(f"v_mov_b32 v{vNon}, s{sNon}")
    a("s_mov_b64 exec, 1")
    nidx = ms.issue(f"buffer_atomic_cmpswap v[{vNon}:{vNon+1}], v{vNon+1}, s[{sNull}:{sNull+3}], 0 offen sc0 sc1", slow=True)
    a("s_mov_b64 exec, -1")
    a("s_nop 0")
    a(f"s_mov_b32 s{sNull}, s18")
    a(f"s_mov_b32 s{sNull+1}, s19")
    a(f"s_mov_b32 s{sNull+2}, 0")
    a(f"v_lshrrev_b32 v{vXt}, 2, v6")
    a(f"v_and_b32 v{vTq+1}, 1, v7")
    a(f"v_lshl_add_u32 v{vTq+1}, v{vTq+1}, 2, v{vXt}")
    a(f"v_lshl_add_u32 v{vTq}, v7, 3, v{vXt}")
    a(f"v_lshlrev_b32 v{vTq}, 8, v{vTq}")
    a(f"v_lshl_add_u32 v{vTq}, v{vTq+1}, 5, v{vTq}")
    a(f"v_and_b32 v{vXt}, 3, v6")
    a(f"v_lshl_add_u32 v{vTq}, v{vXt}, 3, v{vTq}")
    for t in range(1, 8):
        a(f"v_xor_b32 v{vTq+t}, {t << 5}, v{vTq}")
    a(f"v_lshlrev_b32 v{vXrd}, 9, v6")
    a(f"v_lshl_add_u32 v{vXrd}, v7, 4, v{vXrd}")
    a(f"v_and_b32 v{vXt}, 7, v6")
    a(f"v_lshl_add_u32 v{vXrd}, v{vXt}, 6, v{vXrd}")
    a(f"s_lshl_b32 s48, s{sW}, 13")
    a(f"s_add_u32 s48, s48, 0x{LDS_XS:x}")
    a(f"v_add_u32 v{vXrd}, s48, v{vXrd}")
    for i in range(int(OPT.get('SA', 2))): stage_one(Wp)
    ms.wait_for(last_dma)
    a("s_waitcnt lgkmcnt(0)")
    a("s_barrier")
    def q_reads(ks):
        A0 = 152 + (ks & 1)*32
        if ks:
            a(f"v_xor_b32 v{vXt}, 0x{ks << 6:x}, v{vXrd}")
        a(f"ds_read_b128 {vr(8 + (ks&1)*4)}, v{vXt if ks else vXrd}")
        for t in range(8):
            for half in range(2):
                d = A0 + t*4 + half*2
                a(f"ds_read_b64_tr_b16 v[{d}:{d+1}], v{vTq+t} offset:{ks*8192 + half*1024}")
    q_reads(0)
    for ks in range(8):
        if ks < 7:
            a("s_waitcnt lgkmcnt(0)")
            q_reads(ks + 1)
        else:
            a("s_waitcnt lgkmcnt(0)")
        A0 = 152 + (ks & 1)*32
        for t in range(8):
            cc = "0" if ks == 0 else vr(vO + 4*t)
            a(f"v_mfma_f32_16x16x32_bf16 {vr(vO + 4*t)}, {vr(A0 + 4*t)}, {vr(8 + (ks&1)*4)}, {cc}")
        stage_one(Wp)
    a.stamp(1)
    a("s_and_b32 s48, s2, 0x9f")
    a(f"s_lshl_b32 s49, s{sW}, 5")
    a("s_or_b32 s48, s48, s49")
    a("s_lshl_b32 s48, s48, 2")
    a(f"s_add_u32 s48, s48, s{sJ}")
    a("s_lshl_b32 s48, s48, 13")
    a(f"s_add_u32 s48, s48, 0x{QP:x}")
    a(f"s_mov_b32 s{sWSo}, s18")
    a(f"s_mov_b32 s{sWSo+1}, s19")
    a(f"s_cmp_lg_u32 s{sW}, s{sJ}")
    a(f"s_cselect_b32 s{sWSo+2}, 0x{WS_SIZE if not OPT.get('noq7') else 0:x}, 0")
    a("s_nop 3")
    for t in range(8):
        qst = ms.issue(f"buffer_store_dwordx4 {vr(vO + 4*t)}, v{vVoff if t < 4 else vVoff2}, s[{sWSo}:{sWSo+3}], s48 offen offset:{(t&3)*1024}{OPT.get('qstflag', ' sc1')}", slow=True)
    a(f"s_cbranch_scc1 L_notown")
    a(f"s_lshl_b32 s48, s{sW}, 13")
    a(f"s_add_u32 s48, s48, 0x{LDS_XS:x}")
    a(f"v_add_u32 v8, s48, v{vVoff}")
    for t in range(8):
        a(f"ds_write_b128 v8, {vr(vO + 4*t)} offset:{t*1024}")
    a.label("L_notown")
    a(f"s_lshl_b32 s{sFl}, s2, 7")
    a(f"s_add_u32 s{sFl}, s{sFl}, 0x{FLQ:x}")
    for i in range(int(OPT.get('SB', 10))): stage_one(Wp)
    def signal(soff, cnt_off):
        a("s_waitcnt lgkmcnt(0)")
        a("s_mov_b64 exec, 1")
        a(f"ds_add_rtn_u32 v{vCntG}, v{vCntL}, v{vOne} offset:{cnt_off}")
        a(f"v_mov_b32 v{vDum}, s{sNon}")
        a("s_waitcnt lgkmcnt(0)")
        a(f"v_readfirstlane_b32 s49, v{vCntG}")
        a(f"v_mov_b32 v{vCntG}, 0")
        a("s_cmp_eq_u32 s49, 3")
        a(f"s_cselect_b32 s{sNull+2}, 0x{WS_SIZE:x}, 0")
        a("s_nop 0")
        ms.issue(f"buffer_store_dword v{vDum}, v{vCntG}, s[{sNull}:{sNull+3}], s{soff} offen{OPT.get('qflflag', ' sc1') if cnt_off == 8 else ' sc1'}", slow=True)
        a("s_mov_b64 exec, -1")
        a("s_nop 0")
        a(f"s_mov_b32 s{sNull+2}, 0")
    ms.wait_for(qst)
    if OPT.get('xst'): a.stamp(3)
    a(f"v_readfirstlane_b32 s48, v{vNon}")
    a("s_cmp_eq_u32 s48, 0")
    a(f"s_cselect_b32 s48, s{sNon}, s48")
    a(f"v_mov_b32 v{vNon}, s48")
    a(f"s_cmp_lg_u32 s{sW}, 0")
    a("s_cbranch_scc1 L_nonw")
    a(f"ds_write_b32 v{vCntL}, v{vNon} offset:12")
    a.label("L_nonw")
    a(f"s_mov_b32 s{sSpin}, 0x100000")
    a.label("L_nonp")
    a(f"ds_read_b32 v{vNon}, v{vCntL} offset:12")
    a(f"s_sub_u32 s{sSpin}, s{sSpin}, 1")
    a("s_waitcnt lgkmcnt(0)")
    a(f"v_readfirstlane_b32 s{sNon}, v{vNon}")
    a(f"s_cmp_eq_u32 s{sSpin}, 0")
    a("s_cbranch_scc1 L_nond")
    a(f"s_cmp_eq_u32 s{sNon}, 0")
    a("s_cbranch_scc1 L_nonp")
    a.label("L_nond")
    if OPT.get('xst'): a.stamp(4)
    signal(sFl, 8)
    for i in range(int(OPT.get('SC', 14))): stage_one(Wp)
    a("s_and_b32 s47, s2, 0x9f")
    a("s_lshl_b32 s47, s47, 7")
    a(f"s_add_u32 s47, s47, 0x{FLQ:x}")
    a(f"v_and_b32 v{vCntG}, 3, v0")
    a(f"v_lshlrev_b32 v{vCntG}, 12, v{vCntG}")
    pidx = ms.issue(f"buffer_load_dword v{vDum}, v{vCntG}, s[{sWS}:{sWS+3}], s47 offen sc1")
    for i in range(2): stage_one(Wp)
    ms.wait_for(pidx)
    a(f"s_mov_b32 s{sSpin}, {OPT.get('SPIN', '0x20000')}")
    a.label("L_qpoll")
    a(f"v_cmp_ne_u32 vcc, s{sNon}, v{vDum}")
    a("s_cbranch_vccz L_qok")
    if OPT.get('noq7'): a("s_branch L_qok")
    a(f"s_sub_u32 s{sSpin}, s{sSpin}, 1")
    a(f"s_cmp_eq_u32 s{sSpin}, 0")
    a("s_cbranch_scc1 L_qok")
    a("s_sleep 2")
    a(f"buffer_load_dword v{vDum}, v{vCntG}, s[{sWS}:{sWS+3}], s47 offen sc1")
    a("s_waitcnt vmcnt(0)")
    a("s_branch L_qpoll")
    a.label("L_qok")
    if OPT.get('xst'): a.stamp(5)
    a("s_lshl_b32 s48, s2, 15")
    a(f"s_lshl_b32 s49, s{sW}, 11")
    a("s_add_u32 s48, s48, s49")
    a(f"s_add_u32 s48, s48, 0x{QP:x}")
    for jj in range(4):
        a(f"s_cmp_lg_u32 s{sJ}, {jj}")
        a(f"s_cselect_b32 s{sWSo+2}, 0x{WS_SIZE if not OPT.get('noq7') else 0:x}, 0")
        for tt in range(2):
            gl = ms.issue(f"buffer_load_dwordx4 {vr(vO + (jj*2+tt)*4)}, v{vVoff}, s[{sWSo}:{sWSo+3}], s48 offen offset:{tt*1024} sc1")
        if jj < 3: a("s_add_u32 s48, s48, 0x2000")
    a(f"s_lshl_b32 s48, s{sJ}, 13")
    a(f"s_add_u32 s48, s48, s49")
    a(f"s_add_u32 s48, s48, 0x{LDS_XS:x}")
    a(f"v_add_u32 v8, s48, v{vVoff}")
    for tt in range(2):
        a(f"ds_read_b128 {vr(12 + tt*4)}, v8 offset:{tt*1024}")
    a("v_and_b32 v9, 15, v0")
    a("v_lshlrev_b32 v9, 4, v9")
    a("v_bfe_u32 v10, v0, 5, 1")
    a("v_lshl_add_u32 v9, v10, 8, v9")
    a("v_bfe_u32 v10, v0, 4, 1")
    a("v_lshl_add_u32 v9, v10, 3, v9")
    a(f"s_lshl_b32 s48, s{sW}, 10")
    a(f"s_add_u32 s48, s48, 0x{LDS_QF:x}")
    a("v_add_u32 v9, s48, v9")
    a(f"s_cmp_lt_u32 s{sW}, 2")
    a(f"s_cselect_b32 s{sWSo+2}, 0x{WS_SIZE:x}, 0")
    for i in range(int(OPT.get('SD', 5))): stage_one(Wp)
    ms.wait_for(gl)
    if OPT.get('xst'): a.stamp(6)
    a("s_waitcnt lgkmcnt(0)")
    for r in range(8):
        a(f"v_add_f32 v{vO + r}, v{vO + r}, v{vO + 8 + r}")
        a(f"v_add_f32 v{vO + 16 + r}, v{vO + 16 + r}, v{vO + 24 + r}")
    for r in range(8):
        a(f"v_add_f32 v{vO + r}, v{vO + r}, v{12 + r}")
    for r in range(8):
        a(f"v_add_f32 v{vO + r}, v{vO + r}, v{vO + 16 + r}")
    for s_ in range(4):
        a(f"v_cvt_pk_bf16_f32 v{20 + s_}, v{vO + 2*s_}, v{vO + 2*s_ + 1}")
    for tt in range(2):
        a(f"ds_write_b64 v9, v[{20 + 2*tt}:{21 + 2*tt}] offset:{tt*512}")
    stage_one(Wp)
    a("s_waitcnt lgkmcnt(0)")
    a("s_barrier")
    for ph in range(2):
        for sp in range(2):
            a(f"ds_read_b128 {vr(vQ + ph*8 + sp*4)}, v{vQF} offset:{sp*2048 + ph*128}")
    reset_state()
    a("s_waitcnt lgkmcnt(0)")
    a.stamp(2)

    def p_QK(kop):
        for T in range(2):
            for s in range(4):
                d = vSR + (T*2 + (s>>1))*4
                cc = "0" if (s & 1) == 0 else vr(d)
                a(f"v_mfma_f32_16x16x32_bf16 {vr(d)}, {kop(T*4+s)}, {vr(vQ + 4*(s&1))}, {cc}")
    def p_SM1():
        a("s_nop 7")
        for T in range(2):
            for r in range(4):
                a(f"v_permlane32_swap_b32 v{vSR + T*8 + r}, v{vSR + T*8 + 4 + r}")
        a("s_nop 0")
        for T in range(2):
            for r in range(4):
                a(f"v_add_f32_dpp v{vS + T*4 + r}, v{vSR + T*8 + 4 + r}, v{vSR + T*8 + r} row_ror:8 row_mask:0xf bank_mask:0xf")
        a(f"v_max3_f32 v{vT0}, v{vS+0}, v{vS+1}, v{vS+2}")
        a(f"v_max3_f32 v{vT0}, v{vT0}, v{vS+3}, v{vS+4}")
        a(f"v_max3_f32 v{vT0}, v{vT0}, v{vS+5}, v{vS+6}")
        a(f"v_max_f32 v{vT0}, v{vT0}, v{vS+7}")
        a(f"v_mov_b32 v{vT1}, v{vT0}")
        a("s_nop 1")
        a(f"v_permlane16_swap_b32 v{vT0}, v{vT1}")
        a("s_nop 1")
        a(f"v_max_f32 v{vT0}, v{vT0}, v{vT1}")
        a(f"v_mov_b32 v{vT1}, v{vT0}")
        a("s_nop 1")
        a(f"v_permlane32_swap_b32 v{vT0}, v{vT1}")
        a("s_nop 1")
        a(f"v_max_f32 v{vT0}, v{vT0}, v{vT1}")
        a(f"v_mul_f32 v{vT0}, s{sC}, v{vT0}")
        a(f"v_max_f32 v{vT0}, v{vT0}, v{vMc}")
        a(f"v_sub_f32 v{vAl}, v{vMc}, v{vT0}")
        a(f"v_exp_f32 v{vAl}, v{vAl}")
        a(f"v_mov_b32 v{vMc}, v{vT0}")
    def p_SM2():
        for i in range(8):
            a(f"v_fma_f32 v{vS+i}, v{vS+i}, s{sC}, -v{vMc}")
        for i in range(8):
            a(f"v_exp_f32 v{vS+i}, v{vS+i}")
        a("s_nop 0")
        a(f"v_add_f32 v{vT2}, v{vS+0}, v{vS+1}")
        a(f"v_add_f32 v{vT3}, v{vS+2}, v{vS+3}")
        a(f"v_add_f32 v{vT0}, v{vS+4}, v{vS+5}")
        a(f"v_add_f32 v{vT1}, v{vS+6}, v{vS+7}")
        a(f"v_add_f32 v{vT2}, v{vT2}, v{vT3}")
        a(f"v_add_f32 v{vT0}, v{vT0}, v{vT1}")
        a(f"v_add_f32 v{vT2}, v{vT2}, v{vT0}")
        a(f"v_fma_f32 v{vL}, v{vL}, v{vAl}, v{vT2}")
        for t in range(4):
            a(f"v_cvt_pk_bf16_f32 v{vP + t}, v{vS + 2*t}, v{vS + 2*t + 1}")
    def p_RS():
        a("s_nop 7")
        for r in range(32):
            a(f"v_mul_f32 v{vO + r}, v{vAl}, v{vO + r}")
    def p_PV(c):
        perm_c([bV + 4*i for i in range(8)], c)
        mfma_c(vP, c, False)
    def p_PVs(b, c):
        base = vAT + (c & 1)*8
        for i in range(8):
            a(f"v_accvgpr_read_b32 v{base + i}, a{64*b + 32 + 4*i + c}")
        perm_c([base + i for i in range(8)], 0)
        mfma_c(vP, c, False)

    def iteration(ms, kidx, staged=None, extras=None, static_n=None, extras7=None, W=W, late=False):
        pieces = {s: [] for s in range(16)}
        def wq_(): ms.wait_for(kidx[7]); p_QK(lambda j: vr(bK + 4*j))
        WV = int(OPT.get('WV', W)); WK = int(OPT.get('WK', W))
        pq = max(WV - 1, 4 if staged is not None else 0)
        pieces[pq].append(wq_)
        pieces[pq+1].append(p_SM1)
        pieces[pq+2].append(p_SM2)
        pieces[pq+3].append(p_RS)
        vidx = []
        for c in range(4):
            def f(c=c):
                ms.wait_for(vidx[7]); p_PV(c)
            pieces[15 if late else min(15, 8 + WK - 1 + c)].append(f)
        if staged is not None:
            b = staged
            def sq():
                ms.wait_for(st['idx'][('V', b, 7)]); p_QK(lambda j: ar(64*b + 4*j))
            pieces[0].insert(0, sq)
            pieces[1] = [p_SM1, p_SM2] + pieces[1]
            pieces[2] = [p_RS, lambda: p_PVs(b, 0), lambda: p_PVs(b, 1)] + pieces[2]
            pieces[3] = [lambda: p_PVs(b, 2), lambda: p_PVs(b, 3)] + pieces[3]
        knew = []
        for s in range(16):
            ms.pace(WV if s < 8 else WK)
            if s < 8:
                vidx.append(ld_V(ms, vr(bV + 4*s), s, sVoff))
            else:
                knew.append(ld_K(ms, vr(bK + 4*(s-8)), s - 8, sKoff))
            if s == 0:
                if extras: extras()
                a(f"s_add_u32 s{sKoff}, s{sVoff}, 0x8000")
                if static_n is None:
                    a(f"s_cmp_eq_u32 s{sIter}, 15")
                    a(f"s_cselect_b32 s{sKoff}, s{sB1}, s{sKoff}")
                    a(f"s_cmp_eq_u32 s{sIter}, 31")
                    a(f"s_cselect_b32 s{sK+2}, 0, s{sK+2}")
            for f in pieces[s]: f()
            if s == 7 and extras7: extras7()
            assert not (s == 7 and pq > 7)
        a(f"s_mov_b32 s{sVoff}, s{sKoff}")
        return knew

    while stage_one(W): pass
    kidx = [st['idx'][('K', 4, j)] for j in range(8)]

    pre = {}
    vOld, vPst, vOut = 86, 87, 82
    sPst, sPld, sOutB = 84, 85, 86
    sRed = sWQ
    RW = int(OPT.get('RW', 3))
    vAcc = 232
    vTag, sTag = 254, 3
    sPd = 4
    def ex4():
        a(f"v_bfe_u32 v{vB}, v0, 3, 1")
        a(f"v_bfe_u32 v{vB+1}, v0, 4, 2")
        a(f"v_and_b32 v{vB+2}, 7, v0")
        a(f"s_lshl_b32 s48, s{sW}, 1")
        a("s_add_u32 s48, s48, 3")
        a(f"v_add_u32 v{vOld}, s48, v{vB}")
        a(f"v_and_b32 v{vOld}, 3, v{vOld}")
        a(f"v_lshlrev_b32 v{vOld}, 13, v{vOld}")
        a(f"v_lshl_add_u32 v{vOld}, v{vB}, 20, v{vOld}")
        a(f"v_lshl_add_u32 v{vOld}, v{vB+1}, 8, v{vOld}")
        a(f"v_lshl_add_u32 v{vOld}, v{vB+2}, 4, v{vOld}")
        a(f"v_lshlrev_b32 v{vPst}, 15, v{vB}")
        a(f"v_lshl_add_u32 v{vPst}, v{vB+1}, 7, v{vPst}")
        a(f"v_lshl_add_u32 v{vPst}, v{vB+2}, 4, v{vPst}")
        a(f"v_bfe_u32 v{vB}, v0, 3, 3")
        a(f"v_lshlrev_b32 v{vOut}, 11, v{vB+2}")
        a(f"v_lshl_add_u32 v{vOut}, v{vB}, 3, v{vOut}")
        a("s_andn2_b32 s48, s2, 7")
        a(f"s_lshl_b32 s49, s{sW}, 1")
        a("s_add_u32 s48, s48, s49")
        a(f"s_lshl_b32 s{sPst}, s48, 15")
        a("s_and_b32 s48, s2, 7")
        a(f"s_lshl_b32 s{sOutB}, s48, 14")
        a("s_lshl_b32 s48, s48, 10")
        a(f"s_add_u32 s{sPst}, s{sPst}, s48")
        a(f"s_add_u32 s48, s{sP_}, 1")
        a("s_and_b32 s48, s48, 3")
        a("s_lshl_b32 s48, s48, 13")
        a(f"s_add_u32 s49, s{sP_}, 2")
        a("s_and_b32 s49, s49, 3")
        a("s_lshl_b32 s49, s49, 13")
        a(f"s_sub_u32 s{sPd}, s49, s48")
        a(f"s_add_u32 s48, s48, 0x{QP:x}")
        a(f"s_add_u32 s{sPst}, s{sPst}, s48")
        a(f"s_lshl_b32 s{sPld}, s2, 15")
        a(f"s_add_u32 s{sPld}, s{sPld}, s48")
        a("s_lshr_b32 s48, s2, 3")
        a("s_lshl_b32 s48, s48, 6")
        a(f"s_add_u32 s{sOutB}, s{sOutB}, s48")
        a(f"s_mov_b32 s{sRed}, s18")
        a(f"s_mov_b32 s{sRed+1}, s19")
        a(f"s_cmp_eq_u32 s{sW}, {RW}")
        a(f"s_cselect_b32 s{sRed+2}, 0x{WS_SIZE:x}, 0")
        for r in range(4):
            a(f"v_mov_b32 v{vB + 60 + r}, -1")
        a(f"s_lshr_b32 s48, s{sW}, 1")
        a("s_lshl_b32 s48, s48, 11")
        a(f"s_add_u32 s48, s48, s{sOst}")
        pre['st'] = ms.issue(f"buffer_store_dwordx4 {vr(vB + 60)}, v{vVoff}, s[{sWS}:{sWS+3}], s48 offen sc1", slow=True)
        a(f"s_mul_i32 s{sTag}, s{sNon}, 0x9e3779b1")
        a(f"v_mov_b32 v{vTag}, s{sTag}")
    def ex6():
        ms.wait_for(pre['st'])
        a("s_and_b32 s48, s2, 7")
        a(f"s_lshl_b32 s{sFl}, s48, 7")
        a("s_lshr_b32 s48, s2, 3")
        a("s_lshl_b32 s48, s48, 2")
        a(f"s_add_u32 s{sFl}, s{sFl}, s48")
        a(f"s_add_u32 s{sFl}, s{sFl}, 0x{FLP:x}")
        signal(sFl, 4)
    exs = {4: ex4}
    exs7 = {6: ex6}
    for n in range(4, 8):
        kidx = iteration(ms, kidx, staged=n - 4, extras=exs.get(n), static_n=n, extras7=exs7.get(n))
        if not OPT.get('xst'): a.stamp(n - 1)
    a(f"s_mov_b32 s{sIter}, 8")

    def flush():
        a(f"v_mov_b32 v{vT1}, v{vL}")
        a("s_nop 1")
        a(f"v_permlane16_swap_b32 v{vL}, v{vT1}")
        a("s_nop 1")
        a(f"v_add_f32 v{vL}, v{vL}, v{vT1}")
        a(f"v_mov_b32 v{vT1}, v{vL}")
        a("s_nop 1")
        a(f"v_permlane32_swap_b32 v{vL}, v{vT1}")
        a("s_nop 1")
        a(f"v_add_f32 v{vL}, v{vL}, v{vT1}")
        a(f"ds_write_b32 v{vLdsM}, v{vMc}")
        a(f"ds_write_b32 v{vLdsM}, v{vL} offset:{LDS_L - LDS_M}")
        a(f"s_mov_b64 exec, s[{sMask}:{sMask+1}]")
        for j in range(8):
            a(f"ds_write_b128 v{vLdsO}, {vr(vO + 4*j)} offset:{j*512}")
        a("s_mov_b64 exec, -1")

    def combine_addr(ph, vA, vM):
        a(f"v_and_b32 v{vA}, 15, v0")
        a(f"v_lshlrev_b32 v{vA}, 4, v{vA}")
        a(f"v_bfe_u32 v{vM}, v0, 4, 2")
        a(f"v_lshl_add_u32 v{vA}, v{vM}, 2, v{vA}")
        a(f"s_and_b32 s49, s{sW}, 1")
        a("s_lshl_b32 s49, s49, 8")
        a(f"s_add_u32 s49, s49, 0x{LDS_C + ph*0x4000:x}")
        a(f"v_add_u32 v{vA}, s49, v{vA}")
        a(f"v_and_b32 v{vM}, 7, v0")
        a(f"v_lshlrev_b32 v{vM}, 2, v{vM}")
        a(f"v_add_u32 v{vM}, 0x{LDS_M + ph*0x400:x}, v{vM}")
    def combine(ph, vA, vM, R):
        vm, vl, vo, vx, vacc, vout = R, R+4, R+8, R+40, R+44, R+52
        for w in range(4):
            a(f"ds_read_b32 v{vm + w}, v{vM} offset:{w*256}")
        for w in range(4):
            a(f"ds_read_b32 v{vl + w}, v{vM} offset:{LDS_L - LDS_M + w*256}")
        for j in range(6):
            a(f"ds_read_b32 v{vo + j}, v{vA} offset:{j*512}")
        a("s_waitcnt lgkmcnt(10)")
        a(f"v_max3_f32 v{vx}, v{vm}, v{vm+1}, v{vm+2}")
        a(f"v_max_f32 v{vx}, v{vx}, v{vm+3}")
        for ww in range(4):
            a(f"v_sub_f32 v{vm+ww}, v{vm+ww}, v{vx}")
        for ww in range(4):
            a(f"v_exp_f32 v{vm+ww}, v{vm+ww}")
        for n in range(6, 32):
            w, j = n >> 3, n & 7
            a(f"ds_read_b32 v{vo + n}, v{vA} offset:{w*4096 + j*512}")
            if n == 8:
                a("s_waitcnt lgkmcnt(9)")
                a(f"v_mul_f32 v{vx+1}, v{vm}, v{vl}")
                for ww in range(1, 4):
                    a(f"v_fma_f32 v{vx+1}, v{vm+ww}, v{vl+ww}, v{vx+1}")
                a(f"v_rcp_f32 v{vx+1}, v{vx+1}")
        a("s_nop 0")
        for ww in range(4):
            a(f"v_mul_f32 v{vm+ww}, v{vx+1}, v{vm+ww}")
        a("s_waitcnt lgkmcnt(0)")
        for j in range(8):
            a(f"v_mul_f32 v{vacc+j}, v{vm}, v{vo + j}")
        for w in range(1, 4):
            for j in range(8):
                a(f"v_fma_f32 v{vacc+j}, v{vm+w}, v{vo + w*8 + j}, v{vacc+j}")
        for t in range(4):
            a(f"v_cvt_pk_bf16_f32 v{vout+t}, v{vacc+2*t}, v{vacc+2*t+1}")
        for t in range(4):
            a(f"v_min_u32 v{vout+t}, -2, v{vout+t}")
        if ph:
            a(f"s_add_u32 s49, s{sOst}, 0x800")
        else:
            a(f"s_mov_b32 s49, s{sOst}")
        a(f"buffer_store_dwordx4 {vr(vout)}, v{vVoff}, s[{sWSo}:{sWSo+3}], s49 offen{OPT.get('ostflag', ' sc1')}")

    def dummy(k):
        for _ in range(k):
            a(f"buffer_load_dword v{vDum}, v{vVoff}, s[{sNull}:{sNull+3}], 0 offen")
    def wo_dma(m, cnt=1):
        a(f"s_add_u32 m0, s{sLb}, {m*1024}")
        a(f"s_add_u32 s48, s{sWoLd}, 0x{m*16384:x}")
        src = vWoOff
        if m & 1:
            a(f"v_xor_b32 v{vCntG}, 64, v{vWoOff}")
            src = vCntG
        a(f"buffer_load_dwordx4 v{src}, s[{sWO}:{sWO+3}], s48 offen{OPT.get('woflag', ' nt')} lds")
    def wo_sig():
        a("s_mov_b64 exec, 1")
        a(f"ds_add_u32 v{vCntL}, v{vOne} offset:16")
        a("s_mov_b64 exec, -1")
    def lds_spin(off, tmp):
        lp, ld = a.newlabel("lp"), a.newlabel("ld")
        a(f"s_mov_b32 s{sSpin}, 0x100000")
        a.label(lp)
        a(f"ds_read_b32 v{tmp}, v{vCntL} offset:{off}")
        a("s_waitcnt lgkmcnt(0)")
        a(f"v_readfirstlane_b32 s48, v{tmp}")
        a("s_cmp_ge_u32 s48, 4")
        a(f"s_cbranch_scc1 {ld}")
        a(f"s_sub_u32 s{sSpin}, s{sSpin}, 1")
        a(f"s_cmp_eq_u32 s{sSpin}, 0")
        a(f"s_cbranch_scc1 {ld}")
        a("s_sleep 2")
        a(f"s_branch {lp}")
        a.label(ld)
    def wo_tr(k0, k1):
        a(f"v_add_u32 v{vAcc}, 0x{(k0 >> 3) * 65536:x}, v{vTr}")
        for nt in range(1, 4):
            a(f"v_xor_b32 v{vAcc + nt}, {nt << 5}, v{vAcc}")
        for kk in range(k0, k1):
            for nt in range(4):
                for half in range(2):
                    d = (kk*4 + nt)*4 + half*2
                    a(f"ds_read_b64_tr_b16 a[{d}:{d+1}], v{vAcc + nt} offset:{(kk & 7)*4096 + half*512}")
            a("s_waitcnt lgkmcnt(6)")
    def o_ld(q, bb, dst):
        hh, ks = q >> 2, q & 3
        a(f"s_add_u32 s48, s{sOld}, 0x{hh*0x40000:x}")
        a(f"buffer_load_dwordx4 {vr(dst + 4*q)}, v{vOld}, s[{sWS}:{sWS+3}], s48 offen offset:{bb*2048 + (ks>>1)*1024 + (ks&1)*128} sc1")
    def p_ld(gg, ph, dst):
        a(f"s_add_u32 s48, s{sPld}, {'s%d' % sPd if ph else 0}")
        a(f"buffer_load_dwordx4 {vr(dst + 4*gg)}, v{vVoff if gg < 4 else vVoff2}, s[{sRed}:{sRed+3}], s48 offen offset:{(gg&3)*1024} sc1")
    def frag_mfma(q, src, first=False):
        for nt in range(4):
            d = vAcc + nt*4
            a(f"v_mfma_f32_16x16x32_bf16 {vr(d)}, {ar((q*4 + nt)*4)}, {vr(src + 4*q)}, {'0' if first else vr(d)}")
    def p_st(ph):
        a("s_nop 5")
        a(f"s_add_u32 s48, s{sPst}, {'s%d' % sPd if ph else 0}")
        a(f"s_add_u32 s49, s48, 0x40000")
        for nt in range(4):
            for r in range(4):
                a(f"s_mov_b32 s{sBad}, 0x{0x07060500 + r:x}")
                a(f"v_perm_b32 v{vAcc + 4*nt + r}, v{vAcc + 4*nt + r}, v{vTag}, s{sBad}")
            a(f"buffer_store_dwordx4 {vr(vAcc + 4*nt)}, v{vPst}, s[{sWS}:{sWS+3}], s{48 + (nt >> 1)} offen offset:{(nt&1)*512} sc1")
    def stage1_ph0(qs):
        lc, lo = a.newlabel("c"), a.newlabel("o")
        regs = [vB + 4*q + r for q in qs for r in range(4)]
        a(f"s_mov_b32 s{sSpin}, {OPT.get('SPIN', '0x20000')}")
        a.label(lc)
        a(f"v_max_u32 v{vCntG}, v{regs[0]}, v{regs[1]}")
        for r in range(2, len(regs), 2):
            a(f"v_max3_u32 v{vCntG}, v{vCntG}, v{regs[r]}, v{regs[r+1]}")
        a(f"v_cmp_eq_u32 vcc, -1, v{vCntG}")
        a(f"s_cbranch_vccz {lo}")
        a(f"s_sub_u32 s{sSpin}, s{sSpin}, 1")
        a(f"s_cmp_eq_u32 s{sSpin}, 0")
        a(f"s_cbranch_scc1 {lo}")
        for q in qs:
            o_ld(q, 0, vB)
        a("s_waitcnt vmcnt(0)")
        a(f"s_branch {lc}")
        a.label(lo)
        for q in qs:
            frag_mfma(q, vB, q == 0)
    def cnt_ld():
        a(f"s_mov_b32 s48, 0x{FLP:x}")
        a(f"buffer_load_dwordx4 {vr(vB + 56)}, v{vVoff}, s[{sWS}:{sWS+3}], s48 offen sc1")
    def cnt_check():
        lp, ld = a.newlabel("cp"), a.newlabel("cd")
        a(f"s_mov_b32 s{sSpin}, {OPT.get('SPIN', '0x20000')}")
        a.label(lp)
        for r in range(4):
            a(f"v_xor_b32 v{vB + 56 + r}, s{sNon}, v{vB + 56 + r}")
        a(f"v_or3_b32 v{vB + 56}, v{vB + 56}, v{vB + 57}, v{vB + 58}")
        a(f"v_or_b32 v{vB + 56}, v{vB + 56}, v{vB + 59}")
        a(f"v_cmp_ne_u32 vcc, 0, v{vB + 56}")
        a(f"s_cbranch_vccz {ld}")
        a(f"s_sub_u32 s{sSpin}, s{sSpin}, 1")
        a(f"s_cmp_eq_u32 s{sSpin}, 0")
        a(f"s_cbranch_scc1 {ld}")
        a("s_sleep 8")
        cnt_ld()
        a("s_waitcnt vmcnt(0)")
        a(f"s_branch {lp}")
        a.label(ld)
    def flush0():
        a("s_nop 1")
        flush()
        for r in range(8):
            a(f"v_mov_b32 v{vQ + r}, v{vQ2 + r}")
        a(f"v_add_u32 v{vLdsO}, 0x4000, v{vLdsO}")
        a(f"v_add_u32 v{vLdsM}, 0x400, v{vLdsM}")
        a("s_waitcnt lgkmcnt(0)")
        a("s_mov_b64 exec, 1")
        a(f"ds_add_u32 v{vCntL}, v{vOne}")
        a("s_mov_b64 exec, -1")
        reset_state()
    def comb0():
        combine_addr(0, vB + 60, vB + 61)
        lds_spin(0, vB + 62)
        combine(0, vB + 60, vB + 61, vB)
    NX = int(OPT.get('NX', 4))
    TH2 = int(OPT.get('TH2', 0))
    SLOW = int(OPT.get('SLOW', 0))
    sn = {n: [] for n in range(8, 32)}
    def add(n, fn, nv=0, act=False): sn[n].append((fn, nv, act))
    sAdj, sWsel, sT = 87, 47, 80
    vTS = 253
    TSB = 0x320000
    GN = int(OPT.get('GN', 32))
    def pub(k):
        a("s_memrealtime s[100:101]")
        a(f"s_lshl_b32 s48, s2, 2")
        a(f"s_add_u32 s48, s48, 0x{TSB + k*1024:x}")
        a(f"s_cmp_eq_u32 s{sW}, {k & 3}")
        a(f"s_cselect_b32 s{sNull+2}, 0x{WS_SIZE:x}, 0")
        if SLOW & 1: a(f"s_cselect_b32 s{sWsel}, 3, s{sWsel}")
        a(f"v_mov_b32 v{vCntG}, 0")
        a("s_waitcnt lgkmcnt(0)")
        a(f"v_mov_b32 v{vTS}, s100")
        a(f"s_sub_u32 s{sT}, s100, s{sNon}")
        a(f"s_mov_b32 s81, s{sAdj}")
        a("s_mov_b64 exec, 1")
        a(f"buffer_store_dword v{vTS}, v{vCntG}, s[{sNull}:{sNull+3}], s48 offen sc1")
        a("s_mov_b64 exec, -1")
        a("s_nop 0")
        a(f"s_mov_b32 s{sNull+2}, 0")
    def ts_ld(k):
        a(f"s_lshr_b32 s48, s2, 6")
        a(f"s_add_u32 s48, s48, {k}")
        a("s_and_b32 s48, s48, 3")
        a("s_lshl_b32 s48, s48, 8")
        a(f"s_add_u32 s48, s48, 0x{TSB + k*1024:x}")
        a(f"v_lshrrev_b32 v{vCntG}, 2, v{vVoff}")
        a(f"buffer_load_dword v{vTS}, v{vCntG}, s[{sWS}:{sWS+3}], s48 offen sc1")
        a("s_memrealtime s[82:83]")
    def calc(k, lim):
        a("s_waitcnt lgkmcnt(0)")
        a(f"s_sub_u32 s82, s82, s{sNon}")
        a(f"v_subrev_u32 v{vTS}, s{sNon}, v{vTS}")
        a(f"v_min_u32 v{vTS}, s82, v{vTS}")
        for sh in (8, 4, 2, 1):
            a("s_nop 1")
            a(f"v_add_u32_dpp v{vTS}, v{vTS}, v{vTS} row_ror:{sh} row_mask:0xf bank_mask:0xf")
        a("s_nop 1")
        a(f"v_readlane_b32 s48, v{vTS}, 0")
        a(f"v_readlane_b32 s49, v{vTS}, 16")
        a(f"v_readlane_b32 s82, v{vTS}, 32")
        a(f"v_readlane_b32 s83, v{vTS}, 48")
        a("s_add_u32 s48, s48, s49")
        a("s_add_u32 s82, s82, s83")
        a("s_add_u32 s48, s48, s82")
        a("s_lshr_b32 s48, s48, 6")
        a(f"s_sub_i32 s48, s{sT}, s48")
        if STAMP and OPT.get('lagst'): a(f"s_mov_b32 s{71 + k}, s48")
        bias = int(OPT.get('BIAS', 0))
        if bias and k >= int(OPT.get('BK', 0)):
            a("s_bitcmp1_b32 s2, 3")
            a(f"s_mov_b32 s49, {bias}")
            a(f"s_cselect_b32 s49, {-bias}, s49")
            a("s_add_i32 s48, s48, s49")
        if OPT.get('GNN'):
            a("s_cmp_lt_i32 s48, 0")
            a(f"s_mov_b32 s49, {65536 // GN}")
            a(f"s_cselect_b32 s49, {65536 // int(OPT['GNN'])}, s49")
            a("s_mul_i32 s48, s48, s49")
        else:
            a(f"s_mul_i32 s48, s48, {65536 // GN}")
        a("s_add_i32 s48, s48, 0x8000")
        a("s_ashr_i32 s48, s48, 16")
        a(f"s_sub_i32 s81, s81, s{sAdj}")
        a(f"s_sub_i32 s48, s48, s81")
        a(f"s_min_i32 s48, s48, {lim * 2 + 2 if TH2 else lim}")
        a(f"s_max_i32 s{sAdj}, s48, {-lim if not OPT.get('noslow') else 0}")
    D0 = int(OPT.get('D0', 8))
    O0 = int(OPT.get('O0', 22))
    add(16, flush0)
    add(18, cnt_ld, 1, True)
    add(18, comb0, 1)
    if SLOW & 2:
        add(18, lambda: (a(f"s_cmp_lt_u32 s{sW}, 2"), a(f"s_cselect_b32 s{sWsel}, 3, s{sWsel}")))
    if OPT.get('TLB'):
        def tlb():
            a(f"buffer_load_dword v{vDum}, v{vVoff}, s[{sK}:{sK+3}], s{sB1} offen nt")
            a(f"buffer_load_dword v{vDum}, v{vVoff}, s[{sV}:{sV+3}], s{sB1} offen nt")
        add(int(OPT['TLB']), tlb, 2)
    add(20, cnt_check, 0, True)
    CP = [int(t) for t in OPT['CP'].split(',')] if OPT.get('CP') else []
    LD = int(OPT.get('LD', 3))
    for k, c in enumerate(CP):
        add(c, (lambda k=k: pub(k)), 1)
        add(c + LD, (lambda k=k: ts_ld(k)), 1)
        lim = (CP[k+1] - c) if k + 1 < len(CP) else 32 - (c + LD + 1)
        add(c + LD + 1, (lambda k=k, lim=lim: calc(k, lim)))
    DM = int(OPT.get('DM', 4))
    m = 0; n = D0
    while m < 16:
        c_ = 0
        while m < 16 and c_ < DM and sum(v for _, v, _a in sn[n]) < NX:
            add(n, (lambda m=m: wo_dma(m, 1)), 1, True); m += 1; c_ += 1
        n += 1
    add(n + 1, wo_sig, 0, True)
    add(n + 3, lambda: lds_spin(16, vCntG), 0, True)
    n += 3
    for j in range(4):
        while n in (16, 18): n += 1
        add(n, (lambda j=j: wo_tr(4*j, 4*j + 4)), 0, True)
        n += 1
    trend = n
    OM = int(OPT.get('OM', 4))
    q = 0; n = O0
    assert O0 + 2 >= trend
    add(O0 + 2, lambda: a("s_waitcnt lgkmcnt(0)"), 0, True)
    while q < 16:
        c_ = 0; qs = []
        while q < 16 and c_ < OM and sum(v for _, v, _a in sn[n]) < NX:
            add(n, (lambda q=q: o_ld(q, 0, vB)), 1, True); qs.append(q); q += 1; c_ += 1
        if qs: add(n + 2, (lambda qs=qs: stage1_ph0(qs)), 0, True)
        n += 1
    n += 1
    while sum(v for _, v, _a in sn[n]): n += 1
    add(n, lambda: p_st(0), 4, True)
    if SLOW & 4: add(n, lambda: a(f"s_mov_b32 s{sWsel}, 3"), 0, True)
    Ws = [int(t) for t in OPT.get('Ws', f"{W-1},{W},{W+1}").split(',')]
    a(f"s_mov_b32 s{sAdj}, 0")
    if OPT.get('asym'):
        a("s_add_u32 s48, s2, 2")
        a("s_bitcmp1_b32 s48, 2")
        a(f"s_cselect_b32 s{sAdj}, {OPT['asym']}, 0")
    a.label("L_loop")
    if STAMP and OPT.get('itst'):
        a("s_memrealtime s[68:69]")
        a("s_waitcnt lgkmcnt(0)")
        a(f"s_mov_b32 m0, s{sIter}")
        a("s_nop 0")
        a(f"v_writelane_b32 v255, s68, m0")
        a(f"s_add_u32 m0, s{sIter}, 32")
        a("s_nop 0")
        a(f"v_writelane_b32 v255, s{sAdj}, m0")
    if STAMP and OPT.get('lst'):
        for k, n in enumerate([int(t) for t in OPT['lst'].split(',')]):
            a(f"s_cmp_lg_u32 s{sIter}, {n}")
            a(f"s_cbranch_scc1 L_lst{k}")
            a.stamp(1 + k)
            a.label(f"L_lst{k}")
    a(f"s_cmp_lt_i32 s{sAdj}, 0")
    a("s_cbranch_scc1 L_b0")
    if TH2:
        a(f"s_cmp_gt_i32 s{sAdj}, {TH2}")
        a("s_cbranch_scc1 L_b4")
        Ws = Ws + [0, W + 2]
    a(f"s_cmp_gt_i32 s{sAdj}, 0")
    a("s_cbranch_scc1 L_b2")
    for k in ((1, 0, 4, 2) if TH2 else (1, 0, 2)):
        a.label(f"L_b{k}")
        ml = MemSeq(a, pre_kv=8)
        def ex_loop(k=k, ml=ml):
            a(f"s_mov_b32 s{sWsel}, {k}")
            if k != 1: a(f"s_add_i32 s{sAdj}, s{sAdj}, {1 - k if k < 4 else -2}")
            a(f"s_branch L_snip")
            a.label(f"L_ret{k}")
            for _ in range(NX): ml.issue(None)
        iteration(ml, list(range(8)), extras=ex_loop, W=Ws[k])
        a(f"s_add_u32 s{sIter}, s{sIter}, 1")
        a(f"s_cmp_lt_u32 s{sIter}, 32")
        a(f"s_cbranch_scc1 L_loop")
        if k != 2 or SLOW: a("s_branch L_tail")
    if SLOW:
        ml = MemSeq(a, pre_kv=8)
        def ex_loopS(ml=ml):
            a.label(f"L_ret3")
            for _ in range(NX): ml.issue(None, slow=True)
        iteration(ml, list(range(8)), extras=ex_loopS, W=W, late=True)
        a(f"s_add_u32 s{sIter}, s{sIter}, 1")
        a(f"s_cmp_lt_u32 s{sIter}, 32")
        a(f"s_cbranch_scc1 L_loop")
    a.label("L_tail")
    a.stamp(7)
    combine_addr(1, 8, 9)
    flush()
    a("s_waitcnt lgkmcnt(0)")
    a("s_barrier")
    combine(1, 8, 9, 10)
    a("s_bitcmp1_b32 s2, 3")
    a("s_cbranch_scc1 L_inact")
    for q in range(16):
        o_ld(q, 1, bK)
    for gg in range(8):
        p_ld(gg, 0, vB)
    for r in range(16):
        a(f"v_mov_b32 v{vAcc + r}, 0")
    a(f"s_mov_b32 s{sSpin}, {OPT.get('SPIN', '0x20000')}")
    a(f"s_mov_b32 s{sBad}, 0")
    for q in range(16):
        a(f"s_waitcnt vmcnt({8 + 15 - q})")
        a(f"v_max3_u32 v8, v{bK+4*q}, v{bK+4*q+1}, v{bK+4*q+2}")
        a(f"v_max_u32 v8, v8, v{bK+4*q+3}")
        a("v_cmp_eq_u32 vcc, -1, v8")
        a(f"s_cbranch_vccnz L_bad{q}")
        frag_mfma(q, bK)
        a.label(f"L_nx{q}")
    a.label("L_retry")
    a(f"s_cmp_eq_u32 s{sBad}, 0")
    a("s_cbranch_scc1 L_alldone")
    a(f"s_sub_u32 s{sSpin}, s{sSpin}, 1")
    a(f"s_cmp_eq_u32 s{sSpin}, 0")
    a("s_cbranch_scc1 L_alldone")
    if OPT.get('SL'): a(f"s_sleep {OPT['SL']}")
    for q in range(16):
        a(f"s_bitcmp1_b32 s{sBad}, {q}")
        a(f"s_cbranch_scc0 L_rl{q}")
        o_ld(q, 1, bK)
        a.label(f"L_rl{q}")
    a("s_waitcnt vmcnt(0)")
    for q in range(16):
        a(f"s_bitcmp1_b32 s{sBad}, {q}")
        a(f"s_cbranch_scc0 L_rc{q}")
        a(f"v_max3_u32 v8, v{bK+4*q}, v{bK+4*q+1}, v{bK+4*q+2}")
        a(f"v_max_u32 v8, v8, v{bK+4*q+3}")
        a("v_cmp_eq_u32 vcc, -1, v8")
        a(f"s_cbranch_vccnz L_rc{q}")
        frag_mfma(q, bK)
        a(f"s_bitset0_b32 s{sBad}, {q}")
        a.label(f"L_rc{q}")
    a("s_branch L_retry")
    a.label("L_alldone")
    p_st(1)
    a.stamp(8)
    a(f"s_cmp_lg_u32 s{sW}, {RW}")
    a("s_cbranch_scc1 L_fin")
    for gg in range(8):
        p_ld(gg, 1, bK)
    a("s_waitcnt vmcnt(12)")
    a("s_branch L_red")
    a.label("L_inact")
    a.stamp(8)
    a(f"s_cmp_lg_u32 s{sW}, {RW}")
    a("s_cbranch_scc1 L_fin")
    for gg in range(8):
        p_ld(gg, 0, vB)
    for gg in range(8):
        p_ld(gg, 1, bK)
    a("s_waitcnt vmcnt(8)")
    a.label("L_red")
    a(f"s_mov_b32 s{sSelLo}, 0x0c0c0400")
    a(f"s_mov_b32 s{sSelHi}, 0x04000c0c")
    a(f"s_mov_b32 s{sC}, 0xffffff00")
    def reduce(ph, R, firstwait):
        lc, lo = a.newlabel("c"), a.newlabel("o")
        a(f"s_mov_b32 s{sBad}, 0xff")
        a(f"s_mov_b32 s{sSpin}, {OPT.get('SPIN', '0x20000')}")
        if firstwait is not None: a(f"s_waitcnt vmcnt({firstwait})")
        a.label(lc)
        for gg in range(8):
            ln = a.newlabel("n")
            a(f"s_bitcmp1_b32 s{sBad}, {gg}")
            a(f"s_cbranch_scc0 {ln}")
            a(f"v_perm_b32 v8, v{R+4*gg+1}, v{R+4*gg}, s{sSelLo}")
            a(f"v_perm_b32 v9, v{R+4*gg+3}, v{R+4*gg+2}, s{sSelHi}")
            a("v_or_b32 v8, v8, v9")
            a(f"v_cmp_ne_u32 vcc, s{sTag}, v8")
            a(f"s_cbranch_vccnz {ln}x")
            a(f"s_bitset0_b32 s{sBad}, {gg}")
            for r in range(4):
                a(f"v_and_b32 v{R+4*gg+r}, s{sC}, v{R+4*gg+r}")
            a(f"s_branch {ln}")
            a.label(ln + "x")
            p_ld(gg, ph, R)
            a.label(ln)
        a(f"s_cmp_eq_u32 s{sBad}, 0")
        a(f"s_cbranch_scc1 {lo}")
        a(f"s_sub_u32 s{sSpin}, s{sSpin}, 1")
        a("s_waitcnt vmcnt(0)")
        if OPT.get('SL2'): a(f"s_sleep {OPT['SL2']}")
        a(f"s_cmp_lg_u32 s{sSpin}, 0")
        a(f"s_cbranch_scc1 {lc}")
        a.label(lo)
        for (x, y) in ((0, 1), (2, 3), (4, 5), (6, 7), (0, 2), (4, 6), (0, 4)):
            for r in range(4):
                a(f"v_add_f32 v{R + 4*x + r}, v{R + 4*x + r}, v{R + 4*y + r}")
        a(f"v_cvt_pk_bf16_f32 v{R+4}, v{R}, v{R+1}")
        a(f"v_cvt_pk_bf16_f32 v{R+5}, v{R+2}, v{R+3}")
        a(f"s_add_u32 s48, s{sOutB}, 0x{ph*0x20000:x}")
        a(f"buffer_store_dwordx2 v[{R+4}:{R+5}], v{vOut}, s[{sOUT}:{sOUT+3}], s48 offen{OPT.get('outflag','')}")
    a(f"s_mov_b32 s{sSpin}, {OPT.get('SPIN', '0x20000')}")
    reduce(0, vB, None)
    reduce(1, bK, 1)
    a.label("L_fin")
    a.stamp(9)
    a.stamp_store(18, 0x200000, 10)
    if STAMP and OPT.get('itst'):
        a("s_lshl_b32 s92, s2, 2")
        a("s_add_u32 s92, s92, s40")
        a("s_lshl_b32 s92, s92, 8")
        a("s_add_u32 s92, s92, 0x220000")
        a("v_and_b32 v250, 63, v0")
        a("v_lshlrev_b32 v250, 2, v250")
        a("buffer_store_dword v255, v250, s[88:91], s92 offen")
    a.label("L_end")
    a("s_endpgm")
    for q in range(16):
        a.label(f"L_bad{q}")
        a(f"s_bitset1_b32 s{sBad}, {q}")
        a(f"s_branch L_nx{q}")
    a.label("L_snip")
    a("s_bitcmp1_b32 s2, 3")
    a("s_cbranch_scc1 L_snipI")
    for tab in ("A", "I"):
        a.label(f"L_snip{tab}")
        for n in sorted(sn):
            items = [(f, v) for f, v, act in sn[n] if tab == "A" or not act]
            if not items: continue
            a(f"s_cmp_lg_u32 s{sIter}, {n}")
            a(f"s_cbranch_scc1 L_sn{tab}{n}x")
            nv = sum(v for _, v in items)
            assert nv <= NX, (n, nv)
            dummy(NX - nv)
            for f, _ in items: f()
            a(f"s_branch L_snret")
            a.label(f"L_sn{tab}{n}x")
        dummy(NX)
        if tab == "A": a("s_branch L_snret")
    a.label("L_snret")
    a(f"s_cmp_eq_u32 s{sWsel}, 1")
    a("s_cbranch_scc1 L_ret1")
    a(f"s_cmp_eq_u32 s{sWsel}, 0")
    a("s_cbranch_scc1 L_ret0")
    if SLOW:
        a(f"s_cmp_eq_u32 s{sWsel}, 3")
        a("s_cbranch_scc1 L_ret3")
    if TH2:
        a(f"s_cmp_eq_u32 s{sWsel}, 4")
        a("s_cbranch_scc1 L_ret4")
    a("s_branch L_ret2")

def kd(a, name):
    a.raw(".p2align 6")
    a.raw(f".amdhsa_kernel {name}")
    a.raw("  .amdhsa_next_free_vgpr 512")
    a.raw("  .amdhsa_next_free_sgpr 102")
    a.raw("  .amdhsa_accum_offset 256")
    a.raw("  .amdhsa_group_segment_fixed_size 0")
    a.raw("  .amdhsa_kernarg_size 64")
    a.raw("  .amdhsa_user_sgpr_count 2")
    a.raw("  .amdhsa_user_sgpr_kernarg_segment_ptr 1")
    a.raw("  .amdhsa_system_sgpr_workgroup_id_x 1")
    a.raw(".end_amdhsa_kernel")

def main(path):
    a = Asm()
    a.raw(HEADER.rstrip())
    a.raw(f"; @launch grid=(256,1,1) block=(256,1,1) lds={LDS_SIZE}")
    a.raw('.amdgcn_target "amdgcn-amd-amdhsa--gfx950"')
    a.raw(".text")
    gen_k1(a)
    a.raw('.section .rodata,"a"')
    kd(a, K1)
    open(path, "w").write(a.text())

if __name__ == "__main__":
    args = sys.argv[1:]
    if "--stamp" in args:
        STAMP = True
        args.remove("--stamp")
    rest = []
    for x in args:
        if "=" in x:
            k, v = x.split("=", 1)
            OPT[k] = v.replace("+", " ")
        else:
            rest.append(x)
    main(rest[0] if rest else "standalone__mha_block_cached__sampling.s")
```

```python
import sys, struct, math

def f32hex(x):
    return "0x%08x" % struct.unpack("<I", struct.pack("<f", x))[0]

STAMP = False
OPT = {}
class Asm:
    def __init__(self):
        self.L = []
        self.uid = 0
    def stamp(self, idx):
        if not STAMP: return
        self("s_memrealtime s[68:69]")
        self("s_waitcnt lgkmcnt(0)")
        self(f"s_mov_b32 s{70 + idx}, s68")
    def stamp_store(self, wsptr, base, n):
        if not STAMP: return
        self(f"s_mov_b32 s88, s{wsptr}")
        self(f"s_mov_b32 s89, s{wsptr+1}")
        self("s_mov_b32 s90, 0x40000000")
        self("s_mov_b32 s91, 0x00020000")
        self("s_lshl_b32 s92, s2, 3")
        self("s_add_u32 s92, s92, s40")
        self("s_lshl_b32 s92, s92, 6")
        self(f"s_add_u32 s92, s92, 0x{base:x}")
        self("v_mov_b32 v250, 0")
        self("s_getreg_b32 s93, hwreg(HW_REG_XCC_ID)")
        self("v_mov_b32 v251, s93")
        self(f"buffer_store_dword v251, v250, s[88:91], s92 offen offset:{4*n}")
        self("s_nop 1")
        self("s_getreg_b32 s93, hwreg(HW_REG_HW_ID)")
        self("v_mov_b32 v251, s93")
        self(f"buffer_store_dword v251, v250, s[88:91], s92 offen offset:{4*n+4}")
        self("s_nop 1")
        for i in range(n):
            self(f"v_mov_b32 v251, s{70+i}")
            self(f"buffer_store_dword v251, v250, s[88:91], s92 offen offset:{4*i}")
            self("s_nop 1")
    def __call__(self, s):
        self.L.append("  " + s)
    def label(self, s):
        self.L.append(s + ":")
    def newlabel(self, p):
        self.uid += 1
        return f"L_{p}_{self.uid}"
    def raw(self, s):
        self.L.append(s)
    def text(self):
        return "\n".join(self.L) + "\n"

class MemSeq:
    def __init__(self, a, pre_kv=0):
        self.a = a; self.n = pre_kv; self.done = 0; self.kv = list(range(pre_kv)); self.slow = -1
    def issue(self, text, kv=False, slow=False):
        if text is not None: self.a(text)
        idx = self.n; self.n += 1
        if kv: self.kv.append(idx)
        if slow and self.slow < self.done: self.slow = idx
        return idx
    def wait_for(self, idx):
        if idx < self.done: return
        cnt = self.n - 1 - idx
        assert cnt <= 63, cnt
        self.a(f"s_waitcnt vmcnt({cnt})")
        self.done = idx + 1
    def pace(self, W):
        if len(self.kv) >= W:
            t = self.kv[-W]
            if self.slow >= self.done and t > self.slow: return
            self.wait_for(t)

def vr(b, n=4):
    return f"v[{b}:{b+n-1}]"
def ar(b, n=4):
    return f"a[{b}:{b+n-1}]"

HEADER = """; Kernarg layout for this problem (64 bytes, ptrs only, base s[0:1]):
"""

K1 = "standalone__mha_block_cached__sampling_kernel"

LDS_WO = 0
LDS_C = 32768
LDS_WQS = 0
LDS_XS = 65536
LDS_M = 98304
LDS_L = 100352
LDS_QF = 102400
LDS_CNT = 106496
LDS_SIZE = 106496 + 64
PR = 0x400000
QP = 0xC00000
WS_SIZE = QP + 0x1000000
FLQ = 0x300000
FLP = 0x310000

def gen_k1(a):
    W = int(OPT.get('W', 5))
    Wp = int(OPT.get('Wp', 5))
    Rn, Rd = [int(t) for t in OPT.get('R', '7/9').split('/')]
    vKoff, vVoff, vKoff2, vVoff2 = 1, 2, 3, 4
    vMc, vL, vT0, vT1 = 5, 6, 7, 20
    vS = 8
    vP = 16
    vAl, vT2, vT3 = 21, 22, 23
    vQ, vQ2 = 24, 32
    vO = 40
    vPT = 72
    vLdsO, vLdsM, vQF, vOne, vTr, vWoOff, vXoff, vWoff = 80, 81, 82, 83, 84, 85, 86, 87
    bK, bV = 88, 120
    vSR = 152
    vB = 168
    vAT = 232
    vCntL, vCntG, vDum = 248, 249, 252
    sX, sK, sV, sWQ, sWS, sWO, sOUT, sDBG, sNull = 20, 24, 28, 32, 36, 60, 64, 80, 96
    sWSo = 20
    sW, sH, sP_, sB1, sVoff, sKoff, sIter = 40, 41, 42, 43, 44, 45, 46
    sSelLo, sSelHi, sC, sBad, sSpin = 50, 51, 52, 53, 54
    sMask = 56
    sWoLd, sLb = 58, 59
    sXb, sWqb, sJ = 84, 85, 86
    vWoffB, vXt, vTq, vXrd = 253, 254, 216, 224
    sFl = 95
    sNon = 55
    vNon = 246
    sOld, sOst = 93, 94
    cscale = (128 ** -0.5) * math.log2(math.e)

    a.raw(f".globl {K1}")
    a.raw(".p2align 8")
    a.raw(f".type {K1},@function")
    a.label(K1)
    a("s_cmp_ge_u32 s2, 256")
    a("s_cbranch_scc1 L_end")
    a.stamp(0)
    a("s_load_dwordx16 s[4:19], s[0:1], 0")
    a("s_memrealtime s[90:91]")
    a("v_lshrrev_b32 v7, 6, v0")
    a("v_and_b32 v5, 63, v0")
    a("v_readfirstlane_b32 s40, v7")
    a("v_and_b32 v6, 15, v5")
    a("v_lshrrev_b32 v7, 4, v5")
    a("s_and_b32 s41, s2, 7")
    a("s_lshl_b32 s41, s41, 2")
    a("s_lshr_b32 s48, s2, 3")
    a("s_and_b32 s48, s48, 3")
    a("s_add_u32 s41, s41, s48")
    a("s_lshr_b32 s42, s2, 5")
    if OPT.get('map') == 'anti':
        a("s_lshr_b32 s41, s2, 3")
        a("s_and_b32 s42, s2, 7")
    t0, t1, t2, t3 = 240, 241, 242, 243
    a(f"v_and_b32 v{t0}, 3, v6")
    a(f"v_lshlrev_b32 v{t0}, 2, v{t0}")
    a(f"v_lshrrev_b32 v{t2}, 3, v6")
    a(f"v_and_b32 v{t3}, 7, v6")
    a(f"v_lshrrev_b32 v{t1}, 1, v6")
    a(f"v_xor_b32 v{t1}, v{t1}, v7")
    a(f"v_lshlrev_b32 v{vWoff}, 13, v7")
    a(f"v_lshl_add_u32 v{vWoff}, v{t1}, 5, v{vWoff}")
    a(f"v_and_b32 v{t1}, 1, v5")
    a(f"v_lshl_add_u32 v{vWoff}, v{t1}, 4, v{vWoff}")
    a(f"v_xor_b32 v{vWoffB}, 0x80, v{vWoff}")
    a(f"v_lshrrev_b32 v{t1}, 5, v5")
    a(f"v_and_b32 v{vXoff}, 31, v5")
    a(f"v_lshlrev_b32 v{vXoff}, 4, v{vXoff}")
    a(f"v_lshlrev_b32 v{vXt}, 6, v{t1}")
    a(f"v_xor_b32 v{vXoff}, v{vXoff}, v{vXt}")
    a(f"v_lshl_add_u32 v{vXoff}, v{t1}, 11, v{vXoff}")
    a(f"v_bfe_u32 v{t1}, v6, 2, 1")
    a(f"v_add_u32 v{t1}, v{t0}, v{t1}")
    a(f"v_lshlrev_b32 v{vKoff}, 8, v{t1}")
    a(f"v_lshl_add_u32 v{vKoff}, v{t2}, 6, v{vKoff}")
    a(f"v_lshl_add_u32 v{vKoff}, v7, 4, v{vKoff}")
    a(f"v_add_u32 v{vKoff2}, 0x1000, v{vKoff}")
    a(f"v_lshlrev_b32 v{vVoff}, 4, v5")
    a(f"v_add_u32 v{vVoff2}, 0x1000, v{vVoff}")
    a(f"s_and_b32 s{sJ}, s{sP_}, 3")
    a(f"s_and_b32 s48, s{sP_}, 4")
    a(f"s_add_u32 s48, s48, s{sW}")
    a(f"s_lshl_b32 s{sXb}, s48, 14")
    a(f"s_lshl_b32 s48, s{sJ}, 9")
    a(f"s_add_u32 s{sXb}, s{sXb}, s48")
    a(f"s_lshl_b32 s{sWqb}, s{sJ}, 21")
    a(f"s_lshl_b32 s48, s{sW}, 19")
    a(f"s_add_u32 s{sWqb}, s{sWqb}, s48")
    a(f"s_lshl_b32 s48, s{sH}, 8")
    a(f"s_add_u32 s{sWqb}, s{sWqb}, s48")
    a(f"s_lshl_b32 s{sVoff}, s{sP_}, 5")
    a(f"s_add_u32 s{sVoff}, s{sVoff}, s{sH}")
    a(f"s_lshl_b32 s{sVoff}, s{sVoff}, 19")
    a(f"s_lshl_b32 s48, s{sW}, 13")
    a(f"s_add_u32 s{sVoff}, s{sVoff}, s48")
    a(f"s_add_u32 s{sB1}, s{sVoff}, 0x8000000")
    for (d, size) in ((sX, 16*8*1024*2), (sWQ, 1024*4096*2), (sK, 1 << 28), (sV, 1 << 28)):
        a(f"s_mov_b32 s{d+2}, 0x{size:x}")
        a(f"s_mov_b32 s{d+3}, 0x00020000")
    a(f"s_mov_b32 s{sSelLo}, 0x05040100")
    a(f"s_mov_b32 s{sSelHi}, 0x07060302")
    a("s_waitcnt lgkmcnt(0)")
    if OPT.get('wsoff'):
        a(f"s_add_u32 s18, s18, {OPT['wsoff']}")
        a("s_addc_u32 s19, s19, 0")
    for (d, src) in ((sX, 4), (sWQ, 10), (sK, 6), (sV, 8)):
        a(f"s_mov_b32 s{d}, s{src}")
        a(f"s_mov_b32 s{d+1}, s{src+1}")

    a(f"s_mov_b32 s{sDBG}, s16")
    a(f"s_mov_b32 s{sDBG+1}, s17")
    a(f"s_mov_b32 s{sDBG+2}, 256")
    a(f"s_mov_b32 s{sDBG+3}, 0x00020000")
    a(f"v_mov_b32 v{vNon+1}, 0")
    a(f"s_or_b32 s48, s2, s{sW}")
    a("s_cmp_lg_u32 s48, 0")
    a("s_cbranch_scc1 L_nopub")
    a(f"s_or_b32 s{sNon}, s90, 1")
    a(f"v_mov_b32 v{vNon}, s{sNon}")
    a("s_mov_b64 exec, 1")
    a(f"buffer_store_dword v{vNon}, v{vNon+1}, s[{sDBG}:{sDBG+3}], 0 offen sc1")
    a("s_mov_b64 exec, -1")
    a.label("L_nopub")
    if OPT.get('est'): a.stamp(3)
    ms = MemSeq(a)
    NSL = 3
    def xreg(ks): return 8 + 4*ks
    def slot(ks): return 152 + (ks % NSL)*32

    def ld_K(ms, dst, j, soff):
        T, s = j >> 2, j & 3
        return ms.issue(f"buffer_load_dwordx4 {dst}, v{vKoff if T == 0 else vKoff2}, s[{sK}:{sK+3}], s{soff} offen offset:{(s>>1)*512 + (s&1)*128} nt", kv=True)
    def ld_V(ms, dst, i, soff):
        return ms.issue(f"buffer_load_dwordx4 {dst}, v{vVoff if i < 4 else vVoff2}, s[{sV}:{sV+3}], s{soff} offen offset:{(i&3)*1024} nt", kv=True)

    stage = []
    for b in range(4):
        for j in range(8): stage.append(('K', b, j))
        for j in range(8): stage.append(('V', b, j))
    for j in range(8): stage.append(('K', 4, j))
    st = {'pos': 0, 'idx': {}}
    def stage_one(Wx):
        if st['pos'] >= len(stage): return False
        kind, b, j = stage[st['pos']]; st['pos'] += 1
        if len(ms.kv) >= Wx and not st.get('late'):
            st['late'] = True
            late_setup()
        ms.pace(Wx)
        if kind == 'K':
            dst = ar(64*b + 4*j) if b < 4 else vr(bK + 4*j)
            st['idx'][(kind, b, j)] = ld_K(ms, dst, j, sVoff)
        else:
            st['idx'][(kind, b, j)] = ld_V(ms, ar(64*b + 32 + 4*j), j, sVoff)
            if j == 7:
                a(f"s_add_u32 s{sVoff}, s{sVoff}, 0x8000")
        return True

    def perm_c(src, c):
        for hb, sel in ((0, sSelLo), (1, sSelHi)):
            for t in range(4):
                a(f"v_perm_b32 v{vPT + hb*4 + t}, v{src[2*t+1] + c}, v{src[2*t] + c}, s{sel}")
    def mfma_c(bop, c, first):
        a("s_nop 1")
        for hb in range(2):
            j = 2*c + hb
            cc = "0" if first else vr(vO + 4*j)
            a(f"v_mfma_f32_16x16x32_bf16 {vr(vO + 4*j)}, {vr(vPT + hb*4)}, {vr(bop)}, {cc}")
    def reset_state():
        for r in range(32):
            a(f"v_mov_b32 v{vO + r}, 0")
        a(f"v_mov_b32 v{vMc}, 0xff800000")
        a(f"v_mov_b32 v{vL}, 0")

    def late_setup():
        a(f"v_lshl_add_u32 v{t1}, v7, 4, v{t3}")
        a(f"v_lshlrev_b32 v{t1}, 4, v{t1}")
        a(f"v_lshl_add_u32 v{t1}, v{t2}, 10, v{t1}")
        a(f"v_add_u32 v{vQF}, 0x{LDS_QF:x}, v{t1}")
        a(f"v_mov_b32 v{vCntL}, 0x{LDS_CNT:x}")
        a(f"v_mov_b32 v{vOne}, 0")
        a(f"ds_write_b32 v{vCntL}, v{vOne}")
        a(f"ds_write_b32 v{vCntL}, v{vOne} offset:4")
        a(f"ds_write_b32 v{vCntL}, v{vOne} offset:8")
        a(f"ds_write_b32 v{vCntL}, v{vOne} offset:12")
        a(f"ds_write_b32 v{vCntL}, v{vOne} offset:16")
        a(f"v_lshl_add_u32 v{t1}, v7, 3, v{t3}")
        a(f"v_lshlrev_b32 v{t1}, 4, v{t1}")
        a(f"s_lshl_b32 s48, s{sW}, 12")
        a(f"s_add_u32 s48, s48, 0x{LDS_C:x}")
        a(f"v_add_u32 v{vLdsO}, s48, v{t1}")
        a(f"s_lshl_b32 s48, s{sW}, 8")
        a(f"s_add_u32 s48, s48, 0x{LDS_M:x}")
        a(f"v_lshlrev_b32 v{t1}, 2, v5")
        a(f"v_add_u32 v{vLdsM}, s48, v{t1}")
        a(f"v_lshrrev_b32 v{t1}, 3, v5")
        a(f"v_lshlrev_b32 v{vWoOff}, 11, v{t1}")
        a(f"v_lshl_add_u32 v{vWoOff}, v{t3}, 4, v{vWoOff}")
        a(f"v_and_b32 v{t1}, 1, v7")
        a(f"v_lshlrev_b32 v{vTr}, 5, v{t1}")
        a(f"v_xor_b32 v{vWoOff}, v{vWoOff}, v{vTr}")
        a(f"v_lshl_add_u32 v{t1}, v{t1}, 1, v{t2}")
        a(f"v_lshlrev_b32 v{vTr}, 5, v{t1}")
        a(f"v_lshrrev_b32 v{t1}, 2, v6")
        a(f"v_lshl_add_u32 v{t1}, v7, 3, v{t1}")
        a(f"v_lshl_add_u32 v{vTr}, v{t1}, 7, v{vTr}")
        a(f"v_lshl_add_u32 v{vTr}, v{t0}, 1, v{vTr}")
        a(f"s_lshl_b32 s{sLb}, s{sW}, 14")
        a(f"s_lshr_b32 s48, s{sW}, 1")
        a("s_lshl_b32 s48, s48, 15")
        a(f"s_add_u32 s{sLb}, s{sLb}, s48")
        a(f"v_mov_b32 v{vOne}, 1")
        a(f"s_mov_b32 s{sC}, {f32hex(cscale)}")
        a(f"s_mov_b32 s{sMask}, 0x00ff00ff")
        a(f"s_mov_b32 s{sMask+1}, 0x00ff00ff")
        for (d, src, size) in ((sWS, 18, WS_SIZE), (sWO, 12, 4096*1024*2), (sOUT, 14, 128*1024*2), (sNull, 18, 0)):
            a(f"s_mov_b32 s{d}, s{src}")
            a(f"s_mov_b32 s{d+1}, s{src+1}")
            a(f"s_mov_b32 s{d+2}, 0x{size:x}")
            a(f"s_mov_b32 s{d+3}, 0x00020000")
        a("s_and_b32 s48, s2, 7")
        a(f"s_lshl_b32 s{sWoLd}, s48, 20")
        a(f"s_lshl_b32 s{sOld}, s48, 15")
        a(f"s_lshl_b32 s48, s{sW}, 18")
        a(f"s_add_u32 s{sWoLd}, s{sWoLd}, s48")
        a("s_lshr_b32 s48, s2, 3")
        a("s_lshl_b32 s48, s48, 6")
        a(f"s_add_u32 s{sWoLd}, s{sWoLd}, s48")
        a(f"s_lshl_b32 s48, s{sW}, 21")
        a(f"s_add_u32 s{sOld}, s{sOld}, s48")
        a(f"s_add_u32 s{sOld}, s{sOld}, 0x{QP:x}")
        a(f"s_lshl_b32 s{sOst}, s2, 15")
        a(f"s_add_u32 s48, s{sP_}, 3")
        a("s_and_b32 s48, s48, 3")
        a("s_lshl_b32 s48, s48, 13")
        a(f"s_add_u32 s{sOst}, s{sOst}, s48")
        a(f"s_add_u32 s{sOst}, s{sOst}, 0x{QP:x}")
        a(f"s_and_b32 s48, s{sW}, 1")
        a("s_lshl_b32 s48, s48, 10")
        a(f"s_add_u32 s{sOst}, s{sOst}, s48")

    XQ = int(OPT.get('xq', 0))
    if OPT.get('noq7') or XQ & 4:
        a(f"s_mov_b32 s{sX+2}, 0")
        a(f"s_mov_b32 s{sWQ+2}, 0")
    dl = []
    for m in range(8): dl.append(('x', m))
    for m in range(16): dl.append(('w', m))
    order = []
    for i in range(8):
        order += [dl[i], dl[8 + 2*i], dl[9 + 2*i]]
    last_dma = None
    if OPT.get('TP'):
        sh, nl = {'1': (13, 64), '4': (15, 16), '8': (16, 8), '2': (14, 32)}[OPT['TP']]
        a(f"v_lshlrev_b32 v{vDum}, {sh}, v5")
        a(f"s_mov_b64 exec, 0x{(1 << nl) - 1:x}" if nl < 32 else (f"s_mov_b64 exec, -1" if nl == 64 else "s_mov_b32 exec_hi, 0"))
        ms.issue(f"buffer_load_dword v{vDum}, v{vDum}, s[{sWQ}:{sWQ+3}], s{sWqb} offen{OPT.get('wqflag','')}")
        a("s_mov_b64 exec, -1")
    for i in range(int(OPT.get('KF', 0))): stage_one(99)
    for i, (kind, m) in enumerate(order):
        if kind == 'x':
            a(f"s_lshl_b32 s48, s{sW}, 13")
            a(f"s_add_u32 m0, s48, 0x{LDS_XS + m*1024:x}")
            a(f"s_add_u32 s49, s{sXb}, 0x{(m&3)*4096 + (m>>2)*131072:x}")
            src = vXoff
            if m & 3:
                a(f"v_xor_b32 v{vXt}, 0x{(m&3) << 7:x}, v{vXoff}")
                src = vXt
            last_dma = ms.issue(f"buffer_load_dwordx4 v{src}, s[{sX}:{sX+3}], s49 offen lds")
        else:
            a(f"s_lshl_b32 s48, s{sW}, 14")
            a(f"s_add_u32 m0, s48, 0x{LDS_WQS + m*1024:x}")
            a(f"s_add_u32 s49, s{sWqb}, 0x{m*32768:x}")
            last_dma = ms.issue(f"buffer_load_dwordx4 v{vWoffB if m & 2 else vWoff}, s[{sWQ}:{sWQ+3}], s49 offen{OPT.get('wqflag','')} lds")
        if i % int(OPT.get('DI', 3)) == 1 % int(OPT.get('DI', 3)):
            stage_one(int(OPT.get('Wd', Wp)))
    if OPT.get('est'): a.stamp(4)
    if not st.get('late'):
        st['late'] = True
        late_setup()
    a(f"v_lshrrev_b32 v{vXt}, 2, v6")
    a(f"v_and_b32 v{vTq+1}, 1, v7")
    a(f"v_lshl_add_u32 v{vTq+1}, v{vTq+1}, 2, v{vXt}")
    a(f"v_lshl_add_u32 v{vTq}, v7, 3, v{vXt}")
    a(f"v_lshlrev_b32 v{vTq}, 8, v{vTq}")
    a(f"v_lshl_add_u32 v{vTq}, v{vTq+1}, 5, v{vTq}")
    a(f"v_and_b32 v{vXt}, 3, v6")
    a(f"v_lshl_add_u32 v{vTq}, v{vXt}, 3, v{vTq}")
    for t in range(1, 8):
        a(f"v_xor_b32 v{vTq+t}, {t << 5}, v{vTq}")
    a(f"v_lshlrev_b32 v{vXrd}, 9, v6")
    a(f"v_lshl_add_u32 v{vXrd}, v7, 4, v{vXrd}")
    a(f"v_and_b32 v{vXt}, 7, v6")
    a(f"v_lshl_add_u32 v{vXrd}, v{vXt}, 6, v{vXrd}")
    a(f"s_lshl_b32 s48, s{sW}, 13")
    a(f"s_add_u32 s48, s48, 0x{LDS_XS:x}")
    a(f"v_add_u32 v{vXrd}, s48, v{vXrd}")
    for i in range(int(OPT.get('SA', 2))): stage_one(int(OPT.get('Wa', Wp)))
    if OPT.get('est'): a.stamp(5)
    ms.wait_for(last_dma)
    a("s_waitcnt lgkmcnt(0)")
    a("s_barrier")
    if OPT.get('est'): a.stamp(6)
    nidx = ms.issue(f"buffer_load_dword v{vNon}, v{vNon+1}, s[{sDBG}:{sDBG+3}], 0 offen sc1")
    def q_reads(ks):
        A0 = 152 + (ks & 1)*32
        if ks:
            a(f"v_xor_b32 v{vXt}, 0x{ks << 6:x}, v{vXrd}")
        a(f"ds_read_b128 {vr(8 + (ks&1)*4)}, v{vXt if ks else vXrd}")
        for t in range(8):
            for half in range(2):
                d = A0 + t*4 + half*2
                a(f"ds_read_b64_tr_b16 v[{d}:{d+1}], v{vTq+t} offset:{ks*8192 + half*1024}")
    q_reads(0)
    for ks in range(8):
        if ks < 7:
            a("s_waitcnt lgkmcnt(0)")
            q_reads(ks + 1)
        else:
            a("s_waitcnt lgkmcnt(0)")
        A0 = 152 + (ks & 1)*32
        for t in range(8):
            cc = "0" if ks == 0 else vr(vO + 4*t)
            a(f"v_mfma_f32_16x16x32_bf16 {vr(vO + 4*t)}, {vr(A0 + 4*t)}, {vr(8 + (ks&1)*4)}, {cc}")
        stage_one(Wp)
        if ks < int(OPT.get('SM', 0)): stage_one(Wp)
    a.stamp(1)
    sTagQ, sQb = 3, 82
    vTagQ = vNon
    ms.wait_for(nidx)
    a(f"s_mov_b32 s{sSpin}, {OPT.get('SPIN', '0x20000')}")
    a.label("L_nonp")
    a(f"v_readfirstlane_b32 s{sNon}, v{vNon}")
    a(f"s_cmp_lg_u32 s{sNon}, 0")
    a("s_cbranch_scc1 L_nond")
    a(f"s_sub_u32 s{sSpin}, s{sSpin}, 1")
    a(f"s_cmp_eq_u32 s{sSpin}, 0")
    a("s_cbranch_scc1 L_nond")
    a(f"buffer_load_dword v{vNon}, v{vNon+1}, s[{sDBG}:{sDBG+3}], 0 offen sc1")
    a("s_waitcnt vmcnt(0)")
    a("s_branch L_nonp")
    a.label("L_nond")
    a(f"s_mul_i32 s{sTagQ}, s{sNon}, 0x9e3779b1")
    a(f"s_not_b32 s{sTagQ}, s{sTagQ}")
    a(f"v_mov_b32 v{vTagQ}, s{sTagQ}")
    a("s_and_b32 s48, s2, 0x9f")
    a(f"s_lshl_b32 s49, s{sW}, 5")
    a("s_or_b32 s48, s48, s49")
    a("s_lshl_b32 s48, s48, 2")
    a(f"s_add_u32 s48, s48, s{sJ}")
    a("s_lshl_b32 s48, s48, 13")
    a(f"s_add_u32 s48, s48, 0x{QP:x}")
    a(f"s_mov_b32 s{sWSo}, s18")
    a(f"s_mov_b32 s{sWSo+1}, s19")
    for r in range(4):
        a(f"s_mov_b32 s49, 0x{0x07060500 + r:x}")
        for t in range(8):
            a(f"v_perm_b32 v{vO + 4*t + r}, v{vO + 4*t + r}, v{vTagQ}, s49")
    a(f"s_cmp_lg_u32 s{sW}, s{sJ}")
    a(f"s_cselect_b32 s{sWSo+2}, 0x{WS_SIZE:x}, 0")
    for t in range(8):
        qst = ms.issue(f"buffer_store_dwordx4 {vr(vO + 4*t)}, v{vVoff if t < 4 else vVoff2}, s[{sWSo}:{sWSo+3}], s48 offen offset:{(t&3)*1024}{OPT.get('qstflag', ' sc1')}", slow=True)
    a(f"s_cbranch_scc1 L_notown")
    a(f"s_lshl_b32 s48, s{sW}, 13")
    a(f"s_add_u32 s48, s48, 0x{LDS_XS:x}")
    a(f"v_add_u32 v8, s48, v{vVoff}")
    for t in range(8):
        a(f"ds_write_b128 v8, {vr(vO + 4*t)} offset:{t*1024}")
    a("s_waitcnt lgkmcnt(0)")
    a(f"ds_write_b32 v{vCntL}, v{vOne} offset:8")
    a.label("L_notown")
    for i in range(int(OPT.get('SB', 10))): stage_one(Wp)
    def signal(soff, cnt_off):
        a("s_waitcnt lgkmcnt(0)")
        a("s_mov_b64 exec, 1")
        a(f"ds_add_rtn_u32 v{vCntG}, v{vCntL}, v{vOne} offset:{cnt_off}")
        a(f"v_mov_b32 v{vDum}, s{sNon}")
        a("s_waitcnt lgkmcnt(0)")
        a(f"v_readfirstlane_b32 s49, v{vCntG}")
        a(f"v_mov_b32 v{vCntG}, 0")
        a("s_cmp_eq_u32 s49, 3")
        a(f"s_cselect_b32 s{sNull+2}, 0x{WS_SIZE:x}, 0")
        a("s_nop 0")
        ms.issue(f"buffer_store_dword v{vDum}, v{vCntG}, s[{sNull}:{sNull+3}], s{soff} offen sc1", slow=True)
        a("s_mov_b64 exec, -1")
        a("s_nop 0")
        a(f"s_mov_b32 s{sNull+2}, 0")
    ms.wait_for(qst)
    if OPT.get('xst'): a.stamp(3)
    for i in range(int(OPT.get('SC', 14))): stage_one(Wp)
    if OPT.get('xst'): a.stamp(4)
    def gather(track):
        a("s_lshl_b32 s48, s2, 15")
        a(f"s_lshl_b32 s49, s{sW}, 11")
        a("s_add_u32 s48, s48, s49")
        a(f"s_add_u32 s48, s48, 0x{QP:x}")
        for jj in range(4):
            a(f"s_cmp_lg_u32 s{sJ}, {jj}")
            a(f"s_cselect_b32 s{sWSo+2}, 0x{WS_SIZE:x}, 0")
            for tt in range(2):
                t_ = f"buffer_load_dwordx4 {vr(vO + (jj*2+tt)*4)}, v{vVoff}, s[{sWSo}:{sWSo+3}], s48 offen offset:{tt*1024} sc1"
                if track: g_ = ms.issue(t_)
                else: a(t_)
            if jj < 3: a("s_add_u32 s48, s48, 0x2000")
        return g_ if track else None
    def qcheck(ok):
        a(f"s_mov_b64 s[{sQb}:{sQb+1}], 0")
        a("s_mov_b32 s48, 0x0c0c0400")
        a("s_mov_b32 s49, 0x04000c0c")
        for jj in range(4):
            ls = a.newlabel("qs")
            a(f"s_cmp_eq_u32 s{sJ}, {jj}")
            a(f"s_cbranch_scc1 {ls}")
            for tt in range(2):
                R = vO + (jj*2+tt)*4
                a(f"v_perm_b32 v10, v{R+1}, v{R}, s48")
                a(f"v_perm_b32 v11, v{R+3}, v{R+2}, s49")
                a("v_or_b32 v10, v10, v11")
                a(f"v_cmp_ne_u32 vcc, s{sTagQ}, v10")
                a(f"s_or_b64 s[{sQb}:{sQb+1}], s[{sQb}:{sQb+1}], vcc")
            a.label(ls)
        a(f"s_cmp_eq_u64 s[{sQb}:{sQb+1}], 0")
        a(f"s_cbranch_scc1 {ok}")
    gl = gather(True)
    a("v_and_b32 v9, 15, v0")
    a("v_lshlrev_b32 v9, 4, v9")
    a("v_bfe_u32 v10, v0, 5, 1")
    a("v_lshl_add_u32 v9, v10, 8, v9")
    a("v_bfe_u32 v10, v0, 4, 1")
    a("v_lshl_add_u32 v9, v10, 3, v9")
    a(f"s_lshl_b32 s48, s{sW}, 10")
    a(f"s_add_u32 s48, s48, 0x{LDS_QF:x}")
    a("v_add_u32 v9, s48, v9")
    for i in range(int(OPT.get('SD', 5))): stage_one(Wp)
    ms.wait_for(gl)
    if OPT.get('xst'): a.stamp(5)
    a(f"s_mov_b32 s{sSpin}, 0x100000")
    a.label("L_ownp")
    a(f"ds_read_b32 v10, v{vCntL} offset:8")
    a(f"s_sub_u32 s{sSpin}, s{sSpin}, 1")
    a("s_waitcnt lgkmcnt(0)")
    a(f"v_readfirstlane_b32 s48, v10")
    a(f"s_cmp_eq_u32 s{sSpin}, 0")
    a("s_cbranch_scc1 L_ownd")
    a(f"s_cmp_eq_u32 s48, 0")
    a("s_cbranch_scc1 L_ownp")
    a.label("L_ownd")
    a(f"s_lshl_b32 s48, s{sJ}, 13")
    a(f"s_lshl_b32 s49, s{sW}, 11")
    a(f"s_add_u32 s48, s48, s49")
    a(f"s_add_u32 s48, s48, 0x{LDS_XS:x}")
    a(f"v_add_u32 v8, s48, v{vVoff}")
    for tt in range(2):
        a(f"ds_read_b128 {vr(12 + tt*4)}, v8 offset:{tt*1024}")
    SE = int(OPT.get('SE', 0))
    if SE:
        qcheck("L_q1ok")
        gather(False)
        a.label("L_q1ok")
        mark = ms.n - 1
        for i in range(SE): stage_one(Wp)
        ms.done = min(ms.done, mark)
        ms.wait_for(mark)
    a(f"s_mov_b32 s{sSpin}, {OPT.get('SPIN', '0x20000')}")
    a.label("L_qpoll")
    qcheck("L_qok")
    a(f"s_sub_u32 s{sSpin}, s{sSpin}, 1")
    a(f"s_cmp_eq_u32 s{sSpin}, 0")
    a("s_cbranch_scc1 L_qok")
    gather(False)
    a("s_waitcnt vmcnt(0)")
    a("s_branch L_qpoll")
    a.label("L_qok")
    a(f"s_cmp_lt_u32 s{sW}, 2")
    a(f"s_cselect_b32 s{sWSo+2}, 0x{WS_SIZE:x}, 0")
    if OPT.get('xst'): a.stamp(6)
    a("s_mov_b32 s48, 0xffffff00")
    for r in range(32):
        a(f"v_and_b32 v{vO + r}, s48, v{vO + r}")
    a("s_waitcnt lgkmcnt(0)")
    for r in range(8):
        a(f"v_and_b32 v{12 + r}, s48, v{12 + r}")
    for r in range(8):
        a(f"v_add_f32 v{vO + r}, v{vO + r}, v{vO + 8 + r}")
        a(f"v_add_f32 v{vO + 16 + r}, v{vO + 16 + r}, v{vO + 24 + r}")
    for r in range(8):
        a(f"v_add_f32 v{vO + r}, v{vO + r}, v{12 + r}")
    for r in range(8):
        a(f"v_add_f32 v{vO + r}, v{vO + r}, v{vO + 16 + r}")
    for s_ in range(4):
        a(f"v_cvt_pk_bf16_f32 v{20 + s_}, v{vO + 2*s_}, v{vO + 2*s_ + 1}")
    for tt in range(2):
        a(f"ds_write_b64 v9, v[{20 + 2*tt}:{21 + 2*tt}] offset:{tt*512}")
    stage_one(Wp)
    a("s_waitcnt lgkmcnt(0)")
    a("s_barrier")
    for ph in range(2):
        for sp in range(2):
            a(f"ds_read_b128 {vr(vQ + ph*8 + sp*4)}, v{vQF} offset:{sp*2048 + ph*128}")
    reset_state()
    a("s_waitcnt lgkmcnt(0)")
    a.stamp(2)

    def p_QK(kop):
        for T in range(2):
            for s in range(4):
                d = vSR + (T*2 + (s>>1))*4
                cc = "0" if (s & 1) == 0 else vr(d)
                a(f"v_mfma_f32_16x16x32_bf16 {vr(d)}, {kop(T*4+s)}, {vr(vQ + 4*(s&1))}, {cc}")
    def p_SM1():
        a("s_nop 7")
        for T in range(2):
            for r in range(4):
                a(f"v_permlane32_swap_b32 v{vSR + T*8 + r}, v{vSR + T*8 + 4 + r}")
        a("s_nop 0")
        for T in range(2):
            for r in range(4):
                a(f"v_add_f32_dpp v{vS + T*4 + r}, v{vSR + T*8 + 4 + r}, v{vSR + T*8 + r} row_ror:8 row_mask:0xf bank_mask:0xf")
        a(f"v_max3_f32 v{vT0}, v{vS+0}, v{vS+1}, v{vS+2}")
        a(f"v_max3_f32 v{vT0}, v{vT0}, v{vS+3}, v{vS+4}")
        a(f"v_max3_f32 v{vT0}, v{vT0}, v{vS+5}, v{vS+6}")
        a(f"v_max_f32 v{vT0}, v{vT0}, v{vS+7}")
        a(f"v_mov_b32 v{vT1}, v{vT0}")
        a("s_nop 1")
        a(f"v_permlane16_swap_b32 v{vT0}, v{vT1}")
        a("s_nop 1")
        a(f"v_max_f32 v{vT0}, v{vT0}, v{vT1}")
        a(f"v_mov_b32 v{vT1}, v{vT0}")
        a("s_nop 1")
        a(f"v_permlane32_swap_b32 v{vT0}, v{vT1}")
        a("s_nop 1")
        a(f"v_max_f32 v{vT0}, v{vT0}, v{vT1}")
        a(f"v_mul_f32 v{vT0}, s{sC}, v{vT0}")
        a(f"v_max_f32 v{vT0}, v{vT0}, v{vMc}")
        a(f"v_sub_f32 v{vAl}, v{vMc}, v{vT0}")
        a(f"v_exp_f32 v{vAl}, v{vAl}")
        a(f"v_mov_b32 v{vMc}, v{vT0}")
    def p_SM2():
        for i in range(8):
            a(f"v_fma_f32 v{vS+i}, v{vS+i}, s{sC}, -v{vMc}")
        for i in range(8):
            a(f"v_exp_f32 v{vS+i}, v{vS+i}")
        a("s_nop 0")
        a(f"v_add_f32 v{vT2}, v{vS+0}, v{vS+1}")
        a(f"v_add_f32 v{vT3}, v{vS+2}, v{vS+3}")
        a(f"v_add_f32 v{vT0}, v{vS+4}, v{vS+5}")
        a(f"v_add_f32 v{vT1}, v{vS+6}, v{vS+7}")
        a(f"v_add_f32 v{vT2}, v{vT2}, v{vT3}")
        a(f"v_add_f32 v{vT0}, v{vT0}, v{vT1}")
        a(f"v_add_f32 v{vT2}, v{vT2}, v{vT0}")
        a(f"v_fma_f32 v{vL}, v{vL}, v{vAl}, v{vT2}")
        for t in range(4):
            a(f"v_cvt_pk_bf16_f32 v{vP + t}, v{vS + 2*t}, v{vS + 2*t + 1}")
    def p_RS():
        a("s_nop 7")
        for r in range(32):
            a(f"v_mul_f32 v{vO + r}, v{vAl}, v{vO + r}")
    def p_PV(c):
        perm_c([bV + 4*i for i in range(8)], c)
        mfma_c(vP, c, False)
    def p_PVs(b, c):
        base = vAT + (c & 1)*8
        for i in range(8):
            a(f"v_accvgpr_read_b32 v{base + i}, a{64*b + 32 + 4*i + c}")
        perm_c([base + i for i in range(8)], 0)
        mfma_c(vP, c, False)

    def iteration(ms, kidx, staged=None, extras=None, static_n=None, extras7=None, W=W, late=False):
        pieces = {s: [] for s in range(16)}
        def wq_(): ms.wait_for(kidx[7]); p_QK(lambda j: vr(bK + 4*j))
        WV = int(OPT.get('WV', W)); WK = int(OPT.get('WK', W))
        pq = max(WV - 1, 4 if staged is not None else 0)
        pieces[pq].append(wq_)
        pieces[pq+1].append(p_SM1)
        pieces[pq+2].append(p_SM2)
        pieces[pq+3].append(p_RS)
        vidx = []
        for c in range(4):
            def f(c=c):
                ms.wait_for(vidx[7]); p_PV(c)
            pieces[15 if late else min(15, 8 + WK - 1 + c)].append(f)
        if staged is not None:
            b = staged
            def sq():
                ms.wait_for(st['idx'][('V', b, 7)]); p_QK(lambda j: ar(64*b + 4*j))
            pieces[0].insert(0, sq)
            pieces[1] = [p_SM1, p_SM2] + pieces[1]
            pieces[2] = [p_RS, lambda: p_PVs(b, 0), lambda: p_PVs(b, 1)] + pieces[2]
            pieces[3] = [lambda: p_PVs(b, 2), lambda: p_PVs(b, 3)] + pieces[3]
        knew = []
        for s in range(16):
            ms.pace(WV if s < 8 else WK)
            if s < 8:
                vidx.append(ld_V(ms, vr(bV + 4*s), s, sVoff))
            else:
                knew.append(ld_K(ms, vr(bK + 4*(s-8)), s - 8, sKoff))
            if s == 0:
                if extras: extras()
                a(f"s_add_u32 s{sKoff}, s{sVoff}, 0x8000")
                if static_n is None:
                    a(f"s_cmp_eq_u32 s{sIter}, 15")
                    a(f"s_cselect_b32 s{sKoff}, s{sB1}, s{sKoff}")
                    a(f"s_cmp_eq_u32 s{sIter}, 31")
                    a(f"s_cselect_b32 s{sK+2}, 0, s{sK+2}")
            for f in pieces[s]: f()
            if s == 7 and extras7: extras7()
            assert not (s == 7 and pq > 7)
        a(f"s_mov_b32 s{sVoff}, s{sKoff}")
        return knew

    while stage_one(W): pass
    kidx = [st['idx'][('K', 4, j)] for j in range(8)]

    pre = {}
    vOld, vPst, vOut = 86, 87, 82
    sPst, sPld, sOutB = 84, 85, 86
    sRed = sWQ
    RW = int(OPT.get('RW', 3))
    vAcc = 232
    vTag, sTag = 254, 3
    sPd = 4
    def ex4():
        a(f"v_bfe_u32 v{vB}, v0, 3, 1")
        a(f"v_bfe_u32 v{vB+1}, v0, 4, 2")
        a(f"v_and_b32 v{vB+2}, 7, v0")
        a(f"s_lshl_b32 s48, s{sW}, 1")
        a("s_add_u32 s48, s48, 3")
        a(f"v_add_u32 v{vOld}, s48, v{vB}")
        a(f"v_and_b32 v{vOld}, 3, v{vOld}")
        a(f"v_lshlrev_b32 v{vOld}, 13, v{vOld}")
        a(f"v_lshl_add_u32 v{vOld}, v{vB}, 20, v{vOld}")
        a(f"v_lshl_add_u32 v{vOld}, v{vB+1}, 8, v{vOld}")
        a(f"v_lshl_add_u32 v{vOld}, v{vB+2}, 4, v{vOld}")
        a(f"v_lshlrev_b32 v{vPst}, 15, v{vB}")
        a(f"v_lshl_add_u32 v{vPst}, v{vB+1}, 7, v{vPst}")
        a(f"v_lshl_add_u32 v{vPst}, v{vB+2}, 4, v{vPst}")
        a(f"v_bfe_u32 v{vB}, v0, 3, 3")
        a(f"v_lshlrev_b32 v{vOut}, 11, v{vB+2}")
        a(f"v_lshl_add_u32 v{vOut}, v{vB}, 3, v{vOut}")
        a("s_andn2_b32 s48, s2, 7")
        a(f"s_lshl_b32 s49, s{sW}, 1")
        a("s_add_u32 s48, s48, s49")
        a(f"s_lshl_b32 s{sPst}, s48, 15")
        a("s_and_b32 s48, s2, 7")
        a(f"s_lshl_b32 s{sOutB}, s48, 14")
        a("s_lshl_b32 s48, s48, 10")
        a(f"s_add_u32 s{sPst}, s{sPst}, s48")
        a(f"s_add_u32 s48, s{sP_}, 1")
        a("s_and_b32 s48, s48, 3")
        a("s_lshl_b32 s48, s48, 13")
        a(f"s_add_u32 s49, s{sP_}, 2")
        a("s_and_b32 s49, s49, 3")
        a("s_lshl_b32 s49, s49, 13")
        a(f"s_sub_u32 s{sPd}, s49, s48")
        a(f"s_add_u32 s48, s48, 0x{QP + (0x800000 if OPT.get('psep') else 0):x}")
        a(f"s_add_u32 s{sPst}, s{sPst}, s48")
        a(f"s_lshl_b32 s{sPld}, s2, 15")
        a(f"s_add_u32 s{sPld}, s{sPld}, s48")
        a("s_lshr_b32 s48, s2, 3")
        a("s_lshl_b32 s48, s48, 6")
        a(f"s_add_u32 s{sOutB}, s{sOutB}, s48")
        a(f"s_mov_b32 s{sRed}, s18")
        a(f"s_mov_b32 s{sRed+1}, s19")
        a(f"s_cmp_eq_u32 s{sW}, {RW}")
        a(f"s_cselect_b32 s{sRed+2}, 0x{WS_SIZE:x}, 0")
        for r in range(4):
            a(f"v_mov_b32 v{vB + 60 + r}, -1")
        a(f"s_lshr_b32 s48, s{sW}, 1")
        a("s_lshl_b32 s48, s48, 11")
        a(f"s_add_u32 s48, s48, s{sOst}")
        pre['st'] = ms.issue(f"buffer_store_dwordx4 {vr(vB + 60)}, v{vVoff}, s[{sWS}:{sWS+3}], s48 offen sc1", slow=True)
        a(f"s_mul_i32 s{sTag}, s{sNon}, 0x9e3779b1")
        a(f"v_mov_b32 v{vTag}, s{sTag}")
    def ex6():
        ms.wait_for(pre['st'])
        a("s_and_b32 s48, s2, 7")
        a(f"s_lshl_b32 s{sFl}, s48, 7")
        a("s_lshr_b32 s48, s2, 3")
        a("s_lshl_b32 s48, s48, 2")
        a(f"s_add_u32 s{sFl}, s{sFl}, s48")
        a(f"s_add_u32 s{sFl}, s{sFl}, 0x{FLP:x}")
        signal(sFl, 4)
    exs = {4: ex4}
    exs7 = {6: ex6}
    for n in range(4, 8):
        kidx = iteration(ms, kidx, staged=n - 4, extras=exs.get(n), static_n=n, extras7=exs7.get(n))
        if not OPT.get('xst') and not OPT.get('est'): a.stamp(n - 1)
    a(f"s_mov_b32 s{sIter}, 8")

    def flush():
        a(f"v_mov_b32 v{vT1}, v{vL}")
        a("s_nop 1")
        a(f"v_permlane16_swap_b32 v{vL}, v{vT1}")
        a("s_nop 1")
        a(f"v_add_f32 v{vL}, v{vL}, v{vT1}")
        a(f"v_mov_b32 v{vT1}, v{vL}")
        a("s_nop 1")
        a(f"v_permlane32_swap_b32 v{vL}, v{vT1}")
        a("s_nop 1")
        a(f"v_add_f32 v{vL}, v{vL}, v{vT1}")
        a(f"ds_write_b32 v{vLdsM}, v{vMc}")
        a(f"ds_write_b32 v{vLdsM}, v{vL} offset:{LDS_L - LDS_M}")
        a(f"s_mov_b64 exec, s[{sMask}:{sMask+1}]")
        for j in range(8):
            a(f"ds_write_b128 v{vLdsO}, {vr(vO + 4*j)} offset:{j*512}")
        a("s_mov_b64 exec, -1")

    def combine_addr(ph, vA, vM):
        a(f"v_and_b32 v{vA}, 15, v0")
        a(f"v_lshlrev_b32 v{vA}, 4, v{vA}")
        a(f"v_bfe_u32 v{vM}, v0, 4, 2")
        a(f"v_lshl_add_u32 v{vA}, v{vM}, 2, v{vA}")
        a(f"s_and_b32 s49, s{sW}, 1")
        a("s_lshl_b32 s49, s49, 8")
        a(f"s_add_u32 s49, s49, 0x{LDS_C + ph*0x4000:x}")
        a(f"v_add_u32 v{vA}, s49, v{vA}")
        a(f"v_and_b32 v{vM}, 7, v0")
        a(f"v_lshlrev_b32 v{vM}, 2, v{vM}")
        a(f"v_add_u32 v{vM}, 0x{LDS_M + ph*0x400:x}, v{vM}")
    def combine(ph, vA, vM, R):
        vm, vl, vo, vx, vacc, vout = R, R+4, R+8, R+40, R+44, R+52
        for w in range(4):
            a(f"ds_read_b32 v{vm + w}, v{vM} offset:{w*256}")
        for w in range(4):
            a(f"ds_read_b32 v{vl + w}, v{vM} offset:{LDS_L - LDS_M + w*256}")
        for j in range(6):
            a(f"ds_read_b32 v{vo + j}, v{vA} offset:{j*512}")
        a("s_waitcnt lgkmcnt(10)")
        a(f"v_max3_f32 v{vx}, v{vm}, v{vm+1}, v{vm+2}")
        a(f"v_max_f32 v{vx}, v{vx}, v{vm+3}")
        for ww in range(4):
            a(f"v_sub_f32 v{vm+ww}, v{vm+ww}, v{vx}")
        for ww in range(4):
            a(f"v_exp_f32 v{vm+ww}, v{vm+ww}")
        for n in range(6, 32):
            w, j = n >> 3, n & 7
            a(f"ds_read_b32 v{vo + n}, v{vA} offset:{w*4096 + j*512}")
            if n == 8:
                a("s_waitcnt lgkmcnt(9)")
                a(f"v_mul_f32 v{vx+1}, v{vm}, v{vl}")
                for ww in range(1, 4):
                    a(f"v_fma_f32 v{vx+1}, v{vm+ww}, v{vl+ww}, v{vx+1}")
                a(f"v_rcp_f32 v{vx+1}, v{vx+1}")
        a("s_nop 0")
        for ww in range(4):
            a(f"v_mul_f32 v{vm+ww}, v{vx+1}, v{vm+ww}")
        a("s_waitcnt lgkmcnt(0)")
        for j in range(8):
            a(f"v_mul_f32 v{vacc+j}, v{vm}, v{vo + j}")
        for w in range(1, 4):
            for j in range(8):
                a(f"v_fma_f32 v{vacc+j}, v{vm+w}, v{vo + w*8 + j}, v{vacc+j}")
        for t in range(4):
            a(f"v_cvt_pk_bf16_f32 v{vout+t}, v{vacc+2*t}, v{vacc+2*t+1}")
        for t in range(4):
            a(f"v_min_u32 v{vout+t}, -2, v{vout+t}")
        if ph:
            a(f"s_add_u32 s49, s{sOst}, 0x800")
        else:
            a(f"s_mov_b32 s49, s{sOst}")
        a(f"buffer_store_dwordx4 {vr(vout)}, v{vVoff}, s[{sWSo}:{sWSo+3}], s49 offen{OPT.get('ostflag', ' sc1')}")

    def dummy(k):
        for _ in range(k):
            a(f"buffer_load_dword v{vDum}, v{vVoff}, s[{sNull}:{sNull+3}], 0 offen")
    def wo_dma(m, cnt=1):
        a(f"s_add_u32 m0, s{sLb}, {m*1024}")
        a(f"s_add_u32 s48, s{sWoLd}, 0x{m*16384:x}")
        src = vWoOff
        if m & 1:
            a(f"v_xor_b32 v{vCntG}, 64, v{vWoOff}")
            src = vCntG
        a(f"buffer_load_dwordx4 v{src}, s[{sWO}:{sWO+3}], s48 offen{OPT.get('woflag', ' nt')} lds")
    def wo_sig():
        a("s_mov_b64 exec, 1")
        a(f"ds_add_u32 v{vCntL}, v{vOne} offset:16")
        a("s_mov_b64 exec, -1")
    def lds_spin(off, tmp):
        lp, ld = a.newlabel("lp"), a.newlabel("ld")
        a(f"s_mov_b32 s{sSpin}, 0x100000")
        a.label(lp)
        a(f"ds_read_b32 v{tmp}, v{vCntL} offset:{off}")
        a("s_waitcnt lgkmcnt(0)")
        a(f"v_readfirstlane_b32 s48, v{tmp}")
        a("s_cmp_ge_u32 s48, 4")
        a(f"s_cbranch_scc1 {ld}")
        a(f"s_sub_u32 s{sSpin}, s{sSpin}, 1")
        a(f"s_cmp_eq_u32 s{sSpin}, 0")
        a(f"s_cbranch_scc1 {ld}")
        a("s_sleep 2")
        a(f"s_branch {lp}")
        a.label(ld)
    def wo_tr(k0, k1):
        a(f"v_add_u32 v{vAcc}, 0x{(k0 >> 3) * 65536:x}, v{vTr}")
        for nt in range(1, 4):
            a(f"v_xor_b32 v{vAcc + nt}, {nt << 5}, v{vAcc}")
        for kk in range(k0, k1):
            for nt in range(4):
                for half in range(2):
                    d = (kk*4 + nt)*4 + half*2
                    a(f"ds_read_b64_tr_b16 a[{d}:{d+1}], v{vAcc + nt} offset:{(kk & 7)*4096 + half*512}")
            a("s_waitcnt lgkmcnt(6)")
    def o_ld(q, bb, dst):
        hh, ks = q >> 2, q & 3
        a(f"s_add_u32 s48, s{sOld}, 0x{hh*0x40000:x}")
        a(f"buffer_load_dwordx4 {vr(dst + 4*q)}, v{vOld}, s[{sWS}:{sWS+3}], s48 offen offset:{bb*2048 + (ks>>1)*1024 + (ks&1)*128} sc1")
    def p_ld(gg, ph, dst):
        a(f"s_add_u32 s48, s{sPld}, {'s%d' % sPd if ph else 0}")
        a(f"buffer_load_dwordx4 {vr(dst + 4*gg)}, v{vVoff if gg < 4 else vVoff2}, s[{sRed}:{sRed+3}], s48 offen offset:{(gg&3)*1024} sc1")
    def frag_mfma(q, src, first=False):
        for nt in range(4):
            d = vAcc + nt*4
            a(f"v_mfma_f32_16x16x32_bf16 {vr(d)}, {ar((q*4 + nt)*4)}, {vr(src + 4*q)}, {'0' if first else vr(d)}")
    def p_st(ph):
        a("s_nop 5")
        a(f"s_add_u32 s48, s{sPst}, {'s%d' % sPd if ph else 0}")
        a(f"s_add_u32 s49, s48, 0x40000")
        for nt in range(4):
            for r in range(4):
                a(f"s_mov_b32 s{sBad}, 0x{0x07060500 + r:x}")
                a(f"v_perm_b32 v{vAcc + 4*nt + r}, v{vAcc + 4*nt + r}, v{vTag}, s{sBad}")
            a(f"buffer_store_dwordx4 {vr(vAcc + 4*nt)}, v{vPst}, s[{sWS}:{sWS+3}], s{48 + (nt >> 1)} offen offset:{(nt&1)*512} sc1")
    def stage1_ph0(qs):
        lc, lo = a.newlabel("c"), a.newlabel("o")
        regs = [vB + 4*q + r for q in qs for r in range(4)]
        a(f"s_mov_b32 s{sSpin}, {OPT.get('SPIN', '0x20000')}")
        a.label(lc)
        a(f"v_max_u32 v{vCntG}, v{regs[0]}, v{regs[1]}")
        for r in range(2, len(regs), 2):
            a(f"v_max3_u32 v{vCntG}, v{vCntG}, v{regs[r]}, v{regs[r+1]}")
        a(f"v_cmp_eq_u32 vcc, -1, v{vCntG}")
        a(f"s_cbranch_vccz {lo}")
        a(f"s_sub_u32 s{sSpin}, s{sSpin}, 1")
        a(f"s_cmp_eq_u32 s{sSpin}, 0")
        a(f"s_cbranch_scc1 {lo}")
        for q in qs:
            o_ld(q, 0, vB)
        a("s_waitcnt vmcnt(0)")
        a(f"s_branch {lc}")
        a.label(lo)
        for q in qs:
            frag_mfma(q, vB, q == 0)
    def cnt_ld():
        a(f"s_mov_b32 s48, 0x{FLP:x}")
        a(f"buffer_load_dwordx4 {vr(vB + 56)}, v{vVoff}, s[{sWS}:{sWS+3}], s48 offen sc1")
    def cnt_check():
        lp, ld = a.newlabel("cp"), a.newlabel("cd")
        a(f"s_mov_b32 s{sSpin}, {OPT.get('SPIN', '0x20000')}")
        a.label(lp)
        for r in range(4):
            a(f"v_xor_b32 v{vB + 56 + r}, s{sNon}, v{vB + 56 + r}")
        a(f"v_or3_b32 v{vB + 56}, v{vB + 56}, v{vB + 57}, v{vB + 58}")
        a(f"v_or_b32 v{vB + 56}, v{vB + 56}, v{vB + 59}")
        a(f"v_cmp_ne_u32 vcc, 0, v{vB + 56}")
        a(f"s_cbranch_vccz {ld}")
        a(f"s_sub_u32 s{sSpin}, s{sSpin}, 1")
        a(f"s_cmp_eq_u32 s{sSpin}, 0")
        a(f"s_cbranch_scc1 {ld}")
        a("s_sleep 8")
        cnt_ld()
        a("s_waitcnt vmcnt(0)")
        a(f"s_branch {lp}")
        a.label(ld)
    def flush0():
        a("s_nop 1")
        flush()
        for r in range(8):
            a(f"v_mov_b32 v{vQ + r}, v{vQ2 + r}")
        a(f"v_add_u32 v{vLdsO}, 0x4000, v{vLdsO}")
        a(f"v_add_u32 v{vLdsM}, 0x400, v{vLdsM}")
        a("s_waitcnt lgkmcnt(0)")
        a("s_mov_b64 exec, 1")
        a(f"ds_add_u32 v{vCntL}, v{vOne}")
        a("s_mov_b64 exec, -1")
        reset_state()
    def comb0():
        combine_addr(0, vB + 60, vB + 61)
        lds_spin(0, vB + 62)
        combine(0, vB + 60, vB + 61, vB)
    NX = int(OPT.get('NX', 4))
    TH2 = int(OPT.get('TH2', 0))
    SLOW = int(OPT.get('SLOW', 0))
    sn = {n: [] for n in range(8, 32)}
    def add(n, fn, nv=0, act=False): sn[n].append((fn, nv, act))
    sAdj, sWsel, sT = 87, 47, 80
    vTS = 253
    TSB = 0x320000
    GN = int(OPT.get('GN', 32))
    def pub(k):
        a("s_memrealtime s[100:101]")
        a(f"s_lshl_b32 s48, s2, 2")
        a(f"s_add_u32 s48, s48, 0x{TSB + k*1024:x}")
        a(f"s_cmp_eq_u32 s{sW}, {k & 3}")
        a(f"s_cselect_b32 s{sNull+2}, 0x{WS_SIZE:x}, 0")
        if SLOW & 1: a(f"s_cselect_b32 s{sWsel}, 3, s{sWsel}")
        a(f"v_mov_b32 v{vCntG}, 0")
        a("s_waitcnt lgkmcnt(0)")
        a(f"v_mov_b32 v{vTS}, s100")
        a(f"s_sub_u32 s{sT}, s100, s{sNon}")
        a(f"s_mov_b32 s81, s{sAdj}")
        a("s_mov_b64 exec, 1")
        a(f"buffer_store_dword v{vTS}, v{vCntG}, s[{sNull}:{sNull+3}], s48 offen sc1")
        a("s_mov_b64 exec, -1")
        a("s_nop 0")
        a(f"s_mov_b32 s{sNull+2}, 0")
    def ts_ld(k):
        a(f"s_lshr_b32 s48, s2, 6")
        a(f"s_add_u32 s48, s48, {k}")
        a("s_and_b32 s48, s48, 3")
        a("s_lshl_b32 s48, s48, 8")
        a(f"s_add_u32 s48, s48, 0x{TSB + k*1024:x}")
        a(f"v_lshrrev_b32 v{vCntG}, 2, v{vVoff}")
        a(f"buffer_load_dword v{vTS}, v{vCntG}, s[{sWS}:{sWS+3}], s48 offen sc1")
        a("s_memrealtime s[82:83]")
    def calc(k, lim):
        a("s_waitcnt lgkmcnt(0)")
        a(f"s_sub_u32 s82, s82, s{sNon}")
        a(f"v_subrev_u32 v{vTS}, s{sNon}, v{vTS}")
        a(f"v_min_u32 v{vTS}, s82, v{vTS}")
        for sh in (8, 4, 2, 1):
            a("s_nop 1")
            a(f"v_add_u32_dpp v{vTS}, v{vTS}, v{vTS} row_ror:{sh} row_mask:0xf bank_mask:0xf")
        a("s_nop 1")
        a(f"v_readlane_b32 s48, v{vTS}, 0")
        a(f"v_readlane_b32 s49, v{vTS}, 16")
        a(f"v_readlane_b32 s82, v{vTS}, 32")
        a(f"v_readlane_b32 s83, v{vTS}, 48")
        a("s_add_u32 s48, s48, s49")
        a("s_add_u32 s82, s82, s83")
        a("s_add_u32 s48, s48, s82")
        a("s_lshr_b32 s48, s48, 6")
        a(f"s_sub_i32 s48, s{sT}, s48")
        if STAMP and OPT.get('lagst'): a(f"s_mov_b32 s{71 + k}, s48")
        bias = int(OPT.get('BIAS', 0))
        if bias and k >= int(OPT.get('BK', 0)):
            a("s_bitcmp1_b32 s2, 3")
            a(f"s_mov_b32 s49, {bias}")
            a(f"s_cselect_b32 s49, {-bias}, s49")
            a("s_add_i32 s48, s48, s49")
        if OPT.get('GNN'):
            a("s_cmp_lt_i32 s48, 0")
            a(f"s_mov_b32 s49, {65536 // GN}")
            a(f"s_cselect_b32 s49, {65536 // int(OPT['GNN'])}, s49")
            a("s_mul_i32 s48, s48, s49")
        else:
            a(f"s_mul_i32 s48, s48, {65536 // GN}")
        a("s_add_i32 s48, s48, 0x8000")
        a("s_ashr_i32 s48, s48, 16")
        a(f"s_sub_i32 s81, s81, s{sAdj}")
        a(f"s_sub_i32 s48, s48, s81")
        a(f"s_min_i32 s48, s48, {lim * 2 + 2 if TH2 else lim}")
        a(f"s_max_i32 s{sAdj}, s48, {-lim if not OPT.get('noslow') else 0}")
    D0 = int(OPT.get('D0', 8))
    O0 = int(OPT.get('O0', 22))
    add(16, flush0)
    add(18, cnt_ld, 1, True)
    add(18, comb0, 1)
    if SLOW & 2:
        add(18, lambda: (a(f"s_cmp_lt_u32 s{sW}, 2"), a(f"s_cselect_b32 s{sWsel}, 3, s{sWsel}")))
    if OPT.get('TLB'):
        def tlb():
            a(f"buffer_load_dword v{vDum}, v{vVoff}, s[{sK}:{sK+3}], s{sB1} offen nt")
            a(f"buffer_load_dword v{vDum}, v{vVoff}, s[{sV}:{sV+3}], s{sB1} offen nt")
        add(int(OPT['TLB']), tlb, 2)
    add(20, cnt_check, 0, True)
    CP = [int(t) for t in OPT['CP'].split(',')] if OPT.get('CP') else []
    LD = int(OPT.get('LD', 3))
    for k, c in enumerate(CP):
        add(c, (lambda k=k: pub(k)), 1)
        add(c + LD, (lambda k=k: ts_ld(k)), 1)
        lim = (CP[k+1] - c) if k + 1 < len(CP) else 32 - (c + LD + 1)
        add(c + LD + 1, (lambda k=k, lim=lim: calc(k, lim)))
    DM = int(OPT.get('DM', 4))
    PF = int(OPT.get('PF', 0))
    def wo_pf(m):
        a("s_and_b32 s48, s2, 7")
        a("s_lshl_b32 s48, s48, 20")
        a(f"s_lshl_b32 s49, s{sW}, 18")
        a("s_add_u32 s48, s48, s49")
        a("s_lshr_b32 s49, s2, 4")
        a("s_lshl_b32 s49, s49, 10")
        a("s_add_u32 s48, s48, s49")
        a(f"s_add_u32 s48, s48, 0x{m*16384:x}")
        a(f"buffer_load_dwordx4 {vr(vAcc)}, v{vVoff}, s[{sWO}:{sWO+3}], s48 offen{OPT.get('pfflag', ' nt')}")
    m = 0; n = D0
    while m < 16:
        c_ = 0
        while m < 16 and c_ < DM and sum(v for _, v, _a in sn[n] if _a != 'I') < NX and (not PF or sum(v for _, v, _a in sn[n - PF] if _a is not True) < NX):
            add(n, (lambda m=m: wo_dma(m, 1)), 1, True)
            if PF: add(n - PF, (lambda m=m: wo_pf(m)), 1, 'I')
            m += 1; c_ += 1
        n += 1
    add(n + 1, wo_sig, 0, True)
    add(n + 3, lambda: lds_spin(16, vCntG), 0, True)
    n += 3
    for j in range(4):
        while n in (16, 18): n += 1
        add(n, (lambda j=j: wo_tr(4*j, 4*j + 4)), 0, True)
        n += 1
    trend = n
    OM = int(OPT.get('OM', 4))
    q = 0; n = O0
    assert O0 + 2 >= trend
    add(O0 + 2, lambda: a("s_waitcnt lgkmcnt(0)"), 0, True)
    while q < 16:
        c_ = 0; qs = []
        while q < 16 and c_ < OM and sum(v for _, v, _a in sn[n]) < NX:
            add(n, (lambda q=q: o_ld(q, 0, vB)), 1, True); qs.append(q); q += 1; c_ += 1
        if qs: add(n + 2, (lambda qs=qs: stage1_ph0(qs)), 0, True)
        n += 1
    n += 1
    while sum(v for _, v, _a in sn[n]): n += 1
    add(n, lambda: p_st(0), 4, True)
    if SLOW & 4: add(n, lambda: a(f"s_mov_b32 s{sWsel}, 3"), 0, True)
    Ws = [int(t) for t in OPT.get('Ws', f"{W-1},{W},{W+1}").split(',')]
    a(f"s_mov_b32 s{sAdj}, 0")
    if OPT.get('asym'):
        a("s_add_u32 s48, s2, 2")
        a("s_bitcmp1_b32 s48, 2")
        a(f"s_cselect_b32 s{sAdj}, {OPT['asym']}, 0")
    a.label("L_loop")
    if STAMP and OPT.get('itst'):
        a("s_memrealtime s[68:69]")
        a("s_waitcnt lgkmcnt(0)")
        a(f"s_mov_b32 m0, s{sIter}")
        a("s_nop 0")
        a(f"v_writelane_b32 v255, s68, m0")
        a(f"s_add_u32 m0, s{sIter}, 32")
        a("s_nop 0")
        a(f"v_writelane_b32 v255, s{sAdj}, m0")
    if STAMP and OPT.get('lst'):
        for k, n in enumerate([int(t) for t in OPT['lst'].split(',')]):
            a(f"s_cmp_lg_u32 s{sIter}, {n}")
            a(f"s_cbranch_scc1 L_lst{k}")
            a.stamp(1 + k)
            a.label(f"L_lst{k}")
    a(f"s_cmp_lt_i32 s{sAdj}, 0")
    a("s_cbranch_scc1 L_b0")
    if TH2:
        a(f"s_cmp_gt_i32 s{sAdj}, {TH2}")
        a("s_cbranch_scc1 L_b4")
        Ws = Ws + [0, W + 2]
    a(f"s_cmp_gt_i32 s{sAdj}, 0")
    a("s_cbranch_scc1 L_b2")
    for k in ((1, 0, 4, 2) if TH2 else (1, 0, 2)):
        a.label(f"L_b{k}")
        ml = MemSeq(a, pre_kv=8)
        def ex_loop(k=k, ml=ml):
            a(f"s_mov_b32 s{sWsel}, {k}")
            if k != 1: a(f"s_add_i32 s{sAdj}, s{sAdj}, {1 - k if k < 4 else -2}")
            a(f"s_branch L_snip")
            a.label(f"L_ret{k}")
            for _ in range(NX): ml.issue(None)
        iteration(ml, list(range(8)), extras=ex_loop, W=Ws[k])
        a(f"s_add_u32 s{sIter}, s{sIter}, 1")
        a(f"s_cmp_lt_u32 s{sIter}, 32")
        a(f"s_cbranch_scc1 L_loop")
        if k != 2 or SLOW: a("s_branch L_tail")
    if SLOW:
        ml = MemSeq(a, pre_kv=8)
        def ex_loopS(ml=ml):
            a.label(f"L_ret3")
            for _ in range(NX): ml.issue(None, slow=True)
        iteration(ml, list(range(8)), extras=ex_loopS, W=W, late=True)
        a(f"s_add_u32 s{sIter}, s{sIter}, 1")
        a(f"s_cmp_lt_u32 s{sIter}, 32")
        a(f"s_cbranch_scc1 L_loop")
    a.label("L_tail")
    a.stamp(7)
    combine_addr(1, 8, 9)
    flush()
    a("s_waitcnt lgkmcnt(0)")
    a("s_barrier")
    combine(1, 8, 9, 10)
    a("s_bitcmp1_b32 s2, 3")
    a("s_cbranch_scc1 L_inact")
    for q in range(16):
        o_ld(q, 1, bK)
    for gg in range(8):
        p_ld(gg, 0, vB)
    for r in range(16):
        a(f"v_mov_b32 v{vAcc + r}, 0")
    a(f"s_mov_b32 s{sSpin}, {OPT.get('SPIN', '0x20000')}")
    a(f"s_mov_b32 s{sBad}, 0")
    for q in range(16):
        a(f"s_waitcnt vmcnt({8 + 15 - q})")
        a(f"v_max3_u32 v8, v{bK+4*q}, v{bK+4*q+1}, v{bK+4*q+2}")
        a(f"v_max_u32 v8, v8, v{bK+4*q+3}")
        a("v_cmp_eq_u32 vcc, -1, v8")
        a(f"s_cbranch_vccnz L_bad{q}")
        frag_mfma(q, bK)
        a.label(f"L_nx{q}")
    a.label("L_retry")
    a(f"s_cmp_eq_u32 s{sBad}, 0")
    a("s_cbranch_scc1 L_alldone")
    a(f"s_sub_u32 s{sSpin}, s{sSpin}, 1")
    a(f"s_cmp_eq_u32 s{sSpin}, 0")
    a("s_cbranch_scc1 L_alldone")
    if OPT.get('SL'): a(f"s_sleep {OPT['SL']}")
    for q in range(16):
        a(f"s_bitcmp1_b32 s{sBad}, {q}")
        a(f"s_cbranch_scc0 L_rl{q}")
        o_ld(q, 1, bK)
        a.label(f"L_rl{q}")
    a("s_waitcnt vmcnt(0)")
    for q in range(16):
        a(f"s_bitcmp1_b32 s{sBad}, {q}")
        a(f"s_cbranch_scc0 L_rc{q}")
        a(f"v_max3_u32 v8, v{bK+4*q}, v{bK+4*q+1}, v{bK+4*q+2}")
        a(f"v_max_u32 v8, v8, v{bK+4*q+3}")
        a("v_cmp_eq_u32 vcc, -1, v8")
        a(f"s_cbranch_vccnz L_rc{q}")
        frag_mfma(q, bK)
        a(f"s_bitset0_b32 s{sBad}, {q}")
        a.label(f"L_rc{q}")
    a("s_branch L_retry")
    a.label("L_alldone")
    p_st(1)
    a.stamp(8)
    a(f"s_cmp_lg_u32 s{sW}, {RW}")
    a("s_cbranch_scc1 L_fin")
    for gg in range(8):
        p_ld(gg, 1, bK)
    a("s_waitcnt vmcnt(12)")
    a("s_branch L_red")
    a.label("L_inact")
    a.stamp(8)
    a(f"s_cmp_lg_u32 s{sW}, {RW}")
    a("s_cbranch_scc1 L_fin")
    for gg in range(8):
        p_ld(gg, 0, vB)
    for gg in range(8):
        p_ld(gg, 1, bK)
    a("s_waitcnt vmcnt(8)")
    a.label("L_red")
    a(f"s_mov_b32 s{sSelLo}, 0x0c0c0400")
    a(f"s_mov_b32 s{sSelHi}, 0x04000c0c")
    a(f"s_mov_b32 s{sC}, 0xffffff00")
    def reduce(ph, R, firstwait):
        lc, lo = a.newlabel("c"), a.newlabel("o")
        a(f"s_mov_b32 s{sBad}, 0xff")
        a(f"s_mov_b32 s{sSpin}, {OPT.get('SPIN', '0x20000')}")
        if firstwait is not None: a(f"s_waitcnt vmcnt({firstwait})")
        a.label(lc)
        for gg in range(8):
            ln = a.newlabel("n")
            a(f"s_bitcmp1_b32 s{sBad}, {gg}")
            a(f"s_cbranch_scc0 {ln}")
            a(f"v_perm_b32 v8, v{R+4*gg+1}, v{R+4*gg}, s{sSelLo}")
            a(f"v_perm_b32 v9, v{R+4*gg+3}, v{R+4*gg+2}, s{sSelHi}")
            a("v_or_b32 v8, v8, v9")
            a(f"v_cmp_ne_u32 vcc, s{sTag}, v8")
            a(f"s_cbranch_vccnz {ln}x")
            a(f"s_bitset0_b32 s{sBad}, {gg}")
            for r in range(4):
                a(f"v_and_b32 v{R+4*gg+r}, s{sC}, v{R+4*gg+r}")
            a(f"s_branch {ln}")
            a.label(ln + "x")
            p_ld(gg, ph, R)
            a.label(ln)
        a(f"s_cmp_eq_u32 s{sBad}, 0")
        a(f"s_cbranch_scc1 {lo}")
        a(f"s_sub_u32 s{sSpin}, s{sSpin}, 1")
        a("s_waitcnt vmcnt(0)")
        if OPT.get('SL2'): a(f"s_sleep {OPT['SL2']}")
        a(f"s_cmp_lg_u32 s{sSpin}, 0")
        a(f"s_cbranch_scc1 {lc}")
        a.label(lo)
        for (x, y) in ((0, 1), (2, 3), (4, 5), (6, 7), (0, 2), (4, 6), (0, 4)):
            for r in range(4):
                a(f"v_add_f32 v{R + 4*x + r}, v{R + 4*x + r}, v{R + 4*y + r}")
        a(f"v_cvt_pk_bf16_f32 v{R+4}, v{R}, v{R+1}")
        a(f"v_cvt_pk_bf16_f32 v{R+5}, v{R+2}, v{R+3}")
        a(f"s_add_u32 s48, s{sOutB}, 0x{ph*0x20000:x}")
        a(f"buffer_store_dwordx2 v[{R+4}:{R+5}], v{vOut}, s[{sOUT}:{sOUT+3}], s48 offen{OPT.get('outflag','')}")
    a(f"s_mov_b32 s{sSpin}, {OPT.get('SPIN', '0x20000')}")
    reduce(0, vB, None)
    reduce(1, bK, 1)
    a.label("L_fin")
    a.stamp(9)
    a.stamp_store(18, 0x200000, 10)
    if STAMP and OPT.get('itst'):
        a("s_lshl_b32 s92, s2, 2")
        a("s_add_u32 s92, s92, s40")
        a("s_lshl_b32 s92, s92, 8")
        a("s_add_u32 s92, s92, 0x220000")
        a("v_and_b32 v250, 63, v0")
        a("v_lshlrev_b32 v250, 2, v250")
        a("buffer_store_dword v255, v250, s[88:91], s92 offen")
    a.label("L_end")
    a("s_endpgm")
    for q in range(16):
        a.label(f"L_bad{q}")
        a(f"s_bitset1_b32 s{sBad}, {q}")
        a(f"s_branch L_nx{q}")
    a.label("L_snip")
    a("s_bitcmp1_b32 s2, 3")
    a("s_cbranch_scc1 L_snipI")
    for tab in ("A", "I"):
        a.label(f"L_snip{tab}")
        for n in sorted(sn):
            items = [(f, v) for f, v, act in sn[n] if (act is False) or (act is True and tab == "A") or (act == 'I' and tab == "I")]
            if not items: continue
            a(f"s_cmp_lg_u32 s{sIter}, {n}")
            a(f"s_cbranch_scc1 L_sn{tab}{n}x")
            nv = sum(v for _, v in items)
            assert nv <= NX, (n, nv)
            dummy(NX - nv)
            for f, _ in items: f()
            a(f"s_branch L_snret")
            a.label(f"L_sn{tab}{n}x")
        dummy(NX)
        if tab == "A": a("s_branch L_snret")
    a.label("L_snret")
    a(f"s_cmp_eq_u32 s{sWsel}, 1")
    a("s_cbranch_scc1 L_ret1")
    a(f"s_cmp_eq_u32 s{sWsel}, 0")
    a("s_cbranch_scc1 L_ret0")
    if SLOW:
        a(f"s_cmp_eq_u32 s{sWsel}, 3")
        a("s_cbranch_scc1 L_ret3")
    if TH2:
        a(f"s_cmp_eq_u32 s{sWsel}, 4")
        a("s_cbranch_scc1 L_ret4")
    a("s_branch L_ret2")

def kd(a, name):
    a.raw(".p2align 6")
    a.raw(f".amdhsa_kernel {name}")
    a.raw("  .amdhsa_next_free_vgpr 512")
    a.raw("  .amdhsa_next_free_sgpr 102")
    a.raw("  .amdhsa_accum_offset 256")
    a.raw("  .amdhsa_group_segment_fixed_size 0")
    a.raw("  .amdhsa_kernarg_size 64")
    a.raw("  .amdhsa_user_sgpr_count 2")
    a.raw("  .amdhsa_user_sgpr_kernarg_segment_ptr 1")
    a.raw("  .amdhsa_system_sgpr_workgroup_id_x 1")
    a.raw(".end_amdhsa_kernel")

def main(path):
    a = Asm()
    a.raw(HEADER.rstrip())
    a.raw(f"; @launch grid=(256,1,1) block=(256,1,1) lds={LDS_SIZE}")
    a.raw('.amdgcn_target "amdgcn-amd-amdhsa--gfx950"')
    a.raw(".text")
    gen_k1(a)
    a.raw('.section .rodata,"a"')
    kd(a, K1)
    open(path, "w").write(a.text())

if __name__ == "__main__":
    args = sys.argv[1:]
    if "--stamp" in args:
        STAMP = True
        args.remove("--stamp")
    rest = []
    for x in args:
        if "=" in x:
            k, v = x.split("=", 1)
            OPT[k] = v.replace("+", " ")
        else:
            rest.append(x)
    main(rest[0] if rest else "standalone__mha_block_cached__sampling.s")
```

```python
import sys, struct, math

def f32hex(x):
    return "0x%08x" % struct.unpack("<I", struct.pack("<f", x))[0]

STAMP = False
OPT = {}
class Asm:
    def __init__(self):
        self.L = []
        self.uid = 0
    def stamp(self, idx):
        if not STAMP: return
        self("s_memrealtime s[68:69]")
        self("s_waitcnt lgkmcnt(0)")
        self(f"s_mov_b32 s{70 + idx}, s68")
    def stamp_store(self, wsptr, base, n):
        if not STAMP: return
        self(f"s_mov_b32 s88, s{wsptr}")
        self(f"s_mov_b32 s89, s{wsptr+1}")
        self("s_mov_b32 s90, 0x40000000")
        self("s_mov_b32 s91, 0x00020000")
        self("s_lshl_b32 s92, s2, 3")
        self("s_add_u32 s92, s92, s40")
        self("s_lshl_b32 s92, s92, 6")
        self(f"s_add_u32 s92, s92, 0x{base:x}")
        self("v_mov_b32 v250, 0")
        self("s_getreg_b32 s93, hwreg(HW_REG_XCC_ID)")
        self("v_mov_b32 v251, s93")
        self(f"buffer_store_dword v251, v250, s[88:91], s92 offen offset:{4*n}")
        self("s_nop 1")
        self("s_getreg_b32 s93, hwreg(HW_REG_HW_ID)")
        self("v_mov_b32 v251, s93")
        self(f"buffer_store_dword v251, v250, s[88:91], s92 offen offset:{4*n+4}")
        self("s_nop 1")
        for i in range(n):
            self(f"v_mov_b32 v251, s{70+i}")
            self(f"buffer_store_dword v251, v250, s[88:91], s92 offen offset:{4*i}")
            self("s_nop 1")
    def __call__(self, s):
        self.L.append("  " + s)
    def label(self, s):
        self.L.append(s + ":")
    def newlabel(self, p):
        self.uid += 1
        return f"L_{p}_{self.uid}"
    def raw(self, s):
        self.L.append(s)
    def text(self):
        return "\n".join(self.L) + "\n"

class MemSeq:
    def __init__(self, a, pre_kv=0):
        self.a = a; self.n = pre_kv; self.done = 0; self.kv = list(range(pre_kv)); self.slow = -1
    def issue(self, text, kv=False, slow=False):
        if text is not None: self.a(text)
        idx = self.n; self.n += 1
        if kv: self.kv.append(idx)
        if slow and self.slow < self.done: self.slow = idx
        return idx
    def wait_for(self, idx):
        if idx < self.done: return
        cnt = self.n - 1 - idx
        assert cnt <= 63, cnt
        self.a(f"s_waitcnt vmcnt({cnt})")
        self.done = idx + 1
    def pace(self, W):
        if len(self.kv) >= W:
            t = self.kv[-W]
            if self.slow >= self.done and t > self.slow: return
            self.wait_for(t)

def vr(b, n=4):
    return f"v[{b}:{b+n-1}]"
def ar(b, n=4):
    return f"a[{b}:{b+n-1}]"

HEADER = """; Kernarg layout for this problem (64 bytes, ptrs only, base s[0:1]):
"""

K1 = "standalone__mha_block_cached__sampling_kernel"

LDS_WO = 0
LDS_C = 32768
LDS_WQS = 0
LDS_XS = 65536
LDS_M = 98304
LDS_L = 100352
LDS_QF = 102400
LDS_CNT = 106496
LDS_SIZE = 106496 + 64
PR = 0x400000
QP = 0xC00000
WS_SIZE = QP + 0x1000000
FLQ = 0x300000
FLP = 0x310000

def gen_k1(a):
    W = int(OPT.get('W', 5))
    Wp = int(OPT.get('Wp', 5))
    Rn, Rd = [int(t) for t in OPT.get('R', '7/9').split('/')]
    vKoff, vVoff, vKoff2, vVoff2 = 1, 2, 3, 4
    vMc, vL, vT0, vT1 = 5, 6, 7, 20
    vS = 8
    vP = 16
    vAl, vT2, vT3 = 21, 22, 23
    vQ, vQ2 = 24, 32
    vO = 40
    vPT = 72
    vLdsO, vLdsM, vQF, vOne, vTr, vWoOff, vXoff, vWoff = 80, 81, 82, 83, 84, 85, 86, 87
    bK, bV = 88, 120
    vSR = 152
    vB = 168
    vAT = 232
    vCntL, vCntG, vDum = 248, 249, 252
    sX, sK, sV, sWQ, sWS, sWO, sOUT, sDBG, sNull = 20, 24, 28, 32, 36, 60, 64, 80, 96
    sWSo = 20
    sW, sH, sP_, sB1, sVoff, sKoff, sIter = 40, 41, 42, 43, 44, 45, 46
    sSelLo, sSelHi, sC, sBad, sSpin = 50, 51, 52, 53, 54
    sMask = 56
    sWoLd, sLb = 58, 59
    sXb, sWqb, sJ = 84, 85, 86
    vWoffB, vXt, vTq, vXrd = 253, 254, 216, 224
    sFl = 95
    sNon = 55
    vNon = 246
    sOld, sOst = 93, 94
    cscale = (128 ** -0.5) * math.log2(math.e)

    a.raw(f".globl {K1}")
    a.raw(".p2align 8")
    a.raw(f".type {K1},@function")
    a.label(K1)
    a("s_cmp_ge_u32 s2, 256")
    a("s_cbranch_scc1 L_end")
    a.stamp(0)
    a("s_load_dwordx16 s[4:19], s[0:1], 0")
    a("s_memrealtime s[90:91]")
    a("v_lshrrev_b32 v7, 6, v0")
    a("v_and_b32 v5, 63, v0")
    a("v_readfirstlane_b32 s40, v7")
    a("v_and_b32 v6, 15, v5")
    a("v_lshrrev_b32 v7, 4, v5")
    a("s_and_b32 s41, s2, 7")
    a("s_lshl_b32 s41, s41, 2")
    a("s_lshr_b32 s48, s2, 3")
    a("s_and_b32 s48, s48, 3")
    a("s_add_u32 s41, s41, s48")
    a("s_lshr_b32 s42, s2, 5")
    if OPT.get('map') == 'anti':
        a("s_lshr_b32 s41, s2, 3")
        a("s_and_b32 s42, s2, 7")
    t0, t1, t2, t3 = 240, 241, 242, 243
    a(f"v_and_b32 v{t0}, 3, v6")
    a(f"v_lshlrev_b32 v{t0}, 2, v{t0}")
    a(f"v_lshrrev_b32 v{t2}, 3, v6")
    a(f"v_and_b32 v{t3}, 7, v6")
    WQC = 5 if OPT.get('wqc') else 0
    a(f"v_lshlrev_b32 v{vWoff}, {16 - WQC}, v7")
    a(f"v_lshl_add_u32 v{vWoff}, v6, 4, v{vWoff}")
    a(f"v_lshlrev_b32 v{vXoff}, 17, v{t2}")
    a(f"v_lshl_add_u32 v{vXoff}, v{t3}, 11, v{vXoff}")
    a(f"v_lshl_add_u32 v{vXoff}, v7, 4, v{vXoff}")
    a(f"v_bfe_u32 v{t1}, v6, 2, 1")
    a(f"v_add_u32 v{t1}, v{t0}, v{t1}")
    a(f"v_lshlrev_b32 v{vKoff}, 8, v{t1}")
    a(f"v_lshl_add_u32 v{vKoff}, v{t2}, 6, v{vKoff}")
    a(f"v_lshl_add_u32 v{vKoff}, v7, 4, v{vKoff}")
    a(f"v_add_u32 v{vKoff2}, 0x1000, v{vKoff}")
    a(f"v_lshlrev_b32 v{vVoff}, 4, v5")
    a(f"v_add_u32 v{vVoff2}, 0x1000, v{vVoff}")
    a(f"s_lshl_b32 s{sXb}, s{sP_}, 14")
    a(f"s_lshl_b32 s48, s{sW}, 9")
    a(f"s_add_u32 s{sXb}, s{sXb}, s48")
    a(f"s_lshl_b32 s{sWqb}, s{sW}, {21 - WQC}")
    a(f"s_lshl_b32 s48, s{sH}, {18 if WQC else 8}")
    a(f"s_add_u32 s{sWqb}, s{sWqb}, s48")
    a(f"s_lshl_b32 s{sVoff}, s{sP_}, 5")
    a(f"s_add_u32 s{sVoff}, s{sVoff}, s{sH}")
    a(f"s_lshl_b32 s{sVoff}, s{sVoff}, 19")
    a(f"s_lshl_b32 s48, s{sW}, 13")
    a(f"s_add_u32 s{sVoff}, s{sVoff}, s48")
    a(f"s_add_u32 s{sB1}, s{sVoff}, 0x8000000")
    for (d, size) in ((sX, 16*8*1024*2), (sWQ, 1024*4096*2), (sK, 1 << 28), (sV, 1 << 28)):
        a(f"s_mov_b32 s{d+2}, 0x{size:x}")
        a(f"s_mov_b32 s{d+3}, 0x00020000")
    a(f"s_mov_b32 s{sSelLo}, 0x05040100")
    a(f"s_mov_b32 s{sSelHi}, 0x07060302")
    a("s_waitcnt lgkmcnt(0)")
    if OPT.get('wsoff'):
        a(f"s_add_u32 s18, s18, {OPT['wsoff']}")
        a("s_addc_u32 s19, s19, 0")
    for (d, src) in ((sX, 4), (sWQ, 10), (sK, 6), (sV, 8)):
        a(f"s_mov_b32 s{d}, s{src}")
        a(f"s_mov_b32 s{d+1}, s{src+1}")

    a(f"s_mov_b32 s{sDBG}, s16")
    a(f"s_mov_b32 s{sDBG+1}, s17")
    a(f"s_mov_b32 s{sDBG+2}, 256")
    a(f"s_mov_b32 s{sDBG+3}, 0x00020000")
    a(f"v_mov_b32 v{vNon+1}, 0")
    a(f"s_or_b32 s48, s2, s{sW}")
    a("s_cmp_lg_u32 s48, 0")
    a("s_cbranch_scc1 L_nopub")
    a(f"s_or_b32 s{sNon}, s90, 1")
    a(f"v_mov_b32 v{vNon}, s{sNon}")
    a("s_mov_b64 exec, 1")
    a(f"buffer_store_dword v{vNon}, v{vNon+1}, s[{sDBG}:{sDBG+3}], 0 offen sc1")
    a("s_mov_b64 exec, -1")
    a.label("L_nopub")
    if OPT.get('est'): a.stamp(3)
    ms = MemSeq(a)
    NSL = 3
    def xreg(ks): return 8 + 4*ks
    def slot(ks): return 152 + (ks % NSL)*32

    def ld_K(ms, dst, j, soff):
        T, s = j >> 2, j & 3
        return ms.issue(f"buffer_load_dwordx4 {dst}, v{vKoff if T == 0 else vKoff2}, s[{sK}:{sK+3}], s{soff} offen offset:{(s>>1)*512 + (s&1)*128} nt", kv=True)
    def ld_V(ms, dst, i, soff):
        return ms.issue(f"buffer_load_dwordx4 {dst}, v{vVoff if i < 4 else vVoff2}, s[{sV}:{sV+3}], s{soff} offen offset:{(i&3)*1024} nt", kv=True)

    stage = []
    for b in range(4):
        for j in range(8): stage.append(('K', b, j))
        for j in range(8): stage.append(('V', b, j))
    for j in range(8): stage.append(('K', 4, j))
    st = {'pos': 0, 'idx': {}}
    def stage_one(Wx):
        if st['pos'] >= len(stage): return False
        kind, b, j = stage[st['pos']]; st['pos'] += 1
        if len(ms.kv) >= Wx and not st.get('late'):
            st['late'] = True
            late_setup()
        ms.pace(Wx)
        if kind == 'K':
            dst = ar(64*b + 4*j) if b < 4 else vr(bK + 4*j)
            st['idx'][(kind, b, j)] = ld_K(ms, dst, j, sVoff)
        else:
            st['idx'][(kind, b, j)] = ld_V(ms, ar(64*b + 32 + 4*j), j, sVoff)
            if j == 7:
                a(f"s_add_u32 s{sVoff}, s{sVoff}, 0x8000")
        return True

    def perm_c(src, c):
        for hb, sel in ((0, sSelLo), (1, sSelHi)):
            for t in range(4):
                a(f"v_perm_b32 v{vPT + hb*4 + t}, v{src[2*t+1] + c}, v{src[2*t] + c}, s{sel}")
    def mfma_c(bop, c, first):
        a("s_nop 1")
        for hb in range(2):
            j = 2*c + hb
            cc = "0" if first else vr(vO + 4*j)
            a(f"v_mfma_f32_16x16x32_bf16 {vr(vO + 4*j)}, {vr(vPT + hb*4)}, {vr(bop)}, {cc}")
    def reset_state():
        for r in range(32):
            a(f"v_mov_b32 v{vO + r}, 0")
        a(f"v_mov_b32 v{vMc}, 0xff800000")
        a(f"v_mov_b32 v{vL}, 0")

    def late_setup():
        a(f"v_lshl_add_u32 v{t1}, v7, 4, v{t3}")
        a(f"v_lshlrev_b32 v{t1}, 4, v{t1}")
        a(f"v_lshl_add_u32 v{t1}, v{t2}, 10, v{t1}")
        a(f"v_add_u32 v{vQF}, 0x{LDS_QF:x}, v{t1}")
        a(f"v_mov_b32 v{vCntL}, 0x{LDS_CNT:x}")
        a(f"v_mov_b32 v{vOne}, 0")
        a(f"ds_write_b32 v{vCntL}, v{vOne}")
        a(f"ds_write_b32 v{vCntL}, v{vOne} offset:4")
        a(f"ds_write_b32 v{vCntL}, v{vOne} offset:8")
        a(f"ds_write_b32 v{vCntL}, v{vOne} offset:12")
        a(f"ds_write_b32 v{vCntL}, v{vOne} offset:16")
        a(f"v_lshl_add_u32 v{t1}, v7, 3, v{t3}")
        a(f"v_lshlrev_b32 v{t1}, 4, v{t1}")
        a(f"s_lshl_b32 s48, s{sW}, 12")
        a(f"s_add_u32 s48, s48, 0x{LDS_C:x}")
        a(f"v_add_u32 v{vLdsO}, s48, v{t1}")
        a(f"s_lshl_b32 s48, s{sW}, 8")
        a(f"s_add_u32 s48, s48, 0x{LDS_M:x}")
        a(f"v_lshlrev_b32 v{t1}, 2, v5")
        a(f"v_add_u32 v{vLdsM}, s48, v{t1}")
        a(f"v_lshrrev_b32 v{t1}, 3, v5")
        a(f"v_lshlrev_b32 v{vWoOff}, 11, v{t1}")
        a(f"v_lshl_add_u32 v{vWoOff}, v{t3}, 4, v{vWoOff}")
        a(f"v_and_b32 v{t1}, 1, v7")
        a(f"v_lshlrev_b32 v{vTr}, 5, v{t1}")
        a(f"v_xor_b32 v{vWoOff}, v{vWoOff}, v{vTr}")
        a(f"v_lshl_add_u32 v{t1}, v{t1}, 1, v{t2}")
        a(f"v_lshlrev_b32 v{vTr}, 5, v{t1}")
        a(f"v_lshrrev_b32 v{t1}, 2, v6")
        a(f"v_lshl_add_u32 v{t1}, v7, 3, v{t1}")
        a(f"v_lshl_add_u32 v{vTr}, v{t1}, 7, v{vTr}")
        a(f"v_lshl_add_u32 v{vTr}, v{t0}, 1, v{vTr}")
        a(f"s_lshl_b32 s{sLb}, s{sW}, 14")
        a(f"s_lshr_b32 s48, s{sW}, 1")
        a("s_lshl_b32 s48, s48, 15")
        a(f"s_add_u32 s{sLb}, s{sLb}, s48")
        a(f"v_mov_b32 v{vOne}, 1")
        a(f"s_mov_b32 s{sC}, {f32hex(cscale)}")
        a(f"s_mov_b32 s{sMask}, 0x00ff00ff")
        a(f"s_mov_b32 s{sMask+1}, 0x00ff00ff")
        for (d, src, size) in ((sWS, 18, WS_SIZE), (sWO, 12, 4096*1024*2), (sOUT, 14, 128*1024*2), (sNull, 18, 0)):
            a(f"s_mov_b32 s{d}, s{src}")
            a(f"s_mov_b32 s{d+1}, s{src+1}")
            a(f"s_mov_b32 s{d+2}, 0x{size:x}")
            a(f"s_mov_b32 s{d+3}, 0x00020000")
        a("s_and_b32 s48, s2, 7")
        a(f"s_lshl_b32 s{sWoLd}, s48, 20")
        a(f"s_lshl_b32 s{sOld}, s48, 15")
        a(f"s_lshl_b32 s48, s{sW}, 18")
        a(f"s_add_u32 s{sWoLd}, s{sWoLd}, s48")
        a("s_lshr_b32 s48, s2, 3")
        a("s_lshl_b32 s48, s48, 6")
        a(f"s_add_u32 s{sWoLd}, s{sWoLd}, s48")
        a(f"s_lshl_b32 s48, s{sW}, 21")
        a(f"s_add_u32 s{sOld}, s{sOld}, s48")
        a(f"s_add_u32 s{sOld}, s{sOld}, 0x{QP:x}")
        a(f"s_lshl_b32 s{sOst}, s2, 15")
        a(f"s_add_u32 s48, s{sP_}, 3")
        a("s_and_b32 s48, s48, 3")
        a("s_lshl_b32 s48, s48, 13")
        a(f"s_add_u32 s{sOst}, s{sOst}, s48")
        a(f"s_add_u32 s{sOst}, s{sOst}, 0x{QP:x}")
        a(f"s_and_b32 s48, s{sW}, 1")
        a("s_lshl_b32 s48, s48, 10")
        a(f"s_add_u32 s{sOst}, s{sOst}, s48")
        FS = int(OPT.get('FS', 0))
        if FS:
            for r in range(4):
                a(f"v_mov_b32 v{232 + r}, -1")
            a(f"s_lshr_b32 s48, s{sW}, 1")
            a("s_lshl_b32 s48, s48, 11")
            a(f"s_add_u32 s48, s48, s{sOst}")
            if FS == 2:
                a(f"s_cmp_ge_u32 s{sW}, 2")
                a(f"s_cselect_b32 s{sNull+2}, 0x{WS_SIZE:x}, 0")
                ms.issue(f"buffer_store_dwordx4 {vr(232)}, v{vVoff}, s[{sNull}:{sNull+3}], s48 offen sc1")
                a(f"s_mov_b32 s{sNull+2}, 0")
            else:
                ms.issue(f"buffer_store_dwordx4 {vr(232)}, v{vVoff}, s[{sWS}:{sWS+3}], s48 offen sc1")
        PT = int(OPT.get('PT', 0))
        if PT:
            for ph in range(2 - PT, 2):
                a(f"s_add_u32 s48, s{sP_}, {1 + ph}")
                a("s_and_b32 s48, s48, 3")
                a("s_lshl_b32 s48, s48, 13")
                a("s_lshl_b32 s49, s2, 15")
                a("s_add_u32 s48, s48, s49")
                a(f"s_lshl_b32 s49, s{sW}, 11")
                a("s_add_u32 s48, s48, s49")
                a(f"s_add_u32 s48, s48, 0x{QP:x}")
                for k_ in range(2):
                    ms.issue(f"buffer_store_dwordx4 {vr(232)}, v{vVoff}, s[{sWS}:{sWS+3}], s48 offen offset:{k_*1024} sc1")

    def prologue(pfx):
        def O(k, d=None): return OPT.get(pfx + k, OPT.get(k, d))
        Wp = int(O('Wp', 5))
        NSL = int(O('NSL', 3))
        slots = [88, 120, 152, 184][4 - NSL:]
        qa, qb = [int(t) for t in O('QR', '4/3').split('/')]
        seq = [('s',)] * int(O('KF', 0))
        qlist = [('q', n, e) for n in range(8) for e in range(9)]
        Q0 = int(O('Q0', 0))
        seq += qlist[:Q0]
        accum = 0
        for it_ in qlist[Q0:]:
            seq.append(it_)
            accum += qb
            while accum >= qa:
                seq.append(('s',)); accum -= qa
        D = int(O('QD', 10))
        seq += [('s',)] * (D + 4)
        sched = {}
        qidx = {}
        endpos = {}
        for t, it_ in enumerate(seq):
            if it_[0] == 'q' and it_[2] == 8:
                for c in range(4): sched.setdefault(t + D + c, []).append((it_[1], c))
        donec = set()
        for t, it_ in enumerate(seq):
            if t == int(O('LS', 1000)) and not st.get('late'):
                st['late'] = True
                late_setup()
            if it_[0] == 's':
                assert NSL < 4 or st['pos'] < 64 or (4, 3) in donec
                stage_one(Wp if t >= int(O('QW0', 0)) else 99)
            else:
                _, n, e = it_
                if e == 0:
                    a(f"s_add_u32 s48, s{sP_}, {n}")
                    a("s_and_b32 s48, s48, 7")
                    a(f"s_lshl_b32 s47, s48, {18 - WQC}")
                    a(f"s_add_u32 s47, s47, s{sWqb}")
                    a("s_lshl_b32 s48, s48, 6")
                    a(f"s_add_u32 s48, s48, s{sXb}")
                    qidx[(n, e)] = ms.issue(f"buffer_load_dwordx4 {vr(8 + 4*n)}, v{vXoff}, s[{sX}:{sX+3}], s48 offen{OPT.get('xflag','')}")
                else:
                    assert n < NSL or (n - NSL, 3) in donec, (n, e)
                    if e > 1: a(f"s_add_u32 s47, s47, 0x{0x2000 >> WQC:x}")
                    qidx[(n, e)] = ms.issue(f"buffer_load_dwordx4 {vr(slots[n % NSL] + 4*(e-1))}, v{vWoff}, s[{sWQ}:{sWQ+3}], s47 offen{OPT.get('wqflag0', OPT.get('wqflag','')) if n == 0 else OPT.get('wqflag','')}")
            for (n, c) in sched.get(t, []):
                ms.wait_for(qidx[(n, 8)])
                if OPT.get('xst') and c == 0 and n in (0, 2, 4, 6): a.stamp(3 + n // 2)
                perm_c([slots[n % NSL] + 4*i for i in range(8)], c)
                mfma_c(8 + 4*n, c, n == 0)
                donec.add((n, c))
        assert len(donec) == 32
        if not st.get('late'):
            st['late'] = True
            late_setup()
        a.stamp(1)
        a(f"s_lshl_b32 s48, s{sW}, 13")
        a(f"v_add_u32 v8, s48, v{vVoff}")
        a(f"s_lshl_b32 s48, s{sW}, 11")
        a(f"v_add_u32 v9, s48, v{vVoff}")
        a(f"v_lshlrev_b32 v10, 10, v7")
        a(f"v_lshl_add_u32 v10, v6, 4, v10")
        a(f"s_lshl_b32 s48, s{sW}, 2")
        a(f"s_add_u32 s48, s48, 0x{LDS_QF:x}")
        a(f"v_add_u32 v10, s48, v10")
        a(f"s_mov_b32 s{sWSo}, s18")
        a(f"s_mov_b32 s{sWSo+1}, s19")
        a(f"s_cmp_lt_u32 s{sW}, 2")
        a(f"s_cselect_b32 s{sWSo+2}, 0x{WS_SIZE:x}, 0")
        a("s_nop 7")
        for j in range(8):
            a(f"ds_write_b128 v8, {vr(vO + 4*j)} offset:{j*1024}")
        for i in range(int(O('SB', 2))): stage_one(Wp)
        a("s_waitcnt lgkmcnt(0)")
        a("s_barrier")
        for ww in range(4):
            for tt in range(2):
                a(f"ds_read_b128 {vr(vO + (ww*2+tt)*4)}, v9 offset:{ww*8192 + tt*1024}")
        for i in range(int(O('SC', 1))): stage_one(Wp)
        a("s_waitcnt lgkmcnt(0)")
        for r in range(8):
            a(f"v_add_f32 v{vO + r}, v{vO + r}, v{vO + 8 + r}")
            a(f"v_add_f32 v{vO + 16 + r}, v{vO + 16 + r}, v{vO + 24 + r}")
        for r in range(8):
            a(f"v_add_f32 v{vO + r}, v{vO + r}, v{vO + 16 + r}")
        for r in range(4):
            a(f"v_cvt_pk_bf16_f32 v{12 + r}, v{vO + r}, v{vO + 4 + r}")
        for r in range(4):
            a(f"ds_write_b32 v10, v{12 + r} offset:{r*256}")
        for i in range(int(O('SD', 1))): stage_one(Wp)
        a("s_waitcnt lgkmcnt(0)")
        a("s_barrier")
        for ph in range(2):
            for sp in range(2):
                a(f"ds_read_b128 {vr(vQ + ph*8 + sp*4)}, v{vQF} offset:{sp*2048 + ph*128}")
        reset_state()
        a("s_waitcnt lgkmcnt(0)")
        a.stamp(2)
        WF = int(O('WF', W))
        while stage_one(WF if st['pos'] < 64 else W): pass
        a("s_waitcnt vmcnt(8)")
    AB = OPT.get('AB')
    if AB:
        a(f"s_bitcmp1_b32 s2, {AB}")
        a("s_cbranch_scc0 L_pA")
        prologue('B_')
        a("s_branch L_pJ")
        a.label("L_pA")
        ms.__init__(a)
        st.clear(); st.update({'pos': 0, 'idx': {}})
    prologue('A_')
    a.label("L_pJ")
    ms.__init__(a, pre_kv=8)
    for k_ in list(st['idx']): st['idx'][k_] = -1
    for j in range(8): st['idx'][('K', 4, j)] = j
    vNon = 255
    nid = {}
    def get_nonce():
        ms.wait_for(nid['x'])
        a(f"s_mov_b32 s{sSpin}, {OPT.get('SPIN', '0x20000')}")
        a.label("L_nonp")
        a(f"v_readfirstlane_b32 s{sNon}, v{vNon}")
        a(f"s_cmp_lg_u32 s{sNon}, 0")
        a("s_cbranch_scc1 L_nond")
        a(f"s_sub_u32 s{sSpin}, s{sSpin}, 1")
        a(f"s_cmp_eq_u32 s{sSpin}, 0")
        a("s_cbranch_scc1 L_nond")
        a(f"buffer_load_dword v{vNon}, off, s[{sDBG}:{sDBG+3}], 0 sc1")
        a("s_waitcnt vmcnt(0)")
        a("s_branch L_nonp")
        a.label("L_nond")
    def signal(soff, cnt_off):
        a("s_waitcnt lgkmcnt(0)")
        a("s_mov_b64 exec, 1")
        a(f"ds_add_rtn_u32 v{vCntG}, v{vCntL}, v{vOne} offset:{cnt_off}")
        a(f"v_mov_b32 v{vB}, s{sNon}")
        a("s_waitcnt lgkmcnt(0)")
        a(f"v_readfirstlane_b32 s49, v{vCntG}")
        a(f"v_mov_b32 v{vCntG}, 0")
        a("s_cmp_eq_u32 s49, 3")
        a(f"s_cselect_b32 s{sNull+2}, 0x{WS_SIZE:x}, 0")
        a("s_nop 0")
        a(f"buffer_store_dword v{vB}, v{vCntG}, s[{sNull}:{sNull+3}], s{soff} offen sc1")
        a("s_mov_b64 exec, -1")
        a("s_nop 0")
        a(f"s_mov_b32 s{sNull+2}, 0")

    def p_QK(kop):
        for T in range(2):
            for s in range(4):
                d = vSR + (T*2 + (s>>1))*4
                cc = "0" if (s & 1) == 0 else vr(d)
                a(f"v_mfma_f32_16x16x32_bf16 {vr(d)}, {kop(T*4+s)}, {vr(vQ + 4*(s&1))}, {cc}")
    def p_SM1():
        a("s_nop 7")
        for T in range(2):
            for r in range(4):
                a(f"v_permlane32_swap_b32 v{vSR + T*8 + r}, v{vSR + T*8 + 4 + r}")
        a("s_nop 0")
        for T in range(2):
            for r in range(4):
                a(f"v_add_f32_dpp v{vS + T*4 + r}, v{vSR + T*8 + 4 + r}, v{vSR + T*8 + r} row_ror:8 row_mask:0xf bank_mask:0xf")
        a(f"v_max3_f32 v{vT0}, v{vS+0}, v{vS+1}, v{vS+2}")
        a(f"v_max3_f32 v{vT0}, v{vT0}, v{vS+3}, v{vS+4}")
        a(f"v_max3_f32 v{vT0}, v{vT0}, v{vS+5}, v{vS+6}")
        a(f"v_max_f32 v{vT0}, v{vT0}, v{vS+7}")
        a(f"v_mov_b32 v{vT1}, v{vT0}")
        a("s_nop 1")
        a(f"v_permlane16_swap_b32 v{vT0}, v{vT1}")
        a("s_nop 1")
        a(f"v_max_f32 v{vT0}, v{vT0}, v{vT1}")
        a(f"v_mov_b32 v{vT1}, v{vT0}")
        a("s_nop 1")
        a(f"v_permlane32_swap_b32 v{vT0}, v{vT1}")
        a("s_nop 1")
        a(f"v_max_f32 v{vT0}, v{vT0}, v{vT1}")
        a(f"v_mul_f32 v{vT0}, s{sC}, v{vT0}")
        a(f"v_max_f32 v{vT0}, v{vT0}, v{vMc}")
        a(f"v_sub_f32 v{vAl}, v{vMc}, v{vT0}")
        a(f"v_exp_f32 v{vAl}, v{vAl}")
        a(f"v_mov_b32 v{vMc}, v{vT0}")
    def p_SM2():
        for i in range(8):
            a(f"v_fma_f32 v{vS+i}, v{vS+i}, s{sC}, -v{vMc}")
        for i in range(8):
            a(f"v_exp_f32 v{vS+i}, v{vS+i}")
        a("s_nop 0")
        a(f"v_add_f32 v{vT2}, v{vS+0}, v{vS+1}")
        a(f"v_add_f32 v{vT3}, v{vS+2}, v{vS+3}")
        a(f"v_add_f32 v{vT0}, v{vS+4}, v{vS+5}")
        a(f"v_add_f32 v{vT1}, v{vS+6}, v{vS+7}")
        a(f"v_add_f32 v{vT2}, v{vT2}, v{vT3}")
        a(f"v_add_f32 v{vT0}, v{vT0}, v{vT1}")
        a(f"v_add_f32 v{vT2}, v{vT2}, v{vT0}")
        a(f"v_fma_f32 v{vL}, v{vL}, v{vAl}, v{vT2}")
        for t in range(4):
            a(f"v_cvt_pk_bf16_f32 v{vP + t}, v{vS + 2*t}, v{vS + 2*t + 1}")
    def p_RS():
        a("s_nop 7")
        for r in range(32):
            a(f"v_mul_f32 v{vO + r}, v{vAl}, v{vO + r}")
    def p_PV(c):
        perm_c([bV + 4*i for i in range(8)], c)
        mfma_c(vP, c, False)
    def p_PVs(b, c):
        base = vAT + (c & 1)*8
        for i in range(8):
            a(f"v_accvgpr_read_b32 v{base + i}, a{64*b + 32 + 4*i + c}")
        perm_c([base + i for i in range(8)], 0)
        mfma_c(vP, c, False)

    def iteration(ms, kidx, staged=None, extras=None, static_n=None, extras7=None, W=W, late=False):
        pieces = {s: [] for s in range(16)}
        def wq_(): ms.wait_for(kidx[7]); p_QK(lambda j: vr(bK + 4*j))
        WV = int(OPT.get('WV', W)); WK = int(OPT.get('WK', W))
        pq = max(WV - 1, 4 if staged is not None else 0)
        pieces[pq].append(wq_)
        pieces[pq+1].append(p_SM1)
        pieces[pq+2].append(p_SM2)
        pieces[pq+3].append(p_RS)
        vidx = []
        for c in range(4):
            def f(c=c):
                ms.wait_for(vidx[7]); p_PV(c)
            pieces[15 if late else min(15, 8 + WK - 1 + c)].append(f)
        if staged is not None:
            b = staged
            def sq():
                ms.wait_for(st['idx'][('V', b, 7)]); p_QK(lambda j: ar(64*b + 4*j))
            pieces[0].insert(0, sq)
            pieces[1] = [p_SM1, p_SM2] + pieces[1]
            pieces[2] = [p_RS, lambda: p_PVs(b, 0), lambda: p_PVs(b, 1)] + pieces[2]
            pieces[3] = [lambda: p_PVs(b, 2), lambda: p_PVs(b, 3)] + pieces[3]
        knew = []
        for s in range(16):
            ms.pace(WV if s < 8 else WK)
            if s < 8:
                vidx.append(ld_V(ms, vr(bV + 4*s), s, sVoff))
            else:
                knew.append(ld_K(ms, vr(bK + 4*(s-8)), s - 8, sKoff))
            if s == 0:
                if extras: extras()
                a(f"s_add_u32 s{sKoff}, s{sVoff}, 0x8000")
                if static_n is None:
                    a(f"s_cmp_eq_u32 s{sIter}, 15")
                    a(f"s_cselect_b32 s{sKoff}, s{sB1}, s{sKoff}")
                    a(f"s_cmp_eq_u32 s{sIter}, 31")
                    a(f"s_cselect_b32 s{sK+2}, 0, s{sK+2}")
            for f in pieces[s]: f()
            if s == 7 and extras7: extras7()
            assert not (s == 7 and pq > 7)
        a(f"s_mov_b32 s{sVoff}, s{sKoff}")
        return knew

    while stage_one(W): pass
    kidx = [st['idx'][('K', 4, j)] for j in range(8)]

    pre = {}
    vOld, vPst, vOut = 86, 87, 82
    sPst, sPld, sOutB = 84, 85, 86
    sRed = sWQ
    RW = int(OPT.get('RW', 3))
    vAcc = 232
    vTag, sTag = 254, 3
    sPd = 4
    def ex4():
        nid['x'] = ms.issue(f"buffer_load_dword v{vNon}, off, s[{sDBG}:{sDBG+3}], 0 sc1")
        a(f"v_bfe_u32 v{vB}, v0, 3, 1")
        a(f"v_bfe_u32 v{vB+1}, v0, 4, 2")
        a(f"v_and_b32 v{vB+2}, 7, v0")
        a(f"s_lshl_b32 s48, s{sW}, 1")
        a("s_add_u32 s48, s48, 3")
        a(f"v_add_u32 v{vOld}, s48, v{vB}")
        a(f"v_and_b32 v{vOld}, 3, v{vOld}")
        a(f"v_lshlrev_b32 v{vOld}, 13, v{vOld}")
        a(f"v_lshl_add_u32 v{vOld}, v{vB}, 20, v{vOld}")
        a(f"v_lshl_add_u32 v{vOld}, v{vB+1}, 8, v{vOld}")
        a(f"v_lshl_add_u32 v{vOld}, v{vB+2}, 4, v{vOld}")
        a(f"v_lshlrev_b32 v{vPst}, 15, v{vB}")
        a(f"v_lshl_add_u32 v{vPst}, v{vB+1}, 7, v{vPst}")
        a(f"v_lshl_add_u32 v{vPst}, v{vB+2}, 4, v{vPst}")
        a(f"v_bfe_u32 v{vB}, v0, 3, 3")
        a(f"v_lshlrev_b32 v{vOut}, 11, v{vB+2}")
        a(f"v_lshl_add_u32 v{vOut}, v{vB}, 3, v{vOut}")
        a("s_andn2_b32 s48, s2, 7")
        a(f"s_lshl_b32 s49, s{sW}, 1")
        a("s_add_u32 s48, s48, s49")
        a(f"s_lshl_b32 s{sPst}, s48, 15")
        a("s_and_b32 s48, s2, 7")
        a(f"s_lshl_b32 s{sOutB}, s48, 14")
        a("s_lshl_b32 s48, s48, 10")
        a(f"s_add_u32 s{sPst}, s{sPst}, s48")
        a(f"s_add_u32 s48, s{sP_}, 1")
        a("s_and_b32 s48, s48, 3")
        a("s_lshl_b32 s48, s48, 13")
        a(f"s_add_u32 s49, s{sP_}, 2")
        a("s_and_b32 s49, s49, 3")
        a("s_lshl_b32 s49, s49, 13")
        a(f"s_sub_u32 s{sPd}, s49, s48")
        a(f"s_add_u32 s48, s48, 0x{QP + (0x800000 if OPT.get('psep') else 0):x}")
        a(f"s_add_u32 s{sPst}, s{sPst}, s48")
        a(f"s_lshl_b32 s{sPld}, s2, 15")
        a(f"s_add_u32 s{sPld}, s{sPld}, s48")
        a("s_lshr_b32 s48, s2, 3")
        a("s_lshl_b32 s48, s48, 6")
        a(f"s_add_u32 s{sOutB}, s{sOutB}, s48")
        a(f"s_mov_b32 s{sRed}, s18")
        a(f"s_mov_b32 s{sRed+1}, s19")
        a(f"s_cmp_eq_u32 s{sW}, {RW}")
        a(f"s_cselect_b32 s{sRed+2}, 0x{WS_SIZE:x}, 0")
    def ex6():
        get_nonce()
        a(f"s_mul_i32 s{sTag}, s{sNon}, 0x9e3779b1")
        a(f"v_mov_b32 v{vTag}, s{sTag}")
        a("s_and_b32 s48, s2, 7")
        a(f"s_lshl_b32 s{sFl}, s48, 7")
        a("s_lshr_b32 s48, s2, 3")
        a("s_lshl_b32 s48, s48, 2")
        a(f"s_add_u32 s{sFl}, s{sFl}, s48")
        a(f"s_add_u32 s{sFl}, s{sFl}, 0x{FLP:x}")
    exs = {4: ex4}
    exs7 = {6: ex6}
    for n in range(4, 8):
        kidx = iteration(ms, kidx, staged=n - 4, extras=exs.get(n), static_n=n, extras7=exs7.get(n))
        if not OPT.get('xst') and not OPT.get('est') and not OPT.get('tst'): a.stamp(n - 1)
    a(f"s_mov_b32 s{sIter}, 8")

    def flush():
        a(f"v_mov_b32 v{vT1}, v{vL}")
        a("s_nop 1")
        a(f"v_permlane16_swap_b32 v{vL}, v{vT1}")
        a("s_nop 1")
        a(f"v_add_f32 v{vL}, v{vL}, v{vT1}")
        a(f"v_mov_b32 v{vT1}, v{vL}")
        a("s_nop 1")
        a(f"v_permlane32_swap_b32 v{vL}, v{vT1}")
        a("s_nop 1")
        a(f"v_add_f32 v{vL}, v{vL}, v{vT1}")
        a(f"ds_write_b32 v{vLdsM}, v{vMc}")
        a(f"ds_write_b32 v{vLdsM}, v{vL} offset:{LDS_L - LDS_M}")
        a(f"s_mov_b64 exec, s[{sMask}:{sMask+1}]")
        for j in range(8):
            a(f"ds_write_b128 v{vLdsO}, {vr(vO + 4*j)} offset:{j*512}")
        a("s_mov_b64 exec, -1")

    def combine_addr(ph, vA, vM):
        a(f"v_and_b32 v{vA}, 15, v0")
        a(f"v_lshlrev_b32 v{vA}, 4, v{vA}")
        a(f"v_bfe_u32 v{vM}, v0, 4, 2")
        a(f"v_lshl_add_u32 v{vA}, v{vM}, 2, v{vA}")
        a(f"s_and_b32 s49, s{sW}, 1")
        a("s_lshl_b32 s49, s49, 8")
        a(f"s_add_u32 s49, s49, 0x{LDS_C + ph*0x4000:x}")
        a(f"v_add_u32 v{vA}, s49, v{vA}")
        a(f"v_and_b32 v{vM}, 7, v0")
        a(f"v_lshlrev_b32 v{vM}, 2, v{vM}")
        a(f"v_add_u32 v{vM}, 0x{LDS_M + ph*0x400:x}, v{vM}")
    def combine(ph, vA, vM, R):
        vm, vl, vo, vx, vacc, vout = R, R+4, R+8, R+40, R+44, R+52
        for w in range(4):
            a(f"ds_read_b32 v{vm + w}, v{vM} offset:{w*256}")
        for w in range(4):
            a(f"ds_read_b32 v{vl + w}, v{vM} offset:{LDS_L - LDS_M + w*256}")
        for j in range(6):
            a(f"ds_read_b32 v{vo + j}, v{vA} offset:{j*512}")
        a("s_waitcnt lgkmcnt(10)")
        a(f"v_max3_f32 v{vx}, v{vm}, v{vm+1}, v{vm+2}")
        a(f"v_max_f32 v{vx}, v{vx}, v{vm+3}")
        for ww in range(4):
            a(f"v_sub_f32 v{vm+ww}, v{vm+ww}, v{vx}")
        for ww in range(4):
            a(f"v_exp_f32 v{vm+ww}, v{vm+ww}")
        for n in range(6, 32):
            w, j = n >> 3, n & 7
            a(f"ds_read_b32 v{vo + n}, v{vA} offset:{w*4096 + j*512}")
            if n == 8:
                a("s_waitcnt lgkmcnt(9)")
                a(f"v_mul_f32 v{vx+1}, v{vm}, v{vl}")
                for ww in range(1, 4):
                    a(f"v_fma_f32 v{vx+1}, v{vm+ww}, v{vl+ww}, v{vx+1}")
                a(f"v_rcp_f32 v{vx+1}, v{vx+1}")
        a("s_nop 0")
        for ww in range(4):
            a(f"v_mul_f32 v{vm+ww}, v{vx+1}, v{vm+ww}")
        a("s_waitcnt lgkmcnt(0)")
        for j in range(8):
            a(f"v_mul_f32 v{vacc+j}, v{vm}, v{vo + j}")
        for w in range(1, 4):
            for j in range(8):
                a(f"v_fma_f32 v{vacc+j}, v{vm+w}, v{vo + w*8 + j}, v{vacc+j}")
        for t in range(4):
            a(f"v_cvt_pk_bf16_f32 v{vout+t}, v{vacc+2*t}, v{vacc+2*t+1}")
        for t in range(4):
            a(f"v_min_u32 v{vout+t}, -2, v{vout+t}")
        if ph:
            a(f"s_add_u32 s49, s{sOst}, 0x800")
        else:
            a(f"s_mov_b32 s49, s{sOst}")
        a(f"buffer_store_dwordx4 {vr(vout)}, v{vVoff}, s[{sWSo}:{sWSo+3}], s49 offen{OPT.get('ostflag', ' sc1')}")

    def dummy(k):
        for _ in range(k):
            a(f"buffer_load_dword v{vDum}, v{vVoff}, s[{sNull}:{sNull+3}], 0 offen")
    def wo_dma(m, cnt=1):
        a(f"s_add_u32 m0, s{sLb}, {m*1024}")
        a(f"s_add_u32 s48, s{sWoLd}, 0x{m*16384:x}")
        src = vWoOff
        if m & 1:
            a(f"v_xor_b32 v{vCntG}, 64, v{vWoOff}")
            src = vCntG
        a(f"buffer_load_dwordx4 v{src}, s[{sWO}:{sWO+3}], s48 offen{OPT.get('woflag', ' nt')} lds")
    def wo_sig():
        a("s_mov_b64 exec, 1")
        a(f"ds_add_u32 v{vCntL}, v{vOne} offset:16")
        a("s_mov_b64 exec, -1")
    def lds_spin(off, tmp):
        lp, ld = a.newlabel("lp"), a.newlabel("ld")
        a(f"s_mov_b32 s{sSpin}, 0x100000")
        a.label(lp)
        a(f"ds_read_b32 v{tmp}, v{vCntL} offset:{off}")
        a("s_waitcnt lgkmcnt(0)")
        a(f"v_readfirstlane_b32 s48, v{tmp}")
        a("s_cmp_ge_u32 s48, 4")
        a(f"s_cbranch_scc1 {ld}")
        a(f"s_sub_u32 s{sSpin}, s{sSpin}, 1")
        a(f"s_cmp_eq_u32 s{sSpin}, 0")
        a(f"s_cbranch_scc1 {ld}")
        a("s_sleep 2")
        a(f"s_branch {lp}")
        a.label(ld)
    def wo_tr(k0, k1):
        a(f"v_add_u32 v{vAcc}, 0x{(k0 >> 3) * 65536:x}, v{vTr}")
        for nt in range(1, 4):
            a(f"v_xor_b32 v{vAcc + nt}, {nt << 5}, v{vAcc}")
        for kk in range(k0, k1):
            for nt in range(4):
                for half in range(2):
                    d = (kk*4 + nt)*4 + half*2
                    a(f"ds_read_b64_tr_b16 a[{d}:{d+1}], v{vAcc + nt} offset:{(kk & 7)*4096 + half*512}")
            a("s_waitcnt lgkmcnt(6)")
    def o_ld(q, bb, dst):
        hh, ks = q >> 2, q & 3
        a(f"s_add_u32 s48, s{sOld}, 0x{hh*0x40000:x}")
        a(f"buffer_load_dwordx4 {vr(dst + 4*q)}, v{vOld}, s[{sWS}:{sWS+3}], s48 offen offset:{bb*2048 + (ks>>1)*1024 + (ks&1)*128} sc1")
    def p_ld(gg, ph, dst):
        a(f"s_add_u32 s48, s{sPld}, {'s%d' % sPd if ph else 0}")
        a(f"buffer_load_dwordx4 {vr(dst + 4*gg)}, v{vVoff if gg < 4 else vVoff2}, s[{sRed}:{sRed+3}], s48 offen offset:{(gg&3)*1024} sc1")
    def frag_mfma(q, src, first=False, vAcc=vAcc):
        for nt in range(4):
            d = vAcc + nt*4
            a(f"v_mfma_f32_16x16x32_bf16 {vr(d)}, {ar((q*4 + nt)*4)}, {vr(src + 4*q)}, {'0' if first else vr(d)}")
    def p_st(ph, vAcc=vAcc):
        a("s_nop 5")
        a(f"s_add_u32 s48, s{sPst}, {'s%d' % sPd if ph else 0}")
        a(f"s_add_u32 s49, s48, 0x40000")
        for nt in range(4):
            for r in range(4):
                a(f"s_mov_b32 s{sBad}, 0x{0x07060500 + r:x}")
                a(f"v_perm_b32 v{vAcc + 4*nt + r}, v{vAcc + 4*nt + r}, v{vTag}, s{sBad}")
            a(f"buffer_store_dwordx4 {vr(vAcc + 4*nt)}, v{vPst}, s[{sWS}:{sWS+3}], s{48 + (nt >> 1)} offen offset:{(nt&1)*512} sc1")
    def stage1_ph0(qs):
        lc, lo = a.newlabel("c"), a.newlabel("o")
        regs = [vB + 4*q + r for q in qs for r in range(4)]
        a(f"s_mov_b32 s{sSpin}, {OPT.get('SPIN', '0x20000')}")
        a.label(lc)
        a(f"v_max_u32 v{vCntG}, v{regs[0]}, v{regs[1]}")
        for r in range(2, len(regs), 2):
            a(f"v_max3_u32 v{vCntG}, v{vCntG}, v{regs[r]}, v{regs[r+1]}")
        a(f"v_cmp_eq_u32 vcc, -1, v{vCntG}")
        a(f"s_cbranch_vccz {lo}")
        a(f"s_sub_u32 s{sSpin}, s{sSpin}, 1")
        a(f"s_cmp_eq_u32 s{sSpin}, 0")
        a(f"s_cbranch_scc1 {lo}")
        for q in qs:
            o_ld(q, 0, vB)
        a("s_waitcnt vmcnt(0)")
        a(f"s_branch {lc}")
        a.label(lo)
        for q in qs:
            frag_mfma(q, vB, q == 0)
    def cnt_ld():
        a(f"s_mov_b32 s48, 0x{FLP:x}")
        a(f"buffer_load_dwordx4 {vr(vB + 56)}, v{vVoff}, s[{sWS}:{sWS+3}], s48 offen sc1")
    def cnt_check():
        lp, ld = a.newlabel("cp"), a.newlabel("cd")
        a(f"s_mov_b32 s{sSpin}, {OPT.get('SPIN', '0x20000')}")
        a.label(lp)
        for r in range(4):
            a(f"v_xor_b32 v{vB + 56 + r}, s{sNon}, v{vB + 56 + r}")
        a(f"v_or3_b32 v{vB + 56}, v{vB + 56}, v{vB + 57}, v{vB + 58}")
        a(f"v_or_b32 v{vB + 56}, v{vB + 56}, v{vB + 59}")
        a(f"v_cmp_ne_u32 vcc, 0, v{vB + 56}")
        a(f"s_cbranch_vccz {ld}")
        a(f"s_sub_u32 s{sSpin}, s{sSpin}, 1")
        a(f"s_cmp_eq_u32 s{sSpin}, 0")
        a(f"s_cbranch_scc1 {ld}")
        a("s_sleep 8")
        cnt_ld()
        a("s_waitcnt vmcnt(0)")
        a(f"s_branch {lp}")
        a.label(ld)
    def flush0():
        a("s_nop 1")
        flush()
        for r in range(8):
            a(f"v_mov_b32 v{vQ + r}, v{vQ2 + r}")
        a(f"v_add_u32 v{vLdsO}, 0x4000, v{vLdsO}")
        a(f"v_add_u32 v{vLdsM}, 0x400, v{vLdsM}")
        a("s_waitcnt lgkmcnt(0)")
        a("s_mov_b64 exec, 1")
        a(f"ds_add_u32 v{vCntL}, v{vOne}")
        a("s_mov_b64 exec, -1")
        reset_state()
    def comb0():
        lf, le = a.newlabel("cf"), a.newlabel("ce")
        a(f"s_cmp_ge_u32 s{sW}, 2")
        a(f"s_cbranch_scc1 {lf}")
        combine_addr(0, vB + 60, vB + 61)
        lds_spin(0, vB + 62)
        combine(0, vB + 60, vB + 61, vB)
        a(f"s_branch {le}")
        a.label(lf)
        for r in range(4):
            a(f"v_mov_b32 v{vB + 60 + r}, -1")
        a(f"s_add_u32 s48, s{sOst}, 0x800")
        if OPT.get('FS'): dummy(1)
        else: a(f"buffer_store_dwordx4 {vr(vB + 60)}, v{vVoff}, s[{sWS}:{sWS+3}], s48 offen sc1")
        a.label(le)
    NX = int(OPT.get('NX', 4))
    TH2 = int(OPT.get('TH2', 0))
    SLOW = int(OPT.get('SLOW', 0))
    sn = {n: [] for n in range(8, 32)}
    def add(n, fn, nv=0, act=False): sn[n].append((fn, nv, act))
    sAdj, sWsel, sT = 87, 47, 80
    vTS = 253
    TSB = 0x320000
    GN = int(OPT.get('GN', 32))
    def pub(k):
        a("s_memrealtime s[100:101]")
        a(f"s_lshl_b32 s48, s2, 2")
        a(f"s_add_u32 s48, s48, 0x{TSB + k*1024:x}")
        a(f"s_cmp_eq_u32 s{sW}, {k & 3}")
        a(f"s_cselect_b32 s{sNull+2}, 0x{WS_SIZE:x}, 0")
        if SLOW & 1: a(f"s_cselect_b32 s{sWsel}, 3, s{sWsel}")
        a(f"v_mov_b32 v{vCntG}, 0")
        a("s_waitcnt lgkmcnt(0)")
        a(f"v_mov_b32 v{vTS}, s100")
        a(f"s_sub_u32 s{sT}, s100, s{sNon}")
        a(f"s_mov_b32 s81, s{sAdj}")
        a("s_mov_b64 exec, 1")
        a(f"buffer_store_dword v{vTS}, v{vCntG}, s[{sNull}:{sNull+3}], s48 offen sc1")
        a("s_mov_b64 exec, -1")
        a("s_nop 0")
        a(f"s_mov_b32 s{sNull+2}, 0")
    def ts_ld(k):
        a(f"s_lshr_b32 s48, s2, 6")
        a(f"s_add_u32 s48, s48, {k}")
        a("s_and_b32 s48, s48, 3")
        a("s_lshl_b32 s48, s48, 8")
        a(f"s_add_u32 s48, s48, 0x{TSB + k*1024:x}")
        a(f"v_lshrrev_b32 v{vCntG}, 2, v{vVoff}")
        a(f"buffer_load_dword v{vTS}, v{vCntG}, s[{sWS}:{sWS+3}], s48 offen sc1")
        a("s_memrealtime s[82:83]")
    def calc(k, lim):
        a("s_waitcnt lgkmcnt(0)")
        a(f"s_sub_u32 s82, s82, s{sNon}")
        a(f"v_subrev_u32 v{vTS}, s{sNon}, v{vTS}")
        a(f"v_min_u32 v{vTS}, s82, v{vTS}")
        for sh in (8, 4, 2, 1):
            a("s_nop 1")
            a(f"v_add_u32_dpp v{vTS}, v{vTS}, v{vTS} row_ror:{sh} row_mask:0xf bank_mask:0xf")
        a("s_nop 1")
        a(f"v_readlane_b32 s48, v{vTS}, 0")
        a(f"v_readlane_b32 s49, v{vTS}, 16")
        a(f"v_readlane_b32 s82, v{vTS}, 32")
        a(f"v_readlane_b32 s83, v{vTS}, 48")
        a("s_add_u32 s48, s48, s49")
        a("s_add_u32 s82, s82, s83")
        a("s_add_u32 s48, s48, s82")
        a("s_lshr_b32 s48, s48, 6")
        a(f"s_sub_i32 s48, s{sT}, s48")
        if STAMP and OPT.get('lagst'): a(f"s_mov_b32 s{71 + k}, s48")
        bias = int(OPT.get('BIAS', 0))
        if bias and k >= int(OPT.get('BK', 0)):
            a("s_bitcmp1_b32 s2, 3")
            a(f"s_mov_b32 s49, {bias}")
            a(f"s_cselect_b32 s49, {-bias}, s49")
            a("s_add_i32 s48, s48, s49")
        if OPT.get('GNN'):
            a("s_cmp_lt_i32 s48, 0")
            a(f"s_mov_b32 s49, {65536 // GN}")
            a(f"s_cselect_b32 s49, {65536 // int(OPT['GNN'])}, s49")
            a("s_mul_i32 s48, s48, s49")
        else:
            a(f"s_mul_i32 s48, s48, {65536 // GN}")
        a("s_add_i32 s48, s48, 0x8000")
        a("s_ashr_i32 s48, s48, 16")
        a(f"s_sub_i32 s81, s81, s{sAdj}")
        a(f"s_sub_i32 s48, s48, s81")
        a(f"s_min_i32 s48, s48, {lim * 2 + 2 if TH2 else lim}")
        a(f"s_max_i32 s{sAdj}, s48, {-lim if not OPT.get('noslow') else 0}")
    D0 = int(OPT.get('D0', 8))
    O0 = int(OPT.get('O0', 22))
    add(16, flush0)
    C0 = int(OPT.get('C0', 18))
    C1 = int(OPT.get('C1', 28))
    add(C1, cnt_ld, 1, True)
    add(C0, comb0, 1)
    add(C0 + 2, lambda: signal(sFl, 4), 1)
    if SLOW & 2:
        add(18, lambda: (a(f"s_cmp_lt_u32 s{sW}, 2"), a(f"s_cselect_b32 s{sWsel}, 3, s{sWsel}")))
    if OPT.get('TLB'):
        def tlb():
            a(f"buffer_load_dword v{vDum}, v{vVoff}, s[{sK}:{sK+3}], s{sB1} offen nt")
            a(f"buffer_load_dword v{vDum}, v{vVoff}, s[{sV}:{sV+3}], s{sB1} offen nt")
        add(int(OPT['TLB']), tlb, 2)
    add(C1 + 2, cnt_check, 0, True)
    CP = [int(t) for t in OPT['CP'].split(',')] if OPT.get('CP') else []
    LD = int(OPT.get('LD', 3))
    for k, c in enumerate(CP):
        add(c, (lambda k=k: pub(k)), 1)
        add(c + LD, (lambda k=k: ts_ld(k)), 1)
        lim = (CP[k+1] - c) if k + 1 < len(CP) else 32 - (c + LD + 1)
        add(c + LD + 1, (lambda k=k, lim=lim: calc(k, lim)))
    DM = int(OPT.get('DM', 4))
    PF = int(OPT.get('PF', 0))
    def wo_pf(m):
        a("s_and_b32 s48, s2, 7")
        a("s_lshl_b32 s48, s48, 20")
        a(f"s_lshl_b32 s49, s{sW}, 18")
        a("s_add_u32 s48, s48, s49")
        a("s_lshr_b32 s49, s2, 4")
        a("s_lshl_b32 s49, s49, 10")
        a("s_add_u32 s48, s48, s49")
        a(f"s_add_u32 s48, s48, 0x{m*16384:x}")
        a(f"buffer_load_dwordx4 {vr(vAcc)}, v{vVoff}, s[{sWO}:{sWO+3}], s48 offen{OPT.get('pfflag', ' nt')}")
    m = 0; n = D0
    while m < 16:
        c_ = 0
        while m < 16 and c_ < DM and sum(v for _, v, _a in sn[n] if _a != 'I') < NX and (not PF or sum(v for _, v, _a in sn[n - PF] if _a is not True) < NX):
            add(n, (lambda m=m: wo_dma(m, 1)), 1, True)
            if PF: add(n - PF, (lambda m=m: wo_pf(m)), 1, 'I')
            m += 1; c_ += 1
        n += 1
    add(n + 1, wo_sig, 0, True)
    add(n + 3, lambda: lds_spin(16, vCntG), 0, True)
    n += 3
    for j in range(4):
        while n in (16, C0): n += 1
        add(n, (lambda j=j: wo_tr(4*j, 4*j + 4)), 0, True)
        n += 1
    trend = n
    Ws = [int(t) for t in OPT.get('Ws', f"{W-1},{W},{W+1}").split(',')]
    a(f"s_mov_b32 s{sAdj}, 0")
    if OPT.get('asym'):
        a("s_add_u32 s48, s2, 2")
        a("s_bitcmp1_b32 s48, 2")
        a(f"s_cselect_b32 s{sAdj}, {OPT['asym']}, 0")
    a.label("L_loop")
    if STAMP and OPT.get('itst'):
        a("s_memrealtime s[68:69]")
        a("s_waitcnt lgkmcnt(0)")
        a(f"s_mov_b32 m0, s{sIter}")
        a("s_nop 0")
        a(f"v_writelane_b32 v255, s68, m0")
        a(f"s_add_u32 m0, s{sIter}, 32")
        a("s_nop 0")
        a(f"v_writelane_b32 v255, s{sAdj}, m0")
    if STAMP and OPT.get('lst'):
        for k, n in enumerate([int(t) for t in OPT['lst'].split(',')]):
            a(f"s_cmp_lg_u32 s{sIter}, {n}")
            a(f"s_cbranch_scc1 L_lst{k}")
            a.stamp(1 + k)
            a.label(f"L_lst{k}")
    a(f"s_cmp_lt_i32 s{sAdj}, 0")
    a("s_cbranch_scc1 L_b0")
    if TH2:
        a(f"s_cmp_gt_i32 s{sAdj}, {TH2}")
        a("s_cbranch_scc1 L_b4")
        Ws = Ws + [0, W + 2]
    a(f"s_cmp_gt_i32 s{sAdj}, 0")
    a("s_cbranch_scc1 L_b2")
    for k in ((1, 0, 4, 2) if TH2 else (1, 0, 2)):
        a.label(f"L_b{k}")
        ml = MemSeq(a, pre_kv=8)
        def ex_loop(k=k, ml=ml):
            a(f"s_mov_b32 s{sWsel}, {k}")
            if k != 1: a(f"s_add_i32 s{sAdj}, s{sAdj}, {1 - k if k < 4 else -2}")
            a(f"s_branch L_snip")
            a.label(f"L_ret{k}")
            for _ in range(NX): ml.issue(None)
        iteration(ml, list(range(8)), extras=ex_loop, W=Ws[k])
        a(f"s_add_u32 s{sIter}, s{sIter}, 1")
        a(f"s_cmp_lt_u32 s{sIter}, 32")
        a(f"s_cbranch_scc1 L_loop")
        if k != 2 or SLOW: a("s_branch L_tail")
    if SLOW:
        ml = MemSeq(a, pre_kv=8)
        def ex_loopS(ml=ml):
            a.label(f"L_ret3")
            for _ in range(NX): ml.issue(None, slow=True)
        iteration(ml, list(range(8)), extras=ex_loopS, W=W, late=True)
        a(f"s_add_u32 s{sIter}, s{sIter}, 1")
        a(f"s_cmp_lt_u32 s{sIter}, 32")
        a(f"s_cbranch_scc1 L_loop")
    a.label("L_tail")
    a.stamp(7)
    a("s_bitcmp1_b32 s2, 3")
    a("s_cbranch_scc1 L_t1")
    for q in range(16):
        o_ld(q, 0, vB)
    a.label("L_t1")
    combine_addr(1, 8, 9)
    flush()
    a("s_waitcnt lgkmcnt(0)")
    a("s_barrier")
    if OPT.get('tst'): a.stamp(2)
    combine(1, 8, 9, 10)
    if OPT.get('tst'): a.stamp(3)
    a("s_bitcmp1_b32 s2, 3")
    a("s_cbranch_scc1 L_inact")
    TO = int(OPT.get('TO', 0))
    PL = int(OPT.get('PL', 0))
    if TO:
        for q in range(16):
            o_ld(q, 1, bK)
    for q in range(16):
        a(f"s_waitcnt vmcnt({1 + 15 - q + (16 if TO else 0)})")
        frag_mfma(q, vB, q == 0, 12 if PL else vAcc)
    if not PL: p_st(0)
    if OPT.get('tst'): a.stamp(4)
    if not TO:
        for q in range(16):
            o_ld(q, 1, bK)
    for r in range(16):
        a(f"v_mov_b32 v{vAcc + r}, 0")
    a(f"s_mov_b32 s{sSpin}, {OPT.get('SPIN', '0x20000')}")
    a(f"s_mov_b32 s{sBad}, 0")
    for q in range(16):
        a(f"s_waitcnt vmcnt({15 - q + (4 if TO and not PL else 0)})")
        a(f"v_max3_u32 v8, v{bK+4*q}, v{bK+4*q+1}, v{bK+4*q+2}")
        a(f"v_max_u32 v8, v8, v{bK+4*q+3}")
        a("v_cmp_eq_u32 vcc, -1, v8")
        a(f"s_cbranch_vccnz L_bad{q}")
        frag_mfma(q, bK)
        a.label(f"L_nx{q}")
    if OPT.get('tst'): a.stamp(5)
    a.label("L_retry")
    a(f"s_cmp_eq_u32 s{sBad}, 0")
    a("s_cbranch_scc1 L_alldone")
    a(f"s_sub_u32 s{sSpin}, s{sSpin}, 1")
    a(f"s_cmp_eq_u32 s{sSpin}, 0")
    a("s_cbranch_scc1 L_alldone")
    if OPT.get('SL'): a(f"s_sleep {OPT['SL']}")
    for q in range(16):
        a(f"s_bitcmp1_b32 s{sBad}, {q}")
        a(f"s_cbranch_scc0 L_rl{q}")
        o_ld(q, 1, bK)
        a.label(f"L_rl{q}")
    a("s_waitcnt vmcnt(0)")
    for q in range(16):
        a(f"s_bitcmp1_b32 s{sBad}, {q}")
        a(f"s_cbranch_scc0 L_rc{q}")
        a(f"v_max3_u32 v8, v{bK+4*q}, v{bK+4*q+1}, v{bK+4*q+2}")
        a(f"v_max_u32 v8, v8, v{bK+4*q+3}")
        a("v_cmp_eq_u32 vcc, -1, v8")
        a(f"s_cbranch_vccnz L_rc{q}")
        frag_mfma(q, bK)
        a(f"s_bitset0_b32 s{sBad}, {q}")
        a.label(f"L_rc{q}")
    a("s_branch L_retry")
    a.label("L_alldone")
    if OPT.get('tst') and STAMP: a(f"s_mov_b32 s76, s{sSpin}")
    if PL == 2: p_st(0, 12)
    p_st(1)
    if PL == 1: p_st(0, 12)
    a.stamp(8)
    a(f"s_cmp_lg_u32 s{sW}, {RW}")
    a("s_cbranch_scc1 L_fin")
    a("s_branch L_red0")
    a.label("L_inact")
    a.stamp(8)
    a(f"s_cmp_lg_u32 s{sW}, {RW}")
    a("s_cbranch_scc1 L_fin")
    if OPT.get('RS'): a(f"s_sleep {OPT['RS']}")
    a.label("L_red0")
    for gg in range(8):
        p_ld(gg, 0, vB)
    for gg in range(8):
        p_ld(gg, 1, bK)
    a("s_waitcnt vmcnt(8)")
    a.label("L_red")
    a(f"s_mov_b32 s{sSelLo}, 0x0c0c0400")
    a(f"s_mov_b32 s{sSelHi}, 0x04000c0c")
    a(f"s_mov_b32 s{sC}, 0xffffff00")
    def reduce(ph, R, firstwait):
        lc, lo = a.newlabel("c"), a.newlabel("o")
        a(f"s_mov_b32 s{sBad}, 0xff")
        a(f"s_mov_b32 s{sSpin}, {OPT.get('SPIN', '0x20000')}")
        if firstwait is not None: a(f"s_waitcnt vmcnt({firstwait})")
        a.label(lc)
        for gg in range(8):
            ln = a.newlabel("n")
            a(f"s_bitcmp1_b32 s{sBad}, {gg}")
            a(f"s_cbranch_scc0 {ln}")
            a(f"v_perm_b32 v8, v{R+4*gg+1}, v{R+4*gg}, s{sSelLo}")
            a(f"v_perm_b32 v9, v{R+4*gg+3}, v{R+4*gg+2}, s{sSelHi}")
            a("v_or_b32 v8, v8, v9")
            a(f"v_cmp_ne_u32 vcc, s{sTag}, v8")
            a(f"s_cbranch_vccnz {ln}x")
            a(f"s_bitset0_b32 s{sBad}, {gg}")
            for r in range(4):
                a(f"v_and_b32 v{R+4*gg+r}, s{sC}, v{R+4*gg+r}")
            a(f"s_branch {ln}")
            a.label(ln + "x")
            p_ld(gg, ph, R)
            a.label(ln)
        a(f"s_cmp_eq_u32 s{sBad}, 0")
        a(f"s_cbranch_scc1 {lo}")
        a(f"s_sub_u32 s{sSpin}, s{sSpin}, 1")
        a("s_waitcnt vmcnt(0)")
        if OPT.get('SL2'): a(f"s_sleep {OPT['SL2']}")
        a(f"s_cmp_lg_u32 s{sSpin}, 0")
        a(f"s_cbranch_scc1 {lc}")
        a.label(lo)
        for (x, y) in ((0, 1), (2, 3), (4, 5), (6, 7), (0, 2), (4, 6), (0, 4)):
            for r in range(4):
                a(f"v_add_f32 v{R + 4*x + r}, v{R + 4*x + r}, v{R + 4*y + r}")
        a(f"v_cvt_pk_bf16_f32 v{R+4}, v{R}, v{R+1}")
        a(f"v_cvt_pk_bf16_f32 v{R+5}, v{R+2}, v{R+3}")
        a(f"s_add_u32 s48, s{sOutB}, 0x{ph*0x20000:x}")
        a(f"buffer_store_dwordx2 v[{R+4}:{R+5}], v{vOut}, s[{sOUT}:{sOUT+3}], s48 offen{OPT.get('outflag','')}")
    a(f"s_mov_b32 s{sSpin}, {OPT.get('SPIN', '0x20000')}")
    reduce(0, vB, None)
    if OPT.get('tst'): a.stamp(1)
    reduce(1, bK, 1)
    a.label("L_fin")
    a.stamp(9)
    a.stamp_store(18, 0x200000, 10)
    if STAMP and OPT.get('itst'):
        a("s_lshl_b32 s92, s2, 2")
        a("s_add_u32 s92, s92, s40")
        a("s_lshl_b32 s92, s92, 8")
        a("s_add_u32 s92, s92, 0x220000")
        a("v_and_b32 v250, 63, v0")
        a("v_lshlrev_b32 v250, 2, v250")
        a("buffer_store_dword v255, v250, s[88:91], s92 offen")
    a.label("L_end")
    a("s_endpgm")
    for q in range(16):
        a.label(f"L_bad{q}")
        a(f"s_bitset1_b32 s{sBad}, {q}")
        a(f"s_branch L_nx{q}")
    a.label("L_snip")
    a("s_bitcmp1_b32 s2, 3")
    a("s_cbranch_scc1 L_snipI")
    for tab in ("A", "I"):
        a.label(f"L_snip{tab}")
        for n in sorted(sn):
            items = [(f, v) for f, v, act in sn[n] if (act is False) or (act is True and tab == "A") or (act == 'I' and tab == "I")]
            if not items: continue
            a(f"s_cmp_lg_u32 s{sIter}, {n}")
            a(f"s_cbranch_scc1 L_sn{tab}{n}x")
            nv = sum(v for _, v in items)
            assert nv <= NX, (n, nv)
            dummy(NX - nv)
            for f, _ in items: f()
            a(f"s_branch L_snret")
            a.label(f"L_sn{tab}{n}x")
        dummy(NX)
        if tab == "A": a("s_branch L_snret")
    a.label("L_snret")
    a(f"s_cmp_eq_u32 s{sWsel}, 1")
    a("s_cbranch_scc1 L_ret1")
    a(f"s_cmp_eq_u32 s{sWsel}, 0")
    a("s_cbranch_scc1 L_ret0")
    if SLOW:
        a(f"s_cmp_eq_u32 s{sWsel}, 3")
        a("s_cbranch_scc1 L_ret3")
    if TH2:
        a(f"s_cmp_eq_u32 s{sWsel}, 4")
        a("s_cbranch_scc1 L_ret4")
    a("s_branch L_ret2")

def kd(a, name):
    a.raw(".p2align 6")
    a.raw(f".amdhsa_kernel {name}")
    a.raw("  .amdhsa_next_free_vgpr 512")
    a.raw("  .amdhsa_next_free_sgpr 102")
    a.raw("  .amdhsa_accum_offset 256")
    a.raw("  .amdhsa_group_segment_fixed_size 0")
    a.raw("  .amdhsa_kernarg_size 64")
    a.raw("  .amdhsa_user_sgpr_count 2")
    a.raw("  .amdhsa_user_sgpr_kernarg_segment_ptr 1")
    a.raw("  .amdhsa_system_sgpr_workgroup_id_x 1")
    a.raw(".end_amdhsa_kernel")

def main(path):
    a = Asm()
    a.raw(HEADER.rstrip())
    a.raw(f"; @launch grid=(256,1,1) block=(256,1,1) lds={LDS_SIZE}")
    a.raw('.amdgcn_target "amdgcn-amd-amdhsa--gfx950"')
    a.raw(".text")
    gen_k1(a)
    a.raw('.section .rodata,"a"')
    kd(a, K1)
    open(path, "w").write(a.text())

if __name__ == "__main__":
    args = sys.argv[1:]
    if "--stamp" in args:
        STAMP = True
        args.remove("--stamp")
    rest = []
    for x in args:
        if "=" in x:
            k, v = x.split("=", 1)
            OPT[k] = v.replace("+", " ")
        else:
            rest.append(x)
    main(rest[0] if rest else "standalone__mha_block_cached__sampling.s")
```

```python
import sys, struct, math

def f32hex(x):
    return "0x%08x" % struct.unpack("<I", struct.pack("<f", x))[0]

STAMP = False
OPT = {}
class Asm:
    def __init__(self):
        self.L = []
        self.uid = 0
    def stamp(self, idx):
        if not STAMP: return
        self("s_memrealtime s[68:69]")
        self("s_waitcnt lgkmcnt(0)")
        self(f"s_mov_b32 s{70 + idx}, s68")
    def stamp_store(self, wsptr, base, n):
        if not STAMP: return
        self(f"s_mov_b32 s88, s{wsptr}")
        self(f"s_mov_b32 s89, s{wsptr+1}")
        self("s_mov_b32 s90, 0x40000000")
        self("s_mov_b32 s91, 0x00020000")
        self("s_lshl_b32 s92, s2, 3")
        self("s_add_u32 s92, s92, s40")
        self("s_lshl_b32 s92, s92, 6")
        self(f"s_add_u32 s92, s92, 0x{base:x}")
        self("v_mov_b32 v250, 0")
        self("s_getreg_b32 s93, hwreg(HW_REG_XCC_ID)")
        self("v_mov_b32 v251, s93")
        self(f"buffer_store_dword v251, v250, s[88:91], s92 offen offset:{4*n}")
        self("s_nop 1")
        self("s_getreg_b32 s93, hwreg(HW_REG_HW_ID)")
        self("v_mov_b32 v251, s93")
        self(f"buffer_store_dword v251, v250, s[88:91], s92 offen offset:{4*n+4}")
        self("s_nop 1")
        for i in range(n):
            self(f"v_mov_b32 v251, s{70+i}")
            self(f"buffer_store_dword v251, v250, s[88:91], s92 offen offset:{4*i}")
            self("s_nop 1")
    def __call__(self, s):
        self.L.append("  " + s)
    def label(self, s):
        self.L.append(s + ":")
    def newlabel(self, p):
        self.uid += 1
        return f"L_{p}_{self.uid}"
    def raw(self, s):
        self.L.append(s)
    def text(self):
        return "\n".join(self.L) + "\n"

class MemSeq:
    def __init__(self, a, pre_kv=0):
        self.a = a; self.n = pre_kv; self.done = 0; self.kv = list(range(pre_kv)); self.slow = -1
    def issue(self, text, kv=False, slow=False):
        if text is not None: self.a(text)
        idx = self.n; self.n += 1
        if kv: self.kv.append(idx)
        if slow and self.slow < self.done: self.slow = idx
        return idx
    def wait_for(self, idx):
        if idx < self.done: return
        cnt = self.n - 1 - idx
        assert cnt <= 63, cnt
        self.a(f"s_waitcnt vmcnt({cnt})")
        self.done = idx + 1
    def pace(self, W):
        if len(self.kv) >= W:
            t = self.kv[-W]
            if self.slow >= self.done and t > self.slow: return
            self.wait_for(t)

def vr(b, n=4):
    return f"v[{b}:{b+n-1}]"
def ar(b, n=4):
    return f"a[{b}:{b+n-1}]"

HEADER = """; Kernarg layout for this problem (64 bytes, ptrs only, base s[0:1]):
"""

K1 = "standalone__mha_block_cached__sampling_kernel"

LDS_WO = 0
LDS_C = 32768
LDS_WQS = 0
LDS_XS = 65536
LDS_M = 98304
LDS_L = 100352
LDS_QF = 102400
LDS_CNT = 106496
LDS_X = 106496 + 64
LDS_SIZE = LDS_X + 16384
PR = 0x400000
QP = 0xC00000
WS_SIZE = QP + 0x1000000
FLQ = 0x300000
FLP = 0x310000

def gen_k1(a):
    W = int(OPT.get('W', 5))
    Wp = int(OPT.get('Wp', 5))
    Rn, Rd = [int(t) for t in OPT.get('R', '7/9').split('/')]
    vKoff, vVoff, vKoff2, vVoff2 = 1, 2, 3, 4
    vMc, vL, vT0, vT1 = 5, 6, 7, 20
    vS = 8
    vP = 16
    vAl, vT2, vT3 = 21, 22, 23
    vQ, vQ2 = 24, 32
    vO = 40
    vPT = 72
    vLdsO, vLdsM, vQF, vOne, vTr, vWoOff, vXoff, vWoff = 80, 81, 82, 83, 84, 85, 86, 87
    bK, bV = 88, 120
    vSR = 152
    vB = 168
    vAT = 232
    vCntL, vCntG, vDum = 248, 249, 252
    sX, sK, sV, sWQ, sWS, sWO, sOUT, sDBG, sNull = 20, 24, 28, 32, 36, 60, 64, 80, 96
    sWSo = 20
    sW, sH, sP_, sB1, sVoff, sKoff, sIter = 40, 41, 42, 43, 44, 45, 46
    sSelLo, sSelHi, sC, sBad, sSpin = 50, 51, 52, 53, 54
    sMask = 56
    sWoLd, sLb = 58, 59
    sXb, sWqb, sJ = 84, 85, 86
    vWoffB, vXt, vTq, vXrd = 253, 254, 216, 224
    sFl = 95
    sNon = 55
    vNon = 246
    sOld, sOst = 93, 94
    cscale = (128 ** -0.5) * math.log2(math.e)

    a.raw(f".globl {K1}")
    a.raw(".p2align 8")
    a.raw(f".type {K1},@function")
    a.label(K1)
    a("s_cmp_ge_u32 s2, 256")
    a("s_cbranch_scc1 L_end")
    a.stamp(0)
    a("s_load_dwordx16 s[4:19], s[0:1], 0")
    a("s_memrealtime s[90:91]")
    a("v_lshrrev_b32 v7, 6, v0")
    a("v_and_b32 v5, 63, v0")
    a("v_readfirstlane_b32 s40, v7")
    a("v_and_b32 v6, 15, v5")
    a("v_lshrrev_b32 v7, 4, v5")
    a("s_and_b32 s41, s2, 7")
    a("s_lshl_b32 s41, s41, 2")
    a("s_lshr_b32 s48, s2, 3")
    a("s_and_b32 s48, s48, 3")
    a("s_add_u32 s41, s41, s48")
    a("s_lshr_b32 s42, s2, 5")
    if OPT.get('map') == 'anti':
        a("s_lshr_b32 s41, s2, 3")
        a("s_and_b32 s42, s2, 7")
    t0, t1, t2, t3 = 240, 241, 242, 243
    a(f"v_and_b32 v{t0}, 3, v6")
    a(f"v_lshlrev_b32 v{t0}, 2, v{t0}")
    a(f"v_lshrrev_b32 v{t2}, 3, v6")
    a(f"v_and_b32 v{t3}, 7, v6")
    WQC = 5 if OPT.get('wqc') else 0
    a(f"v_lshlrev_b32 v{vWoff}, {16 - WQC}, v7")
    a(f"v_lshl_add_u32 v{vWoff}, v6, 4, v{vWoff}")
    a(f"v_lshlrev_b32 v{vXoff}, 17, v{t2}")
    a(f"v_lshl_add_u32 v{vXoff}, v{t3}, 11, v{vXoff}")
    a(f"v_lshl_add_u32 v{vXoff}, v7, 4, v{vXoff}")
    a(f"v_bfe_u32 v{t1}, v6, 2, 1")
    a(f"v_add_u32 v{t1}, v{t0}, v{t1}")
    a(f"v_lshlrev_b32 v{vKoff}, 8, v{t1}")
    a(f"v_lshl_add_u32 v{vKoff}, v{t2}, 6, v{vKoff}")
    a(f"v_lshl_add_u32 v{vKoff}, v7, 4, v{vKoff}")
    a(f"v_add_u32 v{vKoff2}, 0x1000, v{vKoff}")
    a(f"v_lshlrev_b32 v{vVoff}, 4, v5")
    a(f"v_add_u32 v{vVoff2}, 0x1000, v{vVoff}")
    a(f"s_lshl_b32 s{sXb}, s{sP_}, 14")
    a(f"s_lshl_b32 s48, s{sW}, 9")
    a(f"s_add_u32 s{sXb}, s{sXb}, s48")
    a(f"s_lshl_b32 s{sWqb}, s{sW}, {21 - WQC}")
    a(f"s_lshl_b32 s48, s{sH}, {18 if WQC else 8}")
    a(f"s_add_u32 s{sWqb}, s{sWqb}, s48")
    a(f"s_lshl_b32 s{sVoff}, s{sP_}, 5")
    a(f"s_add_u32 s{sVoff}, s{sVoff}, s{sH}")
    a(f"s_lshl_b32 s{sVoff}, s{sVoff}, 19")
    a(f"s_lshl_b32 s48, s{sW}, 13")
    a(f"s_add_u32 s{sVoff}, s{sVoff}, s48")
    a(f"s_add_u32 s{sB1}, s{sVoff}, 0x8000000")
    for (d, size) in ((sX, 16*8*1024*2), (sWQ, 1024*4096*2), (sK, 1 << 28), (sV, 1 << 28)):
        a(f"s_mov_b32 s{d+2}, 0x{size:x}")
        a(f"s_mov_b32 s{d+3}, 0x00020000")
    a(f"s_mov_b32 s{sSelLo}, 0x05040100")
    a(f"s_mov_b32 s{sSelHi}, 0x07060302")
    a("s_waitcnt lgkmcnt(0)")
    if OPT.get('wsoff'):
        a(f"s_add_u32 s18, s18, {OPT['wsoff']}")
        a("s_addc_u32 s19, s19, 0")
    for (d, src) in ((sX, 4), (sWQ, 10), (sK, 6), (sV, 8)):
        a(f"s_mov_b32 s{d}, s{src}")
        a(f"s_mov_b32 s{d+1}, s{src+1}")

    a(f"s_mov_b32 s{sDBG}, s16")
    a(f"s_mov_b32 s{sDBG+1}, s17")
    a(f"s_mov_b32 s{sDBG+2}, 256")
    a(f"s_mov_b32 s{sDBG+3}, 0x00020000")
    a(f"v_mov_b32 v{vNon+1}, 0")
    a(f"s_or_b32 s48, s2, s{sW}")
    a("s_cmp_lg_u32 s48, 0")
    a("s_cbranch_scc1 L_nopub")
    a(f"s_or_b32 s{sNon}, s90, 1")
    a(f"v_mov_b32 v{vNon}, s{sNon}")
    a("s_mov_b64 exec, 1")
    a(f"buffer_store_dword v{vNon}, v{vNon+1}, s[{sDBG}:{sDBG+3}], 0 offen sc1")
    a("s_mov_b64 exec, -1")
    a.label("L_nopub")
    if OPT.get('est'): a.stamp(3)
    ms = MemSeq(a)
    NSL = 3
    def xreg(ks): return 8 + 4*ks
    def slot(ks): return 152 + (ks % NSL)*32

    def ld_K(ms, dst, j, soff):
        T, s = j >> 2, j & 3
        return ms.issue(f"buffer_load_dwordx4 {dst}, v{vKoff if T == 0 else vKoff2}, s[{sK}:{sK+3}], s{soff} offen offset:{(s>>1)*512 + (s&1)*128} nt", kv=True)
    def ld_V(ms, dst, i, soff):
        return ms.issue(f"buffer_load_dwordx4 {dst}, v{vVoff if i < 4 else vVoff2}, s[{sV}:{sV+3}], s{soff} offen offset:{(i&3)*1024} nt", kv=True)

    stage = []
    for b in range(4):
        for j in range(8): stage.append(('K', b, j))
        for j in range(8): stage.append(('V', b, j))
    for j in range(8): stage.append(('K', 4, j))
    st = {'pos': 0, 'idx': {}}
    def stage_one(Wx):
        if st['pos'] >= len(stage): return False
        kind, b, j = stage[st['pos']]; st['pos'] += 1
        if len(ms.kv) >= Wx and not st.get('late'):
            st['late'] = True
            late_setup()
        ms.pace(Wx)
        if kind == 'K':
            dst = ar(64*b + 4*j) if b < 4 else vr(bK + 4*j)
            st['idx'][(kind, b, j)] = ld_K(ms, dst, j, sVoff)
        else:
            st['idx'][(kind, b, j)] = ld_V(ms, ar(64*b + 32 + 4*j), j, sVoff)
            if j == 7:
                a(f"s_add_u32 s{sVoff}, s{sVoff}, 0x8000")
        return True

    def perm_c(src, c):
        for hb, sel in ((0, sSelLo), (1, sSelHi)):
            for t in range(4):
                a(f"v_perm_b32 v{vPT + hb*4 + t}, v{src[2*t+1] + c}, v{src[2*t] + c}, s{sel}")
    def mfma_c(bop, c, first):
        a("s_nop 1")
        for hb in range(2):
            j = 2*c + hb
            cc = "0" if first else vr(vO + 4*j)
            a(f"v_mfma_f32_16x16x32_bf16 {vr(vO + 4*j)}, {vr(vPT + hb*4)}, {vr(bop)}, {cc}")
    def reset_state():
        for r in range(32):
            a(f"v_mov_b32 v{vO + r}, 0")
        a(f"v_mov_b32 v{vMc}, 0xff800000")
        a(f"v_mov_b32 v{vL}, 0")

    def late_setup():
        a(f"v_lshl_add_u32 v{t1}, v7, 4, v{t3}")
        a(f"v_lshlrev_b32 v{t1}, 4, v{t1}")
        a(f"v_lshl_add_u32 v{t1}, v{t2}, 10, v{t1}")
        a(f"v_add_u32 v{vQF}, 0x{LDS_QF:x}, v{t1}")
        a(f"v_mov_b32 v{vCntL}, 0x{LDS_CNT:x}")
        a(f"v_mov_b32 v{vOne}, 0")
        a(f"ds_write_b32 v{vCntL}, v{vOne}")
        a(f"ds_write_b32 v{vCntL}, v{vOne} offset:4")
        a(f"ds_write_b32 v{vCntL}, v{vOne} offset:8")
        a(f"ds_write_b32 v{vCntL}, v{vOne} offset:12")
        a(f"ds_write_b32 v{vCntL}, v{vOne} offset:16")
        a(f"v_lshl_add_u32 v{t1}, v{t3}, 2, v{vCntL}")
        a(f"ds_write_b32 v{t1}, v{vOne} offset:32")
        a(f"v_lshl_add_u32 v{t1}, v7, 3, v{t3}")
        a(f"v_lshlrev_b32 v{t1}, 4, v{t1}")
        a(f"s_lshl_b32 s48, s{sW}, 12")
        a(f"s_add_u32 s48, s48, 0x{LDS_C:x}")
        a(f"v_add_u32 v{vLdsO}, s48, v{t1}")
        a(f"s_lshl_b32 s48, s{sW}, 8")
        a(f"s_add_u32 s48, s48, 0x{LDS_M:x}")
        a(f"v_lshlrev_b32 v{t1}, 2, v5")
        a(f"v_add_u32 v{vLdsM}, s48, v{t1}")
        a(f"v_lshrrev_b32 v{t1}, 3, v5")
        a(f"v_lshlrev_b32 v{vWoOff}, 11, v{t1}")
        a(f"v_lshl_add_u32 v{vWoOff}, v{t3}, 4, v{vWoOff}")
        a(f"v_and_b32 v{t1}, 1, v7")
        a(f"v_lshlrev_b32 v{vTr}, 5, v{t1}")
        a(f"v_xor_b32 v{vWoOff}, v{vWoOff}, v{vTr}")
        a(f"v_lshl_add_u32 v{t1}, v{t1}, 1, v{t2}")
        a(f"v_lshlrev_b32 v{vTr}, 5, v{t1}")
        a(f"v_lshrrev_b32 v{t1}, 2, v6")
        a(f"v_lshl_add_u32 v{t1}, v7, 3, v{t1}")
        a(f"v_lshl_add_u32 v{vTr}, v{t1}, 7, v{vTr}")
        a(f"v_lshl_add_u32 v{vTr}, v{t0}, 1, v{vTr}")
        a(f"s_lshl_b32 s{sLb}, s{sW}, 14")
        a(f"s_lshr_b32 s48, s{sW}, 1")
        a("s_lshl_b32 s48, s48, 15")
        a(f"s_add_u32 s{sLb}, s{sLb}, s48")
        a("s_lshl_b32 s49, s48, 1")
        a(f"v_add_u32 v{vTr}, s49, v{vTr}")
        a(f"v_mov_b32 v{vOne}, 1")
        a(f"s_mov_b32 s{sC}, {f32hex(cscale)}")
        a(f"s_mov_b32 s{sMask}, 0x00ff00ff")
        a(f"s_mov_b32 s{sMask+1}, 0x00ff00ff")
        for (d, src, size) in ((sWS, 18, WS_SIZE), (sWO, 12, 4096*1024*2), (sOUT, 14, 128*1024*2), (sNull, 18, 0)):
            a(f"s_mov_b32 s{d}, s{src}")
            a(f"s_mov_b32 s{d+1}, s{src+1}")
            a(f"s_mov_b32 s{d+2}, 0x{size:x}")
            a(f"s_mov_b32 s{d+3}, 0x00020000")
        a("s_and_b32 s48, s2, 7")
        a(f"s_lshl_b32 s{sWoLd}, s48, 20")
        a(f"s_lshl_b32 s{sOld}, s48, 15")
        a(f"s_lshl_b32 s48, s{sW}, 18")
        a(f"s_add_u32 s{sWoLd}, s{sWoLd}, s48")
        a("s_lshr_b32 s48, s2, 4")
        a("s_lshl_b32 s48, s48, 7")
        a(f"s_add_u32 s{sWoLd}, s{sWoLd}, s48")
        a("s_and_b32 s48, s2, 8")
        a("s_lshl_b32 s48, s48, 19")
        a(f"s_add_u32 s{sOld}, s{sOld}, s48")
        a(f"s_and_b32 s48, s{sW}, 1")
        a("s_lshl_b32 s48, s48, 21")
        a(f"s_add_u32 s{sOld}, s{sOld}, s48")
        a(f"s_and_b32 s48, s{sW}, 2")
        a("s_lshl_b32 s48, s48, 18")
        a(f"s_add_u32 s{sOld}, s{sOld}, s48")
        a(f"s_add_u32 s{sOld}, s{sOld}, 0x{QP:x}")
        a(f"s_lshl_b32 s{sOst}, s2, 15")
        a(f"s_add_u32 s48, s{sP_}, 3")
        a("s_and_b32 s48, s48, 3")
        a("s_lshl_b32 s48, s48, 13")
        a(f"s_add_u32 s{sOst}, s{sOst}, s48")
        a(f"s_add_u32 s{sOst}, s{sOst}, 0x{QP:x}")
        a(f"s_and_b32 s48, s{sW}, 1")
        a("s_lshl_b32 s48, s48, 10")
        a(f"s_add_u32 s{sOst}, s{sOst}, s48")
        FS = int(OPT.get('FS', 0))
        if FS:
            for r in range(4):
                a(f"v_mov_b32 v{232 + r}, -1")
            a(f"s_lshr_b32 s48, s{sW}, 1")
            a("s_lshl_b32 s48, s48, 11")
            a(f"s_add_u32 s48, s48, s{sOst}")
            if FS == 2:
                a(f"s_cmp_ge_u32 s{sW}, 2")
                a(f"s_cselect_b32 s{sNull+2}, 0x{WS_SIZE:x}, 0")
                ms.issue(f"buffer_store_dwordx4 {vr(232)}, v{vVoff}, s[{sNull}:{sNull+3}], s48 offen sc1")
                a(f"s_mov_b32 s{sNull+2}, 0")
            else:
                ms.issue(f"buffer_store_dwordx4 {vr(232)}, v{vVoff}, s[{sWS}:{sWS+3}], s48 offen sc1")
        PT = int(OPT.get('PT', 0))
        if PT:
            for ph in range(2 - PT, 2):
                a(f"s_add_u32 s48, s{sP_}, {1 + ph}")
                a("s_and_b32 s48, s48, 3")
                a("s_lshl_b32 s48, s48, 13")
                a("s_lshl_b32 s49, s2, 15")
                a("s_add_u32 s48, s48, s49")
                a(f"s_lshl_b32 s49, s{sW}, 11")
                a("s_add_u32 s48, s48, s49")
                a(f"s_add_u32 s48, s48, 0x{QP:x}")
                for k_ in range(2):
                    ms.issue(f"buffer_store_dwordx4 {vr(232)}, v{vVoff}, s[{sWS}:{sWS+3}], s48 offen offset:{k_*1024} sc1")

    def prologue(pfx):
        def O(k, d=None): return OPT.get(pfx + k, OPT.get(k, d))
        Wp = int(O('Wp', 5))
        NSL = int(O('NSL', 3))
        slots = [88, 120, 152, 184][4 - NSL:]
        qa, qb = [int(t) for t in O('QR', '4/3').split('/')]
        seq = [('s',)] * int(O('KF', 0))
        qlist = [('q', n, e) for n in range(8) for e in range(9)]
        Q0 = int(O('Q0', 0))
        seq += qlist[:Q0]
        accum = 0
        for it_ in qlist[Q0:]:
            seq.append(it_)
            accum += qb
            while accum >= qa:
                seq.append(('s',)); accum -= qa
        D = int(O('QD', 10))
        seq += [('s',)] * (D + 4)
        sched = {}
        qidx = {}
        endpos = {}
        for t, it_ in enumerate(seq):
            if it_[0] == 'q' and it_[2] == 8:
                for c in range(4): sched.setdefault(t + D + c, []).append((it_[1], c))
        donec = set()
        for t, it_ in enumerate(seq):
            if t == int(O('LS', 1000)) and not st.get('late'):
                st['late'] = True
                late_setup()
            if it_[0] == 's':
                assert NSL < 4 or st['pos'] < 64 or (4, 3) in donec
                stage_one(Wp if t >= int(O('QW0', 0)) else 99)
            else:
                _, n, e = it_
                if e == 0:
                    a(f"s_add_u32 s48, s{sP_}, {n}")
                    a("s_and_b32 s48, s48, 7")
                    a(f"s_lshl_b32 s47, s48, {18 - WQC}")
                    a(f"s_add_u32 s47, s47, s{sWqb}")
                    a("s_lshl_b32 s48, s48, 6")
                    a(f"s_add_u32 s48, s48, s{sXb}")
                    qidx[(n, e)] = ms.issue(f"buffer_load_dwordx4 {vr(8 + 4*n)}, v{vXoff}, s[{sX}:{sX+3}], s48 offen{OPT.get('xflag','')}")
                else:
                    assert n < NSL or (n - NSL, 3) in donec, (n, e)
                    if e > 1: a(f"s_add_u32 s47, s47, 0x{0x2000 >> WQC:x}")
                    qidx[(n, e)] = ms.issue(f"buffer_load_dwordx4 {vr(slots[n % NSL] + 4*(e-1))}, v{vWoff}, s[{sWQ}:{sWQ+3}], s47 offen{OPT.get('wqflag0', OPT.get('wqflag','')) if n == 0 else OPT.get('wqflag','')}")
            for (n, c) in sched.get(t, []):
                ms.wait_for(qidx[(n, 8)])
                if OPT.get('xst') and c == 0 and n in (0, 2, 4, 6): a.stamp(3 + n // 2)
                perm_c([slots[n % NSL] + 4*i for i in range(8)], c)
                mfma_c(8 + 4*n, c, n == 0)
                donec.add((n, c))
        assert len(donec) == 32
        if not st.get('late'):
            st['late'] = True
            late_setup()
        a.stamp(1)
        a(f"s_lshl_b32 s48, s{sW}, 13")
        a(f"v_add_u32 v8, s48, v{vVoff}")
        a(f"s_lshl_b32 s48, s{sW}, 11")
        a(f"v_add_u32 v9, s48, v{vVoff}")
        a(f"v_lshlrev_b32 v10, 10, v7")
        a(f"v_lshl_add_u32 v10, v6, 4, v10")
        a(f"s_lshl_b32 s48, s{sW}, 2")
        a(f"s_add_u32 s48, s48, 0x{LDS_QF:x}")
        a(f"v_add_u32 v10, s48, v10")
        a(f"s_mov_b32 s{sWSo}, s18")
        a(f"s_mov_b32 s{sWSo+1}, s19")
        a(f"s_cmp_lt_u32 s{sW}, 2")
        a(f"s_cselect_b32 s{sWSo+2}, 0x{WS_SIZE:x}, 0")
        a("s_nop 7")
        for j in range(8):
            a(f"ds_write_b128 v8, {vr(vO + 4*j)} offset:{j*1024}")
        for i in range(int(O('SB', 2))): stage_one(Wp)
        a("s_waitcnt lgkmcnt(0)")
        a("s_barrier")
        for ww in range(4):
            for tt in range(2):
                a(f"ds_read_b128 {vr(vO + (ww*2+tt)*4)}, v9 offset:{ww*8192 + tt*1024}")
        for i in range(int(O('SC', 1))): stage_one(Wp)
        a("s_waitcnt lgkmcnt(0)")
        for r in range(8):
            a(f"v_add_f32 v{vO + r}, v{vO + r}, v{vO + 8 + r}")
            a(f"v_add_f32 v{vO + 16 + r}, v{vO + 16 + r}, v{vO + 24 + r}")
        for r in range(8):
            a(f"v_add_f32 v{vO + r}, v{vO + r}, v{vO + 16 + r}")
        for r in range(4):
            a(f"v_cvt_pk_bf16_f32 v{12 + r}, v{vO + r}, v{vO + 4 + r}")
        for r in range(4):
            a(f"ds_write_b32 v10, v{12 + r} offset:{r*256}")
        for i in range(int(O('SD', 1))): stage_one(Wp)
        a("s_waitcnt lgkmcnt(0)")
        a("s_barrier")
        for ph in range(2):
            for sp in range(2):
                a(f"ds_read_b128 {vr(vQ + ph*8 + sp*4)}, v{vQF} offset:{sp*2048 + ph*128}")
        reset_state()
        a("s_waitcnt lgkmcnt(0)")
        a.stamp(2)
        WF = int(O('WF', W))
        while stage_one(WF if st['pos'] < 64 else W): pass
        a("s_waitcnt vmcnt(8)")
    AB = OPT.get('AB')
    if AB:
        a(f"s_bitcmp1_b32 s2, {AB}")
        a("s_cbranch_scc0 L_pA")
        prologue('B_')
        a("s_branch L_pJ")
        a.label("L_pA")
        ms.__init__(a)
        st.clear(); st.update({'pos': 0, 'idx': {}})
    prologue('A_')
    a.label("L_pJ")
    ms.__init__(a, pre_kv=8)
    for k_ in list(st['idx']): st['idx'][k_] = -1
    for j in range(8): st['idx'][('K', 4, j)] = j
    vNon = 255
    nid = {}
    def get_nonce():
        ms.wait_for(nid['x'])
        a(f"s_mov_b32 s{sSpin}, {OPT.get('SPIN', '0x20000')}")
        a.label("L_nonp")
        a(f"v_readfirstlane_b32 s{sNon}, v{vNon}")
        a(f"s_cmp_lg_u32 s{sNon}, 0")
        a("s_cbranch_scc1 L_nond")
        a(f"s_sub_u32 s{sSpin}, s{sSpin}, 1")
        a(f"s_cmp_eq_u32 s{sSpin}, 0")
        a("s_cbranch_scc1 L_nond")
        a(f"buffer_load_dword v{vNon}, off, s[{sDBG}:{sDBG+3}], 0 sc1")
        a("s_waitcnt vmcnt(0)")
        a("s_branch L_nonp")
        a.label("L_nond")
    def signal(soff, cnt_off):
        a("s_waitcnt lgkmcnt(0)")
        a("s_mov_b64 exec, 1")
        a(f"ds_add_rtn_u32 v{vCntG}, v{vCntL}, v{vOne} offset:{cnt_off}")
        a(f"s_xor_b32 s49, s{sNon}, s5")
        a(f"v_mov_b32 v{vB}, s49")
        a("s_waitcnt lgkmcnt(0)")
        a(f"v_readfirstlane_b32 s49, v{vCntG}")
        a(f"v_mov_b32 v{vCntG}, 0")
        a("s_cmp_eq_u32 s49, 3")
        a(f"s_cselect_b32 s{sNull+2}, 0x{WS_SIZE:x}, 0")
        a("s_nop 0")
        a(f"buffer_store_dword v{vB}, v{vCntG}, s[{sNull}:{sNull+3}], s{soff} offen sc1")
        a("s_mov_b64 exec, -1")
        a("s_nop 0")
        a(f"s_mov_b32 s{sNull+2}, 0")

    def p_QK(kop):
        for T in range(2):
            for s in range(4):
                d = vSR + (T*2 + (s>>1))*4
                cc = "0" if (s & 1) == 0 else vr(d)
                a(f"v_mfma_f32_16x16x32_bf16 {vr(d)}, {kop(T*4+s)}, {vr(vQ + 4*(s&1))}, {cc}")
    def p_SM1():
        a("s_nop 7")
        for T in range(2):
            for r in range(4):
                a(f"v_permlane32_swap_b32 v{vSR + T*8 + r}, v{vSR + T*8 + 4 + r}")
        a("s_nop 0")
        for T in range(2):
            for r in range(4):
                a(f"v_add_f32_dpp v{vS + T*4 + r}, v{vSR + T*8 + 4 + r}, v{vSR + T*8 + r} row_ror:8 row_mask:0xf bank_mask:0xf")
        a(f"v_max3_f32 v{vT0}, v{vS+0}, v{vS+1}, v{vS+2}")
        a(f"v_max3_f32 v{vT0}, v{vT0}, v{vS+3}, v{vS+4}")
        a(f"v_max3_f32 v{vT0}, v{vT0}, v{vS+5}, v{vS+6}")
        a(f"v_max_f32 v{vT0}, v{vT0}, v{vS+7}")
        a(f"v_mov_b32 v{vT1}, v{vT0}")
        a("s_nop 1")
        a(f"v_permlane16_swap_b32 v{vT0}, v{vT1}")
        a("s_nop 1")
        a(f"v_max_f32 v{vT0}, v{vT0}, v{vT1}")
        a(f"v_mov_b32 v{vT1}, v{vT0}")
        a("s_nop 1")
        a(f"v_permlane32_swap_b32 v{vT0}, v{vT1}")
        a("s_nop 1")
        a(f"v_max_f32 v{vT0}, v{vT0}, v{vT1}")
        a(f"v_mul_f32 v{vT0}, s{sC}, v{vT0}")
        a(f"v_max_f32 v{vT0}, v{vT0}, v{vMc}")
        a(f"v_sub_f32 v{vAl}, v{vMc}, v{vT0}")
        a(f"v_exp_f32 v{vAl}, v{vAl}")
        a(f"v_mov_b32 v{vMc}, v{vT0}")
    def p_SM2():
        for i in range(8):
            a(f"v_fma_f32 v{vS+i}, v{vS+i}, s{sC}, -v{vMc}")
        for i in range(8):
            a(f"v_exp_f32 v{vS+i}, v{vS+i}")
        a("s_nop 0")
        a(f"v_add_f32 v{vT2}, v{vS+0}, v{vS+1}")
        a(f"v_add_f32 v{vT3}, v{vS+2}, v{vS+3}")
        a(f"v_add_f32 v{vT0}, v{vS+4}, v{vS+5}")
        a(f"v_add_f32 v{vT1}, v{vS+6}, v{vS+7}")
        a(f"v_add_f32 v{vT2}, v{vT2}, v{vT3}")
        a(f"v_add_f32 v{vT0}, v{vT0}, v{vT1}")
        a(f"v_add_f32 v{vT2}, v{vT2}, v{vT0}")
        a(f"v_fma_f32 v{vL}, v{vL}, v{vAl}, v{vT2}")
        for t in range(4):
            a(f"v_cvt_pk_bf16_f32 v{vP + t}, v{vS + 2*t}, v{vS + 2*t + 1}")
    def p_RS():
        a("s_nop 7")
        for r in range(32):
            a(f"v_mul_f32 v{vO + r}, v{vAl}, v{vO + r}")
    def p_PV(c):
        perm_c([bV + 4*i for i in range(8)], c)
        mfma_c(vP, c, False)
    def p_PVs(b, c):
        base = vAT + (c & 1)*8
        for i in range(8):
            a(f"v_accvgpr_read_b32 v{base + i}, a{64*b + 32 + 4*i + c}")
        perm_c([base + i for i in range(8)], 0)
        mfma_c(vP, c, False)

    def iteration(ms, kidx, staged=None, extras=None, static_n=None, extras7=None, W=W, late=False, kload=None):
        pieces = {s: [] for s in range(16)}
        def wq_(): ms.wait_for(kidx[7]); p_QK(lambda j: vr(bK + 4*j))
        WV = int(OPT.get('WV', W)); WK = int(OPT.get('WK', W))
        pq = max(WV - 1, 4 if staged is not None else 0)
        pieces[pq].append(wq_)
        pieces[pq+1].append(p_SM1)
        pieces[pq+2].append(p_SM2)
        pieces[pq+3].append(p_RS)
        vidx = []
        for c in range(4):
            def f(c=c):
                ms.wait_for(vidx[7]); p_PV(c)
            pieces[15 if late else min(15, 8 + WK - 1 + c)].append(f)
        if staged is not None:
            b = staged
            def sq():
                ms.wait_for(st['idx'][('V', b, 7)]); p_QK(lambda j: ar(64*b + 4*j))
            pieces[0].insert(0, sq)
            pieces[1] = [p_SM1, p_SM2] + pieces[1]
            pieces[2] = [p_RS, lambda: p_PVs(b, 0), lambda: p_PVs(b, 1)] + pieces[2]
            pieces[3] = [lambda: p_PVs(b, 2), lambda: p_PVs(b, 3)] + pieces[3]
        knew = []
        for s in range(16):
            ms.pace(WV if s < 8 else WK)
            if s < 8:
                vidx.append(ld_V(ms, vr(bV + 4*s), s, sVoff))
            elif kload:
                knew.append(kload(ms, s - 8))
            else:
                knew.append(ld_K(ms, vr(bK + 4*(s-8)), s - 8, sKoff))
            if s == 0:
                if extras: extras()
                a(f"s_add_u32 s{sKoff}, s{sVoff}, 0x8000")
                if static_n is None:
                    a(f"s_cmp_eq_u32 s{sIter}, 15")
                    a(f"s_cselect_b32 s{sKoff}, s{sB1}, s{sKoff}")
            for f in pieces[s]: f()
            if s == 7 and extras7: extras7()
            assert not (s == 7 and pq > 7)
        a(f"s_mov_b32 s{sVoff}, s{sKoff}")
        return knew

    while stage_one(W): pass
    kidx = [st['idx'][('K', 4, j)] for j in range(8)]

    pre = {}
    vOld, vPst, vOut = 86, 87, 82
    sPst, sPld, sOutB = 84, 85, 86
    sRed = sWQ
    RW = int(OPT.get('RW', 3))
    vAcc = 232
    vTag, sTag = 254, 3
    sPd = 4
    sXc, sLoc = 5, 6
    def ex4():
        nid['x'] = ms.issue(f"buffer_load_dword v{vNon}, off, s[{sDBG}:{sDBG+3}], 0 sc1")
        a(f"v_bfe_u32 v{vB}, v0, 3, 1")
        a(f"v_bfe_u32 v{vB+1}, v0, 4, 2")
        a(f"v_and_b32 v{vB+2}, 7, v0")
        a(f"s_lshl_b32 s48, s{sW}, 1")
        a("s_add_u32 s48, s48, 3")
        a(f"v_add_u32 v{vOld}, s48, v{vB}")
        a(f"v_and_b32 v{vOld}, 3, v{vOld}")
        a(f"v_lshlrev_b32 v{vOld}, 13, v{vOld}")
        a(f"v_lshl_add_u32 v{vOld}, v{vB}, 20, v{vOld}")
        a(f"v_lshl_add_u32 v{vOld}, v{vB+1}, 8, v{vOld}")
        a(f"v_lshl_add_u32 v{vOld}, v{vB+2}, 4, v{vOld}")
        a(f"v_lshlrev_b32 v{vPst}, 15, v{vB}")
        a(f"v_lshl_add_u32 v{vPst}, v{vB+1}, 7, v{vPst}")
        a(f"v_lshl_add_u32 v{vPst}, v{vB+2}, 4, v{vPst}")
        a(f"v_bfe_u32 v{vB}, v0, 3, 3")
        a(f"v_lshlrev_b32 v{vOut}, 11, v{vB+2}")
        a(f"v_lshl_add_u32 v{vOut}, v{vB}, 3, v{vOut}")
        a("s_andn2_b32 s48, s2, 15")
        a("s_and_b32 s49, s2, 8")
        a("s_lshr_b32 s49, s49, 1")
        a("s_add_u32 s48, s48, s49")
        a(f"s_and_b32 s49, s{sW}, 1")
        a("s_lshl_b32 s49, s49, 1")
        a("s_add_u32 s48, s48, s49")
        a(f"s_lshl_b32 s{sPst}, s48, 15")
        a("s_and_b32 s48, s2, 7")
        a(f"s_lshl_b32 s{sOutB}, s48, 14")
        a("s_lshl_b32 s48, s48, 10")
        a(f"s_add_u32 s{sPst}, s{sPst}, s48")
        a(f"s_add_u32 s48, s{sP_}, 1")
        a("s_and_b32 s48, s48, 3")
        a("s_lshl_b32 s48, s48, 13")
        a(f"s_add_u32 s49, s{sP_}, 2")
        a("s_and_b32 s49, s49, 3")
        a("s_lshl_b32 s49, s49, 13")
        a(f"s_sub_u32 s{sPd}, s49, s48")
        a(f"s_add_u32 s48, s48, 0x{QP + (0x800000 if OPT.get('psep') else 0):x}")
        a(f"s_add_u32 s{sPst}, s{sPst}, s48")
        a(f"s_lshl_b32 s{sPld}, s2, 15")
        a(f"s_add_u32 s{sPld}, s{sPld}, s48")
        a("s_lshr_b32 s48, s2, 3")
        a("s_lshl_b32 s48, s48, 6")
        a(f"s_add_u32 s{sOutB}, s{sOutB}, s48")
        a(f"s_bitcmp1_b32 s{sW}, 0")
        a(f"s_cselect_b32 s48, s{sPd}, 0")
        a(f"s_add_u32 s{sPld}, s{sPld}, s48")
        a(f"s_bitcmp1_b32 s{sW}, 0")
        a(f"s_cselect_b32 s48, 0x20000, 0")
        a(f"s_add_u32 s{sOutB}, s{sOutB}, s48")
    def ex6():
        get_nonce()
        a(f"s_mul_i32 s{sTag}, s{sNon}, 0x9e3779b1")
        a(f"v_mov_b32 v{vTag}, s{sTag}")
        a("s_and_b32 s48, s2, 7")
        a(f"s_lshl_b32 s{sFl}, s48, 7")
        a("s_lshr_b32 s48, s2, 3")
        a("s_lshl_b32 s48, s48, 2")
        a(f"s_add_u32 s{sFl}, s{sFl}, s48")
        a(f"s_add_u32 s{sFl}, s{sFl}, 0x{FLP:x}")
        a(f"s_getreg_b32 s{sXc}, hwreg(HW_REG_XCC_ID)")
        a(f"s_and_b32 s{sXc}, s{sXc}, 15")
        a(f"s_lshl_b32 s{sXc}, s{sXc}, 1")
        if OPT.get('xfake'): a(f"s_and_b32 s{sXc}, s2, {OPT['xfake']}")
    exs = {4: ex4}
    exs7 = {6: ex6}
    for n in range(4, 8):
        kidx = iteration(ms, kidx, staged=n - 4, extras=exs.get(n), static_n=n, extras7=exs7.get(n))
        if not OPT.get('xst') and not OPT.get('est') and not OPT.get('tst'): a.stamp(n - 1)
    a(f"s_mov_b32 s{sIter}, 8")

    def flush():
        a(f"v_mov_b32 v{vT1}, v{vL}")
        a("s_nop 1")
        a(f"v_permlane16_swap_b32 v{vL}, v{vT1}")
        a("s_nop 1")
        a(f"v_add_f32 v{vL}, v{vL}, v{vT1}")
        a(f"v_mov_b32 v{vT1}, v{vL}")
        a("s_nop 1")
        a(f"v_permlane32_swap_b32 v{vL}, v{vT1}")
        a("s_nop 1")
        a(f"v_add_f32 v{vL}, v{vL}, v{vT1}")
        a(f"ds_write_b32 v{vLdsM}, v{vMc}")
        a(f"ds_write_b32 v{vLdsM}, v{vL} offset:{LDS_L - LDS_M}")
        a(f"s_mov_b64 exec, s[{sMask}:{sMask+1}]")
        for j in range(8):
            a(f"ds_write_b128 v{vLdsO}, {vr(vO + 4*j)} offset:{j*512}")
        a("s_mov_b64 exec, -1")

    def combine_addr(ph, vA, vM):
        a(f"v_and_b32 v{vA}, 15, v0")
        a(f"v_lshlrev_b32 v{vA}, 4, v{vA}")
        a(f"v_bfe_u32 v{vM}, v0, 4, 2")
        a(f"v_lshl_add_u32 v{vA}, v{vM}, 2, v{vA}")
        a(f"s_and_b32 s49, s{sW}, 1")
        a("s_lshl_b32 s49, s49, 8")
        a(f"s_add_u32 s49, s49, 0x{LDS_C + ph*0x4000:x}")
        a(f"v_add_u32 v{vA}, s49, v{vA}")
        a(f"v_and_b32 v{vM}, 7, v0")
        a(f"v_lshlrev_b32 v{vM}, 2, v{vM}")
        a(f"v_add_u32 v{vM}, 0x{LDS_M + ph*0x400:x}, v{vM}")
    def combine(ph, vA, vM, R):
        vm, vl, vo, vx, vacc, vout = R, R+4, R+8, R+40, R+44, R+52
        for w in range(4):
            a(f"ds_read_b32 v{vm + w}, v{vM} offset:{w*256}")
        for w in range(4):
            a(f"ds_read_b32 v{vl + w}, v{vM} offset:{LDS_L - LDS_M + w*256}")
        for j in range(6):
            a(f"ds_read_b32 v{vo + j}, v{vA} offset:{j*512}")
        a("s_waitcnt lgkmcnt(10)")
        a(f"v_max3_f32 v{vx}, v{vm}, v{vm+1}, v{vm+2}")
        a(f"v_max_f32 v{vx}, v{vx}, v{vm+3}")
        for ww in range(4):
            a(f"v_sub_f32 v{vm+ww}, v{vm+ww}, v{vx}")
        for ww in range(4):
            a(f"v_exp_f32 v{vm+ww}, v{vm+ww}")
        for n in range(6, 32):
            w, j = n >> 3, n & 7
            a(f"ds_read_b32 v{vo + n}, v{vA} offset:{w*4096 + j*512}")
            if n == 8:
                a("s_waitcnt lgkmcnt(9)")
                a(f"v_mul_f32 v{vx+1}, v{vm}, v{vl}")
                for ww in range(1, 4):
                    a(f"v_fma_f32 v{vx+1}, v{vm+ww}, v{vl+ww}, v{vx+1}")
                a(f"v_rcp_f32 v{vx+1}, v{vx+1}")
        a("s_nop 0")
        for ww in range(4):
            a(f"v_mul_f32 v{vm+ww}, v{vx+1}, v{vm+ww}")
        a("s_waitcnt lgkmcnt(0)")
        for j in range(8):
            a(f"v_mul_f32 v{vacc+j}, v{vm}, v{vo + j}")
        for w in range(1, 4):
            for j in range(8):
                a(f"v_fma_f32 v{vacc+j}, v{vm+w}, v{vo + w*8 + j}, v{vacc+j}")
        for t in range(4):
            a(f"v_cvt_pk_bf16_f32 v{vout+t}, v{vacc+2*t}, v{vacc+2*t+1}")
        for t in range(4):
            a(f"v_min_u32 v{vout+t}, -2, v{vout+t}")
        if ph:
            a(f"s_add_u32 s49, s{sOst}, 0x800")
        else:
            a(f"s_mov_b32 s49, s{sOst}")
        if ph and not OPT.get('noloc'):
            a(f"s_cmp_eq_u32 s{sLoc}, 0")
            a("s_cbranch_scc1 L_ol1")
            a(f"buffer_store_dwordx4 {vr(vout)}, v{vVoff}, s[{sWSo}:{sWSo+3}], s49 offen sc1")
            a("s_branch L_ol2")
            a.label("L_ol1")
            a(f"buffer_store_dwordx4 {vr(vout)}, v{vVoff}, s[{sWSo}:{sWSo+3}], s49 offen")
            a.label("L_ol2")
        else:
            a(f"buffer_store_dwordx4 {vr(vout)}, v{vVoff}, s[{sWSo}:{sWSo+3}], s49 offen sc1")

    def dummy(k):
        for _ in range(k):
            a(f"buffer_load_dword v{vDum}, v{vVoff}, s[{sNull}:{sNull+3}], 0 offen")
    def wo_dma(m, cnt=1):
        a(f"s_add_u32 m0, s{sLb}, {m*1024}")
        a(f"s_add_u32 s48, s{sWoLd}, 0x{m*16384:x}")
        src = vWoOff
        if m & 1:
            a(f"v_xor_b32 v{vCntG}, 64, v{vWoOff}")
            src = vCntG
        a(f"buffer_load_dwordx4 v{src}, s[{sWO}:{sWO+3}], s48 offen{OPT.get('woflag', ' nt')} lds")
    def wo_sig():
        a("s_mov_b64 exec, 1")
        a(f"ds_add_u32 v{vCntL}, v{vOne} offset:16")
        a("s_mov_b64 exec, -1")
    def lds_spin(off, tmp):
        lp, ld = a.newlabel("lp"), a.newlabel("ld")
        a(f"s_mov_b32 s{sSpin}, 0x100000")
        a.label(lp)
        a(f"ds_read_b32 v{tmp}, v{vCntL} offset:{off}")
        a("s_waitcnt lgkmcnt(0)")
        a(f"v_readfirstlane_b32 s48, v{tmp}")
        a("s_cmp_ge_u32 s48, 4")
        a(f"s_cbranch_scc1 {ld}")
        a(f"s_sub_u32 s{sSpin}, s{sSpin}, 1")
        a(f"s_cmp_eq_u32 s{sSpin}, 0")
        a(f"s_cbranch_scc1 {ld}")
        a("s_sleep 2")
        a(f"s_branch {lp}")
        a.label(ld)
    def wo_tr(k0, k1):
        a(f"v_mov_b32 v{vAcc}, v{vTr}")
        for nt in range(1, 4):
            a(f"v_xor_b32 v{vAcc + nt}, {nt << 5}, v{vTr}")
        for kk in range(k0, k1):
            for nt in range(4):
                for half in range(2):
                    d = (kk*4 + nt)*4 + half*2
                    a(f"ds_read_b64_tr_b16 a[{d}:{d+1}], v{vAcc + nt} offset:{(kk & 7)*4096 + half*512}")
            a("s_waitcnt lgkmcnt(6)")
    sOld2 = sWoLd
    def o_txt(q, bb, dst):
        hh, ks = q >> 2, q & 3
        return f"buffer_load_dwordx4 {vr(dst + 4*q)}, v{vOld}, s[{sWS}:{sWS+3}], s{sOld2 if hh else sOld} offen offset:{bb*2048 + (ks>>1)*1024 + (ks&1)*128} sc1"
    def o_ld(q, bb, dst):
        a(o_txt(q, bb, dst))
    def p_ld(gg, ph, dst):
        a(f"buffer_load_dwordx4 {vr(dst + 4*gg)}, v{vVoff if gg < 4 else vVoff2}, s[{sWS}:{sWS+3}], s{sPld} offen offset:{(gg&3)*1024} sc1")
    def frag_mfma(q, src, first=False, vAcc=vAcc):
        for nt in range(4):
            d = vAcc + nt*4
            a(f"v_mfma_f32_16x16x32_bf16 {vr(d)}, {ar((q*4 + nt)*4)}, {vr(src + 4*q)}, {'0' if first else vr(d)}")
    vXw, vFw, vXt_ = 224, 226, 120
    sSel = 88
    def x_addr():
        a(f"s_and_b32 s48, s{sW}, 1")
        a(f"s_lshl_b32 s49, s48, 12")
        a(f"s_add_u32 s49, s49, 0x{LDS_X:x}")
        a(f"v_add_u32 v{vXw}, s49, v{vVoff}")
        a(f"s_lshl_b32 s48, s48, 2")
        a(f"v_add_u32 v{vFw}, s48, v{vCntL}")
        for r in range(4):
            a(f"s_mov_b32 s{sSel + r}, 0x{0x07060500 + r:x}")
    def x_put(ph, acc):
        a("s_nop 4")
        for t in range(4):
            a(f"ds_write_b128 v{vXw}, {vr(acc + 4*t)} offset:{ph*8192 + t*1024}")
        a(f"ds_write_b32 v{vFw}, v{vOne} offset:{32 + ph*16}")
    def x_get(ph, acc):
        lp, ld = a.newlabel("xp"), a.newlabel("xd")
        a(f"s_mov_b32 s{sSpin}, 0x400000")
        a.label(lp)
        a(f"ds_read_b32 v{vCntG}, v{vFw} offset:{32 + ph*16}")
        for t in range(4):
            a(f"ds_read_b128 {vr(vXt_ + 4*t)}, v{vXw} offset:{ph*8192 + t*1024}")
        a(f"s_sub_u32 s{sSpin}, s{sSpin}, 1")
        a("s_waitcnt lgkmcnt(4)")
        a(f"v_readfirstlane_b32 s48, v{vCntG}")
        a(f"s_cmp_eq_u32 s{sSpin}, 0")
        a(f"s_cbranch_scc1 {ld}")
        a("s_cmp_eq_u32 s48, 0")
        a(f"s_cbranch_scc1 {lp}")
        a.label(ld)
        a(f"s_add_u32 s48, s{sPst}, {'s%d' % sPd if ph else 0}")
        a(f"s_add_u32 s49, s48, 0x40000")
        for nt in range(4):
            a(f"s_waitcnt lgkmcnt({3 - nt})")
            for r in range(4):
                a(f"v_add_f32 v{acc + 4*nt + r}, v{acc + 4*nt + r}, v{vXt_ + 4*nt + r}")
            for r in range(4):
                a(f"v_perm_b32 v{acc + 4*nt + r}, v{acc + 4*nt + r}, v{vTag}, s{sSel + r}")
            a(f"buffer_store_dwordx4 {vr(acc + 4*nt)}, v{vPst}, s[{sWS}:{sWS+3}], s{48 + (nt >> 1)} offen offset:{(nt&1)*512} sc1")
    def cnt_ld():
        a(f"s_andn2_b32 s48, s{sFl}, 127")
        a(f"v_bfe_u32 v{vB + 57}, v0, 0, 5")
        a(f"v_lshlrev_b32 v{vB + 57}, 2, v{vB + 57}")
        a(f"buffer_load_dword v{vB + 56}, v{vB + 57}, s[{sWS}:{sWS+3}], s48 offen sc1")
    def cnt_check():
        lp, ld = a.newlabel("cp"), a.newlabel("cd")
        a(f"s_mov_b32 s{sSpin}, {OPT.get('SPIN', '0x20000')}")
        a.label(lp)
        a(f"v_xor_b32 v{vB + 56}, s{sNon}, v{vB + 56}")
        a(f"v_and_b32 v{vB + 57}, 0xffffffe1, v{vB + 56}")
        a(f"v_cmp_ne_u32 vcc, 0, v{vB + 57}")
        a(f"s_cbranch_vccz {ld}")
        a(f"s_sub_u32 s{sSpin}, s{sSpin}, 1")
        a(f"s_cmp_eq_u32 s{sSpin}, 0")
        a(f"s_cbranch_scc1 {ld}")
        a("s_sleep 8")
        cnt_ld()
        a("s_waitcnt vmcnt(0)")
        a(f"s_branch {lp}")
        a.label(ld)
        a(f"v_cmp_ne_u32 vcc, s{sXc}, v{vB + 56}")
        a(f"s_add_u32 s{sOld2}, s{sOld}, 0x40000")
        a(f"s_or_b32 s{sLoc}, vcc_lo, vcc_hi")
    def flush0():
        a("s_nop 1")
        flush()
        for r in range(8):
            a(f"v_mov_b32 v{vQ + r}, v{vQ2 + r}")
        a(f"v_add_u32 v{vLdsO}, 0x4000, v{vLdsO}")
        a(f"v_add_u32 v{vLdsM}, 0x400, v{vLdsM}")
        a("s_waitcnt lgkmcnt(0)")
        a("s_mov_b64 exec, 1")
        a(f"ds_add_u32 v{vCntL}, v{vOne}")
        a("s_mov_b64 exec, -1")
        reset_state()
    def comb0():
        lf, le = a.newlabel("cf"), a.newlabel("ce")
        a(f"s_cmp_ge_u32 s{sW}, 2")
        a(f"s_cbranch_scc1 {lf}")
        combine_addr(0, vB + 60, vB + 61)
        lds_spin(0, vB + 62)
        combine(0, vB + 60, vB + 61, vB)
        a(f"s_branch {le}")
        a.label(lf)
        for r in range(4):
            a(f"v_mov_b32 v{vB + 60 + r}, -1")
        a(f"s_add_u32 s48, s{sOst}, 0x800")
        if OPT.get('FS'): dummy(1)
        else: a(f"buffer_store_dwordx4 {vr(vB + 60)}, v{vVoff}, s[{sWS}:{sWS+3}], s48 offen sc1")
        a.label(le)
    NX = int(OPT.get('NX', 4))
    TH2 = int(OPT.get('TH2', 0))
    SLOW = int(OPT.get('SLOW', 0))
    sn = {n: [] for n in range(8, 32)}
    def add(n, fn, nv=0, act=False): sn[n].append((fn, nv, act))
    sAdj, sWsel, sT = 87, 47, 80
    vTS = 253
    TSB = 0x320000
    GN = int(OPT.get('GN', 32))
    def pub(k):
        a("s_memrealtime s[100:101]")
        a(f"s_lshl_b32 s48, s2, 2")
        a(f"s_add_u32 s48, s48, 0x{TSB + k*1024:x}")
        a(f"s_cmp_eq_u32 s{sW}, {k & 3}")
        a(f"s_cselect_b32 s{sNull+2}, 0x{WS_SIZE:x}, 0")
        if SLOW & 1: a(f"s_cselect_b32 s{sWsel}, 3, s{sWsel}")
        a(f"v_mov_b32 v{vCntG}, 0")
        a("s_waitcnt lgkmcnt(0)")
        a(f"v_mov_b32 v{vTS}, s100")
        a(f"s_sub_u32 s{sT}, s100, s{sNon}")
        a(f"s_mov_b32 s81, s{sAdj}")
        a("s_mov_b64 exec, 1")
        a(f"buffer_store_dword v{vTS}, v{vCntG}, s[{sNull}:{sNull+3}], s48 offen sc1")
        a("s_mov_b64 exec, -1")
        a("s_nop 0")
        a(f"s_mov_b32 s{sNull+2}, 0")
    def ts_ld(k):
        a(f"s_lshr_b32 s48, s2, 6")
        a(f"s_add_u32 s48, s48, {k}")
        a("s_and_b32 s48, s48, 3")
        a("s_lshl_b32 s48, s48, 8")
        a(f"s_add_u32 s48, s48, 0x{TSB + k*1024:x}")
        a(f"v_lshrrev_b32 v{vCntG}, 2, v{vVoff}")
        a(f"buffer_load_dword v{vTS}, v{vCntG}, s[{sWS}:{sWS+3}], s48 offen sc1")
        a("s_memrealtime s[82:83]")
    def calc(k, lim):
        a("s_waitcnt lgkmcnt(0)")
        a(f"s_sub_u32 s82, s82, s{sNon}")
        a(f"v_subrev_u32 v{vTS}, s{sNon}, v{vTS}")
        a(f"v_min_u32 v{vTS}, s82, v{vTS}")
        for sh in (8, 4, 2, 1):
            a("s_nop 1")
            a(f"v_add_u32_dpp v{vTS}, v{vTS}, v{vTS} row_ror:{sh} row_mask:0xf bank_mask:0xf")
        a("s_nop 1")
        a(f"v_readlane_b32 s48, v{vTS}, 0")
        a(f"v_readlane_b32 s49, v{vTS}, 16")
        a(f"v_readlane_b32 s82, v{vTS}, 32")
        a(f"v_readlane_b32 s83, v{vTS}, 48")
        a("s_add_u32 s48, s48, s49")
        a("s_add_u32 s82, s82, s83")
        a("s_add_u32 s48, s48, s82")
        a("s_lshr_b32 s48, s48, 6")
        a(f"s_sub_i32 s48, s{sT}, s48")
        if STAMP and OPT.get('lagst'): a(f"s_mov_b32 s{71 + k}, s48")
        bias = int(OPT.get('BIAS', 0))
        if bias and k >= int(OPT.get('BK', 0)):
            a("s_bitcmp1_b32 s2, 3")
            a(f"s_mov_b32 s49, {bias}")
            a(f"s_cselect_b32 s49, {-bias}, s49")
            a("s_add_i32 s48, s48, s49")
        if OPT.get('GNN'):
            a("s_cmp_lt_i32 s48, 0")
            a(f"s_mov_b32 s49, {65536 // GN}")
            a(f"s_cselect_b32 s49, {65536 // int(OPT['GNN'])}, s49")
            a("s_mul_i32 s48, s48, s49")
        else:
            a(f"s_mul_i32 s48, s48, {65536 // GN}")
        a("s_add_i32 s48, s48, 0x8000")
        a("s_ashr_i32 s48, s48, 16")
        a(f"s_sub_i32 s81, s81, s{sAdj}")
        a(f"s_sub_i32 s48, s48, s81")
        a(f"s_min_i32 s48, s48, {lim * 2 + 2 if TH2 else lim}")
        a(f"s_max_i32 s{sAdj}, s48, {-lim if not OPT.get('noslow') else 0}")
    D0 = int(OPT.get('D0', 8))
    O0 = int(OPT.get('O0', 22))
    add(16, flush0)
    C0 = int(OPT.get('C0', 18))
    C1 = int(OPT.get('C1', 28))
    add(C1, cnt_ld, 1, True)
    add(C0, comb0, 1)
    add(C0 + 2, lambda: signal(sFl, 4), 1)
    if SLOW & 2:
        add(18, lambda: (a(f"s_cmp_lt_u32 s{sW}, 2"), a(f"s_cselect_b32 s{sWsel}, 3, s{sWsel}")))
    if OPT.get('TLB'):
        def tlb():
            a(f"buffer_load_dword v{vDum}, v{vVoff}, s[{sK}:{sK+3}], s{sB1} offen nt")
            a(f"buffer_load_dword v{vDum}, v{vVoff}, s[{sV}:{sV+3}], s{sB1} offen nt")
        add(int(OPT['TLB']), tlb, 2)
    add(C1 + 2, cnt_check, 0, True)
    CP = [int(t) for t in OPT['CP'].split(',')] if OPT.get('CP') else []
    LD = int(OPT.get('LD', 3))
    for k, c in enumerate(CP):
        add(c, (lambda k=k: pub(k)), 1)
        add(c + LD, (lambda k=k: ts_ld(k)), 1)
        lim = (CP[k+1] - c) if k + 1 < len(CP) else 32 - (c + LD + 1)
        add(c + LD + 1, (lambda k=k, lim=lim: calc(k, lim)))
    DM = int(OPT.get('DM', 4))
    PF = int(OPT.get('PF', 0))
    def wo_pf(m):
        a("s_and_b32 s48, s2, 7")
        a("s_lshl_b32 s48, s48, 20")
        a(f"s_lshl_b32 s49, s{sW}, 18")
        a("s_add_u32 s48, s48, s49")
        a("s_lshr_b32 s49, s2, 4")
        a("s_lshl_b32 s49, s49, 10")
        a("s_add_u32 s48, s48, s49")
        a(f"s_add_u32 s48, s48, 0x{m*16384:x}")
        a(f"buffer_load_dwordx4 {vr(vAcc)}, v{vVoff}, s[{sWO}:{sWO+3}], s48 offen{OPT.get('pfflag', ' nt')}")
    m = 0; n = D0
    while m < 16:
        c_ = 0
        while m < 16 and c_ < DM and sum(v for _, v, _a in sn[n] if _a != 'I') < NX and (not PF or sum(v for _, v, _a in sn[n - PF] if _a is not True) < NX):
            add(n, (lambda m=m: wo_dma(m, 1)), 1, True)
            if PF: add(n - PF, (lambda m=m: wo_pf(m)), 1, 'I')
            m += 1; c_ += 1
        n += 1
    add(n + 1, wo_sig, 0, True)
    add(n + 3, lambda: lds_spin(16, vCntG), 0, True)
    n += 3
    for j in range(2):
        while n in (16, C0): n += 1
        add(n, (lambda j=j: wo_tr(4*j, 4*j + 4)), 0, True)
        n += 1
    trend = n
    assert not sn[31] and trend <= C1
    Ws = [int(t) for t in OPT.get('Ws', f"{W-1},{W},{W+1}").split(',')]
    a(f"s_mov_b32 s{sAdj}, 0")
    if OPT.get('asym'):
        a("s_add_u32 s48, s2, 2")
        a("s_bitcmp1_b32 s48, 2")
        a(f"s_cselect_b32 s{sAdj}, {OPT['asym']}, 0")
    a.label("L_loop")
    if STAMP and OPT.get('itst'):
        a("s_memrealtime s[68:69]")
        a("s_waitcnt lgkmcnt(0)")
        a(f"s_mov_b32 m0, s{sIter}")
        a("s_nop 0")
        a(f"v_writelane_b32 v255, s68, m0")
        a(f"s_add_u32 m0, s{sIter}, 32")
        a("s_nop 0")
        a(f"v_writelane_b32 v255, s{sAdj}, m0")
    if STAMP and OPT.get('lst'):
        for k, n in enumerate([int(t) for t in OPT['lst'].split(',')]):
            a(f"s_cmp_lg_u32 s{sIter}, {n}")
            a(f"s_cbranch_scc1 L_lst{k}")
            a.stamp(1 + k)
            a.label(f"L_lst{k}")
    a(f"s_cmp_lt_i32 s{sAdj}, 0")
    a("s_cbranch_scc1 L_b0")
    if TH2:
        a(f"s_cmp_gt_i32 s{sAdj}, {TH2}")
        a("s_cbranch_scc1 L_b4")
        Ws = Ws + [0, W + 2]
    a(f"s_cmp_gt_i32 s{sAdj}, 0")
    a("s_cbranch_scc1 L_b2")
    for k in ((1, 0, 4, 2) if TH2 else (1, 0, 2)):
        a.label(f"L_b{k}")
        ml = MemSeq(a, pre_kv=8)
        def ex_loop(k=k, ml=ml):
            a(f"s_mov_b32 s{sWsel}, {k}")
            if k != 1: a(f"s_add_i32 s{sAdj}, s{sAdj}, {1 - k if k < 4 else -2}")
            a(f"s_branch L_snip")
            a.label(f"L_ret{k}")
            for _ in range(NX): ml.issue(None)
        iteration(ml, list(range(8)), extras=ex_loop, W=Ws[k])
        a(f"s_add_u32 s{sIter}, s{sIter}, 1")
        a(f"s_cmp_lt_u32 s{sIter}, 31")
        a(f"s_cbranch_scc1 L_loop")
        if k != 2: a("s_branch L_last")
    a.label("L_last")
    if STAMP and OPT.get('itst'):
        a("s_memrealtime s[68:69]")
        a("s_waitcnt lgkmcnt(0)")
        a(f"v_writelane_b32 v255, s68, 31")
    ml = MemSeq(a, pre_kv=8)
    o0 = iteration(ml, list(range(8)), extras=x_addr, static_n=31, W=int(OPT.get('WL', W)),
                   kload=lambda m_, j: m_.issue(o_txt(j, 0, bK), kv=True))
    a.label("L_tail")
    a.stamp(7)
    TE = int(OPT.get('TE', 0))
    PL = int(OPT.get('PL', 0))
    acc0, acc1 = vAcc, 200
    if TE == 1:
        for q in range(8): o_ld(q, 1, vB)
    combine_addr(1, 8, 9)
    flush()
    a("s_waitcnt lgkmcnt(0)")
    a("s_barrier")
    if OPT.get('tst'): a.stamp(2)
    a(f"s_cmp_ge_u32 s{sW}, 2")
    a("s_cbranch_scc1 L_t1b")
    combine(1, 8, 9, 10)
    if OPT.get('tst'): a.stamp(3)
    a(f"s_waitcnt vmcnt({9 if TE == 1 else 1})")
    if TE == 3:
        for q in range(8): o_ld(q, 1, vB)
    a("s_branch L_t1")
    a.label("L_t1b")
    if OPT.get('tst'): a.stamp(3)
    a(f"s_waitcnt vmcnt({8 if TE == 1 else 0})")
    a.label("L_t1")
    if TE == 2:
        for q in range(8): o_ld(q, 1, vB)
    for q in range(8):
        frag_mfma(q, bK, q == 0, acc0)
    for r in range(16):
        a(f"v_mov_b32 v{acc1 + r}, 0")
    if TE == 0:
        for q in range(8): o_ld(q, 1, vB)
    a(f"s_cmp_lt_u32 s{sW}, 2")
    a("s_cbranch_scc1 L_t2")
    if TE == 3:
        for q in range(8): o_ld(q, 1, vB)
    if PL != 2: x_put(0, acc0)
    a("s_waitcnt vmcnt(0)")
    a("s_branch L_t3")
    a.label("L_t2")
    if not PL:
        x_get(0, acc0)
    if PL == 2: x_put(0, acc0)
    a(f"s_waitcnt vmcnt({0 if PL else 4})")
    a.label("L_t3")
    if OPT.get('tst'): a.stamp(4)
    a(f"s_mov_b32 s{sSpin}, {OPT.get('SPIN', '0x20000')}")
    a(f"s_mov_b32 s{sBad}, 15")
    a.label("L_retry")
    for gq in range(4):
        R = vB + 8*gq
        a(f"s_bitcmp1_b32 s{sBad}, {gq}")
        a(f"s_cbranch_scc0 L_rc{gq}")
        a(f"v_max3_u32 v8, v{R}, v{R+1}, v{R+2}")
        a(f"v_max3_u32 v9, v{R+3}, v{R+4}, v{R+5}")
        a(f"v_max3_u32 v8, v8, v{R+6}, v{R+7}")
        a(f"v_max_u32 v8, v8, v9")
        a("v_cmp_eq_u32 vcc, -1, v8")
        a(f"s_cbranch_vccnz L_bad{gq}")
        frag_mfma(2*gq, vB, False, acc1)
        frag_mfma(2*gq + 1, vB, False, acc1)
        a(f"s_bitset0_b32 s{sBad}, {gq}")
        a.label(f"L_rc{gq}")
    a(f"s_cmp_eq_u32 s{sBad}, 0")
    a("s_cbranch_scc1 L_alldone")
    a(f"s_sub_u32 s{sSpin}, s{sSpin}, 1")
    a("s_waitcnt vmcnt(0)")
    a(f"s_cmp_lg_u32 s{sSpin}, 0")
    a("s_cbranch_scc1 L_retry")
    a.label("L_alldone")
    if OPT.get('tst') and STAMP: a(f"s_mov_b32 s76, s{sSpin}")
    if OPT.get('tst'): a.stamp(5)
    a(f"s_cmp_ge_u32 s{sW}, 2")
    a("s_cbranch_scc1 L_t4")
    x_get(1, acc1)
    if PL == 1: x_get(0, acc0)
    a.stamp(8)
    a("s_branch L_fin")
    a.label("L_t4")
    x_put(1, acc1)
    if PL == 2: x_get(0, acc0)
    a.stamp(8)
    for gg in range(8):
        p_ld(gg, 0, bK)
    a.label("L_red")
    a(f"s_mov_b32 s{sSelLo}, 0x0c0c0400")
    a(f"s_mov_b32 s{sSelHi}, 0x04000c0c")
    a(f"s_mov_b32 s{sC}, 0xffffff00")
    def reduce(ph, R, firstwait):
        lc, lo = a.newlabel("c"), a.newlabel("o")
        a(f"s_mov_b32 s{sBad}, 0xff")
        a(f"s_mov_b32 s{sSpin}, {OPT.get('SPIN', '0x20000')}")
        if firstwait is not None: a(f"s_waitcnt vmcnt({firstwait})")
        a.label(lc)
        for gg in range(8):
            ln = a.newlabel("n")
            a(f"s_bitcmp1_b32 s{sBad}, {gg}")
            a(f"s_cbranch_scc0 {ln}")
            a(f"v_perm_b32 v8, v{R+4*gg+1}, v{R+4*gg}, s{sSelLo}")
            a(f"v_perm_b32 v9, v{R+4*gg+3}, v{R+4*gg+2}, s{sSelHi}")
            a("v_or_b32 v8, v8, v9")
            a(f"v_cmp_ne_u32 vcc, s{sTag}, v8")
            a(f"s_cbranch_vccnz {ln}x")
            a(f"s_bitset0_b32 s{sBad}, {gg}")
            for r in range(4):
                a(f"v_and_b32 v{R+4*gg+r}, s{sC}, v{R+4*gg+r}")
            a(f"s_branch {ln}")
            a.label(ln + "x")
            p_ld(gg, ph, R)
            a.label(ln)
        a(f"s_cmp_eq_u32 s{sBad}, 0")
        a(f"s_cbranch_scc1 {lo}")
        a(f"s_sub_u32 s{sSpin}, s{sSpin}, 1")
        a("s_waitcnt vmcnt(0)")
        if OPT.get('SL2'): a(f"s_sleep {OPT['SL2']}")
        a(f"s_cmp_lg_u32 s{sSpin}, 0")
        a(f"s_cbranch_scc1 {lc}")
        a.label(lo)
        for (x, y) in ((0, 1), (2, 3), (4, 5), (6, 7), (0, 2), (4, 6), (0, 4)):
            for r in range(4):
                a(f"v_add_f32 v{R + 4*x + r}, v{R + 4*x + r}, v{R + 4*y + r}")
        a(f"v_cvt_pk_bf16_f32 v{R+4}, v{R}, v{R+1}")
        a(f"v_cvt_pk_bf16_f32 v{R+5}, v{R+2}, v{R+3}")
        a(f"buffer_store_dwordx2 v[{R+4}:{R+5}], v{vOut}, s[{sOUT}:{sOUT+3}], s{sOutB} offen{OPT.get('outflag','')}")
    a(f"s_mov_b32 s{sSpin}, {OPT.get('SPIN', '0x20000')}")
    reduce(0, bK, 0)
    a.label("L_fin")
    a.stamp(9)
    a.stamp_store(18, 0x200000, 10)
    if STAMP and OPT.get('itst'):
        a("s_lshl_b32 s92, s2, 2")
        a("s_add_u32 s92, s92, s40")
        a("s_lshl_b32 s92, s92, 8")
        a("s_add_u32 s92, s92, 0x220000")
        a("v_and_b32 v250, 63, v0")
        a("v_lshlrev_b32 v250, 2, v250")
        a("buffer_store_dword v255, v250, s[88:91], s92 offen")
    a.label("L_end")
    a("s_endpgm")
    for gq in range(4):
        a.label(f"L_bad{gq}")
        o_ld(2*gq, 1, vB)
        o_ld(2*gq + 1, 1, vB)
        a(f"s_branch L_rc{gq}")
    a.label("L_snip")
    for tab in ("A",):
        a.label(f"L_snip{tab}")
        for n in sorted(sn):
            items = [(f, v) for f, v, act in sn[n] if (act is False) or (act is True and tab == "A") or (act == 'I' and tab == "I")]
            if not items: continue
            a(f"s_cmp_lg_u32 s{sIter}, {n}")
            a(f"s_cbranch_scc1 L_sn{tab}{n}x")
            nv = sum(v for _, v in items)
            assert nv <= NX, (n, nv)
            dummy(NX - nv)
            for f, _ in items: f()
            a(f"s_branch L_snret")
            a.label(f"L_sn{tab}{n}x")
        dummy(NX)
    a.label("L_snret")
    a(f"s_cmp_eq_u32 s{sWsel}, 1")
    a("s_cbranch_scc1 L_ret1")
    a(f"s_cmp_eq_u32 s{sWsel}, 0")
    a("s_cbranch_scc1 L_ret0")
    if SLOW:
        a(f"s_cmp_eq_u32 s{sWsel}, 3")
        a("s_cbranch_scc1 L_ret3")
    if TH2:
        a(f"s_cmp_eq_u32 s{sWsel}, 4")
        a("s_cbranch_scc1 L_ret4")
    a("s_branch L_ret2")

def kd(a, name):
    a.raw(".p2align 6")
    a.raw(f".amdhsa_kernel {name}")
    a.raw("  .amdhsa_next_free_vgpr 512")
    a.raw("  .amdhsa_next_free_sgpr 102")
    a.raw("  .amdhsa_accum_offset 256")
    a.raw("  .amdhsa_group_segment_fixed_size 0")
    a.raw("  .amdhsa_kernarg_size 64")
    a.raw("  .amdhsa_user_sgpr_count 2")
    a.raw("  .amdhsa_user_sgpr_kernarg_segment_ptr 1")
    a.raw("  .amdhsa_system_sgpr_workgroup_id_x 1")
    a.raw(".end_amdhsa_kernel")

def main(path):
    a = Asm()
    a.raw(HEADER.rstrip())
    a.raw(f"; @launch grid=(256,1,1) block=(256,1,1) lds={LDS_SIZE}")
    a.raw('.amdgcn_target "amdgcn-amd-amdhsa--gfx950"')
    a.raw(".text")
    gen_k1(a)
    a.raw('.section .rodata,"a"')
    kd(a, K1)
    open(path, "w").write(a.text())

if __name__ == "__main__":
    args = sys.argv[1:]
    if "--stamp" in args:
        STAMP = True
        args.remove("--stamp")
    rest = []
    for x in args:
        if "=" in x:
            k, v = x.split("=", 1)
            OPT[k] = v.replace("+", " ")
        else:
            rest.append(x)
    main(rest[0] if rest else "standalone__mha_block_cached__sampling.s")
```

```python
import sys, struct, math

def f32hex(x):
    return "0x%08x" % struct.unpack("<I", struct.pack("<f", x))[0]

STAMP = False
OPT = {}
class Asm:
    def __init__(self):
        self.L = []
        self.uid = 0
    def stamp(self, idx):
        if not STAMP: return
        self("s_memrealtime s[68:69]")
        self("s_waitcnt lgkmcnt(0)")
        self(f"s_mov_b32 s{70 + idx}, s68")
    def stamp_store(self, wsptr, base, n):
        if not STAMP: return
        self(f"s_mov_b32 s88, s{wsptr}")
        self(f"s_mov_b32 s89, s{wsptr+1}")
        self("s_mov_b32 s90, 0x40000000")
        self("s_mov_b32 s91, 0x00020000")
        self("s_lshl_b32 s92, s2, 3")
        self("s_add_u32 s92, s92, s40")
        self("s_lshl_b32 s92, s92, 6")
        self(f"s_add_u32 s92, s92, 0x{base:x}")
        self("v_mov_b32 v250, 0")
        self("s_getreg_b32 s93, hwreg(HW_REG_XCC_ID)")
        self("v_mov_b32 v251, s93")
        self(f"buffer_store_dword v251, v250, s[88:91], s92 offen offset:{4*n}")
        self("s_nop 1")
        self("s_getreg_b32 s93, hwreg(HW_REG_HW_ID)")
        self("v_mov_b32 v251, s93")
        self(f"buffer_store_dword v251, v250, s[88:91], s92 offen offset:{4*n+4}")
        self("s_nop 1")
        for i in range(n):
            self(f"v_mov_b32 v251, s{70+i}")
            self(f"buffer_store_dword v251, v250, s[88:91], s92 offen offset:{4*i}")
            self("s_nop 1")
    def __call__(self, s):
        self.L.append("  " + s)
    def label(self, s):
        self.L.append(s + ":")
    def newlabel(self, p):
        self.uid += 1
        return f"L_{p}_{self.uid}"
    def raw(self, s):
        self.L.append(s)
    def text(self):
        return "\n".join(self.L) + "\n"

class MemSeq:
    def __init__(self, a, pre_kv=0):
        self.a = a; self.n = pre_kv; self.done = 0; self.kv = list(range(pre_kv)); self.slow = -1
    def issue(self, text, kv=False, slow=False):
        if text is not None: self.a(text)
        idx = self.n; self.n += 1
        if kv: self.kv.append(idx)
        if slow and self.slow < self.done: self.slow = idx
        return idx
    def wait_for(self, idx):
        if idx < self.done: return
        cnt = self.n - 1 - idx
        assert cnt <= 63, cnt
        self.a(f"s_waitcnt vmcnt({cnt})")
        self.done = idx + 1
    def pace(self, W):
        if len(self.kv) >= W:
            t = self.kv[-W]
            if self.slow >= self.done and t > self.slow: return
            self.wait_for(t)

def vr(b, n=4):
    return f"v[{b}:{b+n-1}]"
def ar(b, n=4):
    return f"a[{b}:{b+n-1}]"

HEADER = """; Kernarg layout for this problem (64 bytes, ptrs only, base s[0:1]):
"""

K1 = "standalone__mha_block_cached__sampling_kernel"

LDS_WO = 0
LDS_C = 32768
LDS_WQS = 0
LDS_XS = 65536
LDS_M = 98304
LDS_L = 100352
LDS_QF = 102400
LDS_CNT = 106496
LDS_X = 106496 + 64
LDS_SIZE = LDS_X + 16384
PR = 0x400000
QP = 0xC00000
WS_SIZE = QP + 0x1000000
FLQ = 0x300000
FLP = 0x310000

def gen_k1(a):
    W = int(OPT.get('W', 5))
    Wp = int(OPT.get('Wp', 5))
    Rn, Rd = [int(t) for t in OPT.get('R', '7/9').split('/')]
    vKoff, vVoff, vKoff2, vVoff2 = 1, 2, 3, 4
    vMc, vL, vT0, vT1 = 5, 6, 7, 20
    vS = 8
    vP = 16
    vAl, vT2, vT3 = 21, 22, 23
    vQ, vQ2 = 24, 32
    vO = 40
    vPT = 72
    vLdsO, vLdsM, vQF, vOne, vTr, vWoOff, vXoff, vWoff = 80, 81, 82, 83, 84, 85, 86, 87
    bK, bV = 88, 120
    vSR = 152
    vB = 168
    vAT = 232
    vCntL, vCntG, vDum = 248, 249, 252
    sX, sK, sV, sWQ, sWS, sWO, sOUT, sDBG, sNull = 20, 24, 28, 32, 36, 60, 64, 80, 96
    sWSo = 20
    sW, sH, sP_, sB1, sVoff, sKoff, sIter = 40, 41, 42, 43, 44, 45, 46
    sSelLo, sSelHi, sC, sBad, sSpin = 50, 51, 52, 53, 54
    sMask = 56
    sWoLd, sLb = 58, 59
    sXb, sWqb, sJ = 84, 85, 86
    vWoffB, vXt, vTq, vXrd = 253, 254, 216, 224
    sFl = 95
    sNon = 55
    vNon = 246
    sOld, sOst = 93, 94
    cscale = (128 ** -0.5) * math.log2(math.e)

    a.raw(f".globl {K1}")
    a.raw(".p2align 8")
    a.raw(f".type {K1},@function")
    a.label(K1)
    a("s_cmp_ge_u32 s2, 256")
    a("s_cbranch_scc1 L_end")
    a.stamp(0)
    a("s_load_dwordx16 s[4:19], s[0:1], 0")
    a("s_memrealtime s[90:91]")
    a("v_lshrrev_b32 v7, 6, v0")
    a("v_and_b32 v5, 63, v0")
    a("v_readfirstlane_b32 s40, v7")
    a("v_and_b32 v6, 15, v5")
    a("v_lshrrev_b32 v7, 4, v5")
    a("s_and_b32 s41, s2, 7")
    a("s_lshl_b32 s41, s41, 2")
    a("s_lshr_b32 s48, s2, 3")
    a("s_and_b32 s48, s48, 3")
    a("s_add_u32 s41, s41, s48")
    a("s_lshr_b32 s42, s2, 5")
    if OPT.get('map') == 'anti':
        a("s_lshr_b32 s41, s2, 3")
        a("s_and_b32 s42, s2, 7")
    t0, t1, t2, t3 = 240, 241, 242, 243
    a(f"v_and_b32 v{t0}, 3, v6")
    a(f"v_lshlrev_b32 v{t0}, 2, v{t0}")
    a(f"v_lshrrev_b32 v{t2}, 3, v6")
    a(f"v_and_b32 v{t3}, 7, v6")
    WQC = 5 if OPT.get('wqc') else 0
    a(f"v_lshlrev_b32 v{vWoff}, {16 - WQC}, v7")
    a(f"v_lshl_add_u32 v{vWoff}, v6, 4, v{vWoff}")
    a(f"v_lshlrev_b32 v{vXoff}, 17, v{t2}")
    a(f"v_lshl_add_u32 v{vXoff}, v{t3}, 11, v{vXoff}")
    a(f"v_lshl_add_u32 v{vXoff}, v7, 4, v{vXoff}")
    a(f"v_bfe_u32 v{t1}, v6, 2, 1")
    a(f"v_add_u32 v{t1}, v{t0}, v{t1}")
    a(f"v_lshlrev_b32 v{vKoff}, 8, v{t1}")
    a(f"v_lshl_add_u32 v{vKoff}, v{t2}, 6, v{vKoff}")
    a(f"v_lshl_add_u32 v{vKoff}, v7, 4, v{vKoff}")
    a(f"v_add_u32 v{vKoff2}, 0x1000, v{vKoff}")
    a(f"v_lshlrev_b32 v{vVoff}, 4, v5")
    a(f"v_add_u32 v{vVoff2}, 0x1000, v{vVoff}")
    a(f"s_lshl_b32 s{sXb}, s{sP_}, 14")
    a(f"s_lshl_b32 s48, s{sW}, 9")
    a(f"s_add_u32 s{sXb}, s{sXb}, s48")
    a(f"s_lshl_b32 s{sWqb}, s{sW}, {21 - WQC}")
    a(f"s_lshl_b32 s48, s{sH}, {18 if WQC else 8}")
    a(f"s_add_u32 s{sWqb}, s{sWqb}, s48")
    a(f"s_lshl_b32 s{sVoff}, s{sP_}, 5")
    a(f"s_add_u32 s{sVoff}, s{sVoff}, s{sH}")
    a(f"s_lshl_b32 s{sVoff}, s{sVoff}, 19")
    a(f"s_lshl_b32 s48, s{sW}, 13")
    a(f"s_add_u32 s{sVoff}, s{sVoff}, s48")
    a(f"s_add_u32 s{sB1}, s{sVoff}, 0x8000000")
    for (d, size) in ((sX, 16*8*1024*2), (sWQ, 1024*4096*2), (sK, 1 << 28), (sV, 1 << 28)):
        a(f"s_mov_b32 s{d+2}, 0x{size:x}")
        a(f"s_mov_b32 s{d+3}, 0x00020000")
    a(f"s_mov_b32 s{sSelLo}, 0x05040100")
    a(f"s_mov_b32 s{sSelHi}, 0x07060302")
    a("s_waitcnt lgkmcnt(0)")
    if OPT.get('wsoff'):
        a(f"s_add_u32 s18, s18, {OPT['wsoff']}")
        a("s_addc_u32 s19, s19, 0")
    for (d, src) in ((sX, 4), (sWQ, 10), (sK, 6), (sV, 8)):
        a(f"s_mov_b32 s{d}, s{src}")
        a(f"s_mov_b32 s{d+1}, s{src+1}")

    a(f"s_mov_b32 s{sDBG}, s16")
    a(f"s_mov_b32 s{sDBG+1}, s17")
    a(f"s_mov_b32 s{sDBG+2}, 256")
    a(f"s_mov_b32 s{sDBG+3}, 0x00020000")
    a(f"v_mov_b32 v{vNon+1}, 0")
    a(f"s_or_b32 s48, s2, s{sW}")
    a("s_cmp_lg_u32 s48, 0")
    a("s_cbranch_scc1 L_nopub")
    a(f"s_or_b32 s{sNon}, s90, 1")
    a(f"v_mov_b32 v{vNon}, s{sNon}")
    a("s_mov_b64 exec, 1")
    a(f"buffer_store_dword v{vNon}, v{vNon+1}, s[{sDBG}:{sDBG+3}], 0 offen sc1")
    a("s_mov_b64 exec, -1")
    a.label("L_nopub")
    if OPT.get('est'): a.stamp(3)
    ms = MemSeq(a)
    NSL = 3
    def xreg(ks): return 8 + 4*ks
    def slot(ks): return 152 + (ks % NSL)*32

    def ld_K(ms, dst, j, soff):
        T, s = j >> 2, j & 3
        return ms.issue(f"buffer_load_dwordx4 {dst}, v{vKoff if T == 0 else vKoff2}, s[{sK}:{sK+3}], s{soff} offen offset:{(s>>1)*512 + (s&1)*128} nt", kv=True)
    def ld_V(ms, dst, i, soff):
        return ms.issue(f"buffer_load_dwordx4 {dst}, v{vVoff if i < 4 else vVoff2}, s[{sV}:{sV+3}], s{soff} offen offset:{(i&3)*1024} nt", kv=True)

    stage = []
    for b in range(4):
        for j in range(8): stage.append(('K', b, j))
        for j in range(8): stage.append(('V', b, j))
    for j in range(8): stage.append(('K', 4, j))
    st = {'pos': 0, 'idx': {}}
    def stage_one(Wx):
        if st['pos'] >= len(stage): return False
        kind, b, j = stage[st['pos']]; st['pos'] += 1
        if len(ms.kv) >= Wx and not st.get('late'):
            st['late'] = True
            late_setup()
        ms.pace(Wx)
        if kind == 'K':
            dst = ar(64*b + 4*j) if b < 4 else vr(bK + 4*j)
            st['idx'][(kind, b, j)] = ld_K(ms, dst, j, sVoff)
        else:
            st['idx'][(kind, b, j)] = ld_V(ms, ar(64*b + 32 + 4*j), j, sVoff)
            if j == 7:
                a(f"s_add_u32 s{sVoff}, s{sVoff}, 0x8000")
        return True

    def perm_c(src, c):
        for hb, sel in ((0, sSelLo), (1, sSelHi)):
            for t in range(4):
                a(f"v_perm_b32 v{vPT + hb*4 + t}, v{src[2*t+1] + c}, v{src[2*t] + c}, s{sel}")
    def mfma_c(bop, c, first):
        a("s_nop 1")
        for hb in range(2):
            j = 2*c + hb
            cc = "0" if first else vr(vO + 4*j)
            a(f"v_mfma_f32_16x16x32_bf16 {vr(vO + 4*j)}, {vr(vPT + hb*4)}, {vr(bop)}, {cc}")
    def reset_state():
        for r in range(32):
            a(f"v_mov_b32 v{vO + r}, 0")
        a(f"v_mov_b32 v{vMc}, 0xff800000")
        a(f"v_mov_b32 v{vL}, 0")

    def late_setup():
        a(f"v_lshl_add_u32 v{t1}, v7, 4, v{t3}")
        a(f"v_lshlrev_b32 v{t1}, 4, v{t1}")
        a(f"v_lshl_add_u32 v{t1}, v{t2}, 10, v{t1}")
        a(f"v_add_u32 v{vQF}, 0x{LDS_QF:x}, v{t1}")
        a(f"v_mov_b32 v{vCntL}, 0x{LDS_CNT:x}")
        a(f"v_mov_b32 v{vOne}, 0")
        a(f"ds_write_b32 v{vCntL}, v{vOne}")
        a(f"ds_write_b32 v{vCntL}, v{vOne} offset:4")
        a(f"ds_write_b32 v{vCntL}, v{vOne} offset:8")
        a(f"ds_write_b32 v{vCntL}, v{vOne} offset:12")
        a(f"ds_write_b32 v{vCntL}, v{vOne} offset:16")
        a(f"v_lshl_add_u32 v{t1}, v{t3}, 2, v{vCntL}")
        a(f"ds_write_b32 v{t1}, v{vOne} offset:32")
        a(f"v_lshl_add_u32 v{t1}, v7, 3, v{t3}")
        a(f"v_lshlrev_b32 v{t1}, 4, v{t1}")
        a(f"s_lshl_b32 s48, s{sW}, 12")
        a(f"s_add_u32 s48, s48, 0x{LDS_C:x}")
        a(f"v_add_u32 v{vLdsO}, s48, v{t1}")
        a(f"s_lshl_b32 s48, s{sW}, 8")
        a(f"s_add_u32 s48, s48, 0x{LDS_M:x}")
        a(f"v_lshlrev_b32 v{t1}, 2, v5")
        a(f"v_add_u32 v{vLdsM}, s48, v{t1}")
        a(f"v_lshrrev_b32 v{t1}, 3, v5")
        a(f"v_lshlrev_b32 v{vWoOff}, 11, v{t1}")
        a(f"v_lshl_add_u32 v{vWoOff}, v{t3}, 4, v{vWoOff}")
        a(f"v_and_b32 v{t1}, 1, v7")
        a(f"v_lshlrev_b32 v{vTr}, 5, v{t1}")
        a(f"v_xor_b32 v{vWoOff}, v{vWoOff}, v{vTr}")
        a(f"v_lshl_add_u32 v{t1}, v{t1}, 1, v{t2}")
        a(f"v_lshlrev_b32 v{vTr}, 5, v{t1}")
        a(f"v_lshrrev_b32 v{t1}, 2, v6")
        a(f"v_lshl_add_u32 v{t1}, v7, 3, v{t1}")
        a(f"v_lshl_add_u32 v{vTr}, v{t1}, 7, v{vTr}")
        a(f"v_lshl_add_u32 v{vTr}, v{t0}, 1, v{vTr}")
        a(f"s_lshl_b32 s{sLb}, s{sW}, 14")
        a(f"s_lshr_b32 s48, s{sW}, 1")
        a("s_lshl_b32 s48, s48, 15")
        a(f"s_add_u32 s{sLb}, s{sLb}, s48")
        a("s_lshl_b32 s49, s48, 1")
        a(f"v_add_u32 v{vTr}, s49, v{vTr}")
        a(f"v_mov_b32 v{vOne}, 1")
        a(f"s_mov_b32 s{sC}, {f32hex(cscale)}")
        a(f"s_mov_b32 s{sMask}, 0x00ff00ff")
        a(f"s_mov_b32 s{sMask+1}, 0x00ff00ff")
        for (d, src, size) in ((sWS, 18, WS_SIZE), (sWO, 12, 4096*1024*2), (sOUT, 14, 128*1024*2), (sNull, 18, 0)):
            a(f"s_mov_b32 s{d}, s{src}")
            a(f"s_mov_b32 s{d+1}, s{src+1}")
            a(f"s_mov_b32 s{d+2}, 0x{size:x}")
            a(f"s_mov_b32 s{d+3}, 0x00020000")
        a("s_and_b32 s48, s2, 7")
        a(f"s_lshl_b32 s{sWoLd}, s48, 20")
        a(f"s_lshl_b32 s{sOld}, s48, 15")
        a(f"s_lshl_b32 s48, s{sW}, 18")
        a(f"s_add_u32 s{sWoLd}, s{sWoLd}, s48")
        a("s_lshr_b32 s48, s2, 4")
        a("s_lshl_b32 s48, s48, 7")
        a(f"s_add_u32 s{sWoLd}, s{sWoLd}, s48")
        a("s_and_b32 s48, s2, 8")
        a("s_lshl_b32 s48, s48, 19")
        a(f"s_add_u32 s{sOld}, s{sOld}, s48")
        a(f"s_and_b32 s48, s{sW}, 1")
        a("s_lshl_b32 s48, s48, 21")
        a(f"s_add_u32 s{sOld}, s{sOld}, s48")
        a(f"s_and_b32 s48, s{sW}, 2")
        a("s_lshl_b32 s48, s48, 18")
        a(f"s_add_u32 s{sOld}, s{sOld}, s48")
        a(f"s_add_u32 s{sOld}, s{sOld}, 0x{QP:x}")
        a(f"s_lshl_b32 s{sOst}, s2, 15")
        a(f"s_add_u32 s48, s{sP_}, 3")
        a("s_and_b32 s48, s48, 3")
        a("s_lshl_b32 s48, s48, 13")
        a(f"s_add_u32 s{sOst}, s{sOst}, s48")
        a(f"s_add_u32 s{sOst}, s{sOst}, 0x{QP:x}")
        a(f"s_and_b32 s48, s{sW}, 1")
        a("s_lshl_b32 s48, s48, 10")
        a(f"s_add_u32 s{sOst}, s{sOst}, s48")
        FS = int(OPT.get('FS', 0))
        if FS:
            for r in range(4):
                a(f"v_mov_b32 v{232 + r}, -1")
            a(f"s_lshr_b32 s48, s{sW}, 1")
            a("s_lshl_b32 s48, s48, 11")
            a(f"s_add_u32 s48, s48, s{sOst}")
            if FS == 2:
                a(f"s_cmp_ge_u32 s{sW}, 2")
                a(f"s_cselect_b32 s{sNull+2}, 0x{WS_SIZE:x}, 0")
                ms.issue(f"buffer_store_dwordx4 {vr(232)}, v{vVoff}, s[{sNull}:{sNull+3}], s48 offen sc1")
                a(f"s_mov_b32 s{sNull+2}, 0")
            else:
                ms.issue(f"buffer_store_dwordx4 {vr(232)}, v{vVoff}, s[{sWS}:{sWS+3}], s48 offen sc1")
        PT = int(OPT.get('PT', 0))
        if PT:
            for ph in range(2 - PT, 2):
                a(f"s_add_u32 s48, s{sP_}, {1 + ph}")
                a("s_and_b32 s48, s48, 3")
                a("s_lshl_b32 s48, s48, 13")
                a("s_lshl_b32 s49, s2, 15")
                a("s_add_u32 s48, s48, s49")
                a(f"s_lshl_b32 s49, s{sW}, 11")
                a("s_add_u32 s48, s48, s49")
                a(f"s_add_u32 s48, s48, 0x{QP:x}")
                for k_ in range(2):
                    ms.issue(f"buffer_store_dwordx4 {vr(232)}, v{vVoff}, s[{sWS}:{sWS+3}], s48 offen offset:{k_*1024} sc1")

    def prologue(pfx):
        def O(k, d=None): return OPT.get(pfx + k, OPT.get(k, d))
        Wp = int(O('Wp', 5))
        NSL = int(O('NSL', 3))
        slots = [88, 120, 152, 184][4 - NSL:]
        qa, qb = [int(t) for t in O('QR', '4/3').split('/')]
        seq = [('s',)] * int(O('KF', 0))
        qlist = [('q', n, e) for n in range(8) for e in range(9)]
        Q0 = int(O('Q0', 0))
        seq += qlist[:Q0]
        accum = 0
        for it_ in qlist[Q0:]:
            seq.append(it_)
            accum += qb
            while accum >= qa:
                seq.append(('s',)); accum -= qa
        D = int(O('QD', 10))
        seq += [('s',)] * (D + 4)
        sched = {}
        qidx = {}
        endpos = {}
        for t, it_ in enumerate(seq):
            if it_[0] == 'q' and it_[2] == 8:
                for c in range(4): sched.setdefault(t + D + c, []).append((it_[1], c))
        donec = set()
        for t, it_ in enumerate(seq):
            if t == int(O('LS', 1000)) and not st.get('late'):
                st['late'] = True
                late_setup()
            if it_[0] == 's':
                assert NSL < 4 or st['pos'] < 64 or (4, 3) in donec
                stage_one(Wp if t >= int(O('QW0', 0)) else 99)
            else:
                _, n, e = it_
                if e == 0:
                    a(f"s_add_u32 s48, s{sP_}, {n}")
                    a("s_and_b32 s48, s48, 7")
                    a(f"s_lshl_b32 s47, s48, {18 - WQC}")
                    a(f"s_add_u32 s47, s47, s{sWqb}")
                    a("s_lshl_b32 s48, s48, 6")
                    a(f"s_add_u32 s48, s48, s{sXb}")
                    qidx[(n, e)] = ms.issue(f"buffer_load_dwordx4 {vr(8 + 4*n)}, v{vXoff}, s[{sX}:{sX+3}], s48 offen{OPT.get('xflag','')}")
                else:
                    assert n < NSL or (n - NSL, 3) in donec, (n, e)
                    if e > 1: a(f"s_add_u32 s47, s47, 0x{0x2000 >> WQC:x}")
                    qidx[(n, e)] = ms.issue(f"buffer_load_dwordx4 {vr(slots[n % NSL] + 4*(e-1))}, v{vWoff}, s[{sWQ}:{sWQ+3}], s47 offen{OPT.get('wqflag0', OPT.get('wqflag','')) if n == 0 else OPT.get('wqflag','')}")
            for (n, c) in sched.get(t, []):
                ms.wait_for(qidx[(n, 8)])
                if OPT.get('xst') and c == 0 and n in (0, 2, 4, 6): a.stamp(3 + n // 2)
                perm_c([slots[n % NSL] + 4*i for i in range(8)], c)
                mfma_c(8 + 4*n, c, n == 0)
                donec.add((n, c))
        assert len(donec) == 32
        if not st.get('late'):
            st['late'] = True
            late_setup()
        a.stamp(1)
        a(f"s_lshl_b32 s48, s{sW}, 13")
        a(f"v_add_u32 v8, s48, v{vVoff}")
        a(f"s_lshl_b32 s48, s{sW}, 11")
        a(f"v_add_u32 v9, s48, v{vVoff}")
        a(f"v_lshlrev_b32 v10, 10, v7")
        a(f"v_lshl_add_u32 v10, v6, 4, v10")
        a(f"s_lshl_b32 s48, s{sW}, 2")
        a(f"s_add_u32 s48, s48, 0x{LDS_QF:x}")
        a(f"v_add_u32 v10, s48, v10")
        a(f"s_mov_b32 s{sWSo}, s18")
        a(f"s_mov_b32 s{sWSo+1}, s19")
        a(f"s_cmp_lt_u32 s{sW}, 2")
        a(f"s_cselect_b32 s{sWSo+2}, 0x{WS_SIZE:x}, 0")
        a("s_nop 7")
        for j in range(8):
            a(f"ds_write_b128 v8, {vr(vO + 4*j)} offset:{j*1024}")
        for i in range(int(O('SB', 2))): stage_one(Wp)
        a("s_waitcnt lgkmcnt(0)")
        a("s_barrier")
        for ww in range(4):
            for tt in range(2):
                a(f"ds_read_b128 {vr(vO + (ww*2+tt)*4)}, v9 offset:{ww*8192 + tt*1024}")
        for i in range(int(O('SC', 1))): stage_one(Wp)
        a("s_waitcnt lgkmcnt(0)")
        for r in range(8):
            a(f"v_add_f32 v{vO + r}, v{vO + r}, v{vO + 8 + r}")
            a(f"v_add_f32 v{vO + 16 + r}, v{vO + 16 + r}, v{vO + 24 + r}")
        for r in range(8):
            a(f"v_add_f32 v{vO + r}, v{vO + r}, v{vO + 16 + r}")
        for r in range(4):
            a(f"v_cvt_pk_bf16_f32 v{12 + r}, v{vO + r}, v{vO + 4 + r}")
        for r in range(4):
            a(f"ds_write_b32 v10, v{12 + r} offset:{r*256}")
        for i in range(int(O('SD', 1))): stage_one(Wp)
        a("s_waitcnt lgkmcnt(0)")
        a("s_barrier")
        for ph in range(2):
            for sp in range(2):
                a(f"ds_read_b128 {vr(vQ + ph*8 + sp*4)}, v{vQF} offset:{sp*2048 + ph*128}")
        reset_state()
        a("s_waitcnt lgkmcnt(0)")
        a.stamp(2)
        WF = int(O('WF', W))
        while stage_one(WF if st['pos'] < 64 else W): pass
        a("s_waitcnt vmcnt(8)")
    AB = OPT.get('AB')
    if AB:
        a(f"s_bitcmp1_b32 s2, {AB}")
        a("s_cbranch_scc0 L_pA")
        prologue('B_')
        a("s_branch L_pJ")
        a.label("L_pA")
        ms.__init__(a)
        st.clear(); st.update({'pos': 0, 'idx': {}})
    prologue('A_')
    a.label("L_pJ")
    ms.__init__(a, pre_kv=8)
    for k_ in list(st['idx']): st['idx'][k_] = -1
    for j in range(8): st['idx'][('K', 4, j)] = j
    vNon = 255
    nid = {}
    def get_nonce():
        ms.wait_for(nid['x'])
        a(f"s_mov_b32 s{sSpin}, {OPT.get('SPIN', '0x20000')}")
        a.label("L_nonp")
        a(f"v_readfirstlane_b32 s{sNon}, v{vNon}")
        a(f"s_cmp_lg_u32 s{sNon}, 0")
        a("s_cbranch_scc1 L_nond")
        a(f"s_sub_u32 s{sSpin}, s{sSpin}, 1")
        a(f"s_cmp_eq_u32 s{sSpin}, 0")
        a("s_cbranch_scc1 L_nond")
        a(f"buffer_load_dword v{vNon}, off, s[{sDBG}:{sDBG+3}], 0 sc1")
        a("s_waitcnt vmcnt(0)")
        a("s_branch L_nonp")
        a.label("L_nond")
    def signal(soff, cnt_off):
        a("s_waitcnt lgkmcnt(0)")
        a("s_mov_b64 exec, 1")
        a(f"ds_add_rtn_u32 v{vCntG}, v{vCntL}, v{vOne} offset:{cnt_off}")
        a(f"s_xor_b32 s49, s{sNon}, s5")
        a(f"v_mov_b32 v{vB}, s49")
        a("s_waitcnt lgkmcnt(0)")
        a(f"v_readfirstlane_b32 s49, v{vCntG}")
        a(f"v_mov_b32 v{vCntG}, 0")
        a("s_cmp_eq_u32 s49, 3")
        a(f"s_cselect_b32 s{sNull+2}, 0x{WS_SIZE:x}, 0")
        a("s_nop 0")
        a(f"buffer_store_dword v{vB}, v{vCntG}, s[{sNull}:{sNull+3}], s{soff} offen sc1")
        a("s_mov_b64 exec, -1")
        a("s_nop 0")
        a(f"s_mov_b32 s{sNull+2}, 0")

    def p_QK(kop):
        for T in range(2):
            for s in range(4):
                d = vSR + (T*2 + (s>>1))*4
                cc = "0" if (s & 1) == 0 else vr(d)
                a(f"v_mfma_f32_16x16x32_bf16 {vr(d)}, {kop(T*4+s)}, {vr(vQ + 4*(s&1))}, {cc}")
    def p_SM1():
        a("s_nop 7")
        for T in range(2):
            for r in range(4):
                a(f"v_permlane32_swap_b32 v{vSR + T*8 + r}, v{vSR + T*8 + 4 + r}")
        a("s_nop 0")
        for T in range(2):
            for r in range(4):
                a(f"v_add_f32_dpp v{vS + T*4 + r}, v{vSR + T*8 + 4 + r}, v{vSR + T*8 + r} row_ror:8 row_mask:0xf bank_mask:0xf")
        a(f"v_max3_f32 v{vT0}, v{vS+0}, v{vS+1}, v{vS+2}")
        a(f"v_max3_f32 v{vT0}, v{vT0}, v{vS+3}, v{vS+4}")
        a(f"v_max3_f32 v{vT0}, v{vT0}, v{vS+5}, v{vS+6}")
        a(f"v_max_f32 v{vT0}, v{vT0}, v{vS+7}")
        a(f"v_mov_b32 v{vT1}, v{vT0}")
        a("s_nop 1")
        a(f"v_permlane16_swap_b32 v{vT0}, v{vT1}")
        a("s_nop 1")
        a(f"v_max_f32 v{vT0}, v{vT0}, v{vT1}")
        a(f"v_mov_b32 v{vT1}, v{vT0}")
        a("s_nop 1")
        a(f"v_permlane32_swap_b32 v{vT0}, v{vT1}")
        a("s_nop 1")
        a(f"v_max_f32 v{vT0}, v{vT0}, v{vT1}")
        a(f"v_mul_f32 v{vT0}, s{sC}, v{vT0}")
        a(f"v_max_f32 v{vT0}, v{vT0}, v{vMc}")
        a(f"v_sub_f32 v{vAl}, v{vMc}, v{vT0}")
        a(f"v_exp_f32 v{vAl}, v{vAl}")
        a(f"v_mov_b32 v{vMc}, v{vT0}")
    def p_SM2():
        for i in range(8):
            a(f"v_fma_f32 v{vS+i}, v{vS+i}, s{sC}, -v{vMc}")
        for i in range(8):
            a(f"v_exp_f32 v{vS+i}, v{vS+i}")
        a("s_nop 0")
        a(f"v_add_f32 v{vT2}, v{vS+0}, v{vS+1}")
        a(f"v_add_f32 v{vT3}, v{vS+2}, v{vS+3}")
        a(f"v_add_f32 v{vT0}, v{vS+4}, v{vS+5}")
        a(f"v_add_f32 v{vT1}, v{vS+6}, v{vS+7}")
        a(f"v_add_f32 v{vT2}, v{vT2}, v{vT3}")
        a(f"v_add_f32 v{vT0}, v{vT0}, v{vT1}")
        a(f"v_add_f32 v{vT2}, v{vT2}, v{vT0}")
        a(f"v_fma_f32 v{vL}, v{vL}, v{vAl}, v{vT2}")
        for t in range(4):
            a(f"v_cvt_pk_bf16_f32 v{vP + t}, v{vS + 2*t}, v{vS + 2*t + 1}")
    def p_RS():
        a("s_nop 7")
        for r in range(32):
            a(f"v_mul_f32 v{vO + r}, v{vAl}, v{vO + r}")
    def p_PV(c):
        perm_c([bV + 4*i for i in range(8)], c)
        mfma_c(vP, c, False)
    def p_PVs(b, c):
        base = vAT + (c & 1)*8
        for i in range(8):
            a(f"v_accvgpr_read_b32 v{base + i}, a{64*b + 32 + 4*i + c}")
        perm_c([base + i for i in range(8)], 0)
        mfma_c(vP, c, False)

    def iteration(ms, kidx, staged=None, extras=None, static_n=None, extras7=None, W=W, late=False, kload=None):
        pieces = {s: [] for s in range(16)}
        def wq_(): ms.wait_for(kidx[7]); p_QK(lambda j: vr(bK + 4*j))
        WV = int(OPT.get('WV', W)); WK = int(OPT.get('WK', W))
        pq = max(WV - 1, 4 if staged is not None else 0)
        pieces[pq].append(wq_)
        pieces[pq+1].append(p_SM1)
        pieces[pq+2].append(p_SM2)
        pieces[pq+3].append(p_RS)
        vidx = []
        for c in range(4):
            def f(c=c):
                ms.wait_for(vidx[7]); p_PV(c)
            pieces[15 if late else min(15, 8 + WK - 1 + c)].append(f)
        if staged is not None:
            b = staged
            def sq():
                ms.wait_for(st['idx'][('V', b, 7)]); p_QK(lambda j: ar(64*b + 4*j))
            pieces[0].insert(0, sq)
            pieces[1] = [p_SM1, p_SM2] + pieces[1]
            pieces[2] = [p_RS, lambda: p_PVs(b, 0), lambda: p_PVs(b, 1)] + pieces[2]
            pieces[3] = [lambda: p_PVs(b, 2), lambda: p_PVs(b, 3)] + pieces[3]
        knew = []
        for s in range(16):
            ms.pace(WV if s < 8 else WK)
            if s < 8:
                vidx.append(ld_V(ms, vr(bV + 4*s), s, sVoff))
            elif kload:
                knew.append(kload(ms, s - 8))
            else:
                knew.append(ld_K(ms, vr(bK + 4*(s-8)), s - 8, sKoff))
            if s == 0:
                if extras: extras()
                a(f"s_add_u32 s{sKoff}, s{sVoff}, 0x8000")
                if static_n is None:
                    a(f"s_cmp_eq_u32 s{sIter}, 15")
                    a(f"s_cselect_b32 s{sKoff}, s{sB1}, s{sKoff}")
            for f in pieces[s]: f()
            if s == 7 and extras7: extras7()
            assert not (s == 7 and pq > 7)
        a(f"s_mov_b32 s{sVoff}, s{sKoff}")
        return knew

    while stage_one(W): pass
    kidx = [st['idx'][('K', 4, j)] for j in range(8)]

    pre = {}
    vOld, vPst, vOut = 86, 87, 82
    sPst, sPld, sOutB = 84, 85, 86
    sRed = sWQ
    RW = int(OPT.get('RW', 3))
    vAcc = 232
    vTag, sTag = 254, 3
    sPd = 4
    sXc, sLoc = 5, 6
    def ex4():
        nid['x'] = ms.issue(f"buffer_load_dword v{vNon}, off, s[{sDBG}:{sDBG+3}], 0 sc1")
        a(f"v_bfe_u32 v{vB}, v0, 3, 1")
        a(f"v_bfe_u32 v{vB+1}, v0, 4, 2")
        a(f"v_and_b32 v{vB+2}, 7, v0")
        a(f"s_lshl_b32 s48, s{sW}, 1")
        a("s_add_u32 s48, s48, 3")
        a(f"v_add_u32 v{vOld}, s48, v{vB}")
        a(f"v_and_b32 v{vOld}, 3, v{vOld}")
        a(f"v_lshlrev_b32 v{vOld}, 13, v{vOld}")
        a(f"v_lshl_add_u32 v{vOld}, v{vB}, 20, v{vOld}")
        a(f"v_lshl_add_u32 v{vOld}, v{vB+1}, 8, v{vOld}")
        a(f"v_lshl_add_u32 v{vOld}, v{vB+2}, 4, v{vOld}")
        a(f"v_lshlrev_b32 v{vPst}, 15, v{vB}")
        a(f"v_lshl_add_u32 v{vPst}, v{vB+1}, 7, v{vPst}")
        a(f"v_lshl_add_u32 v{vPst}, v{vB+2}, 4, v{vPst}")
        a(f"v_bfe_u32 v{vB}, v0, 3, 3")
        a(f"v_lshlrev_b32 v{vOut}, 11, v{vB+2}")
        a(f"v_lshl_add_u32 v{vOut}, v{vB}, 3, v{vOut}")
        a("s_andn2_b32 s48, s2, 15")
        a("s_and_b32 s49, s2, 8")
        a("s_lshr_b32 s49, s49, 1")
        a("s_add_u32 s48, s48, s49")
        a(f"s_and_b32 s49, s{sW}, 1")
        a("s_lshl_b32 s49, s49, 1")
        a("s_add_u32 s48, s48, s49")
        a(f"s_lshl_b32 s{sPst}, s48, 15")
        a("s_and_b32 s48, s2, 7")
        a(f"s_lshl_b32 s{sOutB}, s48, 14")
        a("s_lshl_b32 s48, s48, 10")
        a(f"s_add_u32 s{sPst}, s{sPst}, s48")
        a(f"s_add_u32 s48, s{sP_}, 1")
        a("s_and_b32 s48, s48, 3")
        a("s_lshl_b32 s48, s48, 13")
        a(f"s_add_u32 s49, s{sP_}, 2")
        a("s_and_b32 s49, s49, 3")
        a("s_lshl_b32 s49, s49, 13")
        a(f"s_sub_u32 s{sPd}, s49, s48")
        a(f"s_add_u32 s48, s48, 0x{QP + (0x800000 if OPT.get('psep') else 0):x}")
        a(f"s_add_u32 s{sPst}, s{sPst}, s48")
        a(f"s_lshl_b32 s{sPld}, s2, 15")
        a(f"s_add_u32 s{sPld}, s{sPld}, s48")
        a("s_lshr_b32 s48, s2, 3")
        a("s_lshl_b32 s48, s48, 6")
        a(f"s_add_u32 s{sOutB}, s{sOutB}, s48")
        a(f"s_bitcmp1_b32 s{sW}, 0")
        a(f"s_cselect_b32 s48, s{sPd}, 0")
        a(f"s_add_u32 s{sPld}, s{sPld}, s48")
        a(f"s_bitcmp1_b32 s{sW}, 0")
        a(f"s_cselect_b32 s48, 0x20000, 0")
        a(f"s_add_u32 s{sOutB}, s{sOutB}, s48")
    def ex6():
        get_nonce()
        a(f"s_mul_i32 s{sTag}, s{sNon}, 0x9e3779b1")
        a(f"v_mov_b32 v{vTag}, s{sTag}")
        a("s_and_b32 s48, s2, 7")
        a(f"s_lshl_b32 s{sFl}, s48, 7")
        a("s_lshr_b32 s48, s2, 3")
        a("s_lshl_b32 s48, s48, 2")
        a(f"s_add_u32 s{sFl}, s{sFl}, s48")
        a(f"s_add_u32 s{sFl}, s{sFl}, 0x{FLP:x}")
        a(f"s_getreg_b32 s{sXc}, hwreg(HW_REG_XCC_ID)")
        a(f"s_and_b32 s{sXc}, s{sXc}, 15")
        a(f"s_lshl_b32 s{sXc}, s{sXc}, 1")
        if OPT.get('xfake'): a(f"s_and_b32 s{sXc}, s2, {OPT['xfake']}")
    exs = {4: ex4}
    exs7 = {6: ex6}
    for n in range(4, 8):
        kidx = iteration(ms, kidx, staged=n - 4, extras=exs.get(n), static_n=n, extras7=exs7.get(n))
        if not OPT.get('xst') and not OPT.get('est') and not OPT.get('tst'): a.stamp(n - 1)
    a(f"s_mov_b32 s{sIter}, 8")

    def flush():
        a(f"v_mov_b32 v{vT1}, v{vL}")
        a("s_nop 1")
        a(f"v_permlane16_swap_b32 v{vL}, v{vT1}")
        a("s_nop 1")
        a(f"v_add_f32 v{vL}, v{vL}, v{vT1}")
        a(f"v_mov_b32 v{vT1}, v{vL}")
        a("s_nop 1")
        a(f"v_permlane32_swap_b32 v{vL}, v{vT1}")
        a("s_nop 1")
        a(f"v_add_f32 v{vL}, v{vL}, v{vT1}")
        a(f"ds_write_b32 v{vLdsM}, v{vMc}")
        a(f"ds_write_b32 v{vLdsM}, v{vL} offset:{LDS_L - LDS_M}")
        a(f"s_mov_b64 exec, s[{sMask}:{sMask+1}]")
        for j in range(8):
            a(f"ds_write_b128 v{vLdsO}, {vr(vO + 4*j)} offset:{j*512}")
        a("s_mov_b64 exec, -1")

    def combine_addr(ph, vA, vM):
        a(f"v_and_b32 v{vA}, 15, v0")
        a(f"v_lshlrev_b32 v{vA}, 4, v{vA}")
        a(f"v_bfe_u32 v{vM}, v0, 4, 2")
        a(f"v_lshl_add_u32 v{vA}, v{vM}, 2, v{vA}")
        a(f"s_and_b32 s49, s{sW}, 1")
        a("s_lshl_b32 s49, s49, 8")
        a(f"s_add_u32 s49, s49, 0x{LDS_C + ph*0x4000:x}")
        a(f"v_add_u32 v{vA}, s49, v{vA}")
        a(f"v_and_b32 v{vM}, 7, v0")
        a(f"v_lshlrev_b32 v{vM}, 2, v{vM}")
        a(f"v_add_u32 v{vM}, 0x{LDS_M + ph*0x400:x}, v{vM}")
    def combine(ph, vA, vM, R):
        vm, vl, vo, vx, vacc, vout = R, R+4, R+8, R+40, R+44, R+52
        for w in range(4):
            a(f"ds_read_b32 v{vm + w}, v{vM} offset:{w*256}")
        for w in range(4):
            a(f"ds_read_b32 v{vl + w}, v{vM} offset:{LDS_L - LDS_M + w*256}")
        for j in range(6):
            a(f"ds_read_b32 v{vo + j}, v{vA} offset:{j*512}")
        a("s_waitcnt lgkmcnt(10)")
        a(f"v_max3_f32 v{vx}, v{vm}, v{vm+1}, v{vm+2}")
        a(f"v_max_f32 v{vx}, v{vx}, v{vm+3}")
        for ww in range(4):
            a(f"v_sub_f32 v{vm+ww}, v{vm+ww}, v{vx}")
        for ww in range(4):
            a(f"v_exp_f32 v{vm+ww}, v{vm+ww}")
        for n in range(6, 32):
            w, j = n >> 3, n & 7
            a(f"ds_read_b32 v{vo + n}, v{vA} offset:{w*4096 + j*512}")
            if n == 8:
                a("s_waitcnt lgkmcnt(9)")
                a(f"v_mul_f32 v{vx+1}, v{vm}, v{vl}")
                for ww in range(1, 4):
                    a(f"v_fma_f32 v{vx+1}, v{vm+ww}, v{vl+ww}, v{vx+1}")
                a(f"v_rcp_f32 v{vx+1}, v{vx+1}")
        a("s_nop 0")
        for ww in range(4):
            a(f"v_mul_f32 v{vm+ww}, v{vx+1}, v{vm+ww}")
        a("s_waitcnt lgkmcnt(0)")
        for j in range(8):
            a(f"v_mul_f32 v{vacc+j}, v{vm}, v{vo + j}")
        for w in range(1, 4):
            for j in range(8):
                a(f"v_fma_f32 v{vacc+j}, v{vm+w}, v{vo + w*8 + j}, v{vacc+j}")
        for t in range(4):
            a(f"v_cvt_pk_bf16_f32 v{vout+t}, v{vacc+2*t}, v{vacc+2*t+1}")
        for t in range(4):
            a(f"v_min_u32 v{vout+t}, -2, v{vout+t}")
        if ph:
            a(f"s_add_u32 s49, s{sOst}, 0x800")
        else:
            a(f"s_mov_b32 s49, s{sOst}")
        if ph and not OPT.get('noloc'):
            a(f"s_cmp_eq_u32 s{sLoc}, 0")
            a("s_cbranch_scc1 L_ol1")
            a(f"buffer_store_dwordx4 {vr(vout)}, v{vVoff}, s[{sWSo}:{sWSo+3}], s49 offen sc1")
            a("s_branch L_ol2")
            a.label("L_ol1")
            a(f"buffer_store_dwordx4 {vr(vout)}, v{vVoff}, s[{sWSo}:{sWSo+3}], s49 offen")
            a.label("L_ol2")
        elif int(OPT.get('xs', 0)) & 2: dummy(1)
        else:
            a(f"buffer_store_dwordx4 {vr(vout)}, v{vVoff}, s[{sWSo}:{sWSo+3}], s49 offen sc1")

    def dummy(k):
        for _ in range(k):
            a(f"buffer_load_dword v{vDum}, v{vVoff}, s[{sNull}:{sNull+3}], 0 offen")
    def wo_dma(m, cnt=1):
        a(f"s_add_u32 m0, s{sLb}, {m*1024}")
        a(f"s_add_u32 s48, s{sWoLd}, 0x{m*16384:x}")
        src = vWoOff
        if m & 1:
            a(f"v_xor_b32 v{vCntG}, 64, v{vWoOff}")
            src = vCntG
        a(f"buffer_load_dwordx4 v{src}, s[{sWO}:{sWO+3}], s48 offen{OPT.get('woflag', ' nt')} lds")
    def wo_sig():
        a("s_mov_b64 exec, 1")
        a(f"ds_add_u32 v{vCntL}, v{vOne} offset:16")
        a("s_mov_b64 exec, -1")
    def lds_spin(off, tmp):
        lp, ld = a.newlabel("lp"), a.newlabel("ld")
        a(f"s_mov_b32 s{sSpin}, 0x100000")
        a.label(lp)
        a(f"ds_read_b32 v{tmp}, v{vCntL} offset:{off}")
        a("s_waitcnt lgkmcnt(0)")
        a(f"v_readfirstlane_b32 s48, v{tmp}")
        a("s_cmp_ge_u32 s48, 4")
        a(f"s_cbranch_scc1 {ld}")
        a(f"s_sub_u32 s{sSpin}, s{sSpin}, 1")
        a(f"s_cmp_eq_u32 s{sSpin}, 0")
        a(f"s_cbranch_scc1 {ld}")
        a("s_sleep 2")
        a(f"s_branch {lp}")
        a.label(ld)
    def wo_tr(k0, k1):
        a(f"v_mov_b32 v{vAcc}, v{vTr}")
        for nt in range(1, 4):
            a(f"v_xor_b32 v{vAcc + nt}, {nt << 5}, v{vTr}")
        for kk in range(k0, k1):
            for nt in range(4):
                for half in range(2):
                    d = (kk*4 + nt)*4 + half*2
                    a(f"ds_read_b64_tr_b16 a[{d}:{d+1}], v{vAcc + nt} offset:{(kk & 7)*4096 + half*512}")
            a("s_waitcnt lgkmcnt(6)")
    sOld2 = sWoLd
    def o_txt(q, bb, dst):
        hh, ks = q >> 2, q & 3
        return f"buffer_load_dwordx4 {vr(dst + 4*q)}, v{vOld}, s[{sWS}:{sWS+3}], s{sOld2 if hh else sOld} offen offset:{bb*2048 + (ks>>1)*1024 + (ks&1)*128} sc1"
    def o_ld(q, bb, dst):
        a(o_txt(q, bb, dst))
    def p_ld(gg, ph, dst):
        a(f"buffer_load_dwordx4 {vr(dst + 4*gg)}, v{vVoff if gg < 4 else vVoff2}, s[{sWS}:{sWS+3}], s{sPld} offen offset:{(gg&3)*1024} sc1")
    def frag_mfma(q, src, first=False, vAcc=vAcc):
        for nt in range(4):
            d = vAcc + nt*4
            a(f"v_mfma_f32_16x16x32_bf16 {vr(d)}, {ar((q*4 + nt)*4)}, {vr(src + 4*q)}, {'0' if first else vr(d)}")
    vXw, vFw, vXt_ = 224, 226, 120
    sSel = 88
    def x_addr():
        a(f"s_and_b32 s48, s{sW}, 1")
        a(f"s_lshl_b32 s49, s48, 12")
        a(f"s_add_u32 s49, s49, 0x{LDS_X:x}")
        a(f"v_add_u32 v{vXw}, s49, v{vVoff}")
        a(f"s_lshl_b32 s48, s48, 2")
        a(f"v_add_u32 v{vFw}, s48, v{vCntL}")
        for r in range(4):
            a(f"s_mov_b32 s{sSel + r}, 0x{0x07060500 + r:x}")
    def x_put(ph, acc):
        a("s_nop 4")
        for t in range(4):
            a(f"ds_write_b128 v{vXw}, {vr(acc + 4*t)} offset:{ph*8192 + t*1024}")
        a(f"ds_write_b32 v{vFw}, v{vOne} offset:{32 + ph*16}")
    def x_get(ph, acc):
        lp, ld = a.newlabel("xp"), a.newlabel("xd")
        a(f"s_mov_b32 s{sSpin}, 0x400000")
        a.label(lp)
        a(f"ds_read_b32 v{vCntG}, v{vFw} offset:{32 + ph*16}")
        for t in range(4):
            a(f"ds_read_b128 {vr(vXt_ + 4*t)}, v{vXw} offset:{ph*8192 + t*1024}")
        a(f"s_sub_u32 s{sSpin}, s{sSpin}, 1")
        a("s_waitcnt lgkmcnt(4)")
        a(f"v_readfirstlane_b32 s48, v{vCntG}")
        a(f"s_cmp_eq_u32 s{sSpin}, 0")
        a(f"s_cbranch_scc1 {ld}")
        a("s_cmp_eq_u32 s48, 0")
        a(f"s_cbranch_scc1 {lp}")
        a.label(ld)
        a(f"s_add_u32 s48, s{sPst}, {'s%d' % sPd if ph else 0}")
        a(f"s_add_u32 s49, s48, 0x40000")
        for nt in range(4):
            a(f"s_waitcnt lgkmcnt({3 - nt})")
            for r in range(4):
                a(f"v_add_f32 v{acc + 4*nt + r}, v{acc + 4*nt + r}, v{vXt_ + 4*nt + r}")
            for r in range(4):
                a(f"v_perm_b32 v{acc + 4*nt + r}, v{acc + 4*nt + r}, v{vTag}, s{sSel + r}")
            a(f"buffer_store_dwordx4 {vr(acc + 4*nt)}, v{vPst}, s[{sWS}:{sWS+3}], s{48 + (nt >> 1)} offen offset:{(nt&1)*512} sc1")
    def cnt_ld():
        a(f"s_andn2_b32 s48, s{sFl}, 127")
        a(f"v_bfe_u32 v{vB + 57}, v0, 0, 5")
        a(f"v_lshlrev_b32 v{vB + 57}, 2, v{vB + 57}")
        a(f"buffer_load_dword v{vB + 56}, v{vB + 57}, s[{sWS}:{sWS+3}], s48 offen sc1")
    def cnt_check():
        lp, ld = a.newlabel("cp"), a.newlabel("cd")
        a(f"s_mov_b32 s{sSpin}, {OPT.get('SPIN', '0x20000')}")
        a.label(lp)
        a(f"v_xor_b32 v{vB + 56}, s{sNon}, v{vB + 56}")
        a(f"v_and_b32 v{vB + 57}, 0xffffffe1, v{vB + 56}")
        a(f"v_cmp_ne_u32 vcc, 0, v{vB + 57}")
        a(f"s_cbranch_vccz {ld}")
        a(f"s_sub_u32 s{sSpin}, s{sSpin}, 1")
        a(f"s_cmp_eq_u32 s{sSpin}, 0")
        a(f"s_cbranch_scc1 {ld}")
        a("s_sleep 8")
        cnt_ld()
        a("s_waitcnt vmcnt(0)")
        a(f"s_branch {lp}")
        a.label(ld)
        a(f"v_cmp_ne_u32 vcc, s{sXc}, v{vB + 56}")
        a(f"s_add_u32 s{sOld2}, s{sOld}, 0x40000")
        a(f"s_or_b32 s{sLoc}, vcc_lo, vcc_hi")
    def flush0():
        a("s_nop 1")
        flush()
        for r in range(8):
            a(f"v_mov_b32 v{vQ + r}, v{vQ2 + r}")
        a(f"v_add_u32 v{vLdsO}, 0x4000, v{vLdsO}")
        a(f"v_add_u32 v{vLdsM}, 0x400, v{vLdsM}")
        a("s_waitcnt lgkmcnt(0)")
        a("s_mov_b64 exec, 1")
        a(f"ds_add_u32 v{vCntL}, v{vOne}")
        a("s_mov_b64 exec, -1")
        reset_state()
    def comb0():
        lf, le = a.newlabel("cf"), a.newlabel("ce")
        a(f"s_cmp_ge_u32 s{sW}, 2")
        a(f"s_cbranch_scc1 {lf}")
        if int(OPT.get('xs', 0)) & 4: dummy(1)
        else:
            combine_addr(0, vB + 60, vB + 61)
            lds_spin(0, vB + 62)
            combine(0, vB + 60, vB + 61, vB)
        a(f"s_branch {le}")
        a.label(lf)
        for r in range(4):
            a(f"v_mov_b32 v{vB + 60 + r}, -1")
        a(f"s_add_u32 s48, s{sOst}, 0x800")
        if OPT.get('FS') or int(OPT.get('xs', 0)) & 1: dummy(1)
        else: a(f"buffer_store_dwordx4 {vr(vB + 60)}, v{vVoff}, s[{sWS}:{sWS+3}], s48 offen sc1")
        a.label(le)
    NX = int(OPT.get('NX', 4))
    TH2 = int(OPT.get('TH2', 0))
    TH3 = int(OPT.get('TH3', 0))
    SLOW = int(OPT.get('SLOW', 0))
    sn = {n: [] for n in range(8, 32)}
    def add(n, fn, nv=0, act=False): sn[n].append((fn, nv, act))
    sAdj, sWsel, sT = 87, 47, 80
    vTS = 253
    TSB = 0x320000
    GN = int(OPT.get('GN', 32))
    sPa, sRd = 7, 8
    sNow, sRef, sTau, sPrev = 82, 83, 81, 9
    SB_ = int(OPT.get('SBITS', 2))
    NS = 256 >> SB_
    RK = int(OPT.get('RK', NS - NS // 8))
    def pub(k):
        lb = a.newlabel("pb")
        a(f"s_mov_b32 s{sPa}, -1")
        a(f"s_bfe_u32 s48, s2, 0x{(SB_ << 16) | 4:x}")
        a(f"s_lshl_b32 s48, s48, 2")
        a(f"s_or_b32 s48, s48, s{sW}")
        a(f"s_mov_b32 s{sT}, s{sNow}")
        a(f"s_cmp_lg_u32 s48, {OPT.get('SUB', 6)}")
        a(f"s_cbranch_scc1 {lb}")
        a(f"s_min_u32 s{sPa}, s{sT}, 0x7fff")
        a(f"s_bitset1_b32 s{sPa}, 23")
        a(f"s_atomic_add s{sPa}, s[16:17], 0x{128 + 4*k:x} glc")
        a.label(lb)
    def pub2(k):
        a("s_waitcnt lgkmcnt(0)")
        a(f"s_and_b32 s48, s{sPa}, 0x7fffff")
        a(f"s_mul_i32 s49, s{sT}, {NS - RK}")
        a("s_add_u32 s48, s48, s49")
        a(f"s_lshr_b32 s48, s48, {8 - SB_}")
        if OPT.get('MED'): a(f"s_mov_b32 s48, s{sT}")
        a(f"s_add_u32 s48, s48, s{sNon}")
        if OPT.get('OFS'): a(f"s_add_u32 s48, s48, {OPT['OFS']}")
        a(f"v_mov_b32 v{vTS}, s48")
        a(f"s_lshr_b32 s49, s{sPa}, 23")
        a(f"s_mov_b32 s48, 0x{TSB + k*1024:x}")
        a(f"s_cmp_eq_u32 s49, {RK}")
        a(f"s_cselect_b32 s{sNull+2}, 0x{WS_SIZE:x}, 0")
        a("s_mov_b64 exec, 1")
        a(f"buffer_store_dword v{vTS}, off, s[{sNull}:{sNull+3}], s48 sc1")
        a("s_mov_b64 exec, -1")
        a("s_nop 0")
        a(f"s_mov_b32 s{sNull+2}, 0")
    def ts_ld(k):
        a(f"s_mov_b32 s48, 0x{TSB + k*1024:x}")
        a("s_mov_b64 exec, 1")
        a(f"buffer_load_dword v{vTS}, off, s[{sWS}:{sWS+3}], s48 sc1")
        a("s_mov_b64 exec, -1")
    EPS = float(OPT.get('EPS', 0.02))
    def calc(k, lim):
        lb = a.newlabel("cl")
        n_ = CP[k] + LD + 1
        a(f"v_readfirstlane_b32 s48, v{vTS}")
        a(f"s_sub_u32 s48, s48, s{sNon}")
        a(f"s_cmp_gt_u32 s48, s{sNow}")
        a(f"s_cselect_b32 s{sPrev}, 0, s{sPrev}")
        a(f"s_cbranch_scc1 {lb}")
        if k == 0:
            a(f"s_mov_b32 s{sTau}, {OPT.get('TAU0', 228)}")
        else:
            a(f"s_sub_u32 s49, s48, s{sPrev}")
            a(f"s_mul_i32 s49, s49, {int(65536 * (1 - EPS) / (CP[k] - CP[k-1]))}")
            a("s_lshr_b32 s49, s49, 16")
            a(f"s_min_u32 s49, s49, {OPT.get('TAUX', 240)}")
            a(f"s_cmp_eq_u32 s{sPrev}, 0")
            a(f"s_cselect_b32 s{sTau}, {OPT.get('TAU0', 228)}, s49")
        a(f"s_mov_b32 s{sPrev}, s48")
        a(f"s_mul_i32 s49, s{sTau}, {n_ - CP[k]}")
        a(f"s_add_u32 s{sRef}, s48, s49")
        a.label(lb)
    D0 = int(OPT.get('D0', 8))
    O0 = int(OPT.get('O0', 22))
    add(16, flush0)
    C0 = int(OPT.get('C0', 18))
    C1 = int(OPT.get('C1', 28))
    add(C1, cnt_ld, 1, True)
    add(C0, comb0, 1)
    add(C0 + int(OPT.get('SG', 2)), lambda: signal(sFl, 4), 1)
    if SLOW & 2:
        add(18, lambda: (a(f"s_cmp_lt_u32 s{sW}, 2"), a(f"s_cselect_b32 s{sWsel}, 3, s{sWsel}")))
    if OPT.get('TLB'):
        def tlb():
            a(f"buffer_load_dword v{vDum}, v{vVoff}, s[{sK}:{sK+3}], s{sB1} offen nt")
            a(f"buffer_load_dword v{vDum}, v{vVoff}, s[{sV}:{sV+3}], s{sB1} offen nt")
        add(int(OPT['TLB']), tlb, 2)
    add(C1 + 2, cnt_check, 0, True)
    CP = [int(t) for t in OPT['CP'].split(',')] if OPT.get('CP') else []
    LD = int(OPT.get('LD', 3))
    late_ = []
    for k, c in enumerate(CP):
        lim = (CP[k+1] - c) if k + 1 < len(CP) else 32 - (c + LD + 1)
        add(c + LD + 1, (lambda k=k, lim=lim: calc(k, lim)))
        late_.append((c, (lambda k=k: pub(k))))
        add(c + 1, (lambda k=k: pub2(k)), 1)
        add(c + LD, (lambda k=k: ts_ld(k)), 1)
    DM = int(OPT.get('DM', 4))
    PF = int(OPT.get('PF', 0))
    def wo_pf(m):
        a("s_and_b32 s48, s2, 7")
        a("s_lshl_b32 s48, s48, 20")
        a(f"s_lshl_b32 s49, s{sW}, 18")
        a("s_add_u32 s48, s48, s49")
        a("s_lshr_b32 s49, s2, 4")
        a("s_lshl_b32 s49, s49, 10")
        a("s_add_u32 s48, s48, s49")
        a(f"s_add_u32 s48, s48, 0x{m*16384:x}")
        a(f"buffer_load_dwordx4 {vr(vAcc)}, v{vVoff}, s[{sWO}:{sWO+3}], s48 offen{OPT.get('pfflag', ' nt')}")
    m = 0; n = D0
    while m < 16:
        c_ = 0
        while m < 16 and c_ < DM and sum(v for _, v, _a in sn[n] if _a != 'I') < NX and (not PF or sum(v for _, v, _a in sn[n - PF] if _a is not True) < NX):
            add(n, (lambda m=m: wo_dma(m, 1)), 1, True)
            if PF: add(n - PF, (lambda m=m: wo_pf(m)), 1, 'I')
            m += 1; c_ += 1
        n += 1
    add(n + 1, wo_sig, 0, True)
    add(n + 3, lambda: lds_spin(16, vCntG), 0, True)
    n += 3
    for j in range(2):
        while n in (16, C0): n += 1
        add(n, (lambda j=j: wo_tr(4*j, 4*j + 4)), 0, True)
        n += 1
    trend = n
    for n_, f_ in late_: add(n_, f_)
    PW = int(OPT.get('PW', 0))
    def pw(ph, k_):
        a(f"s_add_u32 s48, s{sP_}, {1 + ph}")
        a("s_and_b32 s48, s48, 3")
        a("s_lshl_b32 s48, s48, 13")
        a("s_lshl_b32 s49, s2, 15")
        a("s_add_u32 s48, s48, s49")
        a(f"s_lshl_b32 s49, s{sW}, 11")
        a("s_add_u32 s48, s48, s49")
        a(f"s_add_u32 s48, s48, 0x{QP:x}")
        if OPT.get('PW1'): a("s_mov_b64 exec, 1")
        a(f"buffer_load_dwordx4 {vr(vB + 8)}, v{vVoff}, s[{sWS}:{sWS+3}], s48 offen offset:{k_*1024}{OPT.get('pwflag', '')}")
        if OPT.get('PW1'): a("s_mov_b64 exec, -1")
    def pw2(j):
        a(f"s_add_u32 s48, s{sPst}, 0x{j*0x40000:x}")
        a("s_mov_b32 exec_lo, 0x101")
        a("s_mov_b32 exec_hi, 0")
        a(f"buffer_load_dword v{vB + 8}, v{vPst}, s[{sWS}:{sWS+3}], s48 offen sc1")
        a("s_mov_b64 exec, -1")
    if PW:
        n_ = PW
        for ph in range(2 - int(OPT.get('PWP', 2)), 2):
            for k_ in range(2):
                add(n_, (lambda ph=ph, k_=k_: pw(ph, k_)), 1); n_ += 1
        if OPT.get('PW2'):
            add(PW, lambda: pw2(0), 1); add(PW + 1, lambda: pw2(1), 1)
    assert not sn[31] and trend <= 30
    Ws = [int(t) for t in OPT.get('Ws', f"{W-1},{W},{W+1}").split(',')]
    a(f"s_mov_b32 s{sAdj}, 0")
    a(f"s_mov_b32 s{sTau}, 0")
    a(f"s_mov_b32 s{sPrev}, 0")
    a(f"s_mov_b32 s{sRef}, 0")
    if OPT.get('asym'):
        a("s_add_u32 s48, s2, 2")
        a("s_bitcmp1_b32 s48, 2")
        a(f"s_cselect_b32 s{sAdj}, {OPT['asym']}, 0")
    a.label("L_loop")
    a("s_memrealtime s[100:101]")
    a(f"s_add_u32 s{sRef}, s{sRef}, s{sTau}")
    a("s_waitcnt lgkmcnt(0)")
    a(f"s_sub_u32 s{sNow}, s100, s{sNon}")
    a(f"s_sub_i32 s{sAdj}, s{sNow}, s{sRef}")
    a(f"s_cmp_eq_u32 s{sTau}, 0")
    a(f"s_cselect_b32 s{sAdj}, 0, s{sAdj}")
    if STAMP and OPT.get('itst'):
        a("s_memrealtime s[68:69]")
        a("s_waitcnt lgkmcnt(0)")
        a(f"s_mov_b32 m0, s{sIter}")
        a("s_nop 0")
        a(f"v_writelane_b32 v255, s68, m0")
        a(f"s_add_u32 m0, s{sIter}, 32")
        a("s_nop 0")
        a(f"v_writelane_b32 v255, s{sAdj}, m0")
    if STAMP and OPT.get('lst'):
        for k, n in enumerate([int(t) for t in OPT['lst'].split(',')]):
            a(f"s_cmp_lg_u32 s{sIter}, {n}")
            a(f"s_cbranch_scc1 L_lst{k}")
            a.stamp(1 + k)
            a.label(f"L_lst{k}")
    if TH3:
        a(f"s_cmp_lt_i32 s{sAdj}, {-int(OPT.get('B2', 80))}")
        a("s_cbranch_scc1 L_b3")
    a(f"s_cmp_lt_i32 s{sAdj}, {-int(OPT.get('B1', 20))}")
    a("s_cbranch_scc1 L_b0")
    if TH2:
        a(f"s_cmp_gt_i32 s{sAdj}, {OPT.get('A2', 60)}")
        a("s_cbranch_scc1 L_b4")
        Ws = Ws + [W - 2, W + 2]
    a(f"s_cmp_gt_i32 s{sAdj}, {OPT.get('A1', 15)}")
    a("s_cbranch_scc1 L_b2")
    for k in ((1, 0, 3, 4, 2) if TH3 else (1, 0, 4, 2) if TH2 else (1, 0, 2)):
        a.label(f"L_b{k}")
        ml = MemSeq(a, pre_kv=8)
        def ex_loop(k=k, ml=ml):
            a(f"s_mov_b32 s{sWsel}, {k}")
            a(f"s_branch L_snip")
            a.label(f"L_ret{k}")
            for _ in range(NX): ml.issue(None)
        iteration(ml, list(range(8)), extras=ex_loop, W=Ws[k])
        a(f"s_add_u32 s{sIter}, s{sIter}, 1")
        a(f"s_cmp_lt_u32 s{sIter}, 31")
        a(f"s_cbranch_scc1 L_loop")
        if k != 2: a("s_branch L_last")
    a.label("L_last")
    if STAMP and OPT.get('itst'):
        a("s_memrealtime s[68:69]")
        a("s_waitcnt lgkmcnt(0)")
        a(f"v_writelane_b32 v255, s68, 31")
    ml = MemSeq(a, pre_kv=8)
    o0 = iteration(ml, list(range(8)), extras=x_addr, static_n=31, W=int(OPT.get('WL', W)),
                   kload=lambda m_, j: m_.issue(o_txt(j, 0, bK), kv=True))
    a.label("L_tail")
    a.stamp(7)
    TE = int(OPT.get('TE', 0))
    PL = int(OPT.get('PL', 0))
    acc0, acc1 = vAcc, 200
    if TE == 1:
        for q in range(8): o_ld(q, 1, vB)
    combine_addr(1, 8, 9)
    flush()
    a("s_waitcnt lgkmcnt(0)")
    a("s_barrier")
    if OPT.get('tst'): a.stamp(2)
    a(f"s_cmp_ge_u32 s{sW}, 2")
    a("s_cbranch_scc1 L_t1b")
    combine(1, 8, 9, 10)
    if OPT.get('tst'): a.stamp(3)
    a(f"s_waitcnt vmcnt({9 if TE == 1 else 1})")
    if TE == 3:
        for q in range(8): o_ld(q, 1, vB)
    a("s_branch L_t1")
    a.label("L_t1b")
    if OPT.get('tst'): a.stamp(3)
    a(f"s_waitcnt vmcnt({8 if TE == 1 else 0})")
    a.label("L_t1")
    if TE == 2:
        for q in range(8): o_ld(q, 1, vB)
    for q in range(8):
        frag_mfma(q, bK, q == 0, acc0)
    for r in range(16):
        a(f"v_mov_b32 v{acc1 + r}, 0")
    if TE == 0:
        for q in range(8): o_ld(q, 1, vB)
    a(f"s_cmp_lt_u32 s{sW}, 2")
    a("s_cbranch_scc1 L_t2")
    if TE == 3:
        for q in range(8): o_ld(q, 1, vB)
    if PL != 2: x_put(0, acc0)
    a("s_waitcnt vmcnt(0)")
    a("s_branch L_t3")
    a.label("L_t2")
    if not PL:
        x_get(0, acc0)
    if PL == 2: x_put(0, acc0)
    a(f"s_waitcnt vmcnt({0 if PL else 4})")
    a.label("L_t3")
    if OPT.get('tst'): a.stamp(4)
    a(f"s_mov_b32 s{sSpin}, {OPT.get('SPIN', '0x20000')}")
    a(f"s_mov_b32 s{sBad}, 15")
    a.label("L_retry")
    for gq in range(4):
        R = vB + 8*gq
        a(f"s_bitcmp1_b32 s{sBad}, {gq}")
        a(f"s_cbranch_scc0 L_rc{gq}")
        a(f"v_max3_u32 v8, v{R}, v{R+1}, v{R+2}")
        a(f"v_max3_u32 v9, v{R+3}, v{R+4}, v{R+5}")
        a(f"v_max3_u32 v8, v8, v{R+6}, v{R+7}")
        a(f"v_max_u32 v8, v8, v9")
        a("v_cmp_eq_u32 vcc, -1, v8")
        a(f"s_cbranch_vccnz L_bad{gq}")
        frag_mfma(2*gq, vB, False, acc1)
        frag_mfma(2*gq + 1, vB, False, acc1)
        a(f"s_bitset0_b32 s{sBad}, {gq}")
        a.label(f"L_rc{gq}")
    a(f"s_cmp_eq_u32 s{sBad}, 0")
    a("s_cbranch_scc1 L_alldone")
    a(f"s_sub_u32 s{sSpin}, s{sSpin}, 1")
    a("s_waitcnt vmcnt(0)")
    a(f"s_cmp_lg_u32 s{sSpin}, 0")
    a("s_cbranch_scc1 L_retry")
    a.label("L_alldone")
    if OPT.get('tst') and STAMP: a(f"s_mov_b32 s76, s{sSpin}")
    if OPT.get('tst'): a.stamp(5)
    a(f"s_cmp_ge_u32 s{sW}, 2")
    a("s_cbranch_scc1 L_t4")
    x_get(1, acc1)
    if PL == 1: x_get(0, acc0)
    a.stamp(8)
    a("s_branch L_fin")
    a.label("L_t4")
    x_put(1, acc1)
    if PL == 2: x_get(0, acc0)
    a.stamp(8)
    for gg in range(8):
        p_ld(gg, 0, bK)
    a.label("L_red")
    a(f"s_mov_b32 s{sSelLo}, 0x0c0c0400")
    a(f"s_mov_b32 s{sSelHi}, 0x04000c0c")
    a(f"s_mov_b32 s{sC}, 0xffffff00")
    def reduce(ph, R, firstwait):
        lc, lo = a.newlabel("c"), a.newlabel("o")
        a(f"s_mov_b32 s{sBad}, 0xff")
        a(f"s_mov_b32 s{sSpin}, {OPT.get('SPIN', '0x20000')}")
        if firstwait is not None: a(f"s_waitcnt vmcnt({firstwait})")
        a.label(lc)
        for gg in range(8):
            ln = a.newlabel("n")
            a(f"s_bitcmp1_b32 s{sBad}, {gg}")
            a(f"s_cbranch_scc0 {ln}")
            a(f"v_perm_b32 v8, v{R+4*gg+1}, v{R+4*gg}, s{sSelLo}")
            a(f"v_perm_b32 v9, v{R+4*gg+3}, v{R+4*gg+2}, s{sSelHi}")
            a("v_or_b32 v8, v8, v9")
            a(f"v_cmp_ne_u32 vcc, s{sTag}, v8")
            a(f"s_cbranch_vccnz {ln}x")
            a(f"s_bitset0_b32 s{sBad}, {gg}")
            for r in range(4):
                a(f"v_and_b32 v{R+4*gg+r}, s{sC}, v{R+4*gg+r}")
            a(f"s_branch {ln}")
            a.label(ln + "x")
            p_ld(gg, ph, R)
            a.label(ln)
        a(f"s_cmp_eq_u32 s{sBad}, 0")
        a(f"s_cbranch_scc1 {lo}")
        a(f"s_sub_u32 s{sSpin}, s{sSpin}, 1")
        a("s_waitcnt vmcnt(0)")
        if OPT.get('SL2'): a(f"s_sleep {OPT['SL2']}")
        a(f"s_cmp_lg_u32 s{sSpin}, 0")
        a(f"s_cbranch_scc1 {lc}")
        a.label(lo)
        for (x, y) in ((0, 1), (2, 3), (4, 5), (6, 7), (0, 2), (4, 6), (0, 4)):
            for r in range(4):
                a(f"v_add_f32 v{R + 4*x + r}, v{R + 4*x + r}, v{R + 4*y + r}")
        a(f"v_cvt_pk_bf16_f32 v{R+4}, v{R}, v{R+1}")
        a(f"v_cvt_pk_bf16_f32 v{R+5}, v{R+2}, v{R+3}")
        a(f"buffer_store_dwordx2 v[{R+4}:{R+5}], v{vOut}, s[{sOUT}:{sOUT+3}], s{sOutB} offen{OPT.get('outflag','')}")
    a(f"s_mov_b32 s{sSpin}, {OPT.get('SPIN', '0x20000')}")
    reduce(0, bK, 0)
    a.label("L_fin")
    a.stamp(9)
    a.stamp_store(18, 0x200000, 10)
    if STAMP and OPT.get('itst'):
        a("s_lshl_b32 s92, s2, 2")
        a("s_add_u32 s92, s92, s40")
        a("s_lshl_b32 s92, s92, 8")
        a("s_add_u32 s92, s92, 0x220000")
        a("v_and_b32 v250, 63, v0")
        a("v_lshlrev_b32 v250, 2, v250")
        a("buffer_store_dword v255, v250, s[88:91], s92 offen")
    a.label("L_end")
    a("s_endpgm")
    for gq in range(4):
        a.label(f"L_bad{gq}")
        o_ld(2*gq, 1, vB)
        o_ld(2*gq + 1, 1, vB)
        a(f"s_branch L_rc{gq}")
    a.label("L_snip")
    for tab in ("A",):
        a.label(f"L_snip{tab}")
        for n in sorted(sn):
            items = [(f, v) for f, v, act in sn[n] if (act is False) or (act is True and tab == "A") or (act == 'I' and tab == "I")]
            if not items: continue
            a(f"s_cmp_lg_u32 s{sIter}, {n}")
            a(f"s_cbranch_scc1 L_sn{tab}{n}x")
            nv = sum(v for _, v in items)
            assert nv <= NX, (n, nv)
            dummy(NX - nv)
            for f, _ in items: f()
            a(f"s_branch L_snret")
            a.label(f"L_sn{tab}{n}x")
        dummy(NX)
    a.label("L_snret")
    a(f"s_cmp_eq_u32 s{sWsel}, 1")
    a("s_cbranch_scc1 L_ret1")
    a(f"s_cmp_eq_u32 s{sWsel}, 0")
    a("s_cbranch_scc1 L_ret0")
    if TH3:
        a(f"s_cmp_eq_u32 s{sWsel}, 3")
        a("s_cbranch_scc1 L_ret3")
    if TH2:
        a(f"s_cmp_eq_u32 s{sWsel}, 4")
        a("s_cbranch_scc1 L_ret4")
    a("s_branch L_ret2")

def kd(a, name):
    a.raw(".p2align 6")
    a.raw(f".amdhsa_kernel {name}")
    a.raw("  .amdhsa_next_free_vgpr 512")
    a.raw("  .amdhsa_next_free_sgpr 102")
    a.raw("  .amdhsa_accum_offset 256")
    a.raw("  .amdhsa_group_segment_fixed_size 0")
    a.raw("  .amdhsa_kernarg_size 64")
    a.raw("  .amdhsa_user_sgpr_count 2")
    a.raw("  .amdhsa_user_sgpr_kernarg_segment_ptr 1")
    a.raw("  .amdhsa_system_sgpr_workgroup_id_x 1")
    a.raw(".end_amdhsa_kernel")

def main(path):
    a = Asm()
    a.raw(HEADER.rstrip())
    a.raw(f"; @launch grid=(256,1,1) block=(256,1,1) lds={LDS_SIZE}")
    a.raw('.amdgcn_target "amdgcn-amd-amdhsa--gfx950"')
    a.raw(".text")
    gen_k1(a)
    a.raw('.section .rodata,"a"')
    kd(a, K1)
    open(path, "w").write(a.text())

if __name__ == "__main__":
    args = sys.argv[1:]
    if "--stamp" in args:
        STAMP = True
        args.remove("--stamp")
    rest = []
    for x in args:
        if "=" in x:
            k, v = x.split("=", 1)
            OPT[k] = v.replace("+", " ")
        else:
            rest.append(x)
    main(rest[0] if rest else "standalone__mha_block_cached__sampling.s")
```

```python
import sys, struct, math

def f32hex(x):
    return "0x%08x" % struct.unpack("<I", struct.pack("<f", x))[0]

STAMP = False
OPT = {}
class Asm:
    def __init__(self):
        self.L = []
        self.uid = 0
    def stamp(self, idx):
        if not STAMP: return
        self("s_memrealtime s[68:69]")
        self("s_waitcnt lgkmcnt(0)")
        self(f"s_mov_b32 s{70 + idx}, s68")
    def stamp_store(self, wsptr, base, n):
        if not STAMP: return
        self(f"s_mov_b32 s88, s{wsptr}")
        self(f"s_mov_b32 s89, s{wsptr+1}")
        self("s_mov_b32 s90, 0x40000000")
        self("s_mov_b32 s91, 0x00020000")
        self("s_lshl_b32 s92, s2, 3")
        self("s_add_u32 s92, s92, s40")
        self("s_lshl_b32 s92, s92, 6")
        self(f"s_add_u32 s92, s92, 0x{base:x}")
        self("v_mov_b32 v250, 0")
        self("s_getreg_b32 s93, hwreg(HW_REG_XCC_ID)")
        self("v_mov_b32 v251, s93")
        self(f"buffer_store_dword v251, v250, s[88:91], s92 offen offset:{4*n}")
        self("s_nop 1")
        self("s_getreg_b32 s93, hwreg(HW_REG_HW_ID)")
        self("v_mov_b32 v251, s93")
        self(f"buffer_store_dword v251, v250, s[88:91], s92 offen offset:{4*n+4}")
        self("s_nop 1")
        for i in range(n):
            self(f"v_mov_b32 v251, s{70+i}")
            self(f"buffer_store_dword v251, v250, s[88:91], s92 offen offset:{4*i}")
            self("s_nop 1")
    def __call__(self, s):
        self.L.append("  " + s)
    def label(self, s):
        self.L.append(s + ":")
    def newlabel(self, p):
        self.uid += 1
        return f"L_{p}_{self.uid}"
    def raw(self, s):
        self.L.append(s)
    def text(self):
        return "\n".join(self.L) + "\n"

class MemSeq:
    def __init__(self, a, pre_kv=0):
        self.a = a; self.n = pre_kv; self.done = 0; self.kv = list(range(pre_kv)); self.slow = -1
    def issue(self, text, kv=False, slow=False):
        if text is not None: self.a(text)
        idx = self.n; self.n += 1
        if kv: self.kv.append(idx)
        if slow and self.slow < self.done: self.slow = idx
        return idx
    def wait_for(self, idx):
        if idx < self.done: return
        cnt = self.n - 1 - idx
        assert cnt <= 63, cnt
        self.a(f"s_waitcnt vmcnt({cnt})")
        self.done = idx + 1
    def pace(self, W):
        if len(self.kv) >= W:
            t = self.kv[-W]
            if self.slow >= self.done and t > self.slow: return
            self.wait_for(t)

def vr(b, n=4):
    return f"v[{b}:{b+n-1}]"
def ar(b, n=4):
    return f"a[{b}:{b+n-1}]"

HEADER = """; Kernarg layout for this problem (64 bytes, ptrs only, base s[0:1]):
"""

K1 = "standalone__mha_block_cached__sampling_kernel"

LDS_WO = 0
LDS_C = 32768
LDS_WQS = 0
LDS_XS = 65536
LDS_M = 98304
LDS_L = 100352
LDS_QF = 102400
LDS_CNT = 106496
LDS_X = 106496 + 64
LDS_SIZE = LDS_X + 16384
PR = 0x400000
QP = 0xC00000
WS_SIZE = QP + 0x1000000
FLQ = 0x300000
FLP = 0x310000

def gen_k1(a):
    W = int(OPT.get('W', 5))
    Wp = int(OPT.get('Wp', 5))
    Rn, Rd = [int(t) for t in OPT.get('R', '7/9').split('/')]
    vKoff, vVoff, vKoff2, vVoff2 = 1, 2, 3, 4
    vMc, vL, vT0, vT1 = 5, 6, 7, 20
    vS = 8
    vP = 16
    vAl, vT2, vT3 = 21, 22, 23
    vQ, vQ2 = 24, 32
    vO = 40
    vPT = 72
    vLdsO, vLdsM, vQF, vOne, vTr, vWoOff, vXoff, vWoff = 80, 81, 82, 83, 84, 85, 86, 87
    bK, bV = 88, 120
    vSR = 152
    vB = 168
    vAT = 232
    vCntL, vCntG, vDum = 248, 249, 252
    sX, sK, sV, sWQ, sWS, sWO, sOUT, sDBG, sNull = 20, 24, 28, 32, 36, 60, 64, 80, 96
    sWSo = 20
    sW, sH, sP_, sB1, sVoff, sKoff, sIter = 40, 41, 42, 43, 44, 45, 46
    sSelLo, sSelHi, sC, sBad, sSpin = 50, 51, 52, 53, 54
    sMask = 56
    sWoLd, sLb = 58, 59
    sXb, sWqb, sJ = 84, 85, 86
    vWoffB, vXt, vTq, vXrd = 253, 254, 216, 224
    sFl = 95
    sNon = 55
    vNon = 246
    sOld, sOst = 93, 94
    cscale = (128 ** -0.5) * math.log2(math.e)

    a.raw(f".globl {K1}")
    a.raw(".p2align 8")
    a.raw(f".type {K1},@function")
    a.label(K1)
    a("s_cmp_ge_u32 s2, 256")
    a("s_cbranch_scc1 L_end")
    a.stamp(0)
    a("s_load_dwordx16 s[4:19], s[0:1], 0")
    a("s_memrealtime s[90:91]")
    a("v_lshrrev_b32 v7, 6, v0")
    a("v_and_b32 v5, 63, v0")
    a("v_readfirstlane_b32 s40, v7")
    a("v_and_b32 v6, 15, v5")
    a("v_lshrrev_b32 v7, 4, v5")
    a("s_and_b32 s41, s2, 7")
    a("s_lshl_b32 s41, s41, 2")
    a("s_lshr_b32 s48, s2, 3")
    a("s_and_b32 s48, s48, 3")
    a("s_add_u32 s41, s41, s48")
    a("s_lshr_b32 s42, s2, 5")
    HM = int(OPT.get('HM', 0))
    if HM == 1:
        a("s_and_b32 s41, s2, 31")
    if HM == 2:
        a("s_and_b32 s41, s2, 7")
        a("s_lshl_b32 s41, s41, 1")
        a("s_bfe_u32 s48, s2, 0x10003")
        a("s_add_u32 s41, s41, s48")
        a("s_and_b32 s48, s2, 16")
        a("s_add_u32 s41, s41, s48")
    if HM == 3:
        a("s_and_b32 s41, s2, 3")
        a("s_bfe_u32 s48, s2, 0x20003")
        a("s_lshl_b32 s48, s48, 2")
        a("s_add_u32 s41, s41, s48")
        a("s_and_b32 s48, s2, 4")
        a("s_lshl_b32 s48, s48, 2")
        a("s_add_u32 s41, s41, s48")
    if HM == 4:
        a("s_and_b32 s41, s2, 1")
        a("s_bfe_u32 s48, s2, 0x20003")
        a("s_lshl_b32 s48, s48, 1")
        a("s_add_u32 s41, s41, s48")
        a("s_and_b32 s48, s2, 6")
        a("s_lshl_b32 s48, s48, 2")
        a("s_add_u32 s41, s41, s48")
    HB = OPT.get('HB')
    def hmap(dst, src, tmp):
        for k_, ch in enumerate(HB):
            if k_ == 0:
                a(f"s_bfe_u32 s{dst}, s{src}, 0x1000{ch}")
            else:
                a(f"s_bfe_u32 s{tmp}, s{src}, 0x1000{ch}")
                a(f"s_lshl_b32 s{tmp}, s{tmp}, {k_}")
                a(f"s_or_b32 s{dst}, s{dst}, s{tmp}")
    if HB: hmap(41, 2, 48)
    if OPT.get('map') == 'anti':
        a("s_lshr_b32 s41, s2, 3")
        a("s_and_b32 s42, s2, 7")
    t0, t1, t2, t3 = 240, 241, 242, 243
    a(f"v_and_b32 v{t0}, 3, v6")
    a(f"v_lshlrev_b32 v{t0}, 2, v{t0}")
    a(f"v_lshrrev_b32 v{t2}, 3, v6")
    a(f"v_and_b32 v{t3}, 7, v6")
    WQC = 5 if OPT.get('wqc') else 0
    a(f"v_lshlrev_b32 v{vWoff}, {16 - WQC}, v7")
    a(f"v_lshl_add_u32 v{vWoff}, v6, 4, v{vWoff}")
    a(f"v_lshlrev_b32 v{vXoff}, 17, v{t2}")
    a(f"v_lshl_add_u32 v{vXoff}, v{t3}, 11, v{vXoff}")
    a(f"v_lshl_add_u32 v{vXoff}, v7, 4, v{vXoff}")
    a(f"v_bfe_u32 v{t1}, v6, 2, 1")
    a(f"v_add_u32 v{t1}, v{t0}, v{t1}")
    a(f"v_lshlrev_b32 v{vKoff}, 8, v{t1}")
    a(f"v_lshl_add_u32 v{vKoff}, v{t2}, 6, v{vKoff}")
    a(f"v_lshl_add_u32 v{vKoff}, v7, 4, v{vKoff}")
    a(f"v_add_u32 v{vKoff2}, 0x1000, v{vKoff}")
    a(f"v_lshlrev_b32 v{vVoff}, 4, v5")
    a(f"v_add_u32 v{vVoff2}, 0x1000, v{vVoff}")
    PX = int(OPT.get('PX', 0))
    if PX:
        a(f"s_and_b32 s49, s{sP_}, 1")
        a("s_lshl_b32 s49, s49, 2")
        a(f"s_add_u32 s49, s49, s{sW}")
        a(f"s_lshl_b32 s{sXb}, s{sP_}, 14")
        a("s_lshl_b32 s48, s49, 8")
        a(f"s_add_u32 s{sXb}, s{sXb}, s48")
        a(f"s_lshl_b32 s{sWqb}, s49, 20")
        a(f"s_lshl_b32 s48, s{sH}, 8")
        a(f"s_add_u32 s{sWqb}, s{sWqb}, s48")
    else:
        a(f"s_lshl_b32 s{sXb}, s{sP_}, 14")
        a(f"s_lshl_b32 s48, s{sW}, 9")
        a(f"s_add_u32 s{sXb}, s{sXb}, s48")
        a(f"s_lshl_b32 s{sWqb}, s{sW}, {21 - WQC}")
        a(f"s_lshl_b32 s48, s{sH}, {18 if WQC else 8}")
        a(f"s_add_u32 s{sWqb}, s{sWqb}, s48")
    a(f"s_lshl_b32 s{sVoff}, s{sP_}, 5")
    a(f"s_add_u32 s{sVoff}, s{sVoff}, s{sH}")
    a(f"s_lshl_b32 s{sVoff}, s{sVoff}, 19")
    a(f"s_lshl_b32 s48, s{sW}, 13")
    a(f"s_add_u32 s{sVoff}, s{sVoff}, s48")
    ROT = OPT.get('ROT')
    if ROT:
        sh, mul = [int(t) for t in ROT.split('x')]
        a(f"s_lshr_b32 s48, s2, {sh}")
        a(f"s_mul_i32 s48, s48, {mul}")
        a("s_and_b32 s48, s48, 15")
        a("s_lshl_b32 s48, s48, 15")
        a(f"s_add_u32 s{sVoff}, s{sVoff}, s48")
    XM = [t.split(':') for t in OPT['XM'].split(',')] if OPT.get('XM') else []
    sXM = 79
    if XM:
        a(f"s_mov_b32 s{sXM}, 0")
        for b_, i_ in XM:
            a(f"s_bfe_u32 s48, s2, 0x1000{i_}")
            a(f"s_lshl_b32 s48, s48, {b_}")
            a(f"s_xor_b32 s{sXM}, s{sXM}, s48")
        a(f"s_xor_b32 s{sVoff}, s{sVoff}, s{sXM}")
    def next_off(dst, src):
        if XM:
            a(f"s_xor_b32 s{dst}, s{src}, s{sXM}")
            a(f"s_add_u32 s{dst}, s{dst}, 0x8000")
            a(f"s_xor_b32 s{dst}, s{dst}, s{sXM}")
            return
        if not ROT:
            a(f"s_add_u32 s{dst}, s{src}, 0x8000")
            return
        a(f"s_add_u32 s49, s{src}, 0x8000")
        a("s_and_b32 s49, s49, 0x78000")
        a(f"s_andn2_b32 s{dst}, s{src}, 0x78000")
        a(f"s_or_b32 s{dst}, s{dst}, s49")
    a(f"s_add_u32 s{sB1}, s{sVoff}, 0x8000000")
    for (d, size) in ((sX, 16*8*1024*2), (sWQ, 1024*4096*2), (sK, 1 << 28), (sV, 1 << 28)):
        a(f"s_mov_b32 s{d+2}, 0x{size:x}")
        a(f"s_mov_b32 s{d+3}, 0x00020000")
    a(f"s_mov_b32 s{sSelLo}, 0x05040100")
    a(f"s_mov_b32 s{sSelHi}, 0x07060302")
    a("s_waitcnt lgkmcnt(0)")
    if OPT.get('wsoff'):
        a(f"s_add_u32 s18, s18, {OPT['wsoff']}")
        a("s_addc_u32 s19, s19, 0")
    for (d, src) in ((sX, 4), (sWQ, 10), (sK, 6), (sV, 8)):
        a(f"s_mov_b32 s{d}, s{src}")
        a(f"s_mov_b32 s{d+1}, s{src+1}")

    a(f"s_mov_b32 s{sDBG}, s16")
    a(f"s_mov_b32 s{sDBG+1}, s17")
    a(f"s_mov_b32 s{sDBG+2}, 256")
    a(f"s_mov_b32 s{sDBG+3}, 0x00020000")
    CT = int(OPT.get('CT', 0))
    CB, CS = 0x330000, int(OPT.get('CS', '0x1100'), 0)
    a(f"v_mov_b32 v{vNon+1}, 0")
    a(f"s_or_b32 s48, s2, s{sW}")
    a("s_cmp_lg_u32 s48, 0")
    a("s_cbranch_scc1 L_nopub")
    a(f"s_or_b32 s{sNon}, s90, 1")
    a(f"v_mov_b32 v{vNon}, s{sNon}")
    if CT == 1:
        a(f"s_mov_b32 s{sNull}, s18")
        a(f"s_mov_b32 s{sNull+1}, s19")
        a(f"s_mov_b32 s{sNull+2}, 0x{WS_SIZE:x}")
        a(f"s_mov_b32 s{sNull+3}, 0x00020000")
        a(f"s_mov_b32 s48, 0x{CS:x}")
        a(f"v_mul_lo_u32 v245, v5, s48")
        a(f"s_mov_b32 s48, 0x{CB:x}")
        a("s_mov_b32 exec_hi, 0")
        a(f"buffer_store_dword v{vNon+1}, v245, s[{sNull}:{sNull+3}], s48 offen sc1")
    else:
        a("s_mov_b64 exec, 1")
        a(f"buffer_store_dword v{vNon}, v{vNon+1}, s[{sDBG}:{sDBG+3}], 0 offen sc1")
    a("s_mov_b64 exec, -1")
    a.label("L_nopub")
    def late_pub():
        a(f"s_or_b32 s48, s2, s{sW}")
        a("s_cmp_lg_u32 s48, 0")
        a("s_cbranch_scc1 L_nopub2")
        a("s_mov_b64 exec, 1")
        a(f"buffer_store_dword v{vNon}, v{vNon+1}, s[{sDBG}:{sDBG+3}], 0 offen sc1")
        a("s_mov_b64 exec, -1")
        a.label("L_nopub2")
    if OPT.get('est'): a.stamp(3)
    ms = MemSeq(a)
    if OPT.get('T0'):
        a("s_mov_b64 exec, 1")
        ms.issue(f"buffer_load_dword v244, off, s[{sK}:{sK+3}], s{sVoff}{OPT.get('t0flag', ' nt')}")
        ms.issue(f"buffer_load_dword v245, off, s[{sV}:{sV+3}], s{sVoff}{OPT.get('t0flag', ' nt')}")
        a("s_mov_b64 exec, -1")
    NSL = 3
    def xreg(ks): return 8 + 4*ks
    def slot(ks): return 152 + (ks % NSL)*32

    def ld_K(ms, dst, j, soff):
        T, s = j >> 2, j & 3
        return ms.issue(f"buffer_load_dwordx4 {dst}, v{vKoff if T == 0 else vKoff2}, s[{sK}:{sK+3}], s{soff} offen offset:{(s>>1)*512 + (s&1)*128} nt", kv=True)
    def ld_V(ms, dst, i, soff):
        return ms.issue(f"buffer_load_dwordx4 {dst}, v{vVoff if i < 4 else vVoff2}, s[{sV}:{sV+3}], s{soff} offen offset:{(i&3)*1024} nt", kv=True)

    stage = []
    for b in range(4):
        for j in range(8): stage.append(('K', b, j))
        for j in range(8): stage.append(('V', b, j))
    for j in range(8): stage.append(('K', 4, j))
    st = {'pos': 0, 'idx': {}}
    def stage_one(Wx):
        if st['pos'] >= len(stage): return False
        kind, b, j = stage[st['pos']]; st['pos'] += 1
        if len(ms.kv) >= Wx and not st.get('late'):
            st['late'] = True
            late_setup()
        ms.pace(Wx)
        if OPT.get('sst') and st['pos'] - 1 - Wx in (0, 7, 23, 39): a.stamp(3 + (0, 7, 23, 39).index(st['pos'] - 1 - Wx))
        if kind == 'K':
            dst = ar(64*b + 4*j) if b < 4 else vr(bK + 4*j)
            st['idx'][(kind, b, j)] = ld_K(ms, dst, j, sVoff)
        else:
            st['idx'][(kind, b, j)] = ld_V(ms, ar(64*b + 32 + 4*j), j, sVoff)
            if j == 7:
                next_off(sVoff, sVoff)
        return True

    def perm_c(src, c):
        for hb, sel in ((0, sSelLo), (1, sSelHi)):
            for t in range(4):
                a(f"v_perm_b32 v{vPT + hb*4 + t}, v{src[2*t+1] + c}, v{src[2*t] + c}, s{sel}")
    def mfma_c(bop, c, first):
        a("s_nop 1")
        for hb in range(2):
            j = 2*c + hb
            cc = "0" if first else vr(vO + 4*j)
            a(f"v_mfma_f32_16x16x32_bf16 {vr(vO + 4*j)}, {vr(vPT + hb*4)}, {vr(bop)}, {cc}")
    def reset_state():
        for r in range(32):
            a(f"v_mov_b32 v{vO + r}, 0")
        a(f"v_mov_b32 v{vMc}, 0xff800000")
        a(f"v_mov_b32 v{vL}, 0")

    def late_setup():
        a(f"v_lshl_add_u32 v{t1}, v7, 4, v{t3}")
        a(f"v_lshlrev_b32 v{t1}, 4, v{t1}")
        a(f"v_lshl_add_u32 v{t1}, v{t2}, 10, v{t1}")
        a(f"v_add_u32 v{vQF}, 0x{LDS_QF:x}, v{t1}")
        a(f"v_mov_b32 v{vCntL}, 0x{LDS_CNT:x}")
        a(f"v_mov_b32 v{vOne}, 0")
        a(f"ds_write_b32 v{vCntL}, v{vOne}")
        a(f"ds_write_b32 v{vCntL}, v{vOne} offset:4")
        a(f"ds_write_b32 v{vCntL}, v{vOne} offset:8")
        a(f"ds_write_b32 v{vCntL}, v{vOne} offset:12")
        a(f"ds_write_b32 v{vCntL}, v{vOne} offset:16")
        a(f"ds_write_b32 v{vCntL}, v{vOne} offset:24")
        a(f"ds_write_b32 v{vCntL}, v{vOne} offset:28")
        a(f"v_lshl_add_u32 v{t1}, v{t3}, 2, v{vCntL}")
        a(f"ds_write_b32 v{t1}, v{vOne} offset:32")
        a(f"v_lshl_add_u32 v{t1}, v7, 3, v{t3}")
        a(f"v_lshlrev_b32 v{t1}, 4, v{t1}")
        a(f"s_lshl_b32 s48, s{sW}, 12")
        a(f"s_add_u32 s48, s48, 0x{LDS_C:x}")
        a(f"v_add_u32 v{vLdsO}, s48, v{t1}")
        a(f"s_lshl_b32 s48, s{sW}, 8")
        a(f"s_add_u32 s48, s48, 0x{LDS_M:x}")
        a(f"v_lshlrev_b32 v{t1}, 2, v5")
        a(f"v_add_u32 v{vLdsM}, s48, v{t1}")
        a(f"v_lshrrev_b32 v{t1}, 3, v5")
        a(f"v_lshlrev_b32 v{vWoOff}, 11, v{t1}")
        a(f"v_lshl_add_u32 v{vWoOff}, v{t3}, 4, v{vWoOff}")
        a(f"v_and_b32 v{t1}, 1, v7")
        a(f"v_lshlrev_b32 v{vTr}, 5, v{t1}")
        a(f"v_xor_b32 v{vWoOff}, v{vWoOff}, v{vTr}")
        a(f"v_lshl_add_u32 v{t1}, v{t1}, 1, v{t2}")
        a(f"v_lshlrev_b32 v{vTr}, 5, v{t1}")
        a(f"v_lshrrev_b32 v{t1}, 2, v6")
        a(f"v_lshl_add_u32 v{t1}, v7, 3, v{t1}")
        a(f"v_lshl_add_u32 v{vTr}, v{t1}, 7, v{vTr}")
        a(f"v_lshl_add_u32 v{vTr}, v{t0}, 1, v{vTr}")
        a(f"s_lshl_b32 s{sLb}, s{sW}, 14")
        a(f"s_lshr_b32 s48, s{sW}, 1")
        a("s_lshl_b32 s48, s48, 15")
        a(f"s_add_u32 s{sLb}, s{sLb}, s48")
        a("s_lshl_b32 s49, s48, 1")
        a(f"v_add_u32 v{vTr}, s49, v{vTr}")
        a(f"v_mov_b32 v{vOne}, 1")
        a(f"s_mov_b32 s{sC}, {f32hex(cscale)}")
        a(f"s_mov_b32 s{sMask}, 0x00ff00ff")
        a(f"s_mov_b32 s{sMask+1}, 0x00ff00ff")
        for (d, src, size) in ((sWS, 18, WS_SIZE), (sWO, 12, 4096*1024*2), (sOUT, 14, 128*1024*2), (sNull, 18, 0)):
            a(f"s_mov_b32 s{d}, s{src}")
            a(f"s_mov_b32 s{d+1}, s{src+1}")
            a(f"s_mov_b32 s{d+2}, 0x{size:x}")
            a(f"s_mov_b32 s{d+3}, 0x00020000")
        a("s_and_b32 s48, s2, 7")
        a(f"s_lshl_b32 s{sOld}, s48, 15")
        if HB:
            a(f"s_lshl_b32 s49, s{sW}, 3")
            a("s_or_b32 s49, s49, s48")
            hmap(sWoLd, 49, 48)
            a(f"s_lshl_b32 s{sWoLd}, s{sWoLd}, 18")
        else:
            a(f"s_lshl_b32 s{sWoLd}, s48, 20")
            a(f"s_lshl_b32 s48, s{sW}, 18")
            a(f"s_add_u32 s{sWoLd}, s{sWoLd}, s48")
        a("s_lshr_b32 s48, s2, 4")
        a("s_lshl_b32 s48, s48, 7")
        a(f"s_add_u32 s{sWoLd}, s{sWoLd}, s48")
        a("s_and_b32 s48, s2, 8")
        a("s_lshl_b32 s48, s48, 19")
        a(f"s_add_u32 s{sOld}, s{sOld}, s48")
        a(f"s_and_b32 s48, s{sW}, 1")
        a("s_lshl_b32 s48, s48, 21")
        a(f"s_add_u32 s{sOld}, s{sOld}, s48")
        a(f"s_and_b32 s48, s{sW}, 2")
        a("s_lshl_b32 s48, s48, 18")
        a(f"s_add_u32 s{sOld}, s{sOld}, s48")
        a(f"s_add_u32 s{sOld}, s{sOld}, 0x{QP:x}")
        a(f"s_lshl_b32 s{sOst}, s2, 15")
        a(f"s_add_u32 s48, s{sP_}, 3")
        a("s_and_b32 s48, s48, 3")
        a("s_lshl_b32 s48, s48, 13")
        a(f"s_add_u32 s{sOst}, s{sOst}, s48")
        a(f"s_add_u32 s{sOst}, s{sOst}, 0x{QP:x}")
        a(f"s_and_b32 s48, s{sW}, 1")
        a("s_lshl_b32 s48, s48, 10")
        a(f"s_add_u32 s{sOst}, s{sOst}, s48")
        FS = int(OPT.get('FS', 0))
        if FS:
            for r in range(4):
                a(f"v_mov_b32 v{232 + r}, -1")
            a(f"s_lshr_b32 s48, s{sW}, 1")
            a("s_lshl_b32 s48, s48, 11")
            a(f"s_add_u32 s48, s48, s{sOst}")
            if FS == 2:
                a(f"s_cmp_ge_u32 s{sW}, 2")
                a(f"s_cselect_b32 s{sNull+2}, 0x{WS_SIZE:x}, 0")
                ms.issue(f"buffer_store_dwordx4 {vr(232)}, v{vVoff}, s[{sNull}:{sNull+3}], s48 offen sc1")
                a(f"s_mov_b32 s{sNull+2}, 0")
            else:
                ms.issue(f"buffer_store_dwordx4 {vr(232)}, v{vVoff}, s[{sWS}:{sWS+3}], s48 offen sc1")
        PT = int(OPT.get('PT', 0))
        if PT:
            for ph in range(2 - PT, 2):
                a(f"s_add_u32 s48, s{sP_}, {1 + ph}")
                a("s_and_b32 s48, s48, 3")
                a("s_lshl_b32 s48, s48, 13")
                a("s_lshl_b32 s49, s2, 15")
                a("s_add_u32 s48, s48, s49")
                a(f"s_lshl_b32 s49, s{sW}, 11")
                a("s_add_u32 s48, s48, s49")
                a(f"s_add_u32 s48, s48, 0x{QP:x}")
                for k_ in range(2):
                    ms.issue(f"buffer_store_dwordx4 {vr(232)}, v{vVoff}, s[{sWS}:{sWS+3}], s48 offen offset:{k_*1024} sc1")

    def prologue(pfx):
        def O(k, d=None): return OPT.get(pfx + k, OPT.get(k, d))
        Wp = int(O('Wp', 5))
        NSL = int(O('NSL', 3))
        slots = [88, 120, 152, 184][4 - NSL:]
        qa, qb = [int(t) for t in O('QR', '4/3').split('/')]
        seq = [('s',)] * int(O('KF', 0))
        qlist = [('q', n, e) for n in range(8) for e in range(9)]
        Q0 = int(O('Q0', 0))
        seq += qlist[:Q0]
        accum = 0
        for it_ in qlist[Q0:]:
            seq.append(it_)
            accum += qb
            while accum >= qa:
                seq.append(('s',)); accum -= qa
        D = int(O('QD', 10))
        seq += [('s',)] * (D + 4)
        sched = {}
        qidx = {}
        endpos = {}
        for t, it_ in enumerate(seq):
            if it_[0] == 'q' and it_[2] == 8:
                for c in range(4): sched.setdefault(t + D + c, []).append((it_[1], c))
        donec = set()
        for t, it_ in enumerate(seq):
            if t == int(O('LS', 1000)) and not st.get('late'):
                st['late'] = True
                late_setup()
            if it_[0] == 's':
                assert NSL < 4 or st['pos'] < 64 or (4, 3) in donec
                stage_one(Wp if t >= int(O('QW0', 0)) else 99)
            else:
                _, n, e = it_
                if OPT.get('NOQ') and n >= int(OPT['NOQ']) - 1:
                    qidx[(n, e)] = -1
                elif e == 0:
                    a(f"s_add_u32 s48, s{sP_}, {n}")
                    a("s_and_b32 s48, s48, 7")
                    a(f"s_lshl_b32 s47, s48, {18 - WQC}")
                    a(f"s_add_u32 s47, s47, s{sWqb}")
                    a("s_lshl_b32 s48, s48, 6")
                    a(f"s_add_u32 s48, s48, s{sXb}")
                    qidx[(n, e)] = ms.issue(f"buffer_load_dwordx4 {vr(8 + 4*n)}, v{vXoff}, s[{sX}:{sX+3}], s48 offen{OPT.get('xflag','')}")
                else:
                    assert n < NSL or (n - NSL, 3) in donec, (n, e)
                    if e > 1: a(f"s_add_u32 s47, s47, 0x{0x2000 >> WQC:x}")
                    qidx[(n, e)] = ms.issue(f"buffer_load_dwordx4 {vr(slots[n % NSL] + 4*(e-1))}, v{vWoff}, s[{sWQ}:{sWQ+3}], s47 offen{OPT.get('wqflag0', OPT.get('wqflag','')) if n == 0 else OPT.get('wqflag','')}")
            for (n, c) in sched.get(t, []):
                ms.wait_for(qidx[(n, 8)])
                if CT == 1 and n == 0 and c == 0: late_pub()
                if OPT.get('xst') and c == 0 and n in (0, 2, 4, 6): a.stamp(3 + n // 2)
                perm_c([slots[n % NSL] + 4*i for i in range(8)], c)
                mfma_c(8 + 4*n, c, n == 0)
                donec.add((n, c))
        assert len(donec) == 32
        if not st.get('late'):
            st['late'] = True
            late_setup()
        a.stamp(1)
        a(f"s_lshl_b32 s48, s{sW}, 13")
        a(f"v_add_u32 v8, s48, v{vVoff}")
        a(f"s_lshl_b32 s48, s{sW}, 11")
        a(f"v_add_u32 v9, s48, v{vVoff}")
        a(f"v_lshlrev_b32 v10, 10, v7")
        a(f"v_lshl_add_u32 v10, v6, 4, v10")
        a(f"s_lshl_b32 s48, s{sW}, 2")
        a(f"s_add_u32 s48, s48, 0x{LDS_QF:x}")
        a(f"v_add_u32 v10, s48, v10")
        a(f"s_mov_b32 s{sWSo}, s18")
        a(f"s_mov_b32 s{sWSo+1}, s19")
        a(f"s_cmp_lt_u32 s{sW}, 2")
        a(f"s_cselect_b32 s{sWSo+2}, 0x{WS_SIZE:x}, 0")
        a("s_nop 7")
        for j in range(8):
            a(f"ds_write_b128 v8, {vr(vO + 4*j)} offset:{j*1024}")
        for i in range(int(O('SB', 2))): stage_one(Wp)
        a("s_waitcnt lgkmcnt(0)")
        a("s_barrier")
        for ww in range(4):
            for tt in range(2):
                a(f"ds_read_b128 {vr(vO + (ww*2+tt)*4)}, v9 offset:{ww*8192 + tt*1024}")
        for i in range(int(O('SC', 1))): stage_one(Wp)
        a("s_waitcnt lgkmcnt(0)")
        for r in range(8):
            a(f"v_add_f32 v{vO + r}, v{vO + r}, v{vO + 8 + r}")
            a(f"v_add_f32 v{vO + 16 + r}, v{vO + 16 + r}, v{vO + 24 + r}")
        for r in range(8):
            a(f"v_add_f32 v{vO + r}, v{vO + r}, v{vO + 16 + r}")
        for r in range(4):
            a(f"v_cvt_pk_bf16_f32 v{12 + r}, v{vO + r}, v{vO + 4 + r}")
        for r in range(4):
            a(f"ds_write_b32 v10, v{12 + r} offset:{r*256}")
        for i in range(int(O('SD', 1))): stage_one(Wp)
        a("s_waitcnt lgkmcnt(0)")
        a("s_barrier")
        for ph in range(2):
            for sp in range(2):
                a(f"ds_read_b128 {vr(vQ + ph*8 + sp*4)}, v{vQF} offset:{sp*2048 + ph*128}")
        reset_state()
        a("s_waitcnt lgkmcnt(0)")
        a.stamp(2)
        WF = int(O('WF', W))
        while stage_one(WF if st['pos'] < 64 else W): pass
        a("s_waitcnt vmcnt(8)")
    vTag, sTag = 254, 3
    def nonce_wait(vN):
        a(f"s_mov_b32 s{sSpin}, {OPT.get('SPIN', '0x20000')}")
        a.label("L_nonp")
        a(f"v_readfirstlane_b32 s{sNon}, v{vN}")
        a(f"s_cmp_lg_u32 s{sNon}, 0")
        a("s_cbranch_scc1 L_nond")
        a(f"s_sub_u32 s{sSpin}, s{sSpin}, 1")
        a(f"s_cmp_eq_u32 s{sSpin}, 0")
        a("s_cbranch_scc1 L_nond")
        a(f"buffer_load_dword v{vN}, off, s[{sDBG}:{sDBG+3}], 0 sc1")
        a("s_waitcnt vmcnt(0)")
        a("s_branch L_nonp")
        a.label("L_nond")
    def prologue2():
        O = OPT.get
        Wp = int(O('Wp', 5))
        NSL = 3
        slots = [120, 152, 184]
        vO2 = 88
        qa, qb = [int(t) for t in O('QR', '4/3').split('/')]
        seq = [('s',)] * int(O('KF', 0))
        qlist = [('q', n, e) for n in range(4) for e in range(10)]
        Q0 = int(O('Q0', 0))
        D = int(O('QD', 10))
        seq += qlist[:Q0]
        accum = 0
        for it_ in qlist[Q0:]:
            if it_[1] == 3 and it_[2] == 2:
                t0_ = seq.index(('q', 0, 9))
                while len(seq) < t0_ + D + 4: seq.append(('s',))
            seq.append(it_)
            accum += qb
            while accum >= qa:
                seq.append(('s',)); accum -= qa
        seq += [('s',)] * (D + 4)
        NP = int(O('NP', 36))
        sched = {}
        qidx = {}
        for t, it_ in enumerate(seq):
            if it_[0] == 'q' and it_[2] == 9:
                for c in range(4): sched.setdefault(t + D + c, []).append((it_[1], c))
        donec = set()
        for t, it_ in enumerate(seq):
            if t == int(O('LS', 1000)) and not st.get('late'):
                st['late'] = True
                late_setup()
            if t == NP:
                nidx = ms.issue(f"buffer_load_dword v255, off, s[{sDBG}:{sDBG+3}], 0 sc1")
            if it_[0] == 's':
                assert st['pos'] < 64
                stage_one(Wp if t >= int(O('QW0', 0)) else 99)
            else:
                _, n, e = it_
                if e == 0:
                    a(f"s_lshr_b32 s48, s{sP_}, 1")
                    a(f"s_add_u32 s48, s48, {n}")
                    a("s_and_b32 s48, s48, 3")
                    a(f"s_lshl_b32 s47, s48, 18")
                    a(f"s_add_u32 s47, s47, s{sWqb}")
                    a("s_lshl_b32 s48, s48, 6")
                    a(f"s_add_u32 s{sJ}, s48, s{sXb}")
                    qidx[(n, e)] = ms.issue(f"buffer_load_dwordx4 {vr(8 + 8*n)}, v{vXoff}, s[{sX}:{sX+3}], s{sJ} offen{OPT.get('xflag','')}")
                elif e == 1:
                    a(f"s_xor_b32 s48, s{sJ}, 0x4000")
                    qidx[(n, e)] = ms.issue(f"buffer_load_dwordx4 {vr(12 + 8*n)}, v{vXoff}, s[{sX}:{sX+3}], s48 offen{OPT.get('xflag','')}")
                else:
                    assert n < NSL or (n - NSL, 3) in donec, (n, e)
                    if e > 2: a(f"s_add_u32 s47, s47, 0x2000")
                    qidx[(n, e)] = ms.issue(f"buffer_load_dwordx4 {vr(slots[n % NSL] + 4*(e-2))}, v{vWoff}, s[{sWQ}:{sWQ+3}], s47 offen{OPT.get('wqflag0', OPT.get('wqflag','')) if n == 0 else OPT.get('wqflag','')}")
            for (n, c) in sched.get(t, []):
                ms.wait_for(qidx[(n, 9)])
                perm_c([slots[n % NSL] + 4*i for i in range(8)], c)
                a("s_nop 1")
                for (acc, bop) in ((vO, 8 + 8*n), (vO2, 12 + 8*n)):
                    for hb in range(2):
                        j = 2*c + hb
                        cc = "0" if n == 0 else vr(acc + 4*j)
                        a(f"v_mfma_f32_16x16x32_bf16 {vr(acc + 4*j)}, {vr(vPT + hb*4)}, {vr(bop)}, {cc}")
                donec.add((n, c))
        assert len(donec) == 16
        if not st.get('late'):
            st['late'] = True
            late_setup()
        if not OPT.get('pst'): a.stamp(1)
        a(f"s_lshl_b32 s48, s{sW}, 14")
        a(f"v_add_u32 v8, s48, v{vVoff}")
        a(f"s_lshl_b32 s48, s{sW}, 11")
        a(f"v_add_u32 v9, s48, v{vVoff}")
        a(f"v_lshlrev_b32 v10, 10, v7")
        a(f"v_lshl_add_u32 v10, v6, 4, v10")
        a(f"s_lshl_b32 s48, s{sW}, 2")
        a(f"s_add_u32 s48, s48, 0x{LDS_QF:x}")
        a(f"v_add_u32 v10, s48, v10")
        a(f"s_mov_b32 s{sWSo}, s18")
        a(f"s_mov_b32 s{sWSo+1}, s19")
        a(f"s_cmp_lt_u32 s{sW}, 2")
        a(f"s_cselect_b32 s{sWSo+2}, 0x{WS_SIZE:x}, 0")
        a(f"s_lshl_b32 s{sXb}, s2, 15")
        a(f"s_and_b32 s48, s{sP_}, 3")
        a("s_lshl_b32 s48, s48, 13")
        a(f"s_add_u32 s{sXb}, s{sXb}, s48")
        a(f"s_lshl_b32 s48, s{sW}, 11")
        a(f"s_add_u32 s{sXb}, s{sXb}, s48")
        a(f"s_xor_b32 s{sWqb}, s{sXb}, 0x{(32 << 15) | (1 << 13):x}")
        a(f"s_add_u32 s{sXb}, s{sXb}, 0x{QP:x}")
        a(f"s_add_u32 s{sWqb}, s{sWqb}, 0x{QP:x}")
        for r in range(4):
            a(f"s_mov_b32 s{88 + r}, 0x{0x07060500 + r:x}")
        for j in range(8):
            a(f"ds_write_b128 v8, {vr(vO2 + 4*j)} offset:{8192 + j*1024}")
        for j in range(8):
            a(f"ds_write_b128 v8, {vr(vO + 4*j)} offset:{j*1024}")
        ms.wait_for(nidx)
        nonce_wait(255)
        a(f"s_mul_i32 s{sTag}, s{sNon}, 0x9e3779b1")
        a(f"v_mov_b32 v{vTag}, s{sTag}")
        for i in range(int(O('SB', 2))): stage_one(Wp)
        a("s_waitcnt lgkmcnt(0)")
        a("s_barrier")
        for (acc, off) in ((vO2, 8192), (vO, 0)):
            for ww in range(4):
                for tt in range(2):
                    a(f"ds_read_b128 {vr(acc + (ww*2+tt)*4)}, v9 offset:{ww*16384 + off + tt*1024}")
        for i in range(int(O('SC', 1))): stage_one(Wp)
        a("s_waitcnt lgkmcnt(8)")
        for r in range(8):
            a(f"v_add_f32 v{vO2 + r}, v{vO2 + r}, v{vO2 + 8 + r}")
            a(f"v_add_f32 v{vO2 + 16 + r}, v{vO2 + 16 + r}, v{vO2 + 24 + r}")
        for r in range(8):
            a(f"v_add_f32 v{vO2 + r}, v{vO2 + r}, v{vO2 + 16 + r}")
        for r in range(8):
            a(f"v_perm_b32 v{16 + r}, v{vO2 + r}, v{vTag}, s{88 + (r & 3)}")
        for tt in range(2):
            ms.issue(f"buffer_store_dwordx4 {vr(16 + 4*tt)}, v{vVoff}, s[{sWS}:{sWS+3}], s{sWqb} offen offset:{tt*1024} sc1")
        if OPT.get('pst'): a.stamp(1)
        assert st['pos'] <= 64
        print("staged at store:", st['pos'], "seq", len(seq), file=sys.stderr)
        a("s_waitcnt lgkmcnt(0)")
        for r in range(8):
            a(f"v_add_f32 v{vO + r}, v{vO + r}, v{vO + 8 + r}")
            a(f"v_add_f32 v{vO + 16 + r}, v{vO + 16 + r}, v{vO + 24 + r}")
        for r in range(8):
            a(f"v_add_f32 v{vO + r}, v{vO + r}, v{vO + 16 + r}")
        XL = int(O('XL', 56))
        XD = int(O('XD', 10))
        W2 = int(O('Wp2', Wp))
        while st['pos'] < XL: stage_one(W2)
        def px_ld(iss):
            r_ = None
            for tt in range(2):
                r_ = iss(f"buffer_load_dwordx4 {vr(48 + 4*tt)}, v{vVoff}, s[{sWS}:{sWS+3}], s{sXb} offen offset:{tt*1024} sc1")
            return r_
        xi = px_ld(ms.issue)
        for i in range(XD): stage_one(W2)
        a("s_mov_b32 s48, 0x0c0c0400")
        a("s_mov_b32 s47, 0x04000c0c")
        a(f"s_mov_b32 s{sSpin}, {OPT.get('SPIN', '0x20000')}")
        ms.wait_for(xi)
        if OPT.get('pst'): a.stamp(3)
        a.label("L_pxc")
        a("v_perm_b32 v11, v49, v48, s48")
        a("v_perm_b32 v12, v51, v50, s47")
        a("v_perm_b32 v13, v53, v52, s48")
        a("v_perm_b32 v14, v55, v54, s47")
        a("v_or_b32 v11, v11, v12")
        a("v_or_b32 v13, v13, v14")
        a(f"v_xor_b32 v11, s{sTag}, v11")
        a(f"v_xor_b32 v13, s{sTag}, v13")
        a("v_or_b32 v11, v11, v13")
        a("v_cmp_ne_u32 vcc, 0, v11")
        a("s_cbranch_vccz L_pxd")
        a(f"s_sub_u32 s{sSpin}, s{sSpin}, 1")
        a(f"s_cmp_eq_u32 s{sSpin}, 0")
        a("s_cbranch_scc1 L_pxd")
        a("s_sleep 4")
        px_ld(a)
        a("s_waitcnt vmcnt(0)")
        a("s_branch L_pxc")
        a.label("L_pxd")
        if OPT.get('pst') and STAMP: a(f"s_mov_b32 s74, s{sSpin}")
        for r in range(8):
            a(f"v_and_b32 v{48 + r}, 0xffffff00, v{48 + r}")
        for r in range(8):
            a(f"v_add_f32 v{vO + r}, v{vO + r}, v{48 + r}")
        for r in range(4):
            a(f"v_cvt_pk_bf16_f32 v{12 + r}, v{vO + r}, v{vO + 4 + r}")
        for r in range(4):
            a(f"ds_write_b32 v10, v{12 + r} offset:{r*256}")
        for i in range(int(O('SD', 1))): stage_one(W2)
        a("s_waitcnt lgkmcnt(0)")
        a("s_barrier")
        for ph in range(2):
            for sp in range(2):
                a(f"ds_read_b128 {vr(vQ + ph*8 + sp*4)}, v{vQF} offset:{sp*2048 + ph*128}")
        reset_state()
        a("s_waitcnt lgkmcnt(0)")
        a.stamp(2)
        WF = int(O('WF', W))
        while stage_one(WF if st['pos'] < 64 else W): pass
        a("s_waitcnt vmcnt(8)")
    AB = OPT.get('AB')
    if AB:
        a(f"s_bitcmp1_b32 s2, {AB}")
        a("s_cbranch_scc0 L_pA")
        prologue('B_')
        a("s_branch L_pJ")
        a.label("L_pA")
        ms.__init__(a)
        st.clear(); st.update({'pos': 0, 'idx': {}})
    if PX: prologue2()
    else: prologue('A_')
    a.label("L_pJ")
    ms.__init__(a, pre_kv=8)
    for k_ in list(st['idx']): st['idx'][k_] = -1
    for j in range(8): st['idx'][('K', 4, j)] = j
    vNon = 255
    nid = {}
    def get_nonce():
        ms.wait_for(nid['x'])
        nonce_wait(vNon)
    def signal(soff, cnt_off):
        a("s_waitcnt lgkmcnt(0)")
        a("s_mov_b64 exec, 1")
        a(f"ds_add_rtn_u32 v{vCntG}, v{vCntL}, v{vOne} offset:{cnt_off}")
        a(f"s_xor_b32 s49, s{sNon}, s5")
        a(f"v_mov_b32 v{vB}, s49")
        a("s_waitcnt lgkmcnt(0)")
        a(f"v_readfirstlane_b32 s49, v{vCntG}")
        a(f"v_mov_b32 v{vCntG}, 0")
        a("s_cmp_eq_u32 s49, 3")
        a(f"s_cselect_b32 s{sNull+2}, 0x{WS_SIZE:x}, 0")
        a("s_nop 0")
        a(f"buffer_store_dword v{vB}, v{vCntG}, s[{sNull}:{sNull+3}], s{soff} offen sc1")
        a("s_mov_b64 exec, -1")
        a("s_nop 0")
        a(f"s_mov_b32 s{sNull+2}, 0")

    def p_QK(kop):
        for T in range(2):
            for s in range(4):
                d = vSR + (T*2 + (s>>1))*4
                cc = "0" if (s & 1) == 0 else vr(d)
                a(f"v_mfma_f32_16x16x32_bf16 {vr(d)}, {kop(T*4+s)}, {vr(vQ + 4*(s&1))}, {cc}")
    def p_SM1():
        a("s_nop 7")
        for T in range(2):
            for r in range(4):
                a(f"v_permlane32_swap_b32 v{vSR + T*8 + r}, v{vSR + T*8 + 4 + r}")
        a("s_nop 0")
        for T in range(2):
            for r in range(4):
                a(f"v_add_f32_dpp v{vS + T*4 + r}, v{vSR + T*8 + 4 + r}, v{vSR + T*8 + r} row_ror:8 row_mask:0xf bank_mask:0xf")
        a(f"v_max3_f32 v{vT0}, v{vS+0}, v{vS+1}, v{vS+2}")
        a(f"v_max3_f32 v{vT0}, v{vT0}, v{vS+3}, v{vS+4}")
        a(f"v_max3_f32 v{vT0}, v{vT0}, v{vS+5}, v{vS+6}")
        a(f"v_max_f32 v{vT0}, v{vT0}, v{vS+7}")
        a(f"v_mov_b32 v{vT1}, v{vT0}")
        a("s_nop 1")
        a(f"v_permlane16_swap_b32 v{vT0}, v{vT1}")
        a("s_nop 1")
        a(f"v_max_f32 v{vT0}, v{vT0}, v{vT1}")
        a(f"v_mov_b32 v{vT1}, v{vT0}")
        a("s_nop 1")
        a(f"v_permlane32_swap_b32 v{vT0}, v{vT1}")
        a("s_nop 1")
        a(f"v_max_f32 v{vT0}, v{vT0}, v{vT1}")
        a(f"v_mul_f32 v{vT0}, s{sC}, v{vT0}")
        a(f"v_max_f32 v{vT0}, v{vT0}, v{vMc}")
        a(f"v_sub_f32 v{vAl}, v{vMc}, v{vT0}")
        a(f"v_exp_f32 v{vAl}, v{vAl}")
        a(f"v_mov_b32 v{vMc}, v{vT0}")
    def p_SM2():
        for i in range(8):
            a(f"v_fma_f32 v{vS+i}, v{vS+i}, s{sC}, -v{vMc}")
        for i in range(8):
            a(f"v_exp_f32 v{vS+i}, v{vS+i}")
        a("s_nop 0")
        a(f"v_add_f32 v{vT2}, v{vS+0}, v{vS+1}")
        a(f"v_add_f32 v{vT3}, v{vS+2}, v{vS+3}")
        a(f"v_add_f32 v{vT0}, v{vS+4}, v{vS+5}")
        a(f"v_add_f32 v{vT1}, v{vS+6}, v{vS+7}")
        a(f"v_add_f32 v{vT2}, v{vT2}, v{vT3}")
        a(f"v_add_f32 v{vT0}, v{vT0}, v{vT1}")
        a(f"v_add_f32 v{vT2}, v{vT2}, v{vT0}")
        a(f"v_fma_f32 v{vL}, v{vL}, v{vAl}, v{vT2}")
        for t in range(4):
            a(f"v_cvt_pk_bf16_f32 v{vP + t}, v{vS + 2*t}, v{vS + 2*t + 1}")
    def p_RS():
        a("s_nop 7")
        for r in range(32):
            a(f"v_mul_f32 v{vO + r}, v{vAl}, v{vO + r}")
    def p_PV(c):
        perm_c([bV + 4*i for i in range(8)], c)
        mfma_c(vP, c, False)
    def p_PVs(b, c):
        base = vAT + (c & 1)*8
        for i in range(8):
            a(f"v_accvgpr_read_b32 v{base + i}, a{64*b + 32 + 4*i + c}")
        perm_c([base + i for i in range(8)], 0)
        mfma_c(vP, c, False)

    def iteration(ms, kidx, staged=None, extras=None, static_n=None, extras7=None, W=W, late=False, kload=None, hook=None):
        pieces = {s: [] for s in range(16)}
        def wq_(): ms.wait_for(kidx[7]); p_QK(lambda j: vr(bK + 4*j))
        WV = int(OPT.get('WV', W)); WK = int(OPT.get('WK', W))
        pq = max(WV - 1, 4 if staged is not None else 0)
        pieces[pq].append(wq_)
        pieces[pq+1].append(p_SM1)
        pieces[pq+2].append(p_SM2)
        pieces[pq+3].append(p_RS)
        vidx = []
        for c in range(4):
            def f(c=c):
                ms.wait_for(vidx[7]); p_PV(c)
            pieces[15 if late else min(15, 8 + WK - 1 + c)].append(f)
        if staged is not None:
            b = staged
            def sq():
                ms.wait_for(st['idx'][('V', b, 7)]); p_QK(lambda j: ar(64*b + 4*j))
            pieces[0].insert(0, sq)
            pieces[1] = [p_SM1, p_SM2] + pieces[1]
            pieces[2] = [p_RS, lambda: p_PVs(b, 0), lambda: p_PVs(b, 1)] + pieces[2]
            pieces[3] = [lambda: p_PVs(b, 2), lambda: p_PVs(b, 3)] + pieces[3]
        knew = []
        for s in range(16):
            ms.pace(WV if s < 8 else WK)
            if s < 8:
                vidx.append(ld_V(ms, vr(bV + 4*s), s, sVoff))
            elif kload:
                knew.append(kload(ms, s - 8))
            else:
                knew.append(ld_K(ms, vr(bK + 4*(s-8)), s - 8, sKoff))
            if s == 0:
                if extras: extras()
                next_off(sKoff, sVoff)
                if static_n is None:
                    a(f"s_cmp_eq_u32 s{sIter}, 15")
                    a(f"s_cselect_b32 s{sKoff}, s{sB1}, s{sKoff}")
            for f in pieces[s]: f()
            if s == 7 and extras7: extras7()
            if hook and s in hook: hook[s]()
            assert not (s == 7 and pq > 7)
        a(f"s_mov_b32 s{sVoff}, s{sKoff}")
        return knew

    while stage_one(W): pass
    kidx = [st['idx'][('K', 4, j)] for j in range(8)]

    pre = {}
    vOld, vPst, vOut = 86, 87, 82
    sPst, sPld, sOutB = 84, 85, 86
    sRed = sWQ
    RW = int(OPT.get('RW', 3))
    vAcc = 232
    vTag, sTag = 254, 3
    sPd = 4
    sXc, sLoc = 5, 6
    def ex4():
        if not PX: nid['x'] = ms.issue(f"buffer_load_dword v{vNon}, off, s[{sDBG}:{sDBG+3}], 0 sc1")
        a(f"v_bfe_u32 v{vB}, v0, 3, 1")
        a(f"v_bfe_u32 v{vB+1}, v0, 4, 2")
        a(f"v_and_b32 v{vB+2}, 7, v0")
        a(f"s_lshl_b32 s48, s{sW}, 1")
        a("s_add_u32 s48, s48, 3")
        a(f"v_add_u32 v{vOld}, s48, v{vB}")
        a(f"v_and_b32 v{vOld}, 3, v{vOld}")
        a(f"v_lshlrev_b32 v{vOld}, 13, v{vOld}")
        a(f"v_lshl_add_u32 v{vOld}, v{vB}, 20, v{vOld}")
        a(f"v_lshl_add_u32 v{vOld}, v{vB+1}, 8, v{vOld}")
        a(f"v_lshl_add_u32 v{vOld}, v{vB+2}, 4, v{vOld}")
        a(f"v_lshlrev_b32 v{vPst}, 15, v{vB}")
        a(f"v_lshl_add_u32 v{vPst}, v{vB+1}, 7, v{vPst}")
        a(f"v_lshl_add_u32 v{vPst}, v{vB+2}, 4, v{vPst}")
        a(f"v_bfe_u32 v{vB}, v0, 3, 3")
        a(f"v_lshlrev_b32 v{vOut}, 11, v{vB+2}")
        a(f"v_lshl_add_u32 v{vOut}, v{vB}, 3, v{vOut}")
        a("s_andn2_b32 s48, s2, 15")
        a("s_and_b32 s49, s2, 8")
        a("s_lshr_b32 s49, s49, 1")
        a("s_add_u32 s48, s48, s49")
        a(f"s_and_b32 s49, s{sW}, 1")
        a("s_lshl_b32 s49, s49, 1")
        a("s_add_u32 s48, s48, s49")
        a(f"s_lshl_b32 s{sPst}, s48, 15")
        a("s_and_b32 s48, s2, 7")
        a(f"s_lshl_b32 s{sOutB}, s48, 14")
        a("s_lshl_b32 s48, s48, 10")
        a(f"s_add_u32 s{sPst}, s{sPst}, s48")
        a(f"s_add_u32 s48, s{sP_}, 1")
        a("s_and_b32 s48, s48, 3")
        a("s_lshl_b32 s48, s48, 13")
        a(f"s_add_u32 s49, s{sP_}, 2")
        a("s_and_b32 s49, s49, 3")
        a("s_lshl_b32 s49, s49, 13")
        a(f"s_sub_u32 s{sPd}, s49, s48")
        a(f"s_add_u32 s48, s48, 0x{QP + (0x800000 if OPT.get('psep') else 0):x}")
        a(f"s_add_u32 s{sPst}, s{sPst}, s48")
        a(f"s_lshl_b32 s{sPld}, s2, 15")
        a(f"s_add_u32 s{sPld}, s{sPld}, s48")
        a("s_lshr_b32 s48, s2, 3")
        a("s_lshl_b32 s48, s48, 6")
        a(f"s_add_u32 s{sOutB}, s{sOutB}, s48")
        a(f"s_bitcmp1_b32 s{sW}, 0")
        a(f"s_cselect_b32 s48, s{sPd}, 0")
        a(f"s_add_u32 s{sPld}, s{sPld}, s48")
        a(f"s_bitcmp1_b32 s{sW}, 0")
        a(f"s_cselect_b32 s48, 0x20000, 0")
        a(f"s_add_u32 s{sOutB}, s{sOutB}, s48")
    def ex6():
        if not PX:
            get_nonce()
            a(f"s_mul_i32 s{sTag}, s{sNon}, 0x9e3779b1")
            a(f"v_mov_b32 v{vTag}, s{sTag}")
        a("s_and_b32 s48, s2, 7")
        FLB = int(OPT.get('FLB', 2))
        a(f"s_lshl_b32 s{sFl}, s48, {5 + FLB}")
        a("s_lshr_b32 s48, s2, 3")
        a(f"s_lshl_b32 s48, s48, {FLB}")
        a(f"s_add_u32 s{sFl}, s{sFl}, s48")
        a(f"s_add_u32 s{sFl}, s{sFl}, 0x{FLP:x}")
        a(f"s_getreg_b32 s{sXc}, hwreg(HW_REG_XCC_ID)")
        a(f"s_and_b32 s{sXc}, s{sXc}, 15")
        a(f"s_lshl_b32 s{sXc}, s{sXc}, 1")
        if OPT.get('xfake'): a(f"s_and_b32 s{sXc}, s2, {OPT['xfake']}")
    exs = {4: ex4}
    exs7 = {6: ex6}
    for n in range(4, 8):
        kidx = iteration(ms, kidx, staged=n - 4, extras=exs.get(n), static_n=n, extras7=exs7.get(n))
        if not OPT.get('xst') and not OPT.get('est') and not OPT.get('tst') and not OPT.get('pst') and not OPT.get('sst') and not OPT.get('rst'): a.stamp(n - 1)
    a(f"s_mov_b32 s{sIter}, 8")

    def flush():
        a(f"v_mov_b32 v{vT1}, v{vL}")
        a("s_nop 1")
        a(f"v_permlane16_swap_b32 v{vL}, v{vT1}")
        a("s_nop 1")
        a(f"v_add_f32 v{vL}, v{vL}, v{vT1}")
        a(f"v_mov_b32 v{vT1}, v{vL}")
        a("s_nop 1")
        a(f"v_permlane32_swap_b32 v{vL}, v{vT1}")
        a("s_nop 1")
        a(f"v_add_f32 v{vL}, v{vL}, v{vT1}")
        a(f"ds_write_b32 v{vLdsM}, v{vMc}")
        a(f"ds_write_b32 v{vLdsM}, v{vL} offset:{LDS_L - LDS_M}")
        a(f"s_mov_b64 exec, s[{sMask}:{sMask+1}]")
        for j in range(8):
            a(f"ds_write_b128 v{vLdsO}, {vr(vO + 4*j)} offset:{j*512}")
        a("s_mov_b64 exec, -1")

    def combine_addr(ph, vA, vM):
        a(f"v_and_b32 v{vA}, 15, v0")
        a(f"v_lshlrev_b32 v{vA}, 4, v{vA}")
        a(f"v_bfe_u32 v{vM}, v0, 4, 2")
        a(f"v_lshl_add_u32 v{vA}, v{vM}, 2, v{vA}")
        a(f"s_and_b32 s49, s{sW}, 1")
        a("s_lshl_b32 s49, s49, 8")
        a(f"s_add_u32 s49, s49, 0x{LDS_C + ph*0x4000:x}")
        a(f"v_add_u32 v{vA}, s49, v{vA}")
        a(f"v_and_b32 v{vM}, 7, v0")
        a(f"v_lshlrev_b32 v{vM}, 2, v{vM}")
        a(f"v_add_u32 v{vM}, 0x{LDS_M + ph*0x400:x}, v{vM}")
    def combine(ph, vA, vM, R):
        vm, vl, vo, vx, vacc, vout = R, R+4, R+8, R+40, R+44, R+52
        for w in range(4):
            a(f"ds_read_b32 v{vm + w}, v{vM} offset:{w*256}")
        for w in range(4):
            a(f"ds_read_b32 v{vl + w}, v{vM} offset:{LDS_L - LDS_M + w*256}")
        for j in range(6):
            a(f"ds_read_b32 v{vo + j}, v{vA} offset:{j*512}")
        a("s_waitcnt lgkmcnt(10)")
        a(f"v_max3_f32 v{vx}, v{vm}, v{vm+1}, v{vm+2}")
        a(f"v_max_f32 v{vx}, v{vx}, v{vm+3}")
        for ww in range(4):
            a(f"v_sub_f32 v{vm+ww}, v{vm+ww}, v{vx}")
        for ww in range(4):
            a(f"v_exp_f32 v{vm+ww}, v{vm+ww}")
        for n in range(6, 32):
            w, j = n >> 3, n & 7
            a(f"ds_read_b32 v{vo + n}, v{vA} offset:{w*4096 + j*512}")
            if n == 8:
                a("s_waitcnt lgkmcnt(9)")
                a(f"v_mul_f32 v{vx+1}, v{vm}, v{vl}")
                for ww in range(1, 4):
                    a(f"v_fma_f32 v{vx+1}, v{vm+ww}, v{vl+ww}, v{vx+1}")
                a(f"v_rcp_f32 v{vx+1}, v{vx+1}")
        a("s_nop 0")
        for ww in range(4):
            a(f"v_mul_f32 v{vm+ww}, v{vx+1}, v{vm+ww}")
        a("s_waitcnt lgkmcnt(0)")
        for j in range(8):
            a(f"v_mul_f32 v{vacc+j}, v{vm}, v{vo + j}")
        for w in range(1, 4):
            for j in range(8):
                a(f"v_fma_f32 v{vacc+j}, v{vm+w}, v{vo + w*8 + j}, v{vacc+j}")
        for t in range(4):
            a(f"v_cvt_pk_bf16_f32 v{vout+t}, v{vacc+2*t}, v{vacc+2*t+1}")
        for t in range(4):
            a(f"v_min_u32 v{vout+t}, -2, v{vout+t}")
        if ph:
            a(f"s_add_u32 s49, s{sOst}, 0x800")
        else:
            a(f"s_mov_b32 s49, s{sOst}")
        if ph and not OPT.get('noloc'):
            a(f"s_cmp_eq_u32 s{sLoc}, 0")
            a("s_cbranch_scc1 L_ol1")
            a(f"buffer_store_dwordx4 {vr(vout)}, v{vVoff}, s[{sWSo}:{sWSo+3}], s49 offen sc1")
            a("s_branch L_ol2")
            a.label("L_ol1")
            a(f"buffer_store_dwordx4 {vr(vout)}, v{vVoff}, s[{sWSo}:{sWSo+3}], s49 offen")
            a.label("L_ol2")
        elif int(OPT.get('xs', 0)) & 2: dummy(1)
        elif OPT.get('xsp'):
            a(f"v_and_b32 v{vx}, 0x3c0, v{vVoff}")
            a(f"v_add_u32 v{vx}, v{vx}, v{vVoff}")
            a(f"s_and_b32 s48, s{sW}, 1")
            a("s_lshl_b32 s48, s48, 10")
            a("s_add_u32 s49, s49, s48")
            a(f"buffer_store_dwordx4 {vr(vout)}, v{vx}, s[{sWSo}:{sWSo+3}], s49 offen{OPT['xsp']}")
        else:
            a(f"buffer_store_dwordx4 {vr(vout)}, v{vVoff}, s[{sWSo}:{sWSo+3}], s49 offen{OPT.get('o0flag', ' sc1')}")

    def dummy(k):
        for _ in range(k):
            a(f"buffer_load_dword v{vDum}, v{vVoff}, s[{sNull}:{sNull+3}], 0 offen")
    def wo_dma(m, cnt=1):
        a(f"s_add_u32 m0, s{sLb}, {m*1024}")
        a(f"s_add_u32 s48, s{sWoLd}, 0x{m*16384:x}")
        src = vWoOff
        if m & 1:
            a(f"v_xor_b32 v{vCntG}, 64, v{vWoOff}")
            src = vCntG
        a(f"buffer_load_dwordx4 v{src}, s[{sWO}:{sWO+3}], s48 offen{OPT.get('woflag', ' nt')} lds")
    def wo_sig():
        a("s_mov_b64 exec, 1")
        a(f"ds_add_u32 v{vCntL}, v{vOne} offset:16")
        a("s_mov_b64 exec, -1")
    def lds_spin(off, tmp):
        lp, ld = a.newlabel("lp"), a.newlabel("ld")
        a(f"s_mov_b32 s{sSpin}, 0x100000")
        a.label(lp)
        a(f"ds_read_b32 v{tmp}, v{vCntL} offset:{off}")
        a("s_waitcnt lgkmcnt(0)")
        a(f"v_readfirstlane_b32 s48, v{tmp}")
        a("s_cmp_ge_u32 s48, 4")
        a(f"s_cbranch_scc1 {ld}")
        a(f"s_sub_u32 s{sSpin}, s{sSpin}, 1")
        a(f"s_cmp_eq_u32 s{sSpin}, 0")
        a(f"s_cbranch_scc1 {ld}")
        a("s_sleep 2")
        a(f"s_branch {lp}")
        a.label(ld)
    def wo_tr(k0, k1):
        a(f"v_mov_b32 v{vAcc}, v{vTr}")
        for nt in range(1, 4):
            a(f"v_xor_b32 v{vAcc + nt}, {nt << 5}, v{vTr}")
        for kk in range(k0, k1):
            for nt in range(4):
                for half in range(2):
                    d = (kk*4 + nt)*4 + half*2
                    a(f"ds_read_b64_tr_b16 a[{d}:{d+1}], v{vAcc + nt} offset:{(kk & 7)*4096 + half*512}")
            a("s_waitcnt lgkmcnt(6)")
    sOld2 = sWoLd
    def o_txt(q, bb, dst):
        hh, ks = q >> 2, q & 3
        return f"buffer_load_dwordx4 {vr(dst + 4*q)}, v{vOld}, s[{sWS}:{sWS+3}], s{sOld2 if hh else sOld} offen offset:{bb*2048 + (ks>>1)*1024 + (ks&1)*128} sc1"
    def o_ld(q, bb, dst):
        a(o_txt(q, bb, dst))
    def p_ld(gg, ph, dst):
        a(f"buffer_load_dwordx4 {vr(dst + 4*gg)}, v{vVoff if gg < 4 else vVoff2}, s[{sWS}:{sWS+3}], s{sPld} offen offset:{(gg&3)*1024}{OPT.get('plflag', ' sc1')}")
    def frag_mfma(q, src, first=False, vAcc=vAcc):
        for nt in range(4):
            d = vAcc + nt*4
            a(f"v_mfma_f32_16x16x32_bf16 {vr(d)}, {ar((q*4 + nt)*4)}, {vr(src + 4*q)}, {'0' if first else vr(d)}")
    vXw, vFw, vXt_ = 224, 226, 120
    sSel = 88
    def x_addr():
        a(f"s_and_b32 s48, s{sW}, 1")
        a(f"s_lshl_b32 s49, s48, 12")
        a(f"s_add_u32 s49, s49, 0x{LDS_X:x}")
        a(f"v_add_u32 v{vXw}, s49, v{vVoff}")
        a(f"s_lshl_b32 s48, s48, 2")
        a(f"v_add_u32 v{vFw}, s48, v{vCntL}")
        for r in range(4):
            a(f"s_mov_b32 s{sSel + r}, 0x{0x07060500 + r:x}")
    def x_put(ph, acc):
        a("s_nop 4")
        for t in range(4):
            a(f"ds_write_b128 v{vXw}, {vr(acc + 4*t)} offset:{ph*8192 + t*1024}")
        a(f"ds_write_b32 v{vFw}, v{vOne} offset:{32 + ph*16}")
    def x_get(ph, acc, vXt_=vXt_):
        lp, ld = a.newlabel("xp"), a.newlabel("xd")
        a(f"s_mov_b32 s{sSpin}, 0x400000")
        a.label(lp)
        a(f"ds_read_b32 v{vCntG}, v{vFw} offset:{32 + ph*16}")
        for t in range(4):
            a(f"ds_read_b128 {vr(vXt_ + 4*t)}, v{vXw} offset:{ph*8192 + t*1024}")
        a(f"s_sub_u32 s{sSpin}, s{sSpin}, 1")
        a("s_waitcnt lgkmcnt(4)")
        a(f"v_readfirstlane_b32 s48, v{vCntG}")
        a(f"s_cmp_eq_u32 s{sSpin}, 0")
        a(f"s_cbranch_scc1 {ld}")
        a("s_cmp_eq_u32 s48, 0")
        a(f"s_cbranch_scc1 {lp}")
        a.label(ld)
        a(f"s_add_u32 s48, s{sPst}, {'s%d' % sPd if ph else 0}")
        a(f"s_add_u32 s49, s48, 0x40000")
        for nt in range(4):
            a(f"s_waitcnt lgkmcnt({3 - nt})")
            for r in range(4):
                a(f"v_add_f32 v{acc + 4*nt + r}, v{acc + 4*nt + r}, v{vXt_ + 4*nt + r}")
            for r in range(4):
                a(f"v_perm_b32 v{acc + 4*nt + r}, v{acc + 4*nt + r}, v{vTag}, s{sSel + r}")
            a(f"buffer_store_dwordx4 {vr(acc + 4*nt)}, v{vPst}, s[{sWS}:{sWS+3}], s{48 + (nt >> 1)} offen offset:{(nt&1)*512}{OPT.get('psflag', ' sc1')}")
    def cnt_ld():
        FLB = int(OPT.get('FLB', 2))
        a(f"s_andn2_b32 s48, s{sFl}, {(32 << FLB) - 1}")
        a(f"v_bfe_u32 v{vB + 57}, v0, 0, 5")
        a(f"v_lshlrev_b32 v{vB + 57}, {FLB}, v{vB + 57}")
        a(f"buffer_load_dword v{vB + 56}, v{vB + 57}, s[{sWS}:{sWS+3}], s48 offen sc1")
    def cnt_check():
        lp, ld = a.newlabel("cp"), a.newlabel("cd")
        a(f"s_mov_b32 s{sSpin}, {OPT.get('SPIN', '0x20000')}")
        a.label(lp)
        a(f"v_xor_b32 v{vB + 56}, s{sNon}, v{vB + 56}")
        a(f"v_and_b32 v{vB + 57}, 0xffffffe1, v{vB + 56}")
        a(f"v_cmp_ne_u32 vcc, 0, v{vB + 57}")
        a(f"s_cbranch_vccz {ld}")
        a(f"s_sub_u32 s{sSpin}, s{sSpin}, 1")
        a(f"s_cmp_eq_u32 s{sSpin}, 0")
        a(f"s_cbranch_scc1 {ld}")
        a("s_sleep 8")
        cnt_ld()
        a("s_waitcnt vmcnt(0)")
        a(f"s_branch {lp}")
        a.label(ld)
        a(f"v_cmp_ne_u32 vcc, s{sXc}, v{vB + 56}")
        a(f"s_add_u32 s{sOld2}, s{sOld}, 0x40000")
        a(f"s_or_b32 s{sLoc}, vcc_lo, vcc_hi")
    def flush0():
        a("s_nop 1")
        flush()
        for r in range(8):
            a(f"v_mov_b32 v{vQ + r}, v{vQ2 + r}")
        a(f"v_add_u32 v{vLdsO}, 0x4000, v{vLdsO}")
        a(f"v_add_u32 v{vLdsM}, 0x400, v{vLdsM}")
        a("s_waitcnt lgkmcnt(0)")
        a("s_mov_b64 exec, 1")
        a(f"ds_add_u32 v{vCntL}, v{vOne}")
        a("s_mov_b64 exec, -1")
        reset_state()
    def comb0():
        lf, le = a.newlabel("cf"), a.newlabel("ce")
        a(f"s_cmp_ge_u32 s{sW}, 2")
        a(f"s_cbranch_scc1 {lf}")
        if int(OPT.get('xs', 0)) & 4: dummy(1)
        else:
            combine_addr(0, vB + 60, vB + 61)
            lds_spin(0, vB + 62)
            combine(0, vB + 60, vB + 61, vB)
        a(f"s_branch {le}")
        a.label(lf)
        for r in range(4):
            a(f"v_mov_b32 v{vB + 60 + r}, -1")
        a(f"s_add_u32 s48, s{sOst}, 0x800")
        if OPT.get('FS') or int(OPT.get('xs', 0)) & 1: dummy(1)
        elif OPT.get('xsp'):
            a(f"v_and_b32 v{vB}, 0x3c0, v{vVoff}")
            a(f"v_add_u32 v{vB}, v{vB}, v{vVoff}")
            a(f"s_and_b32 s49, s{sW}, 1")
            a("s_lshl_b32 s49, s49, 10")
            a("s_add_u32 s48, s48, s49")
            a("s_add_u32 s48, s48, 0x800")
            a(f"buffer_store_dwordx4 {vr(vB + 60)}, v{vB}, s[{sWS}:{sWS+3}], s48 offen{OPT['xsp']}")
        else: a(f"buffer_store_dwordx4 {vr(vB + 60)}, v{vVoff}, s[{sWS}:{sWS+3}], s48 offen{OPT.get('o0flag', ' sc1')}")
        a.label(le)
    NX = int(OPT.get('NX', 4))
    TH2 = int(OPT.get('TH2', 0))
    TH3 = int(OPT.get('TH3', 0))
    SLOW = int(OPT.get('SLOW', 0))
    sn = {n: [] for n in range(8, 32)}
    def add(n, fn, nv=0, act=False): sn[n].append((fn, nv, act))
    sAdj, sWsel, sT = 87, 47, 80
    vTS = 253
    TSB = 0x320000
    GN = int(OPT.get('GN', 32))
    sPa, sRd = 7, 8
    sNow, sRef, sTau, sPrev = 82, 83, 81, 9
    SB_ = int(OPT.get('SBITS', 2))
    NS = 256 >> SB_
    RK = int(OPT.get('RK', NS - NS // 8))
    SM = OPT.get('SM')
    VA = OPT.get('VA')
    sAS, vAS = 12, 226
    def va_setup():
        a(f"s_mov_b32 s{sAS}, s16")
        a(f"s_mov_b32 s{sAS+1}, s17")
        a(f"s_bfe_u32 s48, s2, 0x{(SB_ << 16) | 4:x}")
        a(f"s_lshl_b32 s48, s48, 2")
        a(f"s_or_b32 s48, s48, s{sW}")
        a(f"s_cmp_eq_u32 s48, {OPT.get('SUB', 6)}")
        a(f"s_cselect_b32 s{sAS+2}, 256, 0")
        a(f"s_mov_b32 s{sAS+3}, 0x00020000")
    def pub(k):
        if VA:
            a(f"s_mov_b32 s{sT}, s{sNow}")
            a(f"s_min_u32 s{sPa}, s{sT}, 0x7fff")
            a(f"s_bitset1_b32 s{sPa}, 23")
            a(f"v_mov_b32 v{vAS}, s{sPa}")
            a("s_mov_b64 exec, 1")
            a(f"buffer_atomic_add v{vAS}, off, s[{sAS}:{sAS+3}], 0 offset:{128 + 4*k}{VA}")
            a("s_mov_b64 exec, -1")
            return
        lb = a.newlabel("pb")
        a(f"s_mov_b32 s{sPa}, -1")
        a(f"s_mov_b32 s{sT}, s{sNow}")
        if SM:
            a(f"s_cmp_lg_u32 s{sW}, {OPT.get('SMW', 2)}")
            a(f"s_cbranch_scc1 {lb}")
            a("s_lshr_b32 s48, s2, 3")
            a(f"s_bitcmp1_b32 {SM}, s48")
            a(f"s_cbranch_scc0 {lb}")
        else:
            a(f"s_bfe_u32 s48, s2, 0x{(SB_ << 16) | 4:x}")
            a(f"s_lshl_b32 s48, s48, 2")
            a(f"s_or_b32 s48, s48, s{sW}")
            a(f"s_cmp_lg_u32 s48, {OPT.get('SUB', 6)}")
            a(f"s_cbranch_scc1 {lb}")
        a(f"s_min_u32 s{sPa}, s{sT}, 0x7fff")
        a(f"s_bitset1_b32 s{sPa}, 23")
        a(f"s_atomic_add s{sPa}, s[16:17], 0x{128 + 4*k:x} glc")
        a.label(lb)
    def pub2(k):
        if VA:
            a(f"v_readfirstlane_b32 s{sPa}, v{vAS}")
            a(f"s_cmp_eq_u32 s{sAS+2}, 0")
            a(f"s_cselect_b32 s{sPa}, -1, s{sPa}")
        else:
            a("s_waitcnt lgkmcnt(0)")
        a(f"s_and_b32 s48, s{sPa}, 0x7fffff")
        a(f"s_mul_i32 s49, s{sT}, {NS - RK}")
        a("s_add_u32 s48, s48, s49")
        a(f"s_lshr_b32 s48, s48, {8 - SB_}")
        if OPT.get('MED'): a(f"s_mov_b32 s48, s{sT}")
        a(f"s_add_u32 s48, s48, s{sNon}")
        if OPT.get('OFS'): a(f"s_add_u32 s48, s48, {OPT['OFS']}")
        a(f"v_mov_b32 v{vTS}, s48")
        a(f"s_lshr_b32 s49, s{sPa}, 23")
        a(f"s_mov_b32 s48, 0x{TSB + k*1024:x}")
        a(f"s_cmp_eq_u32 s49, {RK}")
        a(f"s_cselect_b32 s{sNull+2}, 0x{WS_SIZE:x}, 0")
        a("s_mov_b64 exec, 1")
        a(f"buffer_store_dword v{vTS}, off, s[{sNull}:{sNull+3}], s48 sc1")
        a("s_mov_b64 exec, -1")
        a("s_nop 0")
        a(f"s_mov_b32 s{sNull+2}, 0")
    def ts_ld(k):
        a(f"s_mov_b32 s48, 0x{TSB + k*1024:x}")
        a("s_mov_b64 exec, 1")
        a(f"buffer_load_dword v{vTS}, off, s[{sWS}:{sWS+3}], s48 sc1")
        a("s_mov_b64 exec, -1")
    EPS = float(OPT.get('EPS', 0.02))
    DLT = {}
    for it_ in (OPT['DL'].split(',') if OPT.get('DL') else []):
        n_, d_ = it_.split(':'); DLT[int(n_)] = int(d_)
    def Dsum(n0, n1): return sum(DLT.get(m, 0) for m in range(n0, n1))
    def calc(k, lim):
        lb = a.newlabel("cl")
        n_ = CP[k] + LD + 1
        a(f"v_readfirstlane_b32 s48, v{vTS}")
        a(f"s_sub_u32 s48, s48, s{sNon}")
        a(f"s_cmp_gt_u32 s48, s{sNow}")
        a(f"s_cselect_b32 s{sPrev}, 0, s{sPrev}")
        a(f"s_cbranch_scc1 {lb}")
        if k == 0:
            a(f"s_mov_b32 s{sTau}, {OPT.get('TAU0', 228)}")
        else:
            eps = float(OPT.get(f'EPS{k}', EPS))
            a(f"s_sub_u32 s49, s48, s{sPrev}")
            if Dsum(CP[k-1], CP[k]): a(f"s_sub_u32 s49, s49, {Dsum(CP[k-1], CP[k])}")
            a(f"s_mul_i32 s49, s49, {int(65536 * (1 - eps) / (CP[k] - CP[k-1]))}")
            a("s_lshr_b32 s49, s49, 16")
            a(f"s_min_u32 s49, s49, {OPT.get('TAUX', 240)}")
            if OPT.get('TAUN'): a(f"s_max_u32 s49, s49, {OPT['TAUN']}")
            a(f"s_cmp_eq_u32 s{sPrev}, 0")
            a(f"s_cselect_b32 s{sTau}, {OPT.get('TAU0', 228)}, s49")
        a(f"s_mov_b32 s{sPrev}, s48")
        a(f"s_mul_i32 s49, s{sTau}, {n_ - CP[k]}")
        a(f"s_add_u32 s{sRef}, s48, s49")
        if Dsum(CP[k], n_): a(f"s_add_u32 s{sRef}, s{sRef}, {Dsum(CP[k], n_)}")
        a.label(lb)
    D0 = int(OPT.get('D0', 8))
    O0 = int(OPT.get('O0', 22))
    add(16, flush0)
    C0 = int(OPT.get('C0', 18))
    C1 = int(OPT.get('C1', 28))
    add(C1, cnt_ld, 1, True)
    add(C0, comb0, 1)
    add(C0 + int(OPT.get('SG', 2)), lambda: signal(sFl, 4), 1)
    if SLOW & 2:
        add(18, lambda: (a(f"s_cmp_lt_u32 s{sW}, 2"), a(f"s_cselect_b32 s{sWsel}, 3, s{sWsel}")))
    if OPT.get('TLB'):
        def tlb():
            a(f"buffer_load_dword v{vDum}, v{vVoff}, s[{sK}:{sK+3}], s{sB1} offen nt")
            a(f"buffer_load_dword v{vDum}, v{vVoff}, s[{sV}:{sV+3}], s{sB1} offen nt")
        add(int(OPT['TLB']), tlb, 2)
    add(C1 + 2, cnt_check, 0, True)
    if OPT.get('OW'):
        def ow():
            a(f"s_add_u32 s48, s{sOst}, 0x800")
            a(f"buffer_load_dwordx4 {vr(vB + 8)}, v{vVoff}, s[{sWSo}:{sWSo+3}], s48 offen sc1")
        add(int(OPT['OW']), ow, 1, True)
    E0 = int(OPT.get('E0', 0))
    if E0:
        assert C1 + 2 <= E0
        EN = int(OPT.get('EN', 2))
        for q in range(8): add(E0 + q // EN, (lambda q=q: o_ld(q, 0, vB)), 1, True)
    CP = [int(t) for t in OPT['CP'].split(',')] if OPT.get('CP') else []
    LD = int(OPT.get('LD', 3))
    late_ = []
    for k, c in enumerate(CP):
        lim = (CP[k+1] - c) if k + 1 < len(CP) else 32 - (c + LD + 1)
        add(c + LD + 1, (lambda k=k, lim=lim: calc(k, lim)))
        if VA: add(c, (lambda k=k: pub(k)), 1)
        else: late_.append((c, (lambda k=k: pub(k))))
        add(c + 1, (lambda k=k: pub2(k)), 1)
        if not OPT.get('nots'): add(c + LD, (lambda k=k: ts_ld(k)), 1)
    DM = int(OPT.get('DM', 4))
    PF = int(OPT.get('PF', 0))
    def wo_pf(m):
        a("s_and_b32 s48, s2, 7")
        a("s_lshl_b32 s48, s48, 20")
        a(f"s_lshl_b32 s49, s{sW}, 18")
        a("s_add_u32 s48, s48, s49")
        a("s_lshr_b32 s49, s2, 4")
        a("s_lshl_b32 s49, s49, 10")
        a("s_add_u32 s48, s48, s49")
        a(f"s_add_u32 s48, s48, 0x{m*16384:x}")
        a(f"buffer_load_dwordx4 {vr(vAcc)}, v{vVoff}, s[{sWO}:{sWO+3}], s48 offen{OPT.get('pfflag', ' nt')}")
    m = 0; n = D0
    while m < 16:
        c_ = 0
        while m < 16 and c_ < DM and sum(v for _, v, _a in sn[n] if _a != 'I') < NX and (not PF or sum(v for _, v, _a in sn[n - PF] if _a is not True) < NX):
            add(n, (lambda m=m: wo_dma(m, 1)), 1, True)
            if PF: add(n - PF, (lambda m=m: wo_pf(m)), 1, 'I')
            m += 1; c_ += 1
        n += 1
    add(n + 1, wo_sig, 0, True)
    add(n + 3, lambda: lds_spin(16, vCntG), 0, True)
    n += 3
    for j in range(2):
        while n in (16, C0): n += 1
        add(n, (lambda j=j: wo_tr(4*j, 4*j + 4)), 0, True)
        n += 1
    trend = n
    for n_, f_ in late_: add(n_, f_)
    if CT == 0:
        for n_, d_ in DLT.items(): add(n_, (lambda d_=d_: a(f"s_add_u32 s{sRef}, s{sRef}, {d_}")))
    PW = int(OPT.get('PW', 0))
    def pw(ph, k_):
        a(f"s_add_u32 s48, s{sP_}, {1 + ph}")
        a("s_and_b32 s48, s48, 3")
        a("s_lshl_b32 s48, s48, 13")
        a("s_lshl_b32 s49, s2, 15")
        a("s_add_u32 s48, s48, s49")
        a(f"s_lshl_b32 s49, s{sW}, 11")
        a("s_add_u32 s48, s48, s49")
        a(f"s_add_u32 s48, s48, 0x{QP:x}")
        if OPT.get('PW1'): a("s_mov_b64 exec, 1")
        a(f"buffer_load_dwordx4 {vr(vB + 8)}, v{vVoff}, s[{sWS}:{sWS+3}], s48 offen offset:{k_*1024}{OPT.get('pwflag', '')}")
        if OPT.get('PW1'): a("s_mov_b64 exec, -1")
    def pw2(j):
        a(f"s_add_u32 s48, s{sPst}, 0x{j*0x40000:x}")
        a("s_mov_b32 exec_lo, 0x101")
        a("s_mov_b32 exec_hi, 0")
        a(f"buffer_load_dword v{vB + 8}, v{vPst}, s[{sWS}:{sWS+3}], s48 offen sc1")
        a("s_mov_b64 exec, -1")
    if PW:
        n_ = PW
        for ph in range(2 - int(OPT.get('PWP', 2)), 2):
            for k_ in range(2):
                add(n_, (lambda ph=ph, k_=k_: pw(ph, k_)), 1); n_ += 1
        if OPT.get('PW2'):
            add(PW, lambda: pw2(0), 1); add(PW + 1, lambda: pw2(1), 1)
    assert not sn[31] and trend <= 30
    Ws = [int(t) for t in OPT.get('Ws', f"{W-1},{W},{W+1}").split(',')]
    a(f"s_mov_b32 s{sAdj}, 0")
    a(f"s_mov_b32 s{sTau}, 0")
    a(f"s_mov_b32 s{sPrev}, 0")
    a(f"s_mov_b32 s{sRef}, 0")
    if OPT.get('asym'):
        a("s_add_u32 s48, s2, 2")
        a("s_bitcmp1_b32 s48, 2")
        a(f"s_cselect_b32 s{sAdj}, {OPT['asym']}, 0")
    sRdr, sCnt, sSmp = sWQ, 8, 7
    if OPT.get('GS'): a(f"s_mov_b32 s92, {OPT['GS'].split(',')[0].split(':')[1]}")
    if VA: va_setup()
    RDW = int(OPT.get('RDW', 1))
    if CT:
        a(f"s_mov_b32 s{sRdr}, s18")
        a(f"s_mov_b32 s{sRdr+1}, s19")
        a(f"s_cmp_eq_u32 s{sW}, {RDW}")
        a(f"s_cselect_b32 s{sRdr+2}, 0x{WS_SIZE:x}, 0")
        RDL = int(OPT.get('RDL', 1))
        a(f"s_mov_b32 s{sCnt}, 0x{CB + (8 - RDL)*CS:x}")
        a(f"s_bfe_u32 s48, s2, 0x{(SB_ << 16) | 4:x}")
        a(f"s_lshl_b32 s48, s48, 2")
        a(f"s_or_b32 s{sSmp}, s48, s{sW}")
    vL4, vSt, sSS, sD, sDl = 227, 226, 12, 10, 11
    if CT == 2:
        a(f"s_mov_b32 s{sSS}, s18")
        a(f"s_mov_b32 s{sSS+1}, s19")
        a("s_bfe_u32 s48, s2, 0x20003")
        a("s_mul_i32 s48, s48, 9")
        a("s_lshr_b32 s49, s2, 3")
        a("s_sub_u32 s48, s48, s49")
        a(f"s_sub_u32 s49, s{sW}, {OPT.get('SMW', 2)}")
        a("s_or_b32 s48, s48, s49")
        a(f"s_cselect_b32 s{sSS+2}, 0, 0x{WS_SIZE:x}")
        a(f"s_mov_b32 s{sSS+3}, 0x00020000")
        a(f"s_lshl_b32 s{sSmp}, s{sH}, {OPT.get('SLB', 2)}")
        a(f"s_add_u32 s{sSmp}, s{sSmp}, 0x{RDL*CS:x}")
        a(f"v_and_b32 v{vL4}, 31, v0")
        a(f"v_lshlrev_b32 v{vL4}, {OPT.get('SLB', 2)}, v{vL4}")
        a(f"s_mov_b32 s{sT}, 0")
        a(f"s_mov_b32 s{sD}, 0")
        a(f"s_mov_b32 s{sDl}, 0")
        for it_ in (OPT['DL'].split(',') if OPT.get('DL') else []):
            n_, d_ = it_.split(':')
            add(int(n_), (lambda d_=d_: a(f"s_mov_b32 s{sDl}, {d_}")))
    a.label("L_loop")
    a("s_memrealtime s[100:101]")
    if CT:
        a(f"ds_read_b64 v[250:251], v{vCntL} offset:24")
        a("s_waitcnt lgkmcnt(0)")
        a(f"v_readfirstlane_b32 s{sTau}, v251")
        a(f"v_readfirstlane_b32 s{sRef}, v250")
        a(f"s_sub_u32 s{sNow}, s100, s{sNon}")
        a(f"s_mul_i32 s48, s{sTau}, s{sIter}")
        a(f"s_add_u32 s{sRef}, s{sRef}, s48")
        if CT == 2: a(f"s_add_u32 s{sRef}, s{sRef}, s{sD}")
    else:
        a(f"s_add_u32 s{sRef}, s{sRef}, s{sTau}")
        a("s_waitcnt lgkmcnt(0)")
        a(f"s_sub_u32 s{sNow}, s100, s{sNon}")
    a(f"s_sub_i32 s{sAdj}, s{sNow}, s{sRef}")
    a(f"s_cmp_eq_u32 s{sTau}, 0")
    a(f"s_cselect_b32 s{sAdj}, {OPT.get('ADJ0', 0)}, s{sAdj}")
    GS = [t.split(':') for t in OPT['GS'].split(',')] if OPT.get('GS') else []
    sG = 92
    STASH = len(a.L)
    if STAMP and OPT.get('itst'):
        a("s_memrealtime s[68:69]")
        a("s_waitcnt lgkmcnt(0)")
        a(f"s_mov_b32 m0, s{sIter}")
        a("s_nop 0")
        a(f"v_writelane_b32 v255, s68, m0")
        a(f"s_add_u32 m0, s{sIter}, 32")
        a("s_nop 0")
        a(f"v_writelane_b32 v255, s{sAdj}, m0")
    if STAMP and OPT.get('lst'):
        for k, n in enumerate([int(t) for t in OPT['lst'].split(',')]):
            a(f"s_cmp_lg_u32 s{sIter}, {n}")
            a(f"s_cbranch_scc1 L_lst{k}")
            a.stamp(1 + k)
            a.label(f"L_lst{k}")
    if GS:
        a(f"s_mul_i32 s{sAdj}, s{sAdj}, s{sG}")
        a(f"s_ashr_i32 s{sAdj}, s{sAdj}, 8")
        for n_, g_ in GS[1:]: add(int(n_) - 1, (lambda g_=g_: a(f"s_mov_b32 s{sG}, {g_}")))
    if TH3:
        a(f"s_cmp_lt_i32 s{sAdj}, {-int(OPT.get('B2', 80))}")
        a("s_cbranch_scc1 L_b3")
    a(f"s_cmp_lt_i32 s{sAdj}, {-int(OPT.get('B1', 20))}")
    a("s_cbranch_scc1 L_b0")
    if TH2:
        a(f"s_cmp_gt_i32 s{sAdj}, {OPT.get('A2', 60)}")
        a("s_cbranch_scc1 L_b4")
        Ws = Ws + [W - 2, W + 2]
    a(f"s_cmp_gt_i32 s{sAdj}, {OPT.get('A1', 15)}")
    a("s_cbranch_scc1 L_b2")
    for k in ((1, 0, 3, 4, 2) if TH3 else (1, 0, 4, 2) if TH2 else (1, 0, 2)):
        a.label(f"L_b{k}")
        ml = MemSeq(a, pre_kv=8)
        rd = {}
        def ex_loop(k=k, ml=ml, rd=rd):
            if CT == 2:
                a(f"s_sub_u32 s48, s100, s{sD}")
                a(f"v_mov_b32 v{vSt}, s48")
                a(f"s_add_u32 s48, s{sCnt}, s{sSmp}")
                a("s_mov_b32 exec_hi, 0")
                rd['i'] = ml.issue(f"buffer_load_dword v{vTS}, v{vL4}, s[{sRdr}:{sRdr+3}], s{sCnt} offen sc1")
                a("s_mov_b32 exec_lo, 1")
                ml.issue(f"buffer_store_dword v{vSt}, off, s[{sSS}:{sSS+3}], s48 sc1")
                a("s_mov_b64 exec, -1")
                a(f"s_add_u32 s{sCnt}, s{sCnt}, 0x{CS:x}")
            if CT == 1:
                a("s_mov_b64 exec, 1")
                rd['i'] = ml.issue(f"buffer_load_dword v{vTS}, off, s[{sRdr}:{sRdr+3}], s{sCnt} sc1")
                a("s_mov_b64 exec, -1")
                a(f"s_add_u32 s{sCnt}, s{sCnt}, 0x{CS:x}")
                a(f"s_cmp_lg_u32 s{sSmp}, {OPT.get('SUB', 6)}")
                a(f"s_cbranch_scc1 L_ns{k}")
                a(f"s_min_u32 s{sT}, s{sNow}, 0x7fff")
                a(f"s_bitset1_b32 s{sT}, 23")
                a(f"s_atomic_add s{sT}, s[18:19], s{sCnt}")
                a.label(f"L_ns{k}")
            a(f"s_mov_b32 s{sWsel}, {k}")
            a(f"s_branch L_snip")
            a.label(f"L_ret{k}")
            for _ in range(NX): ml.issue(None)
        def hk(k=k, ml=ml, rd=rd):
            ml.wait_for(rd['i'])
            a(f"s_cmp_lg_u32 s{sW}, {RDW}")
            a(f"s_cbranch_scc1 L_hk{k}")
            if CT == 1:
                a(f"v_readfirstlane_b32 s48, v{vTS}")
                a("s_lshr_b32 s49, s48, 23")
                a(f"s_cselect_b32 s{sPrev}, s{sPrev}, 0")
                a(f"s_cbranch_scc0 L_hk{k}")
                a("s_and_b32 s48, s48, 0x7fffff")
                a(f"s_sub_u32 s49, {NS}, s49")
                a(f"s_mul_i32 s49, s49, s{sNow}")
                a("s_add_u32 s48, s48, s49")
                a(f"s_lshr_b32 s48, s48, {8 - SB_}")
            else:
                a(f"v_subrev_u32 v{vTS}, s{sNon}, v{vTS}")
                a(f"v_cmp_ge_u32 vcc, s{sNow}, v{vTS}")
                a(f"v_min_u32 v{vTS}, s{sNow}, v{vTS}")
                a("s_bcnt1_i32_b32 s49, vcc_lo")
                for sh in (1, 2, 4, 8):
                    a("s_nop 1")
                    a(f"v_add_u32_dpp v{vTS}, v{vTS}, v{vTS} row_shr:{sh} row_mask:0xf bank_mask:0xf bound_ctrl:0")
                a(f"s_cmp_ge_u32 s49, {OPT.get('CMIN', 8)}")
                a(f"s_cselect_b32 s{sPrev}, s{sPrev}, 0")
                a(f"s_cbranch_scc0 L_hk{k}")
                a(f"v_readlane_b32 s48, v{vTS}, 15")
                a(f"v_readlane_b32 s49, v{vTS}, 31")
                a("s_add_u32 s48, s48, s49")
                a("s_lshr_b32 s48, s48, 5")
            a(f"s_sub_u32 s49, s48, s{sPrev}")
            a(f"s_min_u32 s49, s49, {OPT.get('DMAX', 280)}")
            a(f"s_max_u32 s49, s49, {OPT.get('DMIN', 200)}")
            a(f"s_sub_i32 s49, s49, s{sTau}")
            a(f"s_ashr_i32 s49, s49, {OPT.get('TG', 1)}")
            a(f"s_cmp_eq_u32 s{sPrev}, 0")
            a("s_cselect_b32 s49, 0, s49")
            a(f"s_add_u32 s49, s49, s{sTau}")
            a(f"s_cmp_eq_u32 s{sTau}, 0")
            a(f"s_cselect_b32 s49, {OPT.get('TAU0', 228)}, s49")
            a(f"s_mov_b32 s{sPrev}, s48")
            a(f"v_mov_b32 v251, s49")
            a(f"s_sub_u32 s{sT}, s{sIter}, {RDL}")
            a(f"s_mul_i32 s49, s49, s{sT}")
            a(f"s_sub_u32 s48, s48, s49")
            a(f"v_mov_b32 v250, s48")
            a("s_mov_b64 exec, 1")
            a(f"ds_write_b64 v{vCntL}, v[250:251] offset:24")
            a("s_mov_b64 exec, -1")
            a.label(f"L_hk{k}")
        iteration(ml, list(range(8)), extras=ex_loop, W=Ws[k], hook={int(OPT.get('HK', 9)): hk} if CT else None)
        if CT == 2:
            a(f"s_add_u32 s{sD}, s{sD}, s{sDl}")
            a(f"s_mov_b32 s{sDl}, 0")
        a(f"s_add_u32 s{sIter}, s{sIter}, 1")
        a(f"s_cmp_lt_u32 s{sIter}, 31")
        a(f"s_cbranch_scc1 L_loop")
        if k != 2: a("s_branch L_last")
    a.label("L_last")
    if STAMP and OPT.get('itst'):
        a("s_memrealtime s[68:69]")
        a("s_waitcnt lgkmcnt(0)")
        a(f"v_writelane_b32 v255, s68, 31")
    ml = MemSeq(a, pre_kv=8)
    acc0, acc1 = vAcc, 200
    if E0:
        WL = int(OPT.get('WL', W))
        M0 = int(OPT.get('M0', 0))
        for s_ in range(8):
            ml.pace(WL)
            ld_V(ml, vr(bV + 4*s_), s_, sVoff)
            if s_ == 0: x_addr()
            if M0 <= s_ < M0 + 4:
                for q in (2*(s_ - M0), 2*(s_ - M0) + 1): frag_mfma(q, vB, q == 0, acc0)
            if s_ == M0 + 4 or (s_ == 7 and M0 + 4 > 7):
                a(f"s_cmp_lt_u32 s{sW}, 2")
                a("s_cbranch_scc1 L_e1")
                x_put(0, acc0)
                a.label("L_e1")
        ml.wait_for(7)
        p_QK(lambda j: vr(bK + 4*j))
        p_SM1(); p_SM2(); p_RS()
        for r in range(16):
            a(f"v_mov_b32 v{acc1 + r}, 0")
        a(f"s_cmp_ge_u32 s{sW}, 2")
        a("s_cbranch_scc1 L_e2")
        x_get(0, acc0, bK)
        a("s_waitcnt vmcnt(4)")
        a("s_branch L_e3")
        a.label("L_e2")
        a("s_waitcnt vmcnt(0)")
        a.label("L_e3")
        for c in range(4): p_PV(c)
    else:
        o0 = iteration(ml, list(range(8)), extras=x_addr, static_n=31, W=int(OPT.get('WL', W)),
                       kload=lambda m_, j: m_.issue(o_txt(j, 0, bK), kv=True))
    a.label("L_tail")
    a.stamp(7)
    TE = int(OPT.get('TE', 0))
    PL = int(OPT.get('PL', 0))
    acc0, acc1 = vAcc, 200
    TV = int(OPT.get('TV', 0))
    sDone = sWsel
    if TV:
        combine_addr(1, 8, 9)
        flush()
        a("s_waitcnt lgkmcnt(0)")
        a("s_barrier")
        if OPT.get('tst'): a.stamp(2)
        if TV & 2:
            for q in range(8): o_ld(q, 1, vB)
        a(f"s_cmp_ge_u32 s{sW}, 2")
        a("s_cbranch_scc1 L_t1b")
        combine(1, 8, 9, 10)
        if OPT.get('tst'): a.stamp(3)
        if not TV & 2:
            for q in range(8): o_ld(q, 1, vB)
        a("s_waitcnt vmcnt(9)")
        for q in range(8):
            frag_mfma(q, bK, q == 0, acc0)
        for r in range(16):
            a(f"v_mov_b32 v{acc1 + r}, 0")
        a(f"s_mov_b32 s{sDone}, 1")
        x_put(0, acc0)
        a(f"s_waitcnt vmcnt({1 if TV & 2 else 0})")
        a("s_branch L_t3")
        a.label("L_t1b")
        if OPT.get('tst'): a.stamp(3)
        if not TV & 2:
            for q in range(8): o_ld(q, 1, vB)
        a("s_waitcnt vmcnt(8)")
        for q in range(8):
            frag_mfma(q, bK, q == 0, acc0)
        for r in range(16):
            a(f"v_mov_b32 v{acc1 + r}, 0")
        a(f"s_mov_b32 s{sDone}, 0")
        a("s_waitcnt vmcnt(0)")
        a.label("L_t3")
        if OPT.get('tst'): a.stamp(4)
        a(f"s_mov_b32 s{sSpin}, {OPT.get('SPIN', '0x20000')}")
        a(f"s_mov_b32 s{sBad}, 15")
    else:
        if TE == 1:
            for q in range(8): o_ld(q, 1, vB)
        combine_addr(1, 8, 9)
        flush()
        a("s_waitcnt lgkmcnt(0)")
        a("s_barrier")
        if OPT.get('tst'): a.stamp(2)
        a(f"s_cmp_ge_u32 s{sW}, 2")
        a("s_cbranch_scc1 L_t1b")
        combine(1, 8, 9, 10)
        if OPT.get('tst'): a.stamp(3)
        if E0:
            a.label("L_t1b")
            for q in range(8): o_ld(q, 1, vB)
            a("s_waitcnt vmcnt(0)")
        else:
            a(f"s_waitcnt vmcnt({9 if TE == 1 else 0 if OPT.get('OA') else 1})")
            if TE == 3:
                for q in range(8): o_ld(q, 1, vB)
            a("s_branch L_t1")
            a.label("L_t1b")
            if OPT.get('tst'): a.stamp(3)
            a(f"s_waitcnt vmcnt({8 if TE == 1 else 0})")
            a.label("L_t1")
            if TE == 2:
                for q in range(8): o_ld(q, 1, vB)
            for q in range(8):
                frag_mfma(q, bK, q == 0, acc0)
            for r in range(16):
                a(f"v_mov_b32 v{acc1 + r}, 0")
            if TE == 0:
                for q in range(8): o_ld(q, 1, vB)
            a(f"s_cmp_lt_u32 s{sW}, 2")
            a("s_cbranch_scc1 L_t2")
            if TE == 3:
                for q in range(8): o_ld(q, 1, vB)
            if PL != 2: x_put(0, acc0)
            a("s_waitcnt vmcnt(0)")
            a("s_branch L_t3")
            a.label("L_t2")
            if not PL:
                x_get(0, acc0)
            if PL == 2: x_put(0, acc0)
            a(f"s_waitcnt vmcnt({0 if PL else 4})")
        a.label("L_t3")
        if OPT.get('tst'): a.stamp(4)
        a(f"s_mov_b32 s{sSpin}, {OPT.get('SPIN', '0x20000')}")
        a(f"s_mov_b32 s{sBad}, 15")
    a.label("L_retry")
    for gq in range(4):
        R = vB + 8*gq
        a(f"s_bitcmp1_b32 s{sBad}, {gq}")
        a(f"s_cbranch_scc0 L_rc{gq}")
        a(f"v_max3_u32 v8, v{R}, v{R+1}, v{R+2}")
        a(f"v_max3_u32 v9, v{R+3}, v{R+4}, v{R+5}")
        a(f"v_max3_u32 v8, v8, v{R+6}, v{R+7}")
        a(f"v_max_u32 v8, v8, v9")
        a("v_cmp_eq_u32 vcc, -1, v8")
        a(f"s_cbranch_vccnz L_bad{gq}")
        frag_mfma(2*gq, vB, False, acc1)
        frag_mfma(2*gq + 1, vB, False, acc1)
        a(f"s_bitset0_b32 s{sBad}, {gq}")
        a.label(f"L_rc{gq}")
    a(f"s_cmp_eq_u32 s{sBad}, 0")
    a("s_cbranch_scc1 L_alldone")
    if TV:
        a(f"s_cmp_eq_u32 s{sDone}, 0")
        a("s_cbranch_scc1 L_g0")
    a(f"s_sub_u32 s{sSpin}, s{sSpin}, 1")
    a("s_waitcnt vmcnt(0)")
    a(f"s_cmp_lg_u32 s{sSpin}, 0")
    a("s_cbranch_scc1 L_retry")
    a.label("L_alldone")
    if OPT.get('tst') and STAMP: a(f"s_mov_b32 s76, s{sSpin}")
    if OPT.get('tst'): a.stamp(5)
    a(f"s_cmp_ge_u32 s{sW}, 2")
    a("s_cbranch_scc1 L_t4")
    RV = int(OPT.get('RV', 0))
    x_get(1, acc1)
    if PL == 1: x_get(0, acc0)
    a.stamp(8)
    if RV == 1:
        if PL == 1:
            a("s_waitcnt vmcnt(4)")
            a(f"s_cmp_eq_u32 s{sW}, 1")
            a("s_cbranch_scc1 L_r1d")
        a("s_waitcnt vmcnt(0)")
        a("s_branch L_r1d")
    elif RV == 3:
        a(f"s_cmp_eq_u32 s{sW}, 0")
        a("s_cbranch_scc1 L_fin")
        a("s_waitcnt vmcnt(0)")
        a("s_branch L_r1d")
    else:
        a("s_branch L_fin")
    a.label("L_t4")
    x_put(1, acc1)
    if PL == 2: x_get(0, acc0)
    if TV:
        a(f"s_cmp_lg_u32 s{sDone}, 0")
        a("s_cbranch_scc1 L_g1")
        x_get(0, acc0)
        a.label("L_g1")
    a.stamp(8)
    if RV == 1:
        a("s_branch L_fin")
    if RV == 3:
        a(f"s_cmp_eq_u32 s{sW}, 3")
        a("s_cbranch_scc1 L_fin")
    if RV == 2:
        a(f"s_cmp_eq_u32 s{sW}, 3")
        a("s_cbranch_scc1 L_fin")
        a(f"s_mov_b32 s{sIter}, 0")
    def claim():
        a("s_mov_b64 exec, 1")
        a(f"ds_add_rtn_u32 v{vCntG}, v{vCntL}, v{vOne} offset:8")
        a("s_mov_b64 exec, -1")
        a("s_waitcnt lgkmcnt(0)")
        a(f"v_readfirstlane_b32 s48, v{vCntG}")
        a("s_cmp_lg_u32 s48, 0")
        a("s_cbranch_scc1 L_fin")
    if RV == 5:
        a(f"s_mov_b32 s{sIter}, 0")
        a(f"s_cmp_eq_u32 s{sW}, 2")
        a("s_cbranch_scc1 L_r1d")
        a("s_memrealtime s[100:101]")
        a(f"s_add_u32 s48, s{sRef}, s{sTau}")
        a(f"s_add_u32 s48, s48, s{sNon}")
        a(f"s_mov_b32 s{sIter}, 1")
        a("s_waitcnt lgkmcnt(0)")
        a("s_sub_u32 s48, s100, s48")
        a(f"s_cmp_lt_i32 s48, {OPT.get('LT', 405)}")
        a("s_cbranch_scc1 L_fin")
        claim()
    if OPT.get('R0D'): a(f"s_sleep {OPT['R0D']}")
    if OPT.get('R1D'):
        a(f"s_cmp_eq_u32 s{sW}, 2")
        a("s_cbranch_scc1 L_r1d")
        a(f"s_sleep {OPT['R1D']}")
    a.label("L_r1d")
    if STAMP and OPT.get('rst'):
        a.stamp(4)
        a("s_mov_b32 s76, 0")
        a("s_mov_b32 s75, -1")
    if OPT.get('RXD'): a(f"s_sleep {OPT['RXD']}")
    for gg in range(8):
        p_ld(gg, 0, bK)
    a.label("L_red")
    a(f"s_mov_b32 s{sSelLo}, 0x0c0c0400")
    a(f"s_mov_b32 s{sSelHi}, 0x04000c0c")
    a(f"s_mov_b32 s{sC}, 0xffffff00")
    def reduce(ph, R, firstwait):
        lc, lo = a.newlabel("c"), a.newlabel("o")
        a(f"s_mov_b32 s{sBad}, 0xff")
        a(f"s_mov_b32 s{sSpin}, {OPT.get('SPIN', '0x20000')}")
        if firstwait is not None: a(f"s_waitcnt vmcnt({firstwait})")
        a.label(lc)
        for gg in range(8):
            ln = a.newlabel("n")
            a(f"s_bitcmp1_b32 s{sBad}, {gg}")
            a(f"s_cbranch_scc0 {ln}")
            a(f"v_perm_b32 v8, v{R+4*gg+1}, v{R+4*gg}, s{sSelLo}")
            a(f"v_perm_b32 v9, v{R+4*gg+3}, v{R+4*gg+2}, s{sSelHi}")
            a("v_or_b32 v8, v8, v9")
            a(f"v_cmp_ne_u32 vcc, s{sTag}, v8")
            a(f"s_cbranch_vccnz {ln}x")
            a(f"s_bitset0_b32 s{sBad}, {gg}")
            for r in range(4):
                a(f"v_and_b32 v{R+4*gg+r}, s{sC}, v{R+4*gg+r}")
            a(f"s_branch {ln}")
            a.label(ln + "x")
            if STAMP and OPT.get('rst'): a("s_add_u32 s76, s76, 1")
            p_ld(gg, ph, R)
            a.label(ln)
        if STAMP and OPT.get('rst'):
            a("s_cmp_eq_u32 s75, -1")
            a("s_cselect_b32 s75, s76, s75")
        a(f"s_cmp_eq_u32 s{sBad}, 0")
        a(f"s_cbranch_scc1 {lo}")
        a(f"s_sub_u32 s{sSpin}, s{sSpin}, 1")
        a("s_waitcnt vmcnt(0)")
        if OPT.get('SL2'): a(f"s_sleep {OPT['SL2']}")
        a(f"s_cmp_lg_u32 s{sSpin}, 0")
        a(f"s_cbranch_scc1 {lc}")
        a.label(lo)
        for (x, y) in ((0, 1), (2, 3), (4, 5), (6, 7), (0, 2), (4, 6), (0, 4)):
            for r in range(4):
                a(f"v_add_f32 v{R + 4*x + r}, v{R + 4*x + r}, v{R + 4*y + r}")
        a(f"v_cvt_pk_bf16_f32 v{R+4}, v{R}, v{R+1}")
        a(f"v_cvt_pk_bf16_f32 v{R+5}, v{R+2}, v{R+3}")
        a(f"buffer_store_dwordx2 v[{R+4}:{R+5}], v{vOut}, s[{sOUT}:{sOUT+3}], s{sOutB} offen{OPT.get('outflag','')}")
    a(f"s_mov_b32 s{sSpin}, {OPT.get('SPIN', '0x20000')}")
    reduce(0, bK, 0)
    if RV == 2:
        a(f"s_add_u32 s{sPld}, s{sPld}, s{sPd}")
        a(f"s_add_u32 s{sOutB}, s{sOutB}, 0x20000")
        a(f"s_add_u32 s{sIter}, s{sIter}, 1")
        a(f"s_cmp_eq_u32 s{sIter}, 1")
        a("s_nop 1")
        a("s_cbranch_scc1 L_r1d")
    if RV == 5:
        a(f"s_cmp_lg_u32 s{sIter}, 0")
        a("s_cbranch_scc1 L_fin")
        a(f"s_add_u32 s{sPld}, s{sPld}, s{sPd}")
        a(f"s_add_u32 s{sOutB}, s{sOutB}, 0x20000")
        a(f"s_mov_b32 s{sIter}, 1")
        claim()
        a("s_branch L_r1d")
    a.label("L_fin")
    a.stamp(9)
    a.stamp_store(18, 0x200000, 10)
    if STAMP and OPT.get('itst'):
        a("s_lshl_b32 s92, s2, 2")
        a("s_add_u32 s92, s92, s40")
        a("s_lshl_b32 s92, s92, 8")
        a("s_add_u32 s92, s92, 0x220000")
        a("v_and_b32 v250, 63, v0")
        a("v_lshlrev_b32 v250, 2, v250")
        a("buffer_store_dword v255, v250, s[88:91], s92 offen")
    a.label("L_end")
    a("s_endpgm")
    if TV:
        a.label("L_g0")
        x_get(0, acc0)
        a(f"s_mov_b32 s{sSpin}, {OPT.get('SPIN', '0x20000')}")
        a(f"s_mov_b32 s{sDone}, 1")
        a("s_waitcnt vmcnt(4)")
        a("s_branch L_retry")
    for gq in range(4):
        a.label(f"L_bad{gq}")
        if OPT.get('SL1'): a(f"s_sleep {OPT['SL1']}")
        o_ld(2*gq, 1, vB)
        o_ld(2*gq + 1, 1, vB)
        a(f"s_branch L_rc{gq}")
    a.label("L_snip")
    for tab in ("A",):
        a.label(f"L_snip{tab}")
        for n in sorted(sn):
            items = [(f, v) for f, v, act in sn[n] if (act is False) or (act is True and tab == "A") or (act == 'I' and tab == "I")]
            if not items: continue
            a(f"s_cmp_lg_u32 s{sIter}, {n}")
            a(f"s_cbranch_scc1 L_sn{tab}{n}x")
            nv = sum(v for _, v in items)
            assert nv <= NX, (n, nv)
            dummy(NX - nv)
            for f, _ in items: f()
            a(f"s_branch L_snret")
            a.label(f"L_sn{tab}{n}x")
        dummy(NX)
    a.label("L_snret")
    a(f"s_cmp_eq_u32 s{sWsel}, 1")
    a("s_cbranch_scc1 L_ret1")
    a(f"s_cmp_eq_u32 s{sWsel}, 0")
    a("s_cbranch_scc1 L_ret0")
    if TH3:
        a(f"s_cmp_eq_u32 s{sWsel}, 3")
        a("s_cbranch_scc1 L_ret3")
    if TH2:
        a(f"s_cmp_eq_u32 s{sWsel}, 4")
        a("s_cbranch_scc1 L_ret4")
    a("s_branch L_ret2")

def kd(a, name):
    a.raw(".p2align 6")
    a.raw(f".amdhsa_kernel {name}")
    a.raw("  .amdhsa_next_free_vgpr 512")
    a.raw("  .amdhsa_next_free_sgpr 102")
    a.raw("  .amdhsa_accum_offset 256")
    a.raw("  .amdhsa_group_segment_fixed_size 0")
    a.raw("  .amdhsa_kernarg_size 64")
    a.raw("  .amdhsa_user_sgpr_count 2")
    a.raw("  .amdhsa_user_sgpr_kernarg_segment_ptr 1")
    a.raw("  .amdhsa_system_sgpr_workgroup_id_x 1")
    a.raw(".end_amdhsa_kernel")

def main(path):
    a = Asm()
    a.raw(HEADER.rstrip())
    a.raw(f"; @launch grid=(256,1,1) block=(256,1,1) lds={LDS_SIZE}")
    a.raw('.amdgcn_target "amdgcn-amd-amdhsa--gfx950"')
    a.raw(".text")
    gen_k1(a)
    a.raw('.section .rodata,"a"')
    kd(a, K1)
    open(path, "w").write(a.text())

if __name__ == "__main__":
    args = sys.argv[1:]
    if "--stamp" in args:
        STAMP = True
        args.remove("--stamp")
    rest = []
    for x in args:
        if "=" in x:
            k, v = x.split("=", 1)
            OPT[k] = v.replace("+", " ")
        else:
            rest.append(x)
    main(rest[0] if rest else "standalone__mha_block_cached__sampling.s")
```

```python
import sys, struct, math

def f32hex(x):
    return "0x%08x" % struct.unpack("<I", struct.pack("<f", x))[0]

STAMP = False
OPT = {}
class Asm:
    def __init__(self):
        self.L = []
        self.uid = 0
    def stamp(self, idx):
        if not STAMP: return
        self("s_memrealtime s[68:69]")
        self("s_waitcnt lgkmcnt(0)")
        self(f"s_mov_b32 s{70 + idx}, s68")
    def stamp_store(self, wsptr, base, n):
        if not STAMP: return
        self(f"s_mov_b32 s88, s{wsptr}")
        self(f"s_mov_b32 s89, s{wsptr+1}")
        self("s_mov_b32 s90, 0x40000000")
        self("s_mov_b32 s91, 0x00020000")
        self("s_lshl_b32 s92, s2, 3")
        self("s_add_u32 s92, s92, s40")
        self("s_lshl_b32 s92, s92, 6")
        self(f"s_add_u32 s92, s92, 0x{base:x}")
        self("v_mov_b32 v250, 0")
        self("s_getreg_b32 s93, hwreg(HW_REG_XCC_ID)")
        self("v_mov_b32 v251, s93")
        self(f"buffer_store_dword v251, v250, s[88:91], s92 offen offset:{4*n}")
        self("s_nop 1")
        self("s_getreg_b32 s93, hwreg(HW_REG_HW_ID)")
        self("v_mov_b32 v251, s93")
        self(f"buffer_store_dword v251, v250, s[88:91], s92 offen offset:{4*n+4}")
        self("s_nop 1")
        for i in range(n):
            self(f"v_mov_b32 v251, s{70+i}")
            self(f"buffer_store_dword v251, v250, s[88:91], s92 offen offset:{4*i}")
            self("s_nop 1")
    def __call__(self, s):
        self.L.append("  " + s)
    def label(self, s):
        self.L.append(s + ":")
    def newlabel(self, p):
        self.uid += 1
        return f"L_{p}_{self.uid}"
    def raw(self, s):
        self.L.append(s)
    def text(self):
        return "\n".join(self.L) + "\n"

class MemSeq:
    def __init__(self, a, pre_kv=0):
        self.a = a; self.n = pre_kv; self.done = 0; self.kv = list(range(pre_kv)); self.slow = -1
    def issue(self, text, kv=False, slow=False):
        if text is not None: self.a(text)
        idx = self.n; self.n += 1
        if kv: self.kv.append(idx)
        if slow and self.slow < self.done: self.slow = idx
        return idx
    def wait_for(self, idx):
        if idx < self.done: return
        cnt = self.n - 1 - idx
        assert cnt <= 63, cnt
        self.a(f"s_waitcnt vmcnt({cnt})")
        self.done = idx + 1
    def pace(self, W):
        if len(self.kv) >= W:
            t = self.kv[-W]
            if self.slow >= self.done and t > self.slow: return
            self.wait_for(t)

def vr(b, n=4):
    return f"v[{b}:{b+n-1}]"
def ar(b, n=4):
    return f"a[{b}:{b+n-1}]"

HEADER = """; Kernarg layout for this problem (64 bytes, ptrs only, base s[0:1]):
"""

K1 = "standalone__mha_block_cached__sampling_kernel"

LDS_WO = 0
LDS_C = 32768
LDS_WQS = 0
LDS_XS = 65536
LDS_M = 98304
LDS_L = 100352
LDS_QF = 102400
LDS_CNT = 106496
LDS_X = 106496 + 64
LDS_SIZE = LDS_X + 16384
PR = 0x400000
QP = 0xC00000
WS_SIZE = QP + 0x1000000
FLQ = 0x300000
FLP = 0x310000

def gen_k1(a):
    W = int(OPT.get('W', 5))
    Wp = int(OPT.get('Wp', 5))
    Rn, Rd = [int(t) for t in OPT.get('R', '7/9').split('/')]
    vKoff, vVoff, vKoff2, vVoff2 = 1, 2, 3, 4
    vMc, vL, vT0, vT1 = 5, 6, 7, 20
    vS = 8
    vP = 16
    vAl, vT2, vT3 = 21, 22, 23
    vQ, vQ2 = 24, 32
    vO = 40
    vPT = 72
    vLdsO, vLdsM, vQF, vOne, vTr, vWoOff, vXoff, vWoff = 80, 81, 82, 83, 84, 85, 86, 87
    bK, bV = 88, 120
    vSR = 152
    vB = 168
    vAT = 232
    vCntL, vCntG, vDum = 248, 249, 252
    sX, sK, sV, sWQ, sWS, sWO, sOUT, sDBG, sNull = 20, 24, 28, 32, 36, 60, 64, 80, 96
    sWSo = 20
    sW, sH, sP_, sB1, sVoff, sKoff, sIter = 40, 41, 42, 43, 44, 45, 46
    sSelLo, sSelHi, sC, sBad, sSpin = 50, 51, 52, 53, 54
    sMask = 56
    sWoLd, sLb = 58, 59
    sXb, sWqb, sJ = 84, 85, 86
    vWoffB, vXt, vTq, vXrd = 253, 254, 216, 224
    sFl = 95
    sNon = 55
    vNon = 246
    sOld, sOst = 93, 94
    cscale = (128 ** -0.5) * math.log2(math.e)

    a.raw(f".globl {K1}")
    a.raw(".p2align 8")
    a.raw(f".type {K1},@function")
    a.label(K1)
    a("s_cmp_ge_u32 s2, 256")
    a("s_cbranch_scc1 L_end")
    a.stamp(0)
    a("s_load_dwordx16 s[4:19], s[0:1], 0")
    a("s_memrealtime s[90:91]")
    a("v_lshrrev_b32 v7, 6, v0")
    a("v_and_b32 v5, 63, v0")
    a("v_readfirstlane_b32 s40, v7")
    a("v_and_b32 v6, 15, v5")
    a("v_lshrrev_b32 v7, 4, v5")
    a("s_and_b32 s41, s2, 7")
    a("s_lshl_b32 s41, s41, 2")
    a("s_lshr_b32 s48, s2, 3")
    a("s_and_b32 s48, s48, 3")
    a("s_add_u32 s41, s41, s48")
    a("s_lshr_b32 s42, s2, 5")
    HM = int(OPT.get('HM', 0))
    if HM == 1:
        a("s_and_b32 s41, s2, 31")
    if HM == 2:
        a("s_and_b32 s41, s2, 7")
        a("s_lshl_b32 s41, s41, 1")
        a("s_bfe_u32 s48, s2, 0x10003")
        a("s_add_u32 s41, s41, s48")
        a("s_and_b32 s48, s2, 16")
        a("s_add_u32 s41, s41, s48")
    if HM == 3:
        a("s_and_b32 s41, s2, 3")
        a("s_bfe_u32 s48, s2, 0x20003")
        a("s_lshl_b32 s48, s48, 2")
        a("s_add_u32 s41, s41, s48")
        a("s_and_b32 s48, s2, 4")
        a("s_lshl_b32 s48, s48, 2")
        a("s_add_u32 s41, s41, s48")
    if HM == 4:
        a("s_and_b32 s41, s2, 1")
        a("s_bfe_u32 s48, s2, 0x20003")
        a("s_lshl_b32 s48, s48, 1")
        a("s_add_u32 s41, s41, s48")
        a("s_and_b32 s48, s2, 6")
        a("s_lshl_b32 s48, s48, 2")
        a("s_add_u32 s41, s41, s48")
    HB = OPT.get('HB')
    def hmap(dst, src, tmp):
        for k_, ch in enumerate(HB):
            if k_ == 0:
                a(f"s_bfe_u32 s{dst}, s{src}, 0x1000{ch}")
            else:
                a(f"s_bfe_u32 s{tmp}, s{src}, 0x1000{ch}")
                a(f"s_lshl_b32 s{tmp}, s{tmp}, {k_}")
                a(f"s_or_b32 s{dst}, s{dst}, s{tmp}")
    if HB: hmap(41, 2, 48)
    if OPT.get('map') == 'anti':
        a("s_lshr_b32 s41, s2, 3")
        a("s_and_b32 s42, s2, 7")
    t0, t1, t2, t3 = 240, 241, 242, 243
    a(f"v_and_b32 v{t0}, 3, v6")
    a(f"v_lshlrev_b32 v{t0}, 2, v{t0}")
    a(f"v_lshrrev_b32 v{t2}, 3, v6")
    a(f"v_and_b32 v{t3}, 7, v6")
    WQC = 5 if OPT.get('wqc') else 0
    a(f"v_lshlrev_b32 v{vWoff}, {16 - WQC}, v7")
    a(f"v_lshl_add_u32 v{vWoff}, v6, 4, v{vWoff}")
    a(f"v_lshlrev_b32 v{vXoff}, 17, v{t2}")
    a(f"v_lshl_add_u32 v{vXoff}, v{t3}, 11, v{vXoff}")
    a(f"v_lshl_add_u32 v{vXoff}, v7, 4, v{vXoff}")
    a(f"v_bfe_u32 v{t1}, v6, 2, 1")
    a(f"v_add_u32 v{t1}, v{t0}, v{t1}")
    a(f"v_lshlrev_b32 v{vKoff}, 8, v{t1}")
    a(f"v_lshl_add_u32 v{vKoff}, v{t2}, 6, v{vKoff}")
    a(f"v_lshl_add_u32 v{vKoff}, v7, 4, v{vKoff}")
    a(f"v_add_u32 v{vKoff2}, 0x1000, v{vKoff}")
    a(f"v_lshlrev_b32 v{vVoff}, 4, v5")
    a(f"v_add_u32 v{vVoff2}, 0x1000, v{vVoff}")
    PX = int(OPT.get('PX', 0))
    if PX:
        a(f"s_and_b32 s49, s{sP_}, 1")
        a("s_lshl_b32 s49, s49, 2")
        a(f"s_add_u32 s49, s49, s{sW}")
        a(f"s_lshl_b32 s{sXb}, s{sP_}, 14")
        a("s_lshl_b32 s48, s49, 8")
        a(f"s_add_u32 s{sXb}, s{sXb}, s48")
        a(f"s_lshl_b32 s{sWqb}, s49, 20")
        a(f"s_lshl_b32 s48, s{sH}, 8")
        a(f"s_add_u32 s{sWqb}, s{sWqb}, s48")
    else:
        a(f"s_lshl_b32 s{sXb}, s{sP_}, 14")
        a(f"s_lshl_b32 s48, s{sW}, 9")
        a(f"s_add_u32 s{sXb}, s{sXb}, s48")
        a(f"s_lshl_b32 s{sWqb}, s{sW}, {21 - WQC}")
        a(f"s_lshl_b32 s48, s{sH}, {18 if WQC else 8}")
        a(f"s_add_u32 s{sWqb}, s{sWqb}, s48")
    a(f"s_lshl_b32 s{sVoff}, s{sP_}, 5")
    a(f"s_add_u32 s{sVoff}, s{sVoff}, s{sH}")
    a(f"s_lshl_b32 s{sVoff}, s{sVoff}, 19")
    a(f"s_lshl_b32 s48, s{sW}, 13")
    a(f"s_add_u32 s{sVoff}, s{sVoff}, s48")
    ROT = OPT.get('ROT')
    if ROT:
        sh, mul = [int(t) for t in ROT.split('x')]
        a(f"s_lshr_b32 s48, s2, {sh}")
        a(f"s_mul_i32 s48, s48, {mul}")
        a("s_and_b32 s48, s48, 15")
        a("s_lshl_b32 s48, s48, 15")
        a(f"s_add_u32 s{sVoff}, s{sVoff}, s48")
    XM = [t.split(':') for t in OPT['XM'].split(',')] if OPT.get('XM') else []
    sXM = 79
    if XM:
        a(f"s_mov_b32 s{sXM}, 0")
        for b_, i_ in XM:
            a(f"s_bfe_u32 s48, s2, 0x1000{i_}")
            a(f"s_lshl_b32 s48, s48, {b_}")
            a(f"s_xor_b32 s{sXM}, s{sXM}, s48")
        a(f"s_xor_b32 s{sVoff}, s{sVoff}, s{sXM}")
    def next_off(dst, src):
        if XM:
            a(f"s_xor_b32 s{dst}, s{src}, s{sXM}")
            a(f"s_add_u32 s{dst}, s{dst}, 0x8000")
            a(f"s_xor_b32 s{dst}, s{dst}, s{sXM}")
            return
        if not ROT:
            a(f"s_add_u32 s{dst}, s{src}, 0x8000")
            return
        a(f"s_add_u32 s49, s{src}, 0x8000")
        a("s_and_b32 s49, s49, 0x78000")
        a(f"s_andn2_b32 s{dst}, s{src}, 0x78000")
        a(f"s_or_b32 s{dst}, s{dst}, s49")
    a(f"s_add_u32 s{sB1}, s{sVoff}, 0x8000000")
    for (d, size) in ((sX, 16*8*1024*2), (sWQ, 1024*4096*2), (sK, 1 << 28), (sV, 1 << 28)):
        a(f"s_mov_b32 s{d+2}, 0x{size:x}")
        a(f"s_mov_b32 s{d+3}, 0x00020000")
    a(f"s_mov_b32 s{sSelLo}, 0x05040100")
    a(f"s_mov_b32 s{sSelHi}, 0x07060302")
    a("s_waitcnt lgkmcnt(0)")
    if OPT.get('wsoff'):
        a(f"s_add_u32 s18, s18, {OPT['wsoff']}")
        a("s_addc_u32 s19, s19, 0")
    for (d, src) in ((sX, 4), (sWQ, 10), (sK, 6), (sV, 8)):
        a(f"s_mov_b32 s{d}, s{src}")
        a(f"s_mov_b32 s{d+1}, s{src+1}")

    a(f"s_mov_b32 s{sDBG}, s16")
    a(f"s_mov_b32 s{sDBG+1}, s17")
    a(f"s_mov_b32 s{sDBG+2}, 256")
    a(f"s_mov_b32 s{sDBG+3}, 0x00020000")
    CT = int(OPT.get('CT', 0))
    CB, CS = 0x330000, int(OPT.get('CS', '0x1100'), 0)
    a(f"v_mov_b32 v{vNon+1}, 0")
    a(f"s_or_b32 s48, s2, s{sW}")
    a("s_cmp_lg_u32 s48, 0")
    a("s_cbranch_scc1 L_nopub")
    a(f"s_or_b32 s{sNon}, s90, 1")
    a(f"v_mov_b32 v{vNon}, s{sNon}")
    if CT == 1:
        a(f"s_mov_b32 s{sNull}, s18")
        a(f"s_mov_b32 s{sNull+1}, s19")
        a(f"s_mov_b32 s{sNull+2}, 0x{WS_SIZE:x}")
        a(f"s_mov_b32 s{sNull+3}, 0x00020000")
        a(f"s_mov_b32 s48, 0x{CS:x}")
        a(f"v_mul_lo_u32 v245, v5, s48")
        a(f"s_mov_b32 s48, 0x{CB:x}")
        a("s_mov_b32 exec_hi, 0")
        a(f"buffer_store_dword v{vNon+1}, v245, s[{sNull}:{sNull+3}], s48 offen sc1")
    else:
        a("s_mov_b64 exec, 1")
        a(f"buffer_store_dword v{vNon}, v{vNon+1}, s[{sDBG}:{sDBG+3}], 0 offen sc1")
    a("s_mov_b64 exec, -1")
    a.label("L_nopub")
    def late_pub():
        a(f"s_or_b32 s48, s2, s{sW}")
        a("s_cmp_lg_u32 s48, 0")
        a("s_cbranch_scc1 L_nopub2")
        a("s_mov_b64 exec, 1")
        a(f"buffer_store_dword v{vNon}, v{vNon+1}, s[{sDBG}:{sDBG+3}], 0 offen sc1")
        a("s_mov_b64 exec, -1")
        a.label("L_nopub2")
    if OPT.get('est'): a.stamp(3)
    ms = MemSeq(a)
    if OPT.get('T0'):
        a("s_mov_b64 exec, 1")
        ms.issue(f"buffer_load_dword v244, off, s[{sK}:{sK+3}], s{sVoff}{OPT.get('t0flag', ' nt')}")
        ms.issue(f"buffer_load_dword v245, off, s[{sV}:{sV+3}], s{sVoff}{OPT.get('t0flag', ' nt')}")
        a("s_mov_b64 exec, -1")
    NSL = 3
    def xreg(ks): return 8 + 4*ks
    def slot(ks): return 152 + (ks % NSL)*32

    def ld_K(ms, dst, j, soff):
        T, s = j >> 2, j & 3
        return ms.issue(f"buffer_load_dwordx4 {dst}, v{vKoff if T == 0 else vKoff2}, s[{sK}:{sK+3}], s{soff} offen offset:{(s>>1)*512 + (s&1)*128} nt", kv=True)
    def ld_V(ms, dst, i, soff):
        return ms.issue(f"buffer_load_dwordx4 {dst}, v{vVoff if i < 4 else vVoff2}, s[{sV}:{sV+3}], s{soff} offen offset:{(i&3)*1024} nt", kv=True)

    stage = []
    for b in range(4):
        for j in range(8): stage.append(('K', b, j))
        for j in range(8): stage.append(('V', b, j))
    for j in range(8): stage.append(('K', 4, j))
    st = {'pos': 0, 'idx': {}}
    def stage_one(Wx):
        if st['pos'] >= len(stage): return False
        kind, b, j = stage[st['pos']]; st['pos'] += 1
        if len(ms.kv) >= Wx and not st.get('late'):
            st['late'] = True
            late_setup()
        ms.pace(Wx)
        if OPT.get('sst') and st['pos'] - 1 - Wx in (0, 7, 23, 39): a.stamp(3 + (0, 7, 23, 39).index(st['pos'] - 1 - Wx))
        if kind == 'K':
            dst = ar(64*b + 4*j) if b < 4 else vr(bK + 4*j)
            st['idx'][(kind, b, j)] = ld_K(ms, dst, j, sVoff)
        else:
            st['idx'][(kind, b, j)] = ld_V(ms, ar(64*b + 32 + 4*j), j, sVoff)
            if j == 7:
                next_off(sVoff, sVoff)
        return True

    def perm_c(src, c):
        for hb, sel in ((0, sSelLo), (1, sSelHi)):
            for t in range(4):
                a(f"v_perm_b32 v{vPT + hb*4 + t}, v{src[2*t+1] + c}, v{src[2*t] + c}, s{sel}")
    def mfma_c(bop, c, first):
        a("s_nop 1")
        for hb in range(2):
            j = 2*c + hb
            cc = "0" if first else vr(vO + 4*j)
            a(f"v_mfma_f32_16x16x32_bf16 {vr(vO + 4*j)}, {vr(vPT + hb*4)}, {vr(bop)}, {cc}")
    def reset_state():
        for r in range(32):
            a(f"v_mov_b32 v{vO + r}, 0")
        a(f"v_mov_b32 v{vMc}, 0xff800000")
        a(f"v_mov_b32 v{vL}, 0")

    def late_setup():
        a(f"v_lshl_add_u32 v{t1}, v7, 4, v{t3}")
        a(f"v_lshlrev_b32 v{t1}, 4, v{t1}")
        a(f"v_lshl_add_u32 v{t1}, v{t2}, 10, v{t1}")
        a(f"v_add_u32 v{vQF}, 0x{LDS_QF:x}, v{t1}")
        a(f"v_mov_b32 v{vCntL}, 0x{LDS_CNT:x}")
        a(f"v_mov_b32 v{vOne}, 0")
        a(f"ds_write_b32 v{vCntL}, v{vOne}")
        a(f"ds_write_b32 v{vCntL}, v{vOne} offset:4")
        a(f"ds_write_b32 v{vCntL}, v{vOne} offset:8")
        a(f"ds_write_b32 v{vCntL}, v{vOne} offset:12")
        a(f"ds_write_b32 v{vCntL}, v{vOne} offset:16")
        a(f"ds_write_b32 v{vCntL}, v{vOne} offset:24")
        a(f"ds_write_b32 v{vCntL}, v{vOne} offset:28")
        a(f"v_lshl_add_u32 v{t1}, v{t3}, 2, v{vCntL}")
        a(f"ds_write_b32 v{t1}, v{vOne} offset:32")
        a(f"v_lshl_add_u32 v{t1}, v7, 3, v{t3}")
        a(f"v_lshlrev_b32 v{t1}, 4, v{t1}")
        a(f"s_lshl_b32 s48, s{sW}, 12")
        a(f"s_add_u32 s48, s48, 0x{LDS_C:x}")
        a(f"v_add_u32 v{vLdsO}, s48, v{t1}")
        a(f"s_lshl_b32 s48, s{sW}, 8")
        a(f"s_add_u32 s48, s48, 0x{LDS_M:x}")
        a(f"v_lshlrev_b32 v{t1}, 2, v5")
        a(f"v_add_u32 v{vLdsM}, s48, v{t1}")
        a(f"v_lshrrev_b32 v{t1}, 3, v5")
        a(f"v_lshlrev_b32 v{vWoOff}, 11, v{t1}")
        a(f"v_lshl_add_u32 v{vWoOff}, v{t3}, 4, v{vWoOff}")
        a(f"v_and_b32 v{t1}, 1, v7")
        a(f"v_lshlrev_b32 v{vTr}, 5, v{t1}")
        a(f"v_xor_b32 v{vWoOff}, v{vWoOff}, v{vTr}")
        a(f"v_lshl_add_u32 v{t1}, v{t1}, 1, v{t2}")
        a(f"v_lshlrev_b32 v{vTr}, 5, v{t1}")
        a(f"v_lshrrev_b32 v{t1}, 2, v6")
        a(f"v_lshl_add_u32 v{t1}, v7, 3, v{t1}")
        a(f"v_lshl_add_u32 v{vTr}, v{t1}, 7, v{vTr}")
        a(f"v_lshl_add_u32 v{vTr}, v{t0}, 1, v{vTr}")
        a(f"s_lshl_b32 s{sLb}, s{sW}, 14")
        a(f"s_lshr_b32 s48, s{sW}, 1")
        a("s_lshl_b32 s48, s48, 15")
        a(f"s_add_u32 s{sLb}, s{sLb}, s48")
        a("s_lshl_b32 s49, s48, 1")
        a(f"v_add_u32 v{vTr}, s49, v{vTr}")
        a(f"v_mov_b32 v{vOne}, 1")
        a(f"s_mov_b32 s{sC}, {f32hex(cscale)}")
        a(f"s_mov_b32 s{sMask}, 0x00ff00ff")
        a(f"s_mov_b32 s{sMask+1}, 0x00ff00ff")
        for (d, src, size) in ((sWS, 18, WS_SIZE), (sWO, 12, 4096*1024*2), (sOUT, 14, 128*1024*2), (sNull, 18, 0)):
            a(f"s_mov_b32 s{d}, s{src}")
            a(f"s_mov_b32 s{d+1}, s{src+1}")
            a(f"s_mov_b32 s{d+2}, 0x{size:x}")
            a(f"s_mov_b32 s{d+3}, 0x00020000")
        a("s_and_b32 s48, s2, 7")
        a(f"s_lshl_b32 s{sOld}, s48, 15")
        if HB:
            a(f"s_lshl_b32 s49, s{sW}, 3")
            a("s_or_b32 s49, s49, s48")
            hmap(sWoLd, 49, 48)
            a(f"s_lshl_b32 s{sWoLd}, s{sWoLd}, 18")
        else:
            a(f"s_lshl_b32 s{sWoLd}, s48, 20")
            a(f"s_lshl_b32 s48, s{sW}, 18")
            a(f"s_add_u32 s{sWoLd}, s{sWoLd}, s48")
        a("s_lshr_b32 s48, s2, 4")
        a("s_lshl_b32 s48, s48, 7")
        a(f"s_add_u32 s{sWoLd}, s{sWoLd}, s48")
        a("s_and_b32 s48, s2, 8")
        a("s_lshl_b32 s48, s48, 19")
        a(f"s_add_u32 s{sOld}, s{sOld}, s48")
        a(f"s_and_b32 s48, s{sW}, 1")
        a("s_lshl_b32 s48, s48, 21")
        a(f"s_add_u32 s{sOld}, s{sOld}, s48")
        a(f"s_and_b32 s48, s{sW}, 2")
        a("s_lshl_b32 s48, s48, 18")
        a(f"s_add_u32 s{sOld}, s{sOld}, s48")
        a(f"s_add_u32 s{sOld}, s{sOld}, 0x{QP:x}")
        a(f"s_lshl_b32 s{sOst}, s2, 15")
        a(f"s_add_u32 s48, s{sP_}, 3")
        a("s_and_b32 s48, s48, 3")
        a("s_lshl_b32 s48, s48, 13")
        a(f"s_add_u32 s{sOst}, s{sOst}, s48")
        a(f"s_add_u32 s{sOst}, s{sOst}, 0x{QP:x}")
        a(f"s_and_b32 s48, s{sW}, 1")
        a("s_lshl_b32 s48, s48, 10")
        a(f"s_add_u32 s{sOst}, s{sOst}, s48")
        FS = int(OPT.get('FS', 0))
        if FS:
            for r in range(4):
                a(f"v_mov_b32 v{232 + r}, -1")
            a(f"s_lshr_b32 s48, s{sW}, 1")
            a("s_lshl_b32 s48, s48, 11")
            a(f"s_add_u32 s48, s48, s{sOst}")
            if FS == 2:
                a(f"s_cmp_ge_u32 s{sW}, 2")
                a(f"s_cselect_b32 s{sNull+2}, 0x{WS_SIZE:x}, 0")
                ms.issue(f"buffer_store_dwordx4 {vr(232)}, v{vVoff}, s[{sNull}:{sNull+3}], s48 offen sc1")
                a(f"s_mov_b32 s{sNull+2}, 0")
            else:
                ms.issue(f"buffer_store_dwordx4 {vr(232)}, v{vVoff}, s[{sWS}:{sWS+3}], s48 offen sc1")
        PT = int(OPT.get('PT', 0))
        if PT:
            for ph in range(2 - PT, 2):
                a(f"s_add_u32 s48, s{sP_}, {1 + ph}")
                a("s_and_b32 s48, s48, 3")
                a("s_lshl_b32 s48, s48, 13")
                a("s_lshl_b32 s49, s2, 15")
                a("s_add_u32 s48, s48, s49")
                a(f"s_lshl_b32 s49, s{sW}, 11")
                a("s_add_u32 s48, s48, s49")
                a(f"s_add_u32 s48, s48, 0x{QP:x}")
                for k_ in range(2):
                    ms.issue(f"buffer_store_dwordx4 {vr(232)}, v{vVoff}, s[{sWS}:{sWS+3}], s48 offen offset:{k_*1024} sc1")

    def prologue(pfx):
        def O(k, d=None): return OPT.get(pfx + k, OPT.get(k, d))
        Wp = int(O('Wp', 5))
        NSL = int(O('NSL', 3))
        slots = [88, 120, 152, 184][4 - NSL:]
        qa, qb = [int(t) for t in O('QR', '4/3').split('/')]
        seq = [('s',)] * int(O('KF', 0))
        qlist = [('q', n, e) for n in range(8) for e in range(9)]
        Q0 = int(O('Q0', 0))
        seq += qlist[:Q0]
        accum = 0
        for it_ in qlist[Q0:]:
            seq.append(it_)
            accum += qb
            while accum >= qa:
                seq.append(('s',)); accum -= qa
        D = int(O('QD', 10))
        seq += [('s',)] * (D + 4)
        sched = {}
        qidx = {}
        endpos = {}
        for t, it_ in enumerate(seq):
            if it_[0] == 'q' and it_[2] == 8:
                for c in range(4): sched.setdefault(t + D + c, []).append((it_[1], c))
        donec = set()
        for t, it_ in enumerate(seq):
            if t == int(O('LS', 1000)) and not st.get('late'):
                st['late'] = True
                late_setup()
            if it_[0] == 's':
                assert NSL < 4 or st['pos'] < 64 or (4, 3) in donec
                stage_one(Wp if t >= int(O('QW0', 0)) else 99)
            else:
                _, n, e = it_
                if OPT.get('NOQ') and n >= int(OPT['NOQ']) - 1:
                    qidx[(n, e)] = -1
                elif e == 0:
                    a(f"s_add_u32 s48, s{sP_}, {n}")
                    a("s_and_b32 s48, s48, 7")
                    a(f"s_lshl_b32 s47, s48, {18 - WQC}")
                    a(f"s_add_u32 s47, s47, s{sWqb}")
                    a("s_lshl_b32 s48, s48, 6")
                    a(f"s_add_u32 s48, s48, s{sXb}")
                    qidx[(n, e)] = ms.issue(f"buffer_load_dwordx4 {vr(8 + 4*n)}, v{vXoff}, s[{sX}:{sX+3}], s48 offen{OPT.get('xflag','')}")
                else:
                    assert n < NSL or (n - NSL, 3) in donec, (n, e)
                    if e > 1: a(f"s_add_u32 s47, s47, 0x{0x2000 >> WQC:x}")
                    qidx[(n, e)] = ms.issue(f"buffer_load_dwordx4 {vr(slots[n % NSL] + 4*(e-1))}, v{vWoff}, s[{sWQ}:{sWQ+3}], s47 offen{OPT.get('wqflag0', OPT.get('wqflag','')) if n == 0 else OPT.get('wqflag','')}")
            for (n, c) in sched.get(t, []):
                ms.wait_for(qidx[(n, 8)])
                if CT == 1 and n == 0 and c == 0: late_pub()
                if OPT.get('xst') and c == 0 and n in (0, 2, 4, 6): a.stamp(3 + n // 2)
                perm_c([slots[n % NSL] + 4*i for i in range(8)], c)
                mfma_c(8 + 4*n, c, n == 0)
                donec.add((n, c))
        assert len(donec) == 32
        if not st.get('late'):
            st['late'] = True
            late_setup()
        a.stamp(1)
        a(f"s_lshl_b32 s48, s{sW}, 13")
        a(f"v_add_u32 v8, s48, v{vVoff}")
        a(f"s_lshl_b32 s48, s{sW}, 11")
        a(f"v_add_u32 v9, s48, v{vVoff}")
        a(f"v_lshlrev_b32 v10, 10, v7")
        a(f"v_lshl_add_u32 v10, v6, 4, v10")
        a(f"s_lshl_b32 s48, s{sW}, 2")
        a(f"s_add_u32 s48, s48, 0x{LDS_QF:x}")
        a(f"v_add_u32 v10, s48, v10")
        a(f"s_mov_b32 s{sWSo}, s18")
        a(f"s_mov_b32 s{sWSo+1}, s19")
        a(f"s_cmp_lt_u32 s{sW}, 2")
        a(f"s_cselect_b32 s{sWSo+2}, 0x{WS_SIZE:x}, 0")
        a("s_nop 7")
        for j in range(8):
            a(f"ds_write_b128 v8, {vr(vO + 4*j)} offset:{j*1024}")
        for i in range(int(O('SB', 2))): stage_one(Wp)
        a("s_waitcnt lgkmcnt(0)")
        a("s_barrier")
        for ww in range(4):
            for tt in range(2):
                a(f"ds_read_b128 {vr(vO + (ww*2+tt)*4)}, v9 offset:{ww*8192 + tt*1024}")
        for i in range(int(O('SC', 1))): stage_one(Wp)
        a("s_waitcnt lgkmcnt(0)")
        for r in range(8):
            a(f"v_add_f32 v{vO + r}, v{vO + r}, v{vO + 8 + r}")
            a(f"v_add_f32 v{vO + 16 + r}, v{vO + 16 + r}, v{vO + 24 + r}")
        for r in range(8):
            a(f"v_add_f32 v{vO + r}, v{vO + r}, v{vO + 16 + r}")
        for r in range(4):
            a(f"v_cvt_pk_bf16_f32 v{12 + r}, v{vO + r}, v{vO + 4 + r}")
        for r in range(4):
            a(f"ds_write_b32 v10, v{12 + r} offset:{r*256}")
        for i in range(int(O('SD', 1))): stage_one(Wp)
        a("s_waitcnt lgkmcnt(0)")
        a("s_barrier")
        for ph in range(2):
            for sp in range(2):
                a(f"ds_read_b128 {vr(vQ + ph*8 + sp*4)}, v{vQF} offset:{sp*2048 + ph*128}")
        reset_state()
        a("s_waitcnt lgkmcnt(0)")
        a.stamp(2)
        WF = int(O('WF', W))
        while stage_one(WF if st['pos'] < 64 else W): pass
        a("s_waitcnt vmcnt(8)")
    vTag, sTag = 254, 3
    def nonce_wait(vN):
        a(f"s_mov_b32 s{sSpin}, {OPT.get('SPIN', '0x20000')}")
        a.label("L_nonp")
        a(f"v_readfirstlane_b32 s{sNon}, v{vN}")
        a(f"s_cmp_lg_u32 s{sNon}, 0")
        a("s_cbranch_scc1 L_nond")
        a(f"s_sub_u32 s{sSpin}, s{sSpin}, 1")
        a(f"s_cmp_eq_u32 s{sSpin}, 0")
        a("s_cbranch_scc1 L_nond")
        a(f"buffer_load_dword v{vN}, off, s[{sDBG}:{sDBG+3}], 0 sc1")
        a("s_waitcnt vmcnt(0)")
        a("s_branch L_nonp")
        a.label("L_nond")
    def prologue2():
        O = OPT.get
        Wp = int(O('Wp', 5))
        NSL = 3
        slots = [120, 152, 184]
        vO2 = 88
        qa, qb = [int(t) for t in O('QR', '4/3').split('/')]
        seq = [('s',)] * int(O('KF', 0))
        qlist = [('q', n, e) for n in range(4) for e in range(10)]
        Q0 = int(O('Q0', 0))
        D = int(O('QD', 10))
        seq += qlist[:Q0]
        accum = 0
        for it_ in qlist[Q0:]:
            if it_[1] == 3 and it_[2] == 2:
                t0_ = seq.index(('q', 0, 9))
                while len(seq) < t0_ + D + 4: seq.append(('s',))
            seq.append(it_)
            accum += qb
            while accum >= qa:
                seq.append(('s',)); accum -= qa
        seq += [('s',)] * (D + 4)
        NP = int(O('NP', 36))
        sched = {}
        qidx = {}
        for t, it_ in enumerate(seq):
            if it_[0] == 'q' and it_[2] == 9:
                for c in range(4): sched.setdefault(t + D + c, []).append((it_[1], c))
        donec = set()
        for t, it_ in enumerate(seq):
            if t == int(O('LS', 1000)) and not st.get('late'):
                st['late'] = True
                late_setup()
            if t == NP:
                nidx = ms.issue(f"buffer_load_dword v255, off, s[{sDBG}:{sDBG+3}], 0 sc1")
            if it_[0] == 's':
                assert st['pos'] < 64
                stage_one(Wp if t >= int(O('QW0', 0)) else 99)
            else:
                _, n, e = it_
                if e == 0:
                    a(f"s_lshr_b32 s48, s{sP_}, 1")
                    a(f"s_add_u32 s48, s48, {n}")
                    a("s_and_b32 s48, s48, 3")
                    a(f"s_lshl_b32 s47, s48, 18")
                    a(f"s_add_u32 s47, s47, s{sWqb}")
                    a("s_lshl_b32 s48, s48, 6")
                    a(f"s_add_u32 s{sJ}, s48, s{sXb}")
                    qidx[(n, e)] = ms.issue(f"buffer_load_dwordx4 {vr(8 + 8*n)}, v{vXoff}, s[{sX}:{sX+3}], s{sJ} offen{OPT.get('xflag','')}")
                elif e == 1:
                    a(f"s_xor_b32 s48, s{sJ}, 0x4000")
                    qidx[(n, e)] = ms.issue(f"buffer_load_dwordx4 {vr(12 + 8*n)}, v{vXoff}, s[{sX}:{sX+3}], s48 offen{OPT.get('xflag','')}")
                else:
                    assert n < NSL or (n - NSL, 3) in donec, (n, e)
                    if e > 2: a(f"s_add_u32 s47, s47, 0x2000")
                    qidx[(n, e)] = ms.issue(f"buffer_load_dwordx4 {vr(slots[n % NSL] + 4*(e-2))}, v{vWoff}, s[{sWQ}:{sWQ+3}], s47 offen{OPT.get('wqflag0', OPT.get('wqflag','')) if n == 0 else OPT.get('wqflag','')}")
            for (n, c) in sched.get(t, []):
                ms.wait_for(qidx[(n, 9)])
                perm_c([slots[n % NSL] + 4*i for i in range(8)], c)
                a("s_nop 1")
                for (acc, bop) in ((vO, 8 + 8*n), (vO2, 12 + 8*n)):
                    for hb in range(2):
                        j = 2*c + hb
                        cc = "0" if n == 0 else vr(acc + 4*j)
                        a(f"v_mfma_f32_16x16x32_bf16 {vr(acc + 4*j)}, {vr(vPT + hb*4)}, {vr(bop)}, {cc}")
                donec.add((n, c))
        assert len(donec) == 16
        if not st.get('late'):
            st['late'] = True
            late_setup()
        if not OPT.get('pst'): a.stamp(1)
        a(f"s_lshl_b32 s48, s{sW}, 14")
        a(f"v_add_u32 v8, s48, v{vVoff}")
        a(f"s_lshl_b32 s48, s{sW}, 11")
        a(f"v_add_u32 v9, s48, v{vVoff}")
        a(f"v_lshlrev_b32 v10, 10, v7")
        a(f"v_lshl_add_u32 v10, v6, 4, v10")
        a(f"s_lshl_b32 s48, s{sW}, 2")
        a(f"s_add_u32 s48, s48, 0x{LDS_QF:x}")
        a(f"v_add_u32 v10, s48, v10")
        a(f"s_mov_b32 s{sWSo}, s18")
        a(f"s_mov_b32 s{sWSo+1}, s19")
        a(f"s_cmp_lt_u32 s{sW}, 2")
        a(f"s_cselect_b32 s{sWSo+2}, 0x{WS_SIZE:x}, 0")
        a(f"s_lshl_b32 s{sXb}, s2, 15")
        a(f"s_and_b32 s48, s{sP_}, 3")
        a("s_lshl_b32 s48, s48, 13")
        a(f"s_add_u32 s{sXb}, s{sXb}, s48")
        a(f"s_lshl_b32 s48, s{sW}, 11")
        a(f"s_add_u32 s{sXb}, s{sXb}, s48")
        a(f"s_xor_b32 s{sWqb}, s{sXb}, 0x{(32 << 15) | (1 << 13):x}")
        a(f"s_add_u32 s{sXb}, s{sXb}, 0x{QP:x}")
        a(f"s_add_u32 s{sWqb}, s{sWqb}, 0x{QP:x}")
        for r in range(4):
            a(f"s_mov_b32 s{88 + r}, 0x{0x07060500 + r:x}")
        for j in range(8):
            a(f"ds_write_b128 v8, {vr(vO2 + 4*j)} offset:{8192 + j*1024}")
        for j in range(8):
            a(f"ds_write_b128 v8, {vr(vO + 4*j)} offset:{j*1024}")
        ms.wait_for(nidx)
        nonce_wait(255)
        a(f"s_mul_i32 s{sTag}, s{sNon}, 0x9e3779b1")
        a(f"v_mov_b32 v{vTag}, s{sTag}")
        for i in range(int(O('SB', 2))): stage_one(Wp)
        a("s_waitcnt lgkmcnt(0)")
        a("s_barrier")
        for (acc, off) in ((vO2, 8192), (vO, 0)):
            for ww in range(4):
                for tt in range(2):
                    a(f"ds_read_b128 {vr(acc + (ww*2+tt)*4)}, v9 offset:{ww*16384 + off + tt*1024}")
        for i in range(int(O('SC', 1))): stage_one(Wp)
        a("s_waitcnt lgkmcnt(8)")
        for r in range(8):
            a(f"v_add_f32 v{vO2 + r}, v{vO2 + r}, v{vO2 + 8 + r}")
            a(f"v_add_f32 v{vO2 + 16 + r}, v{vO2 + 16 + r}, v{vO2 + 24 + r}")
        for r in range(8):
            a(f"v_add_f32 v{vO2 + r}, v{vO2 + r}, v{vO2 + 16 + r}")
        for r in range(8):
            a(f"v_perm_b32 v{16 + r}, v{vO2 + r}, v{vTag}, s{88 + (r & 3)}")
        for tt in range(2):
            ms.issue(f"buffer_store_dwordx4 {vr(16 + 4*tt)}, v{vVoff}, s[{sWS}:{sWS+3}], s{sWqb} offen offset:{tt*1024} sc1")
        if OPT.get('pst'): a.stamp(1)
        assert st['pos'] <= 64
        print("staged at store:", st['pos'], "seq", len(seq), file=sys.stderr)
        a("s_waitcnt lgkmcnt(0)")
        for r in range(8):
            a(f"v_add_f32 v{vO + r}, v{vO + r}, v{vO + 8 + r}")
            a(f"v_add_f32 v{vO + 16 + r}, v{vO + 16 + r}, v{vO + 24 + r}")
        for r in range(8):
            a(f"v_add_f32 v{vO + r}, v{vO + r}, v{vO + 16 + r}")
        XL = int(O('XL', 56))
        XD = int(O('XD', 10))
        W2 = int(O('Wp2', Wp))
        while st['pos'] < XL: stage_one(W2)
        def px_ld(iss):
            r_ = None
            for tt in range(2):
                r_ = iss(f"buffer_load_dwordx4 {vr(48 + 4*tt)}, v{vVoff}, s[{sWS}:{sWS+3}], s{sXb} offen offset:{tt*1024} sc1")
            return r_
        xi = px_ld(ms.issue)
        for i in range(XD): stage_one(W2)
        a("s_mov_b32 s48, 0x0c0c0400")
        a("s_mov_b32 s47, 0x04000c0c")
        a(f"s_mov_b32 s{sSpin}, {OPT.get('SPIN', '0x20000')}")
        ms.wait_for(xi)
        if OPT.get('pst'): a.stamp(3)
        a.label("L_pxc")
        a("v_perm_b32 v11, v49, v48, s48")
        a("v_perm_b32 v12, v51, v50, s47")
        a("v_perm_b32 v13, v53, v52, s48")
        a("v_perm_b32 v14, v55, v54, s47")
        a("v_or_b32 v11, v11, v12")
        a("v_or_b32 v13, v13, v14")
        a(f"v_xor_b32 v11, s{sTag}, v11")
        a(f"v_xor_b32 v13, s{sTag}, v13")
        a("v_or_b32 v11, v11, v13")
        a("v_cmp_ne_u32 vcc, 0, v11")
        a("s_cbranch_vccz L_pxd")
        a(f"s_sub_u32 s{sSpin}, s{sSpin}, 1")
        a(f"s_cmp_eq_u32 s{sSpin}, 0")
        a("s_cbranch_scc1 L_pxd")
        a("s_sleep 4")
        px_ld(a)
        a("s_waitcnt vmcnt(0)")
        a("s_branch L_pxc")
        a.label("L_pxd")
        if OPT.get('pst') and STAMP: a(f"s_mov_b32 s74, s{sSpin}")
        for r in range(8):
            a(f"v_and_b32 v{48 + r}, 0xffffff00, v{48 + r}")
        for r in range(8):
            a(f"v_add_f32 v{vO + r}, v{vO + r}, v{48 + r}")
        for r in range(4):
            a(f"v_cvt_pk_bf16_f32 v{12 + r}, v{vO + r}, v{vO + 4 + r}")
        for r in range(4):
            a(f"ds_write_b32 v10, v{12 + r} offset:{r*256}")
        for i in range(int(O('SD', 1))): stage_one(W2)
        a("s_waitcnt lgkmcnt(0)")
        a("s_barrier")
        for ph in range(2):
            for sp in range(2):
                a(f"ds_read_b128 {vr(vQ + ph*8 + sp*4)}, v{vQF} offset:{sp*2048 + ph*128}")
        reset_state()
        a("s_waitcnt lgkmcnt(0)")
        a.stamp(2)
        WF = int(O('WF', W))
        while stage_one(WF if st['pos'] < 64 else W): pass
        a("s_waitcnt vmcnt(8)")
    AB = OPT.get('AB')
    if AB:
        a(f"s_bitcmp1_b32 s2, {AB}")
        a("s_cbranch_scc0 L_pA")
        prologue('B_')
        a("s_branch L_pJ")
        a.label("L_pA")
        ms.__init__(a)
        st.clear(); st.update({'pos': 0, 'idx': {}})
    if PX: prologue2()
    else: prologue('A_')
    a.label("L_pJ")
    ms.__init__(a, pre_kv=8)
    for k_ in list(st['idx']): st['idx'][k_] = -1
    for j in range(8): st['idx'][('K', 4, j)] = j
    vNon = 255
    nid = {}
    def get_nonce():
        ms.wait_for(nid['x'])
        nonce_wait(vNon)
    def signal(soff, cnt_off):
        a("s_waitcnt lgkmcnt(0)")
        a("s_mov_b64 exec, 1")
        a(f"ds_add_rtn_u32 v{vCntG}, v{vCntL}, v{vOne} offset:{cnt_off}")
        a(f"s_xor_b32 s49, s{sNon}, s5")
        a(f"v_mov_b32 v{vB}, s49")
        a("s_waitcnt lgkmcnt(0)")
        a(f"v_readfirstlane_b32 s49, v{vCntG}")
        a(f"v_mov_b32 v{vCntG}, 0")
        a("s_cmp_eq_u32 s49, 3")
        a(f"s_cselect_b32 s{sNull+2}, 0x{WS_SIZE:x}, 0")
        a("s_nop 0")
        a(f"buffer_store_dword v{vB}, v{vCntG}, s[{sNull}:{sNull+3}], s{soff} offen sc1")
        a("s_mov_b64 exec, -1")
        a("s_nop 0")
        a(f"s_mov_b32 s{sNull+2}, 0")

    def p_QK(kop):
        for T in range(2):
            for s in range(4):
                d = vSR + (T*2 + (s>>1))*4
                cc = "0" if (s & 1) == 0 else vr(d)
                a(f"v_mfma_f32_16x16x32_bf16 {vr(d)}, {kop(T*4+s)}, {vr(vQ + 4*(s&1))}, {cc}")
    def p_SM1():
        a("s_nop 7")
        for T in range(2):
            for r in range(4):
                a(f"v_permlane32_swap_b32 v{vSR + T*8 + r}, v{vSR + T*8 + 4 + r}")
        a("s_nop 0")
        for T in range(2):
            for r in range(4):
                a(f"v_add_f32_dpp v{vS + T*4 + r}, v{vSR + T*8 + 4 + r}, v{vSR + T*8 + r} row_ror:8 row_mask:0xf bank_mask:0xf")
        a(f"v_max3_f32 v{vT0}, v{vS+0}, v{vS+1}, v{vS+2}")
        a(f"v_max3_f32 v{vT0}, v{vT0}, v{vS+3}, v{vS+4}")
        a(f"v_max3_f32 v{vT0}, v{vT0}, v{vS+5}, v{vS+6}")
        a(f"v_max_f32 v{vT0}, v{vT0}, v{vS+7}")
        a(f"v_mov_b32 v{vT1}, v{vT0}")
        a("s_nop 1")
        a(f"v_permlane16_swap_b32 v{vT0}, v{vT1}")
        a("s_nop 1")
        a(f"v_max_f32 v{vT0}, v{vT0}, v{vT1}")
        a(f"v_mov_b32 v{vT1}, v{vT0}")
        a("s_nop 1")
        a(f"v_permlane32_swap_b32 v{vT0}, v{vT1}")
        a("s_nop 1")
        a(f"v_max_f32 v{vT0}, v{vT0}, v{vT1}")
        a(f"v_mul_f32 v{vT0}, s{sC}, v{vT0}")
        a(f"v_max_f32 v{vT0}, v{vT0}, v{vMc}")
        a(f"v_sub_f32 v{vAl}, v{vMc}, v{vT0}")
        a(f"v_exp_f32 v{vAl}, v{vAl}")
        a(f"v_mov_b32 v{vMc}, v{vT0}")
    def p_SM2():
        for i in range(8):
            a(f"v_fma_f32 v{vS+i}, v{vS+i}, s{sC}, -v{vMc}")
        for i in range(8):
            a(f"v_exp_f32 v{vS+i}, v{vS+i}")
        a("s_nop 0")
        a(f"v_add_f32 v{vT2}, v{vS+0}, v{vS+1}")
        a(f"v_add_f32 v{vT3}, v{vS+2}, v{vS+3}")
        a(f"v_add_f32 v{vT0}, v{vS+4}, v{vS+5}")
        a(f"v_add_f32 v{vT1}, v{vS+6}, v{vS+7}")
        a(f"v_add_f32 v{vT2}, v{vT2}, v{vT3}")
        a(f"v_add_f32 v{vT0}, v{vT0}, v{vT1}")
        a(f"v_add_f32 v{vT2}, v{vT2}, v{vT0}")
        a(f"v_fma_f32 v{vL}, v{vL}, v{vAl}, v{vT2}")
        for t in range(4):
            a(f"v_cvt_pk_bf16_f32 v{vP + t}, v{vS + 2*t}, v{vS + 2*t + 1}")
    def p_RS():
        a("s_nop 7")
        for r in range(32):
            a(f"v_mul_f32 v{vO + r}, v{vAl}, v{vO + r}")
    def p_PV(c):
        perm_c([bV + 4*i for i in range(8)], c)
        mfma_c(vP, c, False)
    def p_PVs(b, c):
        base = vAT + (c & 1)*8
        for i in range(8):
            a(f"v_accvgpr_read_b32 v{base + i}, a{64*b + 32 + 4*i + c}")
        perm_c([base + i for i in range(8)], 0)
        mfma_c(vP, c, False)

    def iteration(ms, kidx, staged=None, extras=None, static_n=None, extras7=None, W=W, late=False, kload=None, hook=None):
        pieces = {s: [] for s in range(16)}
        def wq_(): ms.wait_for(kidx[7]); p_QK(lambda j: vr(bK + 4*j))
        WV = int(OPT.get('WV', W)); WK = int(OPT.get('WK', W))
        pq = max(WV - 1, 4 if staged is not None else 0)
        pieces[pq].append(wq_)
        pieces[pq+1].append(p_SM1)
        pieces[pq+2].append(p_SM2)
        pieces[pq+3].append(p_RS)
        vidx = []
        for c in range(4):
            def f(c=c):
                ms.wait_for(vidx[7]); p_PV(c)
            pieces[15 if late else min(15, 8 + WK - 1 + c)].append(f)
        if staged is not None:
            b = staged
            def sq():
                ms.wait_for(st['idx'][('V', b, 7)]); p_QK(lambda j: ar(64*b + 4*j))
            pieces[0].insert(0, sq)
            pieces[1] = [p_SM1, p_SM2] + pieces[1]
            pieces[2] = [p_RS, lambda: p_PVs(b, 0), lambda: p_PVs(b, 1)] + pieces[2]
            pieces[3] = [lambda: p_PVs(b, 2), lambda: p_PVs(b, 3)] + pieces[3]
        knew = []
        for s in range(16):
            ms.pace(WV if s < 8 else WK)
            if s < 8:
                vidx.append(ld_V(ms, vr(bV + 4*s), s, sVoff))
            elif kload:
                knew.append(kload(ms, s - 8))
            else:
                knew.append(ld_K(ms, vr(bK + 4*(s-8)), s - 8, sKoff))
            if s == 0:
                if extras: extras()
                next_off(sKoff, sVoff)
                if static_n is None:
                    a(f"s_cmp_eq_u32 s{sIter}, 15")
                    a(f"s_cselect_b32 s{sKoff}, s{sB1}, s{sKoff}")
            for f in pieces[s]: f()
            if s == 7 and extras7: extras7()
            if hook and s in hook: hook[s]()
            assert not (s == 7 and pq > 7)
        a(f"s_mov_b32 s{sVoff}, s{sKoff}")
        return knew

    while stage_one(W): pass
    kidx = [st['idx'][('K', 4, j)] for j in range(8)]

    pre = {}
    vOld, vPst, vOut = 86, 87, 82
    sPst, sPld, sOutB = 84, 85, 86
    sRed = sWQ
    RW = int(OPT.get('RW', 3))
    vAcc = 232
    vTag, sTag = 254, 3
    sPd = 4
    sXc, sLoc = 5, 6
    IL = int(OPT.get('IL', 0))
    def ex4():
        if not PX: nid['x'] = ms.issue(f"buffer_load_dword v{vNon}, off, s[{sDBG}:{sDBG+3}], 0 sc1")
        a(f"v_bfe_u32 v{vB}, v0, 3, 1")
        a(f"v_bfe_u32 v{vB+1}, v0, 4, 2")
        a(f"v_and_b32 v{vB+2}, 7, v0")
        a(f"s_lshl_b32 s48, s{sW}, 1")
        a("s_add_u32 s48, s48, 3")
        a(f"v_add_u32 v{vOld}, s48, v{vB}")
        a(f"v_and_b32 v{vOld}, 3, v{vOld}")
        a(f"v_lshlrev_b32 v{vOld}, 13, v{vOld}")
        a(f"v_lshl_add_u32 v{vOld}, v{vB}, 20, v{vOld}")
        a(f"v_lshl_add_u32 v{vOld}, v{vB+1}, 8, v{vOld}")
        a(f"v_lshl_add_u32 v{vOld}, v{vB+2}, 4, v{vOld}")
        a(f"v_lshlrev_b32 v{vPst}, 15, v{vB}")
        if IL:
            a(f"v_lshl_add_u32 v{vPst}, v{vB+1}, 8, v{vPst}")
            a(f"v_lshl_add_u32 v{vPst}, v{vB+2}, 4, v{vPst}")
            a(f"v_and_b32 v{vB+3}, {8 - (IL >> 4)}, v{vB+2}")
            a(f"v_lshl_add_u32 v{vPst}, v{vB+3}, 4, v{vPst}")
        else:
            a(f"v_lshl_add_u32 v{vPst}, v{vB+1}, 7, v{vPst}")
            a(f"v_lshl_add_u32 v{vPst}, v{vB+2}, 4, v{vPst}")
        a(f"v_bfe_u32 v{vB}, v0, 3, 3")
        a(f"v_lshlrev_b32 v{vOut}, 11, v{vB+2}")
        a(f"v_lshl_add_u32 v{vOut}, v{vB}, 3, v{vOut}")
        a("s_andn2_b32 s48, s2, 15")
        a("s_and_b32 s49, s2, 8")
        a("s_lshr_b32 s49, s49, 1")
        a("s_add_u32 s48, s48, s49")
        a(f"s_and_b32 s49, s{sW}, 1")
        a("s_lshl_b32 s49, s49, 1")
        a("s_add_u32 s48, s48, s49")
        a(f"s_lshl_b32 s{sPst}, s48, 15")
        a("s_and_b32 s48, s2, 7")
        a(f"s_lshl_b32 s{sOutB}, s48, 14")
        a(f"s_lshl_b32 s48, s48, {11 if IL else 10}")
        a(f"s_add_u32 s{sPst}, s{sPst}, s48")
        if IL:
            a(f"s_and_b32 s48, s{sP_}, 1")
            a("s_lshl_b32 s48, s48, 14")
            a(f"s_mov_b32 s{sPd}, {IL}")
            a(f"s_add_u32 s48, s48, 0x{QP + 0x800000:x}")
        else:
            a(f"s_add_u32 s48, s{sP_}, 1")
            a("s_and_b32 s48, s48, 3")
            a("s_lshl_b32 s48, s48, 13")
            a(f"s_add_u32 s49, s{sP_}, 2")
            a("s_and_b32 s49, s49, 3")
            a("s_lshl_b32 s49, s49, 13")
            a(f"s_sub_u32 s{sPd}, s49, s48")
            a(f"s_add_u32 s48, s48, 0x{QP + (0x800000 if OPT.get('psep') else 0):x}")
        a(f"s_add_u32 s{sPst}, s{sPst}, s48")
        a(f"s_lshl_b32 s{sPld}, s2, 15")
        a(f"s_add_u32 s{sPld}, s{sPld}, s48")
        a("s_lshr_b32 s48, s2, 3")
        a("s_lshl_b32 s48, s48, 6")
        a(f"s_add_u32 s{sOutB}, s{sOutB}, s48")
        a(f"s_bitcmp1_b32 s{sW}, 0")
        a(f"s_cselect_b32 s48, s{sPd}, 0")
        a(f"s_add_u32 s{sPld}, s{sPld}, s48")
        a(f"s_bitcmp1_b32 s{sW}, 0")
        a(f"s_cselect_b32 s48, 0x20000, 0")
        a(f"s_add_u32 s{sOutB}, s{sOutB}, s48")
    def ex6():
        if not PX:
            get_nonce()
            a(f"s_mul_i32 s{sTag}, s{sNon}, 0x9e3779b1")
            a(f"v_mov_b32 v{vTag}, s{sTag}")
        a("s_and_b32 s48, s2, 7")
        FLB = int(OPT.get('FLB', 2))
        a(f"s_lshl_b32 s{sFl}, s48, {5 + FLB}")
        a("s_lshr_b32 s48, s2, 3")
        a(f"s_lshl_b32 s48, s48, {FLB}")
        a(f"s_add_u32 s{sFl}, s{sFl}, s48")
        a(f"s_add_u32 s{sFl}, s{sFl}, 0x{FLP:x}")
        a(f"s_getreg_b32 s{sXc}, hwreg(HW_REG_XCC_ID)")
        a(f"s_and_b32 s{sXc}, s{sXc}, 15")
        a(f"s_lshl_b32 s{sXc}, s{sXc}, 1")
        if OPT.get('xfake'): a(f"s_and_b32 s{sXc}, s2, {OPT['xfake']}")
    exs = {4: ex4}
    exs7 = {6: ex6}
    for n in range(4, 8):
        kidx = iteration(ms, kidx, staged=n - 4, extras=exs.get(n), static_n=n, extras7=exs7.get(n))
        if not OPT.get('xst') and not OPT.get('est') and not OPT.get('tst') and not OPT.get('pst') and not OPT.get('sst') and not OPT.get('rst'): a.stamp(n - 1)
    a(f"s_mov_b32 s{sIter}, 8")

    def flush():
        a(f"v_mov_b32 v{vT1}, v{vL}")
        a("s_nop 1")
        a(f"v_permlane16_swap_b32 v{vL}, v{vT1}")
        a("s_nop 1")
        a(f"v_add_f32 v{vL}, v{vL}, v{vT1}")
        a(f"v_mov_b32 v{vT1}, v{vL}")
        a("s_nop 1")
        a(f"v_permlane32_swap_b32 v{vL}, v{vT1}")
        a("s_nop 1")
        a(f"v_add_f32 v{vL}, v{vL}, v{vT1}")
        a(f"ds_write_b32 v{vLdsM}, v{vMc}")
        a(f"ds_write_b32 v{vLdsM}, v{vL} offset:{LDS_L - LDS_M}")
        a(f"s_mov_b64 exec, s[{sMask}:{sMask+1}]")
        for j in range(8):
            a(f"ds_write_b128 v{vLdsO}, {vr(vO + 4*j)} offset:{j*512}")
        a("s_mov_b64 exec, -1")

    def combine_addr(ph, vA, vM):
        a(f"v_and_b32 v{vA}, 15, v0")
        a(f"v_lshlrev_b32 v{vA}, 4, v{vA}")
        a(f"v_bfe_u32 v{vM}, v0, 4, 2")
        a(f"v_lshl_add_u32 v{vA}, v{vM}, 2, v{vA}")
        a(f"s_and_b32 s49, s{sW}, 1")
        a("s_lshl_b32 s49, s49, 8")
        a(f"s_add_u32 s49, s49, 0x{LDS_C + ph*0x4000:x}")
        a(f"v_add_u32 v{vA}, s49, v{vA}")
        a(f"v_and_b32 v{vM}, 7, v0")
        a(f"v_lshlrev_b32 v{vM}, 2, v{vM}")
        a(f"v_add_u32 v{vM}, 0x{LDS_M + ph*0x400:x}, v{vM}")
    def combine(ph, vA, vM, R):
        vm, vl, vo, vx, vacc, vout = R, R+4, R+8, R+40, R+44, R+52
        for w in range(4):
            a(f"ds_read_b32 v{vm + w}, v{vM} offset:{w*256}")
        for w in range(4):
            a(f"ds_read_b32 v{vl + w}, v{vM} offset:{LDS_L - LDS_M + w*256}")
        for j in range(6):
            a(f"ds_read_b32 v{vo + j}, v{vA} offset:{j*512}")
        a("s_waitcnt lgkmcnt(10)")
        a(f"v_max3_f32 v{vx}, v{vm}, v{vm+1}, v{vm+2}")
        a(f"v_max_f32 v{vx}, v{vx}, v{vm+3}")
        for ww in range(4):
            a(f"v_sub_f32 v{vm+ww}, v{vm+ww}, v{vx}")
        for ww in range(4):
            a(f"v_exp_f32 v{vm+ww}, v{vm+ww}")
        for n in range(6, 32):
            w, j = n >> 3, n & 7
            a(f"ds_read_b32 v{vo + n}, v{vA} offset:{w*4096 + j*512}")
            if n == 8:
                a("s_waitcnt lgkmcnt(9)")
                a(f"v_mul_f32 v{vx+1}, v{vm}, v{vl}")
                for ww in range(1, 4):
                    a(f"v_fma_f32 v{vx+1}, v{vm+ww}, v{vl+ww}, v{vx+1}")
                a(f"v_rcp_f32 v{vx+1}, v{vx+1}")
        a("s_nop 0")
        for ww in range(4):
            a(f"v_mul_f32 v{vm+ww}, v{vx+1}, v{vm+ww}")
        a("s_waitcnt lgkmcnt(0)")
        for j in range(8):
            a(f"v_mul_f32 v{vacc+j}, v{vm}, v{vo + j}")
        for w in range(1, 4):
            for j in range(8):
                a(f"v_fma_f32 v{vacc+j}, v{vm+w}, v{vo + w*8 + j}, v{vacc+j}")
        for t in range(4):
            a(f"v_cvt_pk_bf16_f32 v{vout+t}, v{vacc+2*t}, v{vacc+2*t+1}")
        for t in range(4):
            a(f"v_min_u32 v{vout+t}, -2, v{vout+t}")
        if ph:
            a(f"s_add_u32 s49, s{sOst}, 0x800")
        else:
            a(f"s_mov_b32 s49, s{sOst}")
        if ph and not OPT.get('noloc'):
            a(f"s_cmp_eq_u32 s{sLoc}, 0")
            a("s_cbranch_scc1 L_ol1")
            a(f"buffer_store_dwordx4 {vr(vout)}, v{vVoff}, s[{sWSo}:{sWSo+3}], s49 offen sc1")
            a("s_branch L_ol2")
            a.label("L_ol1")
            a(f"buffer_store_dwordx4 {vr(vout)}, v{vVoff}, s[{sWSo}:{sWSo+3}], s49 offen")
            a.label("L_ol2")
        elif int(OPT.get('xs', 0)) & 2: dummy(1)
        elif OPT.get('xsp'):
            a(f"v_and_b32 v{vx}, 0x3c0, v{vVoff}")
            a(f"v_add_u32 v{vx}, v{vx}, v{vVoff}")
            a(f"s_and_b32 s48, s{sW}, 1")
            a("s_lshl_b32 s48, s48, 10")
            a("s_add_u32 s49, s49, s48")
            a(f"buffer_store_dwordx4 {vr(vout)}, v{vx}, s[{sWSo}:{sWSo+3}], s49 offen{OPT['xsp']}")
        else:
            a(f"buffer_store_dwordx4 {vr(vout)}, v{vVoff}, s[{sWSo}:{sWSo+3}], s49 offen{OPT.get('o0flag', ' sc1')}")

    def dummy(k):
        for _ in range(k):
            a(f"buffer_load_dword v{vDum}, v{vVoff}, s[{sNull}:{sNull+3}], 0 offen")
    def wo_dma(m, cnt=1):
        a(f"s_add_u32 m0, s{sLb}, {m*1024}")
        a(f"s_add_u32 s48, s{sWoLd}, 0x{m*16384:x}")
        src = vWoOff
        if m & 1:
            a(f"v_xor_b32 v{vCntG}, 64, v{vWoOff}")
            src = vCntG
        a(f"buffer_load_dwordx4 v{src}, s[{sWO}:{sWO+3}], s48 offen{OPT.get('woflag', ' nt')} lds")
    def wo_sig():
        a("s_mov_b64 exec, 1")
        a(f"ds_add_u32 v{vCntL}, v{vOne} offset:16")
        a("s_mov_b64 exec, -1")
    def lds_spin(off, tmp):
        lp, ld = a.newlabel("lp"), a.newlabel("ld")
        a(f"s_mov_b32 s{sSpin}, 0x100000")
        a.label(lp)
        a(f"ds_read_b32 v{tmp}, v{vCntL} offset:{off}")
        a("s_waitcnt lgkmcnt(0)")
        a(f"v_readfirstlane_b32 s48, v{tmp}")
        a("s_cmp_ge_u32 s48, 4")
        a(f"s_cbranch_scc1 {ld}")
        a(f"s_sub_u32 s{sSpin}, s{sSpin}, 1")
        a(f"s_cmp_eq_u32 s{sSpin}, 0")
        a(f"s_cbranch_scc1 {ld}")
        a("s_sleep 2")
        a(f"s_branch {lp}")
        a.label(ld)
    def wo_tr(k0, k1):
        a(f"v_mov_b32 v{vAcc}, v{vTr}")
        for nt in range(1, 4):
            a(f"v_xor_b32 v{vAcc + nt}, {nt << 5}, v{vTr}")
        for kk in range(k0, k1):
            for nt in range(4):
                for half in range(2):
                    d = (kk*4 + nt)*4 + half*2
                    a(f"ds_read_b64_tr_b16 a[{d}:{d+1}], v{vAcc + nt} offset:{(kk & 7)*4096 + half*512}")
            a("s_waitcnt lgkmcnt(6)")
    sOld2 = sWoLd
    def o_txt(q, bb, dst):
        hh, ks = q >> 2, q & 3
        return f"buffer_load_dwordx4 {vr(dst + 4*q)}, v{vOld}, s[{sWS}:{sWS+3}], s{sOld2 if hh else sOld} offen offset:{bb*2048 + (ks>>1)*1024 + (ks&1)*128} sc1"
    def o_ld(q, bb, dst):
        a(o_txt(q, bb, dst))
    vPl = 228
    def p_ld(gg, ph, dst):
        if IL:
            a(f"s_add_u32 s48, s{sPld}, 0x{(gg >> 1)*4096:x}")
            a(f"buffer_load_dwordx4 {vr(dst + 4*gg)}, v{vPl}, s[{sWS}:{sWS+3}], s48 offen offset:{(gg&1)*2048}{OPT.get('plflag', ' sc1')}")
            return
        a(f"buffer_load_dwordx4 {vr(dst + 4*gg)}, v{vVoff if gg < 4 else vVoff2}, s[{sWS}:{sWS+3}], s{sPld} offen offset:{(gg&3)*1024}{OPT.get('plflag', ' sc1')}")
    def frag_mfma(q, src, first=False, vAcc=vAcc):
        for nt in range(4):
            d = vAcc + nt*4
            a(f"v_mfma_f32_16x16x32_bf16 {vr(d)}, {ar((q*4 + nt)*4)}, {vr(src + 4*q)}, {'0' if first else vr(d)}")
    vXw, vFw, vXt_ = 224, 226, 120
    sSel = 88
    def x_addr():
        if IL:
            a(f"v_and_b32 v{vPl}, 0x{0x400 - IL:x}, v{vVoff}")
            a(f"v_add_u32 v{vPl}, v{vPl}, v{vVoff}")
        a(f"s_and_b32 s48, s{sW}, 1")
        a(f"s_lshl_b32 s49, s48, 12")
        a(f"s_add_u32 s49, s49, 0x{LDS_X:x}")
        a(f"v_add_u32 v{vXw}, s49, v{vVoff}")
        a(f"s_lshl_b32 s48, s48, 2")
        a(f"v_add_u32 v{vFw}, s48, v{vCntL}")
        for r in range(4):
            a(f"s_mov_b32 s{sSel + r}, 0x{0x07060500 + r:x}")
    def x_put(ph, acc):
        a("s_nop 4")
        for t in range(4):
            a(f"ds_write_b128 v{vXw}, {vr(acc + 4*t)} offset:{ph*8192 + t*1024}")
        a(f"ds_write_b32 v{vFw}, v{vOne} offset:{32 + ph*16}")
    def x_get(ph, acc, vXt_=vXt_):
        lp, ld = a.newlabel("xp"), a.newlabel("xd")
        a(f"s_mov_b32 s{sSpin}, 0x400000")
        a.label(lp)
        a(f"ds_read_b32 v{vCntG}, v{vFw} offset:{32 + ph*16}")
        for t in range(4):
            a(f"ds_read_b128 {vr(vXt_ + 4*t)}, v{vXw} offset:{ph*8192 + t*1024}")
        a(f"s_sub_u32 s{sSpin}, s{sSpin}, 1")
        a("s_waitcnt lgkmcnt(4)")
        a(f"v_readfirstlane_b32 s48, v{vCntG}")
        a(f"s_cmp_eq_u32 s{sSpin}, 0")
        a(f"s_cbranch_scc1 {ld}")
        a("s_cmp_eq_u32 s48, 0")
        a(f"s_cbranch_scc1 {lp}")
        a.label(ld)
        a(f"s_add_u32 s48, s{sPst}, {'s%d' % sPd if ph else 0}")
        a(f"s_add_u32 s49, s48, 0x40000")
        for nt in range(4):
            a(f"s_waitcnt lgkmcnt({3 - nt})")
            for r in range(4):
                a(f"v_add_f32 v{acc + 4*nt + r}, v{acc + 4*nt + r}, v{vXt_ + 4*nt + r}")
            for r in range(4):
                a(f"v_perm_b32 v{acc + 4*nt + r}, v{acc + 4*nt + r}, v{vTag}, s{sSel + r}")
            a(f"buffer_store_dwordx4 {vr(acc + 4*nt)}, v{vPst}, s[{sWS}:{sWS+3}], s{48 + (nt >> 1)} offen offset:{(nt&1)*(1024 if IL else 512)}{OPT.get('psflag', ' sc1')}")
    def cnt_ld():
        FLB = int(OPT.get('FLB', 2))
        a(f"s_andn2_b32 s48, s{sFl}, {(32 << FLB) - 1}")
        a(f"v_bfe_u32 v{vB + 57}, v0, 0, 5")
        a(f"v_lshlrev_b32 v{vB + 57}, {FLB}, v{vB + 57}")
        a(f"buffer_load_dword v{vB + 56}, v{vB + 57}, s[{sWS}:{sWS+3}], s48 offen sc1")
    def cnt_check():
        lp, ld = a.newlabel("cp"), a.newlabel("cd")
        a(f"s_mov_b32 s{sSpin}, {OPT.get('SPIN', '0x20000')}")
        a.label(lp)
        a(f"v_xor_b32 v{vB + 56}, s{sNon}, v{vB + 56}")
        a(f"v_and_b32 v{vB + 57}, 0xffffffe1, v{vB + 56}")
        a(f"v_cmp_ne_u32 vcc, 0, v{vB + 57}")
        a(f"s_cbranch_vccz {ld}")
        a(f"s_sub_u32 s{sSpin}, s{sSpin}, 1")
        a(f"s_cmp_eq_u32 s{sSpin}, 0")
        a(f"s_cbranch_scc1 {ld}")
        a("s_sleep 8")
        cnt_ld()
        a("s_waitcnt vmcnt(0)")
        a(f"s_branch {lp}")
        a.label(ld)
        a(f"v_cmp_ne_u32 vcc, s{sXc}, v{vB + 56}")
        a(f"s_add_u32 s{sOld2}, s{sOld}, 0x40000")
        a(f"s_or_b32 s{sLoc}, vcc_lo, vcc_hi")
    def flush0():
        a("s_nop 1")
        flush()
        for r in range(8):
            a(f"v_mov_b32 v{vQ + r}, v{vQ2 + r}")
        a(f"v_add_u32 v{vLdsO}, 0x4000, v{vLdsO}")
        a(f"v_add_u32 v{vLdsM}, 0x400, v{vLdsM}")
        a("s_waitcnt lgkmcnt(0)")
        a("s_mov_b64 exec, 1")
        a(f"ds_add_u32 v{vCntL}, v{vOne}")
        a("s_mov_b64 exec, -1")
        reset_state()
    def comb0():
        lf, le = a.newlabel("cf"), a.newlabel("ce")
        a(f"s_cmp_ge_u32 s{sW}, 2")
        a(f"s_cbranch_scc1 {lf}")
        if int(OPT.get('xs', 0)) & 4: dummy(1)
        else:
            combine_addr(0, vB + 60, vB + 61)
            lds_spin(0, vB + 62)
            combine(0, vB + 60, vB + 61, vB)
        a(f"s_branch {le}")
        a.label(lf)
        for r in range(4):
            a(f"v_mov_b32 v{vB + 60 + r}, -1")
        a(f"s_add_u32 s48, s{sOst}, 0x800")
        if OPT.get('FS') or int(OPT.get('xs', 0)) & 1: dummy(1)
        elif OPT.get('xsp'):
            a(f"v_and_b32 v{vB}, 0x3c0, v{vVoff}")
            a(f"v_add_u32 v{vB}, v{vB}, v{vVoff}")
            a(f"s_and_b32 s49, s{sW}, 1")
            a("s_lshl_b32 s49, s49, 10")
            a("s_add_u32 s48, s48, s49")
            a("s_add_u32 s48, s48, 0x800")
            a(f"buffer_store_dwordx4 {vr(vB + 60)}, v{vB}, s[{sWS}:{sWS+3}], s48 offen{OPT['xsp']}")
        else: a(f"buffer_store_dwordx4 {vr(vB + 60)}, v{vVoff}, s[{sWS}:{sWS+3}], s48 offen{OPT.get('o0flag', ' sc1')}")
        a.label(le)
    NX = int(OPT.get('NX', 4))
    TH2 = int(OPT.get('TH2', 0))
    TH3 = int(OPT.get('TH3', 0))
    SLOW = int(OPT.get('SLOW', 0))
    sn = {n: [] for n in range(8, 32)}
    def add(n, fn, nv=0, act=False): sn[n].append((fn, nv, act))
    sAdj, sWsel, sT = 87, 47, 80
    vTS = 253
    TSB = 0x320000
    GN = int(OPT.get('GN', 32))
    sPa, sRd = 7, 8
    sNow, sRef, sTau, sPrev = 82, 83, 81, 9
    SB_ = int(OPT.get('SBITS', 2))
    NS = 256 >> SB_
    RK = int(OPT.get('RK', NS - NS // 8))
    SM = OPT.get('SM')
    VA = OPT.get('VA')
    sAS, vAS = 12, 226
    def va_setup():
        a(f"s_mov_b32 s{sAS}, s16")
        a(f"s_mov_b32 s{sAS+1}, s17")
        a(f"s_bfe_u32 s48, s2, 0x{(SB_ << 16) | 4:x}")
        a(f"s_lshl_b32 s48, s48, 2")
        a(f"s_or_b32 s48, s48, s{sW}")
        a(f"s_cmp_eq_u32 s48, {OPT.get('SUB', 6)}")
        a(f"s_cselect_b32 s{sAS+2}, 256, 0")
        a(f"s_mov_b32 s{sAS+3}, 0x00020000")
    def pub(k):
        if VA:
            a(f"s_mov_b32 s{sT}, s{sNow}")
            a(f"s_min_u32 s{sPa}, s{sT}, 0x7fff")
            a(f"s_bitset1_b32 s{sPa}, 23")
            a(f"v_mov_b32 v{vAS}, s{sPa}")
            a("s_mov_b64 exec, 1")
            a(f"buffer_atomic_add v{vAS}, off, s[{sAS}:{sAS+3}], 0 offset:{128 + 4*k}{VA}")
            a("s_mov_b64 exec, -1")
            return
        lb = a.newlabel("pb")
        a(f"s_mov_b32 s{sPa}, -1")
        a(f"s_mov_b32 s{sT}, s{sNow}")
        if SM:
            a(f"s_cmp_lg_u32 s{sW}, {OPT.get('SMW', 2)}")
            a(f"s_cbranch_scc1 {lb}")
            a("s_lshr_b32 s48, s2, 3")
            a(f"s_bitcmp1_b32 {SM}, s48")
            a(f"s_cbranch_scc0 {lb}")
        else:
            a(f"s_bfe_u32 s48, s2, 0x{(SB_ << 16) | 4:x}")
            a(f"s_lshl_b32 s48, s48, 2")
            a(f"s_or_b32 s48, s48, s{sW}")
            a(f"s_cmp_lg_u32 s48, {OPT.get('SUB', 6)}")
            a(f"s_cbranch_scc1 {lb}")
        a(f"s_min_u32 s{sPa}, s{sT}, 0x7fff")
        a(f"s_bitset1_b32 s{sPa}, 23")
        a(f"s_atomic_add s{sPa}, s[16:17], 0x{128 + 4*k:x} glc")
        a.label(lb)
    def pub2(k):
        if VA:
            a(f"v_readfirstlane_b32 s{sPa}, v{vAS}")
            a(f"s_cmp_eq_u32 s{sAS+2}, 0")
            a(f"s_cselect_b32 s{sPa}, -1, s{sPa}")
        else:
            a("s_waitcnt lgkmcnt(0)")
        a(f"s_and_b32 s48, s{sPa}, 0x7fffff")
        a(f"s_mul_i32 s49, s{sT}, {NS - RK}")
        a("s_add_u32 s48, s48, s49")
        a(f"s_lshr_b32 s48, s48, {8 - SB_}")
        if OPT.get('MED'): a(f"s_mov_b32 s48, s{sT}")
        a(f"s_add_u32 s48, s48, s{sNon}")
        if OPT.get('OFS'): a(f"s_add_u32 s48, s48, {OPT['OFS']}")
        a(f"v_mov_b32 v{vTS}, s48")
        a(f"s_lshr_b32 s49, s{sPa}, 23")
        a(f"s_mov_b32 s48, 0x{TSB + k*1024:x}")
        a(f"s_cmp_eq_u32 s49, {RK}")
        a(f"s_cselect_b32 s{sNull+2}, 0x{WS_SIZE:x}, 0")
        a("s_mov_b64 exec, 1")
        a(f"buffer_store_dword v{vTS}, off, s[{sNull}:{sNull+3}], s48 sc1")
        a("s_mov_b64 exec, -1")
        a("s_nop 0")
        a(f"s_mov_b32 s{sNull+2}, 0")
    def ts_ld(k):
        a(f"s_mov_b32 s48, 0x{TSB + k*1024:x}")
        a("s_mov_b64 exec, 1")
        a(f"buffer_load_dword v{vTS}, off, s[{sWS}:{sWS+3}], s48 sc1")
        a("s_mov_b64 exec, -1")
    EPS = float(OPT.get('EPS', 0.02))
    DLT = {}
    for it_ in (OPT['DL'].split(',') if OPT.get('DL') else []):
        n_, d_ = it_.split(':'); DLT[int(n_)] = int(d_)
    def Dsum(n0, n1): return sum(DLT.get(m, 0) for m in range(n0, n1))
    def calc(k, lim):
        lb = a.newlabel("cl")
        n_ = CP[k] + LD + 1
        a(f"v_readfirstlane_b32 s48, v{vTS}")
        a(f"s_sub_u32 s48, s48, s{sNon}")
        a(f"s_cmp_gt_u32 s48, s{sNow}")
        a(f"s_cselect_b32 s{sPrev}, 0, s{sPrev}")
        a(f"s_cbranch_scc1 {lb}")
        if k == 0:
            a(f"s_mov_b32 s{sTau}, {OPT.get('TAU0', 228)}")
        else:
            eps = float(OPT.get(f'EPS{k}', EPS))
            a(f"s_sub_u32 s49, s48, s{sPrev}")
            if Dsum(CP[k-1], CP[k]): a(f"s_sub_u32 s49, s49, {Dsum(CP[k-1], CP[k])}")
            a(f"s_mul_i32 s49, s49, {int(65536 * (1 - eps) / (CP[k] - CP[k-1]))}")
            a("s_lshr_b32 s49, s49, 16")
            a(f"s_min_u32 s49, s49, {OPT.get('TAUX', 240)}")
            if OPT.get('TAUN'): a(f"s_max_u32 s49, s49, {OPT['TAUN']}")
            a(f"s_cmp_eq_u32 s{sPrev}, 0")
            a(f"s_cselect_b32 s{sTau}, {OPT.get('TAU0', 228)}, s49")
        a(f"s_mov_b32 s{sPrev}, s48")
        a(f"s_mul_i32 s49, s{sTau}, {n_ - CP[k]}")
        a(f"s_add_u32 s{sRef}, s48, s49")
        if Dsum(CP[k], n_): a(f"s_add_u32 s{sRef}, s{sRef}, {Dsum(CP[k], n_)}")
        a.label(lb)
    D0 = int(OPT.get('D0', 8))
    O0 = int(OPT.get('O0', 22))
    add(16, flush0)
    C0 = int(OPT.get('C0', 18))
    C1 = int(OPT.get('C1', 28))
    add(C1, cnt_ld, 1, True)
    add(C0, comb0, 1)
    add(C0 + int(OPT.get('SG', 2)), lambda: signal(sFl, 4), 1)
    if SLOW & 2:
        add(18, lambda: (a(f"s_cmp_lt_u32 s{sW}, 2"), a(f"s_cselect_b32 s{sWsel}, 3, s{sWsel}")))
    if OPT.get('TLB'):
        def tlb():
            a(f"buffer_load_dword v{vDum}, v{vVoff}, s[{sK}:{sK+3}], s{sB1} offen nt")
            a(f"buffer_load_dword v{vDum}, v{vVoff}, s[{sV}:{sV+3}], s{sB1} offen nt")
        add(int(OPT['TLB']), tlb, 2)
    add(C1 + 2, cnt_check, 0, True)
    if OPT.get('OW'):
        def ow():
            a(f"s_add_u32 s48, s{sOst}, 0x800")
            a(f"buffer_load_dwordx4 {vr(vB + 8)}, v{vVoff}, s[{sWSo}:{sWSo+3}], s48 offen sc1")
        add(int(OPT['OW']), ow, 1, True)
    E0 = int(OPT.get('E0', 0))
    if E0:
        assert C1 + 2 <= E0
        EN = int(OPT.get('EN', 2))
        for q in range(8): add(E0 + q // EN, (lambda q=q: o_ld(q, 0, vB)), 1, True)
    CP = [int(t) for t in OPT['CP'].split(',')] if OPT.get('CP') else []
    LD = int(OPT.get('LD', 3))
    late_ = []
    for k, c in enumerate(CP):
        lim = (CP[k+1] - c) if k + 1 < len(CP) else 32 - (c + LD + 1)
        add(c + LD + 1, (lambda k=k, lim=lim: calc(k, lim)))
        if VA: add(c, (lambda k=k: pub(k)), 1)
        else: late_.append((c, (lambda k=k: pub(k))))
        add(c + 1, (lambda k=k: pub2(k)), 1)
        if not OPT.get('nots'): add(c + LD, (lambda k=k: ts_ld(k)), 1)
    DM = int(OPT.get('DM', 4))
    PF = int(OPT.get('PF', 0))
    def wo_pf(m):
        a("s_and_b32 s48, s2, 7")
        a("s_lshl_b32 s48, s48, 20")
        a(f"s_lshl_b32 s49, s{sW}, 18")
        a("s_add_u32 s48, s48, s49")
        a("s_lshr_b32 s49, s2, 4")
        a("s_lshl_b32 s49, s49, 10")
        a("s_add_u32 s48, s48, s49")
        a(f"s_add_u32 s48, s48, 0x{m*16384:x}")
        a(f"buffer_load_dwordx4 {vr(vAcc)}, v{vVoff}, s[{sWO}:{sWO+3}], s48 offen{OPT.get('pfflag', ' nt')}")
    m = 0; n = D0
    while m < 16:
        c_ = 0
        while m < 16 and c_ < DM and sum(v for _, v, _a in sn[n] if _a != 'I') < NX and (not PF or sum(v for _, v, _a in sn[n - PF] if _a is not True) < NX):
            add(n, (lambda m=m: wo_dma(m, 1)), 1, True)
            if PF: add(n - PF, (lambda m=m: wo_pf(m)), 1, 'I')
            m += 1; c_ += 1
        n += 1
    add(n + 1, wo_sig, 0, True)
    add(n + 3, lambda: lds_spin(16, vCntG), 0, True)
    n += 3
    for j in range(2):
        while n in (16, C0): n += 1
        add(n, (lambda j=j: wo_tr(4*j, 4*j + 4)), 0, True)
        n += 1
    trend = n
    for n_, f_ in late_: add(n_, f_)
    if CT == 0:
        for n_, d_ in DLT.items(): add(n_, (lambda d_=d_: a(f"s_add_u32 s{sRef}, s{sRef}, {d_}")))
    PW = int(OPT.get('PW', 0))
    def pw(ph, k_):
        a(f"s_add_u32 s48, s{sP_}, {1 + ph}")
        a("s_and_b32 s48, s48, 3")
        a("s_lshl_b32 s48, s48, 13")
        a("s_lshl_b32 s49, s2, 15")
        a("s_add_u32 s48, s48, s49")
        a(f"s_lshl_b32 s49, s{sW}, 11")
        a("s_add_u32 s48, s48, s49")
        a(f"s_add_u32 s48, s48, 0x{QP:x}")
        if OPT.get('PW1'): a("s_mov_b64 exec, 1")
        a(f"buffer_load_dwordx4 {vr(vB + 8)}, v{vVoff}, s[{sWS}:{sWS+3}], s48 offen offset:{k_*1024}{OPT.get('pwflag', '')}")
        if OPT.get('PW1'): a("s_mov_b64 exec, -1")
    def pw2(j):
        a(f"s_add_u32 s48, s{sPst}, 0x{j*0x40000:x}")
        a("s_mov_b32 exec_lo, 0x101")
        a("s_mov_b32 exec_hi, 0")
        a(f"buffer_load_dword v{vB + 8}, v{vPst}, s[{sWS}:{sWS+3}], s48 offen sc1")
        a("s_mov_b64 exec, -1")
    if PW:
        n_ = PW
        for ph in range(2 - int(OPT.get('PWP', 2)), 2):
            for k_ in range(2):
                add(n_, (lambda ph=ph, k_=k_: pw(ph, k_)), 1); n_ += 1
        if OPT.get('PW2'):
            add(PW, lambda: pw2(0), 1); add(PW + 1, lambda: pw2(1), 1)
    assert not sn[31] and trend <= 30
    Ws = [int(t) for t in OPT.get('Ws', f"{W-1},{W},{W+1}").split(',')]
    a(f"s_mov_b32 s{sAdj}, 0")
    a(f"s_mov_b32 s{sTau}, 0")
    a(f"s_mov_b32 s{sPrev}, 0")
    a(f"s_mov_b32 s{sRef}, 0")
    if OPT.get('asym'):
        a("s_add_u32 s48, s2, 2")
        a("s_bitcmp1_b32 s48, 2")
        a(f"s_cselect_b32 s{sAdj}, {OPT['asym']}, 0")
    sRdr, sCnt, sSmp = sWQ, 8, 7
    if OPT.get('GS'): a(f"s_mov_b32 s92, {OPT['GS'].split(',')[0].split(':')[1]}")
    if VA: va_setup()
    RDW = int(OPT.get('RDW', 1))
    if CT:
        a(f"s_mov_b32 s{sRdr}, s18")
        a(f"s_mov_b32 s{sRdr+1}, s19")
        a(f"s_cmp_eq_u32 s{sW}, {RDW}")
        a(f"s_cselect_b32 s{sRdr+2}, 0x{WS_SIZE:x}, 0")
        RDL = int(OPT.get('RDL', 1))
        a(f"s_mov_b32 s{sCnt}, 0x{CB + (8 - RDL)*CS:x}")
        a(f"s_bfe_u32 s48, s2, 0x{(SB_ << 16) | 4:x}")
        a(f"s_lshl_b32 s48, s48, 2")
        a(f"s_or_b32 s{sSmp}, s48, s{sW}")
    vL4, vSt, sSS, sD, sDl = 227, 226, 12, 10, 11
    if CT == 2:
        a(f"s_mov_b32 s{sSS}, s18")
        a(f"s_mov_b32 s{sSS+1}, s19")
        a("s_bfe_u32 s48, s2, 0x20003")
        a("s_mul_i32 s48, s48, 9")
        a("s_lshr_b32 s49, s2, 3")
        a("s_sub_u32 s48, s48, s49")
        a(f"s_sub_u32 s49, s{sW}, {OPT.get('SMW', 2)}")
        a("s_or_b32 s48, s48, s49")
        a(f"s_cselect_b32 s{sSS+2}, 0, 0x{WS_SIZE:x}")
        a(f"s_mov_b32 s{sSS+3}, 0x00020000")
        a(f"s_lshl_b32 s{sSmp}, s{sH}, {OPT.get('SLB', 2)}")
        a(f"s_add_u32 s{sSmp}, s{sSmp}, 0x{RDL*CS:x}")
        a(f"v_and_b32 v{vL4}, 31, v0")
        a(f"v_lshlrev_b32 v{vL4}, {OPT.get('SLB', 2)}, v{vL4}")
        a(f"s_mov_b32 s{sT}, 0")
        a(f"s_mov_b32 s{sD}, 0")
        a(f"s_mov_b32 s{sDl}, 0")
        for it_ in (OPT['DL'].split(',') if OPT.get('DL') else []):
            n_, d_ = it_.split(':')
            add(int(n_), (lambda d_=d_: a(f"s_mov_b32 s{sDl}, {d_}")))
    a.label("L_loop")
    a("s_memrealtime s[100:101]")
    if CT:
        a(f"ds_read_b64 v[250:251], v{vCntL} offset:24")
        a("s_waitcnt lgkmcnt(0)")
        a(f"v_readfirstlane_b32 s{sTau}, v251")
        a(f"v_readfirstlane_b32 s{sRef}, v250")
        a(f"s_sub_u32 s{sNow}, s100, s{sNon}")
        a(f"s_mul_i32 s48, s{sTau}, s{sIter}")
        a(f"s_add_u32 s{sRef}, s{sRef}, s48")
        if CT == 2: a(f"s_add_u32 s{sRef}, s{sRef}, s{sD}")
    else:
        a(f"s_add_u32 s{sRef}, s{sRef}, s{sTau}")
        a("s_waitcnt lgkmcnt(0)")
        a(f"s_sub_u32 s{sNow}, s100, s{sNon}")
    a(f"s_sub_i32 s{sAdj}, s{sNow}, s{sRef}")
    a(f"s_cmp_eq_u32 s{sTau}, 0")
    a(f"s_cselect_b32 s{sAdj}, {OPT.get('ADJ0', 0)}, s{sAdj}")
    GS = [t.split(':') for t in OPT['GS'].split(',')] if OPT.get('GS') else []
    sG = 92
    STASH = len(a.L)
    if STAMP and OPT.get('itst'):
        a("s_memrealtime s[68:69]")
        a("s_waitcnt lgkmcnt(0)")
        a(f"s_mov_b32 m0, s{sIter}")
        a("s_nop 0")
        a(f"v_writelane_b32 v255, s68, m0")
        a(f"s_add_u32 m0, s{sIter}, 32")
        a("s_nop 0")
        a(f"v_writelane_b32 v255, s{sAdj}, m0")
    if STAMP and OPT.get('lst'):
        for k, n in enumerate([int(t) for t in OPT['lst'].split(',')]):
            a(f"s_cmp_lg_u32 s{sIter}, {n}")
            a(f"s_cbranch_scc1 L_lst{k}")
            a.stamp(1 + k)
            a.label(f"L_lst{k}")
    if GS:
        a(f"s_mul_i32 s{sAdj}, s{sAdj}, s{sG}")
        a(f"s_ashr_i32 s{sAdj}, s{sAdj}, 8")
        for n_, g_ in GS[1:]: add(int(n_) - 1, (lambda g_=g_: a(f"s_mov_b32 s{sG}, {g_}")))
    if TH3:
        a(f"s_cmp_lt_i32 s{sAdj}, {-int(OPT.get('B2', 80))}")
        a("s_cbranch_scc1 L_b3")
    a(f"s_cmp_lt_i32 s{sAdj}, {-int(OPT.get('B1', 20))}")
    a("s_cbranch_scc1 L_b0")
    if TH2:
        a(f"s_cmp_gt_i32 s{sAdj}, {OPT.get('A2', 60)}")
        a("s_cbranch_scc1 L_b4")
        Ws = Ws + [W - 2, W + 2]
    a(f"s_cmp_gt_i32 s{sAdj}, {OPT.get('A1', 15)}")
    a("s_cbranch_scc1 L_b2")
    for k in ((1, 0, 3, 4, 2) if TH3 else (1, 0, 4, 2) if TH2 else (1, 0, 2)):
        a.label(f"L_b{k}")
        ml = MemSeq(a, pre_kv=8)
        rd = {}
        def ex_loop(k=k, ml=ml, rd=rd):
            if CT == 2:
                a(f"s_sub_u32 s48, s100, s{sD}")
                a(f"v_mov_b32 v{vSt}, s48")
                a(f"s_add_u32 s48, s{sCnt}, s{sSmp}")
                a("s_mov_b32 exec_hi, 0")
                rd['i'] = ml.issue(f"buffer_load_dword v{vTS}, v{vL4}, s[{sRdr}:{sRdr+3}], s{sCnt} offen sc1")
                a("s_mov_b32 exec_lo, 1")
                ml.issue(f"buffer_store_dword v{vSt}, off, s[{sSS}:{sSS+3}], s48 sc1")
                a("s_mov_b64 exec, -1")
                a(f"s_add_u32 s{sCnt}, s{sCnt}, 0x{CS:x}")
            if CT == 1:
                a("s_mov_b64 exec, 1")
                rd['i'] = ml.issue(f"buffer_load_dword v{vTS}, off, s[{sRdr}:{sRdr+3}], s{sCnt} sc1")
                a("s_mov_b64 exec, -1")
                a(f"s_add_u32 s{sCnt}, s{sCnt}, 0x{CS:x}")
                a(f"s_cmp_lg_u32 s{sSmp}, {OPT.get('SUB', 6)}")
                a(f"s_cbranch_scc1 L_ns{k}")
                a(f"s_min_u32 s{sT}, s{sNow}, 0x7fff")
                a(f"s_bitset1_b32 s{sT}, 23")
                a(f"s_atomic_add s{sT}, s[18:19], s{sCnt}")
                a.label(f"L_ns{k}")
            a(f"s_mov_b32 s{sWsel}, {k}")
            a(f"s_branch L_snip")
            a.label(f"L_ret{k}")
            for _ in range(NX): ml.issue(None)
        def hk(k=k, ml=ml, rd=rd):
            ml.wait_for(rd['i'])
            a(f"s_cmp_lg_u32 s{sW}, {RDW}")
            a(f"s_cbranch_scc1 L_hk{k}")
            if CT == 1:
                a(f"v_readfirstlane_b32 s48, v{vTS}")
                a("s_lshr_b32 s49, s48, 23")
                a(f"s_cselect_b32 s{sPrev}, s{sPrev}, 0")
                a(f"s_cbranch_scc0 L_hk{k}")
                a("s_and_b32 s48, s48, 0x7fffff")
                a(f"s_sub_u32 s49, {NS}, s49")
                a(f"s_mul_i32 s49, s49, s{sNow}")
                a("s_add_u32 s48, s48, s49")
                a(f"s_lshr_b32 s48, s48, {8 - SB_}")
            else:
                a(f"v_subrev_u32 v{vTS}, s{sNon}, v{vTS}")
                a(f"v_cmp_ge_u32 vcc, s{sNow}, v{vTS}")
                a(f"v_min_u32 v{vTS}, s{sNow}, v{vTS}")
                a("s_bcnt1_i32_b32 s49, vcc_lo")
                for sh in (1, 2, 4, 8):
                    a("s_nop 1")
                    a(f"v_add_u32_dpp v{vTS}, v{vTS}, v{vTS} row_shr:{sh} row_mask:0xf bank_mask:0xf bound_ctrl:0")
                a(f"s_cmp_ge_u32 s49, {OPT.get('CMIN', 8)}")
                a(f"s_cselect_b32 s{sPrev}, s{sPrev}, 0")
                a(f"s_cbranch_scc0 L_hk{k}")
                a(f"v_readlane_b32 s48, v{vTS}, 15")
                a(f"v_readlane_b32 s49, v{vTS}, 31")
                a("s_add_u32 s48, s48, s49")
                a("s_lshr_b32 s48, s48, 5")
            a(f"s_sub_u32 s49, s48, s{sPrev}")
            a(f"s_min_u32 s49, s49, {OPT.get('DMAX', 280)}")
            a(f"s_max_u32 s49, s49, {OPT.get('DMIN', 200)}")
            a(f"s_sub_i32 s49, s49, s{sTau}")
            a(f"s_ashr_i32 s49, s49, {OPT.get('TG', 1)}")
            a(f"s_cmp_eq_u32 s{sPrev}, 0")
            a("s_cselect_b32 s49, 0, s49")
            a(f"s_add_u32 s49, s49, s{sTau}")
            a(f"s_cmp_eq_u32 s{sTau}, 0")
            a(f"s_cselect_b32 s49, {OPT.get('TAU0', 228)}, s49")
            a(f"s_mov_b32 s{sPrev}, s48")
            a(f"v_mov_b32 v251, s49")
            a(f"s_sub_u32 s{sT}, s{sIter}, {RDL}")
            a(f"s_mul_i32 s49, s49, s{sT}")
            a(f"s_sub_u32 s48, s48, s49")
            a(f"v_mov_b32 v250, s48")
            a("s_mov_b64 exec, 1")
            a(f"ds_write_b64 v{vCntL}, v[250:251] offset:24")
            a("s_mov_b64 exec, -1")
            a.label(f"L_hk{k}")
        iteration(ml, list(range(8)), extras=ex_loop, W=Ws[k], hook={int(OPT.get('HK', 9)): hk} if CT else None)
        if CT == 2:
            a(f"s_add_u32 s{sD}, s{sD}, s{sDl}")
            a(f"s_mov_b32 s{sDl}, 0")
        a(f"s_add_u32 s{sIter}, s{sIter}, 1")
        a(f"s_cmp_lt_u32 s{sIter}, 31")
        a(f"s_cbranch_scc1 L_loop")
        if k != 2: a("s_branch L_last")
    a.label("L_last")
    if STAMP and OPT.get('itst'):
        a("s_memrealtime s[68:69]")
        a("s_waitcnt lgkmcnt(0)")
        a(f"v_writelane_b32 v255, s68, 31")
    ml = MemSeq(a, pre_kv=8)
    acc0, acc1 = vAcc, 200
    if E0:
        WL = int(OPT.get('WL', W))
        M0 = int(OPT.get('M0', 0))
        for s_ in range(8):
            ml.pace(WL)
            ld_V(ml, vr(bV + 4*s_), s_, sVoff)
            if s_ == 0: x_addr()
            if M0 <= s_ < M0 + 4:
                for q in (2*(s_ - M0), 2*(s_ - M0) + 1): frag_mfma(q, vB, q == 0, acc0)
            if s_ == M0 + 4 or (s_ == 7 and M0 + 4 > 7):
                a(f"s_cmp_lt_u32 s{sW}, 2")
                a("s_cbranch_scc1 L_e1")
                x_put(0, acc0)
                a.label("L_e1")
        ml.wait_for(7)
        p_QK(lambda j: vr(bK + 4*j))
        p_SM1(); p_SM2(); p_RS()
        for r in range(16):
            a(f"v_mov_b32 v{acc1 + r}, 0")
        a(f"s_cmp_ge_u32 s{sW}, 2")
        a("s_cbranch_scc1 L_e2")
        x_get(0, acc0, bK)
        a("s_waitcnt vmcnt(4)")
        a("s_branch L_e3")
        a.label("L_e2")
        a("s_waitcnt vmcnt(0)")
        a.label("L_e3")
        for c in range(4): p_PV(c)
    else:
        o0 = iteration(ml, list(range(8)), extras=x_addr, static_n=31, W=int(OPT.get('WL', W)),
                       kload=lambda m_, j: m_.issue(o_txt(j, 0, bK), kv=True))
    a.label("L_tail")
    if OPT.get('dbgt'):
        a("s_memrealtime s[100:101]")
        a("s_waitcnt lgkmcnt(0)")
        a(f"s_sub_u32 s78, s100, s{sNon}")
    a.stamp(7)
    TE = int(OPT.get('TE', 0))
    PL = int(OPT.get('PL', 0))
    acc0, acc1 = vAcc, 200
    TV = int(OPT.get('TV', 0))
    sDone = sWsel
    if TV:
        combine_addr(1, 8, 9)
        flush()
        a("s_waitcnt lgkmcnt(0)")
        a("s_barrier")
        if OPT.get('tst'): a.stamp(2)
        if TV & 2:
            for q in range(8): o_ld(q, 1, vB)
        a(f"s_cmp_ge_u32 s{sW}, 2")
        a("s_cbranch_scc1 L_t1b")
        combine(1, 8, 9, 10)
        if OPT.get('tst'): a.stamp(3)
        if not TV & 2:
            for q in range(8): o_ld(q, 1, vB)
        a("s_waitcnt vmcnt(9)")
        for q in range(8):
            frag_mfma(q, bK, q == 0, acc0)
        for r in range(16):
            a(f"v_mov_b32 v{acc1 + r}, 0")
        a(f"s_mov_b32 s{sDone}, 1")
        x_put(0, acc0)
        a(f"s_waitcnt vmcnt({1 if TV & 2 else 0})")
        a("s_branch L_t3")
        a.label("L_t1b")
        if OPT.get('tst'): a.stamp(3)
        if not TV & 2:
            for q in range(8): o_ld(q, 1, vB)
        a("s_waitcnt vmcnt(8)")
        for q in range(8):
            frag_mfma(q, bK, q == 0, acc0)
        for r in range(16):
            a(f"v_mov_b32 v{acc1 + r}, 0")
        a(f"s_mov_b32 s{sDone}, 0")
        a("s_waitcnt vmcnt(0)")
        a.label("L_t3")
        if OPT.get('tst'): a.stamp(4)
        a(f"s_mov_b32 s{sSpin}, {OPT.get('SPIN', '0x20000')}")
        a(f"s_mov_b32 s{sBad}, 15")
    else:
        if TE == 1:
            for q in range(8): o_ld(q, 1, vB)
        combine_addr(1, 8, 9)
        flush()
        a("s_waitcnt lgkmcnt(0)")
        a("s_barrier")
        if OPT.get('tst'): a.stamp(2)
        a(f"s_cmp_ge_u32 s{sW}, 2")
        a("s_cbranch_scc1 L_t1b")
        combine(1, 8, 9, 10)
        if OPT.get('tst'): a.stamp(3)
        if E0:
            a.label("L_t1b")
            for q in range(8): o_ld(q, 1, vB)
            a("s_waitcnt vmcnt(0)")
        else:
            a(f"s_waitcnt vmcnt({9 if TE == 1 else 0 if OPT.get('OA') else 1})")
            if TE == 3:
                for q in range(8): o_ld(q, 1, vB)
            a("s_branch L_t1")
            a.label("L_t1b")
            if OPT.get('tst'): a.stamp(3)
            a(f"s_waitcnt vmcnt({8 if TE == 1 else 0})")
            a.label("L_t1")
            if TE == 2:
                for q in range(8): o_ld(q, 1, vB)
            for q in range(8):
                frag_mfma(q, bK, q == 0, acc0)
            for r in range(16):
                a(f"v_mov_b32 v{acc1 + r}, 0")
            if TE == 0:
                for q in range(8): o_ld(q, 1, vB)
            a(f"s_cmp_lt_u32 s{sW}, 2")
            a("s_cbranch_scc1 L_t2")
            if TE == 3:
                for q in range(8): o_ld(q, 1, vB)
            if PL != 2: x_put(0, acc0)
            a("s_waitcnt vmcnt(0)")
            a("s_branch L_t3")
            a.label("L_t2")
            if not PL:
                x_get(0, acc0)
            if PL == 2: x_put(0, acc0)
            a(f"s_waitcnt vmcnt({0 if PL else 4})")
        a.label("L_t3")
        if OPT.get('tst'): a.stamp(4)
        a(f"s_mov_b32 s{sSpin}, {OPT.get('SPIN', '0x20000')}")
        a(f"s_mov_b32 s{sBad}, 15")
    a.label("L_retry")
    for gq in range(4):
        R = vB + 8*gq
        a(f"s_bitcmp1_b32 s{sBad}, {gq}")
        a(f"s_cbranch_scc0 L_rc{gq}")
        a(f"v_max3_u32 v8, v{R}, v{R+1}, v{R+2}")
        a(f"v_max3_u32 v9, v{R+3}, v{R+4}, v{R+5}")
        a(f"v_max3_u32 v8, v8, v{R+6}, v{R+7}")
        a(f"v_max_u32 v8, v8, v9")
        a("v_cmp_eq_u32 vcc, -1, v8")
        a(f"s_cbranch_vccnz L_bad{gq}")
        frag_mfma(2*gq, vB, False, acc1)
        frag_mfma(2*gq + 1, vB, False, acc1)
        a(f"s_bitset0_b32 s{sBad}, {gq}")
        a.label(f"L_rc{gq}")
    a(f"s_cmp_eq_u32 s{sBad}, 0")
    a("s_cbranch_scc1 L_alldone")
    if TV:
        a(f"s_cmp_eq_u32 s{sDone}, 0")
        a("s_cbranch_scc1 L_g0")
    a(f"s_sub_u32 s{sSpin}, s{sSpin}, 1")
    a("s_waitcnt vmcnt(0)")
    a(f"s_cmp_lg_u32 s{sSpin}, 0")
    a("s_cbranch_scc1 L_retry")
    a.label("L_alldone")
    if OPT.get('tst') and STAMP: a(f"s_mov_b32 s76, s{sSpin}")
    if OPT.get('tst'): a.stamp(5)
    a(f"s_cmp_ge_u32 s{sW}, 2")
    a("s_cbranch_scc1 L_t4")
    RV = int(OPT.get('RV', 0))
    x_get(1, acc1)
    if PL == 1: x_get(0, acc0)
    a.stamp(8)
    if RV == 1:
        if PL == 1:
            a("s_waitcnt vmcnt(4)")
            a(f"s_cmp_eq_u32 s{sW}, 1")
            a("s_cbranch_scc1 L_r1d")
        a("s_waitcnt vmcnt(0)")
        a("s_branch L_r1d")
    elif RV == 3:
        a(f"s_cmp_eq_u32 s{sW}, 0")
        a("s_cbranch_scc1 L_fin")
        a("s_waitcnt vmcnt(0)")
        a("s_branch L_r1d")
    else:
        a("s_branch L_fin")
    a.label("L_t4")
    x_put(1, acc1)
    if PL == 2: x_get(0, acc0)
    if TV:
        a(f"s_cmp_lg_u32 s{sDone}, 0")
        a("s_cbranch_scc1 L_g1")
        x_get(0, acc0)
        a.label("L_g1")
    a.stamp(8)
    if RV == 1:
        a("s_branch L_fin")
    if RV == 3:
        a(f"s_cmp_eq_u32 s{sW}, 3")
        a("s_cbranch_scc1 L_fin")
    if RV in (2, 4):
        a(f"s_cmp_eq_u32 s{sW}, 3")
        a("s_cbranch_scc1 L_fin")
        a(f"s_mov_b32 s{sIter}, 0")
    def claim():
        a("s_mov_b64 exec, 1")
        a(f"ds_add_rtn_u32 v{vCntG}, v{vCntL}, v{vOne} offset:8")
        a("s_mov_b64 exec, -1")
        a("s_waitcnt lgkmcnt(0)")
        a(f"v_readfirstlane_b32 s48, v{vCntG}")
        a("s_cmp_lg_u32 s48, 0")
        a("s_cbranch_scc1 L_fin")
    if RV == 5:
        a(f"s_mov_b32 s{sIter}, 0")
        a(f"s_cmp_eq_u32 s{sW}, 2")
        a("s_cbranch_scc1 L_r1d")
        a("s_memrealtime s[100:101]")
        a(f"s_add_u32 s48, s{sRef}, s{sTau}")
        a(f"s_add_u32 s48, s48, s{sNon}")
        a(f"s_mov_b32 s{sIter}, 1")
        a("s_waitcnt lgkmcnt(0)")
        a("s_sub_u32 s48, s100, s48")
        a(f"s_cmp_lt_i32 s48, {OPT.get('LT', 405)}")
        a("s_cbranch_scc1 L_fin")
        claim()
    if OPT.get('R0D'): a(f"s_sleep {OPT['R0D']}")
    if OPT.get('R1D'):
        a(f"s_cmp_eq_u32 s{sW}, 2")
        a("s_cbranch_scc1 L_r1d")
        a(f"s_sleep {OPT['R1D']}")
    a.label("L_r1d")
    if STAMP and OPT.get('rst'):
        a.stamp(4)
        a("s_mov_b32 s76, 0")
        a("s_mov_b32 s75, -1")
    if OPT.get('RXD'): a(f"s_sleep {OPT['RXD']}")
    for gg in range(8):
        p_ld(gg, 0, bK)
    a.label("L_red")
    a(f"s_mov_b32 s{sSelLo}, 0x0c0c0400")
    a(f"s_mov_b32 s{sSelHi}, 0x04000c0c")
    a(f"s_mov_b32 s{sC}, 0xffffff00")
    def reduce(ph, R, firstwait):
        lc, lo = a.newlabel("c"), a.newlabel("o")
        a(f"s_mov_b32 s{sBad}, 0xff")
        a(f"s_mov_b32 s{sSpin}, {OPT.get('SPIN', '0x20000')}")
        if firstwait is not None: a(f"s_waitcnt vmcnt({firstwait})")
        a.label(lc)
        for gg in range(8):
            ln = a.newlabel("n")
            a(f"s_bitcmp1_b32 s{sBad}, {gg}")
            a(f"s_cbranch_scc0 {ln}")
            a(f"v_perm_b32 v8, v{R+4*gg+1}, v{R+4*gg}, s{sSelLo}")
            a(f"v_perm_b32 v9, v{R+4*gg+3}, v{R+4*gg+2}, s{sSelHi}")
            a("v_or_b32 v8, v8, v9")
            a(f"v_cmp_ne_u32 vcc, s{sTag}, v8")
            a(f"s_cbranch_vccnz {ln}x")
            a(f"s_bitset0_b32 s{sBad}, {gg}")
            for r in range(4):
                a(f"v_and_b32 v{R+4*gg+r}, s{sC}, v{R+4*gg+r}")
            a(f"s_branch {ln}")
            a.label(ln + "x")
            if STAMP and OPT.get('rst'): a("s_add_u32 s76, s76, 1")
            p_ld(gg, ph, R)
            a.label(ln)
        if STAMP and OPT.get('rst'):
            a("s_cmp_eq_u32 s75, -1")
            a("s_cselect_b32 s75, s76, s75")
        a(f"s_cmp_eq_u32 s{sBad}, 0")
        a(f"s_cbranch_scc1 {lo}")
        a(f"s_sub_u32 s{sSpin}, s{sSpin}, 1")
        a("s_waitcnt vmcnt(0)")
        if OPT.get('SL2'): a(f"s_sleep {OPT['SL2']}")
        a(f"s_cmp_lg_u32 s{sSpin}, 0")
        a(f"s_cbranch_scc1 {lc}")
        a.label(lo)
        for (x, y) in ((0, 1), (2, 3), (4, 5), (6, 7), (0, 2), (4, 6), (0, 4)):
            for r in range(4):
                a(f"v_add_f32 v{R + 4*x + r}, v{R + 4*x + r}, v{R + 4*y + r}")
        a(f"v_cvt_pk_bf16_f32 v{R+4}, v{R}, v{R+1}")
        a(f"v_cvt_pk_bf16_f32 v{R+5}, v{R+2}, v{R+3}")
        a(f"buffer_store_dwordx2 v[{R+4}:{R+5}], v{vOut}, s[{sOUT}:{sOUT+3}], s{sOutB} offen{OPT.get('outflag','')}")
    a(f"s_mov_b32 s{sSpin}, {OPT.get('SPIN', '0x20000')}")
    if RV == 4:
        a(f"s_waitcnt vmcnt({OPT.get('R4', 0)})")
        a(f"s_add_u32 s{sPld}, s{sPld}, s{sPd}")
        for gg in range(8):
            p_ld(gg, 1, bV)
        a(f"s_sub_u32 s{sPld}, s{sPld}, s{sPd}")
        reduce(0, bK, 8)
        a(f"s_add_u32 s{sPld}, s{sPld}, s{sPd}")
        a(f"s_add_u32 s{sOutB}, s{sOutB}, 0x20000")
        reduce(1, bV, 1)
    else:
        reduce(0, bK, 0)
    if RV == 2:
        a(f"s_add_u32 s{sPld}, s{sPld}, s{sPd}")
        a(f"s_add_u32 s{sOutB}, s{sOutB}, 0x20000")
        a(f"s_add_u32 s{sIter}, s{sIter}, 1")
        a(f"s_cmp_eq_u32 s{sIter}, 1")
        a("s_nop 1")
        a("s_cbranch_scc1 L_r1d")
    if RV == 5:
        a(f"s_cmp_lg_u32 s{sIter}, 0")
        a("s_cbranch_scc1 L_fin")
        a(f"s_add_u32 s{sPld}, s{sPld}, s{sPd}")
        a(f"s_add_u32 s{sOutB}, s{sOutB}, 0x20000")
        a(f"s_mov_b32 s{sIter}, 1")
        claim()
        a("s_branch L_r1d")
    a.label("L_fin")
    if OPT.get('dbgt'):
        a("s_memrealtime s[100:101]")
        a("s_mov_b32 s80, s16")
        a("s_mov_b32 s81, s17")
        a("s_mov_b32 s82, 256")
        a("s_mov_b32 s83, 0x00020000")
        a("s_waitcnt lgkmcnt(0)")
        a(f"s_sub_u32 s48, s100, s{sNon}")
        a("v_mov_b32 v8, s48")
        a("v_mov_b32 v9, s78")
        a("s_mov_b64 exec, 1")
        a("buffer_atomic_umax v8, off, s[80:83], 0 offset:4 sc1")
        a("buffer_atomic_umax v9, off, s[80:83], 0 offset:8 sc1")
        a("buffer_atomic_add v9, off, s[80:83], 0 offset:12 sc1")
    a.stamp(9)
    a.stamp_store(18, 0x200000, 10)
    if STAMP and OPT.get('itst'):
        a("s_lshl_b32 s92, s2, 2")
        a("s_add_u32 s92, s92, s40")
        a("s_lshl_b32 s92, s92, 8")
        a("s_add_u32 s92, s92, 0x220000")
        a("v_and_b32 v250, 63, v0")
        a("v_lshlrev_b32 v250, 2, v250")
        a("buffer_store_dword v255, v250, s[88:91], s92 offen")
    a.label("L_end")
    a("s_endpgm")
    if TV:
        a.label("L_g0")
        x_get(0, acc0)
        a(f"s_mov_b32 s{sSpin}, {OPT.get('SPIN', '0x20000')}")
        a(f"s_mov_b32 s{sDone}, 1")
        a("s_waitcnt vmcnt(4)")
        a("s_branch L_retry")
    for gq in range(4):
        a.label(f"L_bad{gq}")
        if OPT.get('SL1'): a(f"s_sleep {OPT['SL1']}")
        o_ld(2*gq, 1, vB)
        o_ld(2*gq + 1, 1, vB)
        a(f"s_branch L_rc{gq}")
    a.label("L_snip")
    for tab in ("A",):
        a.label(f"L_snip{tab}")
        for n in sorted(sn):
            items = [(f, v) for f, v, act in sn[n] if (act is False) or (act is True and tab == "A") or (act == 'I' and tab == "I")]
            if not items: continue
            a(f"s_cmp_lg_u32 s{sIter}, {n}")
            a(f"s_cbranch_scc1 L_sn{tab}{n}x")
            nv = sum(v for _, v in items)
            assert nv <= NX, (n, nv)
            dummy(NX - nv)
            for f, _ in items: f()
            a(f"s_branch L_snret")
            a.label(f"L_sn{tab}{n}x")
        dummy(NX)
    a.label("L_snret")
    a(f"s_cmp_eq_u32 s{sWsel}, 1")
    a("s_cbranch_scc1 L_ret1")
    a(f"s_cmp_eq_u32 s{sWsel}, 0")
    a("s_cbranch_scc1 L_ret0")
    if TH3:
        a(f"s_cmp_eq_u32 s{sWsel}, 3")
        a("s_cbranch_scc1 L_ret3")
    if TH2:
        a(f"s_cmp_eq_u32 s{sWsel}, 4")
        a("s_cbranch_scc1 L_ret4")
    a("s_branch L_ret2")

def kd(a, name):
    a.raw(".p2align 6")
    a.raw(f".amdhsa_kernel {name}")
    a.raw("  .amdhsa_next_free_vgpr 512")
    a.raw("  .amdhsa_next_free_sgpr 102")
    a.raw("  .amdhsa_accum_offset 256")
    a.raw("  .amdhsa_group_segment_fixed_size 0")
    a.raw("  .amdhsa_kernarg_size 64")
    a.raw("  .amdhsa_user_sgpr_count 2")
    a.raw("  .amdhsa_user_sgpr_kernarg_segment_ptr 1")
    a.raw("  .amdhsa_system_sgpr_workgroup_id_x 1")
    a.raw(".end_amdhsa_kernel")

def main(path):
    a = Asm()
    a.raw(HEADER.rstrip())
    a.raw(f"; @launch grid=(256,1,1) block=(256,1,1) lds={LDS_SIZE}")
    a.raw('.amdgcn_target "amdgcn-amd-amdhsa--gfx950"')
    a.raw(".text")
    gen_k1(a)
    a.raw('.section .rodata,"a"')
    kd(a, K1)
    open(path, "w").write(a.text())

if __name__ == "__main__":
    args = sys.argv[1:]
    if "--stamp" in args:
        STAMP = True
        args.remove("--stamp")
    rest = []
    for x in args:
        if "=" in x:
            k, v = x.split("=", 1)
            OPT[k] = v.replace("+", " ")
        else:
            rest.append(x)
    main(rest[0] if rest else "standalone__mha_block_cached__sampling.s")
```
